```python
import torch

def _softmax(x, axis=-1):
    return torch.softmax(x, dim=axis)
def _gelu(x):
    return torch.nn.functional.gelu(x, approximate="tanh")
def _silu(x):
    return torch.nn.functional.silu(x)
def _sigmoid(x):
    return torch.sigmoid(x)
def _layernorm(x, axis=-1, eps=1e-5):
    m = x.mean(dim=axis, keepdim=True)
    v = x.var(dim=axis, keepdim=True, unbiased=False)
    return (x - m) / torch.sqrt(v + eps)
def _scatter_add(tgt, idx, src, axis=0):
    return tgt.clone().index_add_(axis, idx, src)
def _segment_sum(src, seg, n):
    out = torch.zeros((n,) + src.shape[1:], dtype=src.dtype)
    return out.index_add_(0, seg, src)
def _pad(x, pw):
    flat = tuple(v for pair in reversed(pw) for v in pair)
    return torch.nn.functional.pad(x, flat)

kernel_name = 'sequential_preLN__sliding_block_cached__swiglu_ffn__decode'

def setup_inputs():

    _w = (lambda a: (lambda t: t.to(torch.bfloat16) if t.is_floating_point() else t)(torch.as_tensor(a)))
    def _A_setup():
        B, Sq, D = 4, 1, 512
        Hq, Hkv, Sk, Dh = 32, 8, 16384, 128
        assert Hq % Hkv == 0, (Hq, Hkv)
        return {
            "x": _w((lambda *s: torch.randn(*s, dtype=torch.bfloat16) * 0.05)(B, Sq, D)),
            "k_cache": _w((lambda *s: torch.randn(*s, dtype=torch.bfloat16) * 3.2)(B, Hkv, Sk, Dh)),
            "v_cache": _w((lambda *s: torch.randn(*s, dtype=torch.bfloat16) * 0.4)(B, Hkv, Sk, Dh)),
            "wq": _w((lambda *s: torch.randn(*s, dtype=torch.bfloat16) * 3.2)(D, Hq * Dh) * (D ** -0.5)),
            "wo": _w((lambda *s: torch.randn(*s, dtype=torch.bfloat16) * 0.4)(Hq * Dh, D) * ((Hq * Dh) ** -0.5)),
        }
    _A_in = _A_setup()

    def _B_setup():
        B, S, D, F = 4, 1, 512, 1792
        return {
            "x": _w((lambda *s: torch.randn(*s, dtype=torch.bfloat16) * 0.05)(B, S, D)),
            "w_gate": _w((lambda *s: torch.randn(*s, dtype=torch.bfloat16) * 0.05)(D, F)),
            "w_up": _w((lambda *s: torch.randn(*s, dtype=torch.bfloat16) * 0.05)(D, F)),
            "w_down": _w((lambda *s: torch.randn(*s, dtype=torch.bfloat16) * 0.05)(F, D)),
        }
    _B_in = _B_setup()

    return {
        "A_x": _A_in["x"],
        "A_k_cache": _A_in["k_cache"],
        "A_v_cache": _A_in["v_cache"],
        "A_wq": _A_in["wq"],
        "A_wo": _A_in["wo"],
        "B_x": _B_in["x"],
        "B_w_gate": _B_in["w_gate"],
        "B_w_up": _B_in["w_up"],
        "B_w_down": _B_in["w_down"],
    }

def reference(A_x, A_k_cache, A_v_cache, A_wq, A_wo, B_x, B_w_gate, B_w_up, B_w_down):
    def _A_ref(x, k_cache, v_cache, wq, wo):
        B, Sq, D = x.shape
        Hq, Dh = 32, 128
        Hkv, Sk = k_cache.shape[1], k_cache.shape[2]
        W = min(4096, max(256, Sk // 4))
        rep = Hq // Hkv
        q = (lambda x, *d: x.permute(*d))((x @ wq).reshape(B, Sq, Hq, Dh), 0, 2, 1, 3)
        k = (lambda x, n, axis: torch.repeat_interleave(x, n, dim=axis))(k_cache[:, :, Sk - W:, :], rep, axis=1)
        v = (lambda x, n, axis: torch.repeat_interleave(x, n, dim=axis))(v_cache[:, :, Sk - W:, :], rep, axis=1)
        scores = torch.einsum("bhqd,bhkd->bhqk", q, k) * (Dh ** -0.5)
        p = _softmax(scores, axis=-1)
        o = torch.einsum("bhqk,bhkd->bhqd", p, v)
        return (lambda x, *d: x.permute(*d))(o, 0, 2, 1, 3).reshape(B, Sq, Hq * Dh) @ wo

    def _B_ref(x, w_gate, w_up, w_down):
        g = _silu(x @ w_gate)
        u = x @ w_up
        return (g * u) @ w_down

    x = A_x
    h = x + _A_ref(_layernorm(x, axis=-1), A_k_cache, A_v_cache, A_wq, A_wo)
    h2 = h + _B_ref(_layernorm(h, axis=-1), B_w_gate, B_w_up, B_w_down)
    return h2
```

```python
import re

_REG = re.compile(r"\b([vsa])(\d+)\b|\b([vsa])\[(\d+):(\d+)\]|\b(vcc|exec|m0)\b")
TRANS = ("v_exp_", "v_log_", "v_rcp_", "v_rsq_", "v_sqrt_", "v_sin_", "v_cos_")


def regs_of(text):
    out = set()
    for m in _REG.finditer(text):
        if m.group(1):
            out.add((m.group(1), int(m.group(2))))
        elif m.group(3):
            for i in range(int(m.group(4)), int(m.group(5)) + 1):
                out.add((m.group(3), i))
        else:
            out.add((m.group(6), 0))
    return out


def split_ops(s):
    ops, depth, cur = [], 0, ""
    for ch in s:
        if ch in "[(":
            depth += 1
        if ch in "])":
            depth -= 1
        if ch == "," and depth == 0:
            ops.append(cur.strip())
            cur = ""
        else:
            cur += ch
    if cur.strip():
        ops.append(cur.strip())
    return ops


class Ins:
    def __init__(self, text):
        self.text = text
        body = text.split(";")[0].strip()
        self.label = body[:-1] if body.endswith(":") else None
        self.is_code = bool(body) and self.label is None and not body.startswith(".")
        self.op = ""
        self.w, self.r = set(), set()
        self.srcab, self.srcc, self.data = set(), set(), set()
        self.kind = None
        self.states = 1
        if not self.is_code:
            self.states = 0
            return
        parts = body.split(None, 1)
        op = self.op = parts[0]
        ops = split_ops(parts[1]) if len(parts) > 1 else []
        self.ops = ops
        R = regs_of
        if op == "s_nop":
            self.kind = "salu"
            self.states = int(ops[0], 0) + 1
        elif op.startswith(("v_mfma", "v_smfmac")):
            self.kind = "mfma"
            self.w = R(ops[0])
            self.srcab = R(ops[1]) | R(ops[2])
            last = ops[3].split()[0]
            if op.startswith("v_smfmac"):
                self.srcc = set(self.w)
                self.srcab |= R(last)
            else:
                self.srcc = R(last)
            self.r = self.srcab | self.srcc
            self.passes = 8 if "32x32" in op else 4
        elif op.startswith("v_"):
            self.kind = "valu"
            self.dpp = any(k in body for k in ("row_", "quad_perm", "wave_"))
            self.trans = op.startswith(TRANS)
            self.dot = op.startswith("v_dot")
            self.sdwa_or_opsel = "dst_sel:WORD" in body or "dst_sel:BYTE" in body
            if op.startswith("v_permlane"):
                self.w = R(ops[0]) | R(ops[1])
                self.r = set(self.w)
            elif op.startswith("v_cmpx"):
                self.w = R(ops[0]) | {("exec", 0)}
                self.r = set().union(*[R(o) for o in ops[1:]])
            elif op.startswith(("v_add_co", "v_sub_co", "v_addc_co", "v_subb_co", "v_div_scale", "v_mad_u64")):
                self.w = R(ops[0]) | R(ops[1])
                self.r = set().union(*[R(o) for o in ops[2:]])
            else:
                self.w = R(ops[0])
                self.r = set().union(*[R(o) for o in ops[1:]]) if len(ops) > 1 else set()
                if op.startswith(("v_fmac", "v_dot2c", "v_writelane", "v_pk_fmac")) or self.dpp:
                    self.r |= self.w
        elif op.startswith(("buffer_", "global_")):
            self.kind = "vmem"
            self.lds = bool(re.search(r"\blds\b", body))
            allr = [R(o) for o in ops]
            if op.startswith(("buffer_wbl2", "buffer_inv")):
                pass
            elif "load" in op and not self.lds:
                self.w = allr[0]
                self.r = set().union(*allr[1:])
            else:
                self.r = set().union(*allr)
                if self.lds:
                    self.r.add(("m0", 0))
                elif op.startswith("buffer_"):
                    self.data = allr[0]
                else:
                    self.data = allr[1]
            self.wide = op.endswith(("x3", "x4")) and "store" in op
        elif op.startswith("ds_"):
            self.kind = "ds"
            allr = [R(o) for o in ops]
            if "read" in op or "permute" in op or "swizzle" in op:
                self.w = allr[0]
                self.r = set().union(*allr[1:])
            else:
                self.r = set().union(*allr)
        elif op.startswith("s_"):
            self.kind = "salu"
            nodst = ("s_cmp", "s_cbranch", "s_branch", "s_waitcnt", "s_barrier", "s_endpgm", "s_sleep",
                     "s_setprio", "s_bitcmp", "s_setpc")
            if op.startswith(nodst):
                self.r = set().union(*[R(o) for o in ops]) if ops else set()
            else:
                self.w = R(ops[0])
                self.r = set().union(*[R(o) for o in ops[1:]]) if len(ops) > 1 else set()
                if op.startswith(("s_addk", "s_mulk")):
                    self.r |= self.w
                if "saveexec" in op:
                    self.w.add(("exec", 0))
        else:
            raise ValueError("unparsed: " + text)


def vg(s):
    return {x for x in s if x[0] in "va" and len(x[0]) == 1}


def sg(s):
    return {x for x in s if x[0] in ("s", "vcc")}


def need(p, c):
    n = 0
    if p.kind == "valu":
        pv, ps = vg(p.w), sg(p.w)
        if c.kind == "mfma":
            if pv & c.r:
                n = max(n, 3 if p.dot else 2)
            if ("exec", 0) in p.w:
                n = max(n, 4)
        if c.kind == "valu":
            if c.dpp and pv & c.r:
                n = max(n, 2)
            if c.dpp and ("exec", 0) in p.w:
                n = max(n, 5)
            if c.op.startswith("v_permlane"):
                if pv & c.r:
                    n = max(n, 2)
                if ("exec", 0) in p.w:
                    n = max(n, 4)
            if c.op.startswith(("v_readlane", "v_readfirstlane")):
                if pv & c.r:
                    n = max(n, 1)
                if ("exec", 0) in p.w:
                    n = max(n, 4)
            if c.op.startswith(("v_readlane", "v_writelane")) and ps & c.r:
                n = max(n, 4)
            if ps & c.r:
                n = max(n, 2)
            if c.op.startswith("v_div_fmas") and ("vcc", 0) in p.w:
                n = max(n, 4)
            if p.trans and pv & c.r:
                n = max(n, 1)
            if p.sdwa_or_opsel and pv & (c.r | c.w):
                n = max(n, 1)
            if p.dot and pv & (c.r | c.w) and not (c.op == p.op and not (pv & (regs_of(c.ops[1]) | regs_of(c.ops[2])))):
                n = max(n, 3)
        if c.kind == "vmem" and ps & c.r:
            n = max(n, 5)
        if c.kind in ("vmem", "ds") and p.dot and pv & c.r:
            n = max(n, 3)
        if c.kind in ("vmem", "ds") and p.trans and pv & c.r:
            n = max(n, 1)
        if c.kind == "salu" and ps & c.r and not c.op.startswith("s_cbranch"):
            n = max(n, 1)
    if p.kind == "salu":
        if ("m0", 0) in p.w and c.kind == "vmem" and ("m0", 0) in c.r:
            n = max(n, 1)
    if p.kind == "mfma":
        big = {4: 8, 8: 12}[p.passes]
        if c.kind == "mfma":
            if p.w & c.srcab:
                n = max(n, big)
            if p.w & c.srcc:
                same = p.w == c.srcc and p.op == c.op
                if not same:
                    n = max(n, big - 2)
            elif p.w & c.w:
                n = max(n, big)
        elif c.kind in ("valu", "vmem", "ds"):
            if p.w & (c.r | c.w):
                n = max(n, big)
            if c.kind == "valu" and p.srcc & c.w:
                n = max(n, {4: 3, 8: 7}[p.passes])
    if p.kind == "vmem" and getattr(p, "wide", False):
        if c.kind in ("valu", "mfma") and p.data & c.w:
            n = max(n, 2)
        elif p.data & c.w:
            n = max(n, 1)
    return n


MAXD = 13


def insert_waits(lines):
    ins = [Ins(t) for t in lines]
    total = 0
    start = 0
    while True:
        labels = {x.label: i for i, x in enumerate(ins) if x.label}
        jumps = {}
        for i, x in enumerate(ins):
            if x.is_code and x.op.startswith(("s_branch", "s_cbranch")):
                jumps.setdefault(labels[x.ops[0]], []).append(i)

        def preds(i):
            out = list(jumps.get(i, []))
            if i > 0 and not (ins[i - 1].is_code and ins[i - 1].op in ("s_branch", "s_endpgm")):
                out.append(i - 1)
            return out

        fix = None
        for i in range(start, len(ins)):
            c = ins[i]
            if not c.is_code or c.op == "s_nop":
                continue
            short = 0
            stack = [(j, 0) for j in preds(i)]
            seen = {}
            while stack:
                j, d = stack.pop()
                if seen.get(j, 99) <= d:
                    continue
                seen[j] = d
                p = ins[j]
                if p.is_code:
                    short = max(short, need(p, c) - d)
                nd = d + p.states
                if nd < MAXD:
                    stack += [(k, nd) for k in preds(j)]
            if short > 0:
                fix = (i, short)
                break
        if fix is None:
            break
        i, short = fix
        ins.insert(i, Ins(f"s_nop {short - 1}"))
        start = i
        total += 1
    return [x.text for x in ins], total


class Asm:
    def __init__(self):
        self.lines = []
        self.uid = 0

    def __call__(self, s):
        for t in s.split("\n"):
            t = t.strip()
            if t:
                self.lines.append(t)

    def c(self, s):
        self.lines.append("; " + s)

    def label(self, stem):
        self.uid += 1
        return f"L_{stem}_{self.uid}"


def vr(a, n=1):
    return f"v{a}" if n == 1 else f"v[{a}:{a + n - 1}]"


def sr(a, n=1):
    return f"s{a}" if n == 1 else f"s[{a}:{a + n - 1}]"
```

```python
import sys
sys.path.insert(0, "exp")
from asmlib import Asm, vr, sr, insert_waits

NAME = "sequential_preLN__sliding_block_cached__swiglu_ffn__decode_kernel"
HEADER = open("sequential_preLN__sliding_block_cached__swiglu_ffn__decode.s.ref").read().split("; Override launch")[0]

QP, YBUF, ZBUF, HBUF, HSTAT, EPOCH, OBUF, STAMPS = 0x0, 0x40000, 0x80000, 0xc0000, 0xc1000, 0xc2000, 0xc4000, 0x180000
VERSION = 3
REC = 2176
WS_SIZE = 0x200000
FLAG_OFF = 0

S_X, S_WQ, S_WS, S_WST, S_A, S_B, S_WG, S_WU, S_OUT, S_DBG = 28, 32, 36, 40, 44, 48, 52, 56, 60, 64
sW, sXI, sT, sLIM, sCNT, sPASS, sFAST, sLB, sT0, sNT = 68, 69, 70, 71, 72, 73, 74, 75, 76, 77
sA, sB, sC, sD = 78, 79, 80, 81
sSELLO, sSELHI, sREC, sTAG = 82, 83, 84, 85
sSTR = 3
sMASK = 4
sTB = 12
sST = 86
vL, vN, vG = 1, 2, 3
vFF = 255
QL, ML, LL, PB = 151552, 152576, 152640, 153600


def gen(tailx=7, kvflags="nt", wqflags="nt", woflags="nt", guflags="nt", wdflags="nt", stamps=False, force_slow=False,
        dry=False, limit=0x40000, window=6, kprio=0):
    A = Asm()

    def stamp(i):
        if stamps:
            A(f"s_memrealtime {sr(sST + 2 * i, 2)}")

    def srd(base, ptr, size):
        A(f"s_mov_b32 s{base}, s{ptr}")
        A(f"s_mov_b32 s{base + 1}, s{ptr + 1}")
        A(f"s_mov_b32 s{base + 2}, {size:#x}")
        A(f"s_mov_b32 s{base + 3}, 0x20000")

    def rb(dst, src):
        A(f"v_cvt_pk_bf16_f32 v{dst}, v{src}, v{src}")
        A(f"v_lshlrev_b32 v{dst}, 16, v{dst}")

    def allred_rows(op, v, t):
        A(f"v_mov_b32 v{t}, v{v}")
        A(f"v_permlane32_swap_b32 v{v}, v{t}")
        A(f"{op} v{v}, v{v}, v{t}")
        A(f"v_mov_b32 v{t}, v{v}")
        A(f"v_permlane16_swap_b32 v{v}, v{t}")
        A(f"{op} v{v}, v{v}, v{t}")

    def dpp_red(op, regs, rots):
        for r in rots:
            for v in regs:
                A(f"{op}_dpp v{v}, v{v}, v{v} row_ror:{r} row_mask:0xf bank_mask:0xf")

    def rows_to_batches(D):
        A(f"v_permlane32_swap_b32 v{D}, v{D + 2}")
        A(f"v_permlane32_swap_b32 v{D + 1}, v{D + 3}")
        A(f"v_add_f32 v{D}, v{D}, v{D + 2}")
        A(f"v_add_f32 v{D + 1}, v{D + 1}, v{D + 3}")
        A(f"v_permlane16_swap_b32 v{D}, v{D + 1}")
        A(f"v_add_f32 v{D}, v{D}, v{D + 1}")

    def fold_d(D):
        for rho in (1, 2, 3):
            for r in range(4):
                A(f"v_mov_b32_dpp v{D + r}, v{D + 4 * rho + r} quad_perm:[0,1,2,3] row_mask:{1 << rho:#x} bank_mask:0xf")
        rows_to_batches(D)

    def mfma16(D, Areg, Breg, first):
        c = "0" if first else vr(D, 4)
        A(f"v_mfma_f32_16x16x32_bf16 {vr(D, 4)}, {vr(Areg, 4)}, {vr(Breg, 4)}, {c}")

    def sentinel_check(regs, t):
        regs = list(regs)
        if len(regs) % 2 == 0:
            A(f"v_max_u32 v{t}, v{regs[0]}, v{regs[1]}")
            rest = regs[2:]
        else:
            A(f"v_max3_u32 v{t}, v{regs[0]}, v{regs[1]}, v{regs[2]}")
            rest = regs[3:]
        for i in range(0, len(rest), 2):
            A(f"v_max3_u32 v{t}, v{t}, v{rest[i]}, v{rest[i + 1]}")
        A(f"v_cmp_eq_u32 vcc, -1, v{t}")

    def tag_check(regs, tags, t):
        regs = list(regs)
        for i, r in enumerate(regs):
            A(f"v_xor_b32 v{r}, {tags[i % len(tags)]}, v{r}")
        A(f"v_or_b32 v{t}, v{regs[0]}, v{regs[1]}")
        for i in range(2, len(regs), 2):
            A(f"v_or3_b32 v{t}, v{t}, v{regs[i]}, v{regs[i + 1]}")
        A(f"v_and_b32 v{t}, 0xff, v{t}")
        A(f"v_cmp_ne_u32 vcc, 0, v{t}")

    TAGS = [f"s{sTB + i}" for i in range(4)]

    def tag_put(D):
        for i in range(4):
            A(f"v_bfi_b32 v{D + i}, v{vFF}, s{sTB + i}, v{D + i}")

    def poll(loads, check, wait="s_waitcnt vmcnt(0)", sleep=0):
        top, out = A.label("poll"), A.label("polled")
        A(f"s_mov_b32 s{sCNT}, 0")
        A(f"{top}:")
        for l in loads:
            A(l)
        A(f"s_add_u32 s{sCNT}, s{sCNT}, 1")
        A(f"s_cmp_ge_u32 s{sCNT}, s{sLIM}")
        A(wait)
        check()
        A(f"s_cbranch_scc1 {out}")
        if sleep:
            A(f"s_cbranch_vccz {out}")
            A(f"s_sleep {sleep}")
            A(f"s_branch {top}")
        else:
            A(f"s_cbranch_vccnz {top}")
        A(f"{out}:")

    def make_tag():
        A("s_waitcnt lgkmcnt(0)")
        A(f"s_add_u32 s{sTAG}, s{sTAG}, 0x9e3779b1")
        for i in range(4):
            A(f"s_bfe_u32 s{sTB + i}, s{sTAG}, {0x80000 + 8 * i:#x}")

    def set_masks():
        for i in range(4):
            A(f"s_mov_b32 s{sMASK + 2 * i}, {0x000f000f << (4 * i):#x}")
            A(f"s_mov_b32 s{sMASK + 2 * i + 1}, {0x000f000f << (4 * i):#x}")

    def store_mode(texts):
        slow, done = A.label("slow"), A.label("stored")
        A(f"s_cmp_eq_u32 s{sFAST}, 0")
        A(f"s_cbranch_scc1 {slow}")
        for t in texts:
            A(t)
        A(f"s_branch {done}")
        A(f"{slow}:")
        for t in texts:
            A(t + " sc1" if t.startswith("buffer_") else t)
        A(f"{done}:")

    def line_tile_addr(dst, base_s, t1, t2):
        A(f"v_bfe_u32 v{t1}, v{vN}, 3, 1")
        A(f"v_and_b32 v{t2}, 1, v{vG}")
        A(f"v_lshl_or_b32 v{t1}, v{t2}, 1, v{t1}")
        A(f"v_lshlrev_b32 v{t1}, 5, v{t1}")
        A(f"v_and_b32 v{t2}, 3, v{vN}")
        A(f"v_lshl_add_u32 v{t1}, v{t2}, 3, v{t1}")
        A(f"v_lshrrev_b32 v{t2}, 2, v{vN}")
        A(f"v_lshl_add_u32 v{t1}, v{t2}, 7, v{t1}")
        A(f"v_lshl_add_u32 v{t1}, v{vG}, 10, v{t1}")
        for i in range(4):
            A(f"v_xor_b32 v{dst + i}, {32 * i}, v{t1}")
            if base_s is not None:
                A(f"v_add_u32 v{dst + i}, s{base_s}, v{dst + i}")

    def line_tile_read(dst, addr, off):
        for i in range(4):
            A(f"ds_read_b64_tr_b16 {vr(dst(i), 2)}, v{addr + i} offset:{off}")
            A(f"ds_read_b64_tr_b16 {vr(dst(i) + 2, 2)}, v{addr + i} offset:{off + 512}")

    def swz_chunk(dst, t):
        A(f"v_and_b32 v{t}, 1, v{vG}")
        A(f"v_lshlrev_b32 v{t}, 1, v{t}")
        A(f"v_and_b32 v{dst}, 7, v{vL}")
        A(f"v_xor_b32 v{dst}, v{dst}, v{t}")
        A(f"v_lshlrev_b32 v{dst}, 4, v{dst}")

    A(f"{NAME}:")
    stamp(0)
    A("s_cmp_ge_u32 s2, 256")
    A("s_cbranch_scc1 L_end")
    A("s_load_dwordx16 s[4:19], s[0:1], 0")
    A("s_load_dwordx8 s[20:27], s[0:1], 64")
    A("v_lshrrev_b32 v4, 6, v0")
    A(f"v_and_b32 v{vL}, 63, v0")
    A(f"v_readfirstlane_b32 s{sW}, v4")
    A(f"v_and_b32 v{vN}, 15, v0")
    A(f"v_bfe_u32 v{vG}, v0, 4, 2")
    A(f"v_mov_b32 v{vFF}, 0xff")
    A(f"s_and_b32 s{sXI}, s2, 7")
    A(f"s_lshr_b32 s{sT}, s2, 3")
    A(f"s_mov_b32 s{sLIM}, {limit}")
    A.c("LDS: q copy and max slots start empty, probabilities of absent tiles are zero")
    for i in range(4):
        A(f"v_mov_b32 v{8 + i}, -1")
        A(f"v_mov_b32 v{12 + i}, 0")
    A(f"v_lshlrev_b32 v6, 4, v{vL}")
    A(f"v_add_u32 v7, {QL}, v6")
    A("ds_write_b128 v7, v[8:11]")
    A("ds_write_b128 v7, v[8:11] offset:1024")
    A(f"ds_write_b128 v7, v[12:15] offset:{PB + 4096 - QL}")
    A.c("split = (x - tailx - 1) & 7 and the record offset of this attention workgroup")
    A(f"s_sub_u32 s{sB}, s{sXI}, {tailx + 1}")
    A(f"s_and_b32 s{sB}, s{sB}, 7")
    A(f"s_lshl_b32 s{sREC}, s{sT}, 3")
    A(f"s_add_u32 s{sREC}, s{sREC}, s{sB}")
    A(f"s_mul_i32 s{sREC}, s{sREC}, {REC}")
    A(f"s_add_u32 s{sREC}, s{sREC}, {OBUF}")
    A.c("effective split s' = (split + pair) mod 7, byte offset of its first tile, tile count")
    A(f"s_add_u32 s{sB}, s{sB}, s{sT}")
    A(f"s_mul_i32 s{sA}, s{sB}, 37")
    A(f"s_lshr_b32 s{sA}, s{sA}, 8")
    A(f"s_mul_i32 s{sA}, s{sA}, 7")
    A(f"s_sub_u32 s{sB}, s{sB}, s{sA}")
    A(f"s_mul_i32 s{sT0}, s{sB}, 37")
    A(f"s_max_u32 s{sA}, s{sB}, 4")
    A(f"s_sub_u32 s{sA}, s{sA}, 4")
    A(f"s_sub_u32 s{sT0}, s{sT0}, s{sA}")
    A(f"s_cmp_lt_u32 s{sB}, 4")
    A(f"s_cselect_b32 s{sNT}, 37, 36")
    A(f"s_lshl_b32 s{sT0}, s{sT0}, 12")
    A(f"s_lshl_b32 s{sA}, s{sT}, 22")
    A(f"s_add_u32 s{sT0}, s{sT0}, s{sA}")
    A(f"s_add_u32 s{sT0}, s{sT0}, 0x300000")
    A("s_waitcnt lgkmcnt(0)")
    A(f"s_load_dword s{sTAG}, s[26:27], {EPOCH}")
    srd(S_WS, 26, WS_SIZE)
    srd(S_WST, 26, WS_SIZE)
    srd(S_X, 4, 4096)
    A(f"s_cmp_eq_u32 s{sXI}, {tailx}")
    A("s_cbranch_scc1 L_tail_srd")
    srd(S_A, 6, 0x8000000)
    srd(S_B, 8, 0x8000000)
    A("s_branch L_srd_done")
    A("L_tail_srd:")
    srd(S_A, 12, 4096 * 1024)
    srd(S_B, 20, 1792 * 1024)
    A("L_srd_done:")
    A(f"s_cmp_lg_u32 s{sW}, 0")
    A("s_cbranch_scc1 L_after_q")

    A.c("q job: LayerNorm(x)[:, 128 kq : 128 kq + 128] @ wq[those rows, 64 columns]")
    srd(S_WQ, 10, 512 * 8192)
    XR, XF, QB, QD = 16, 32, 64, 128
    A(f"v_and_b32 v4, 3, v{vN}")
    A("v_lshlrev_b32 v4, 10, v4")
    A(f"v_lshrrev_b32 v5, 2, v{vN}")
    A("v_lshl_add_u32 v4, v5, 8, v4")
    A(f"v_lshl_add_u32 v4, v{vG}, 4, v4")
    for j in range(4):
        A(f"buffer_load_dwordx4 {vr(XR + 4 * j, 4)}, v4, {sr(S_X, 4)}, 0 offen offset:{64 * j}")
    swz_chunk(5, 6)
    A(f"v_lshrrev_b32 v6, 3, v{vL}")
    A("v_lshl_add_u32 v5, v6, 13, v5")
    A("v_xor_b32 v6, 64, v5")
    A(f"s_lshl_b32 s{sA}, s{sXI}, 10")
    A(f"s_lshr_b32 s{sB}, s{sT}, 2")
    A(f"s_lshl_b32 s{sB}, s{sB}, 7")
    A(f"s_add_u32 s{sA}, s{sA}, s{sB}")
    A(f"s_and_b32 s{sB}, s{sT}, 3")
    A(f"s_lshl_b32 s{sB}, s{sB}, 20")
    A(f"s_add_u32 s{sA}, s{sA}, s{sB}")
    for i in range(16):
        A(f"s_mov_b32 m0, {1024 * i}")
        if i:
            A(f"s_add_u32 s{sA}, s{sA}, {8 * 8192}")
        A(f"buffer_load_dwordx4 v{5 + (i & 1)}, {sr(S_WQ, 4)}, s{sA} offen {wqflags} lds")
    A("s_barrier")
    line_tile_addr(8, None, 6, 7)
    A("s_waitcnt vmcnt(16)")
    for i in range(16):
        A(f"v_lshlrev_b32 v{XF + 2 * i}, 16, v{XR + i}")
        A(f"v_and_b32 v{XF + 2 * i + 1}, 0xffff0000, v{XR + i}")
    A(f"v_pk_add_f32 v[12:13], {vr(XF, 2)}, {vr(XF + 2, 2)}")
    A(f"v_pk_add_f32 v[14:15], {vr(XF + 4, 2)}, {vr(XF + 6, 2)}")
    for i in range(4, 16, 2):
        A(f"v_pk_add_f32 v[12:13], v[12:13], {vr(XF + 2 * i, 2)}")
        A(f"v_pk_add_f32 v[14:15], v[14:15], {vr(XF + 2 * i + 2, 2)}")
    A("v_pk_add_f32 v[12:13], v[12:13], v[14:15]")
    A("v_add_f32 v12, v12, v13")
    dpp_red("v_add_f32", [12], [8, 4])
    allred_rows("v_add_f32", 12, 13)
    A("v_mul_f32 v12, 0x3b000000, v12")
    A("v_mov_b32 v14, 0")
    A("v_mov_b32 v15, 0")
    for i in range(16):
        A(f"v_pk_add_f32 v[144:145], {vr(XF + 2 * i, 2)}, v[12:13] op_sel_hi:[1,0] neg_lo:[0,1] neg_hi:[0,1]")
        A("v_pk_fma_f32 v[14:15], v[144:145], v[144:145], v[14:15]")
    A("v_add_f32 v14, v14, v15")
    dpp_red("v_add_f32", [14], [8, 4])
    allred_rows("v_add_f32", 14, 15)
    A("v_mul_f32 v14, 0x3b000000, v14")
    rb(12, 12)
    rb(14, 14)
    A("v_add_f32 v14, 0x3727c5ac, v14")
    rb(14, 14)
    A("v_sqrt_f32 v14, v14")
    rb(14, 14)
    A("v_rcp_f32 v14, v14")
    for i in range(16):
        p = XF + 2 * i
        A(f"v_pk_add_f32 {vr(p, 2)}, {vr(p, 2)}, v[12:13] op_sel_hi:[1,0] neg_lo:[0,1] neg_hi:[0,1]")
        A(f"v_cvt_pk_bf16_f32 v{p + 1}, v{p}, v{p + 1}")
        A(f"v_lshlrev_b32 v{p}, 16, v{p + 1}")
        A(f"v_and_b32 v{p + 1}, 0xffff0000, v{p + 1}")
        A(f"v_pk_mul_f32 {vr(p, 2)}, {vr(p, 2)}, v[14:15] op_sel_hi:[1,0]")
        A(f"v_cvt_pk_bf16_f32 v{XR + i}, v{p}, v{p + 1}")
    A("s_waitcnt vmcnt(0)")
    for j in range(4):
        line_tile_read(lambda i: QB + 16 * i + 4 * j, 8, 4096 * j)
        A("s_waitcnt lgkmcnt(0)")
        for i in range(4):
            mfma16(QD + 4 * i, QB + 16 * i + 4 * j, XR + 4 * j, j == 0)
    A.c("QP byte = (b*8 + x)*8192 + kq*2048 + (64*(t>>2) + 16*tile + 4g)*4, lanes of column group kq hold it")
    make_tag()
    A(f"s_lshl_b32 s{sA}, s{sXI}, 13")
    A(f"s_and_b32 s{sB}, s{sT}, 3")
    A(f"s_lshl_b32 s{sC}, s{sB}, 11")
    A(f"s_add_u32 s{sA}, s{sA}, s{sC}")
    A(f"s_lshr_b32 s{sC}, s{sT}, 2")
    A(f"s_lshl_b32 s{sC}, s{sC}, 8")
    A(f"s_add_u32 s{sA}, s{sA}, s{sC}")
    A(f"s_lshl_b32 s{sB}, s{sB}, 2")
    A(f"s_lshl_b32 s{sB}, 0x000f000f, s{sB}")
    A(f"v_and_b32 v4, 3, v{vN}")
    A("v_lshlrev_b32 v4, 16, v4")
    A(f"v_lshl_add_u32 v4, v{vG}, 4, v4")
    for i in range(16):
        A(f"v_add_u32 v{QD + i}, 0x80, v{QD + i}")
    for i in range(4):
        tag_put(QD + 4 * i)
    A(f"s_mov_b32 exec_lo, s{sB}")
    A(f"s_mov_b32 exec_hi, s{sB}")
    for i in range(4):
        A(f"buffer_store_dwordx4 {vr(QD + 4 * i, 4)}, v4, {sr(S_WST, 4)}, s{sA} offen offset:{QP + 64 * i} sc1")
    A("s_mov_b64 exec, -1")
    stamp(1)
    A("L_after_q:")
    A(f"s_cmp_eq_u32 s{sXI}, {tailx}")
    A("s_cbranch_scc1 L_tail")
    A(f"s_cmp_ge_u32 s{sW}, 4")
    A("s_cbranch_scc1 L_vwave")

    A.c("K wave k: stage its key tiles in LDS, scores, workgroup max, probabilities")
    KO, KA, QO = 4, 8, 12
    vM, vLs, vT1, vT2 = 14, 15, 62, 63
    Q, S, PA, QM, KF, QG = 16, 32, 44, 64, 128, 160
    if kprio:
        A(f"s_setprio {kprio}")
    A(f"v_lshlrev_b32 v{vT1}, 2, v{vG}")
    A(f"v_xor_b32 v{vT1}, v{vT1}, v{vN}")
    A(f"v_lshlrev_b32 v{vT1}, 4, v{vT1}")
    A(f"v_lshl_add_u32 v{KO}, v{vG}, 8, v{vT1}")
    for i in (1, 2, 3):
        A(f"v_xor_b32 v{KO + i}, {16 * i}, v{KO}")
    A.c("wave 0: tiles 30.., stride 1; waves 1-3: tiles k-1, k+2, ..")
    A(f"s_mul_i32 s{sLB}, s{sW}, 40960")
    A(f"s_sub_u32 s{sLB}, s{sLB}, 12288")
    A(f"s_sub_u32 s{sD}, s{sW}, 1")
    A(f"s_sub_u32 s{sNT}, s{sNT}, 30")
    A(f"s_cmp_eq_u32 s{sW}, 0")
    A(f"s_cselect_b32 s{sLB}, 0, s{sLB}")
    A(f"s_cselect_b32 s{sD}, 30, s{sD}")
    A(f"s_cselect_b32 s{sSTR}, 1, 3")
    A(f"s_cselect_b32 s{sNT}, s{sNT}, 10")
    A(f"s_lshl_b32 s{sA}, s{sD}, 12")
    A(f"s_add_u32 s{sB}, s{sT0}, s{sA}")
    A(f"s_lshl_b32 s{sC}, s{sSTR}, 12")
    A(f"s_mov_b32 s{sA}, s{sLB}")
    for slot in range(10):
        if slot >= 6 and slot <= 7:
            A(f"s_cmp_le_u32 s{sNT}, {slot}")
            A("s_cbranch_scc1 L_k_issued")
        A(f"s_mov_b32 m0, s{sA}")
        A(f"s_add_u32 s{sA}, s{sA}, 4096")
        for i in range(4):
            A(f"buffer_load_dwordx4 v{KO + i}, {sr(S_A, 4)}, s{sB} offen offset:{1024 * i} {kvflags} lds")
        A(f"s_add_u32 s{sB}, s{sB}, s{sC}")
        if slot == 0:
            A(f"s_cmp_eq_u32 s{sW}, 0")
            A("s_cbranch_scc1 L_k_nobar")
            A("s_barrier")
            A("L_k_nobar:")
    A("L_k_issued:")
    stamp(2)
    A(f"s_cmp_lg_u32 s{sW}, 0")
    A("s_cbranch_scc1 L_k_tag")
    A.c("wave 0 sums the four q partials of this batch / kv head into LDS (operand order)")
    A(f"v_lshlrev_b32 v{vT2}, 4, v{vL}")
    A(f"s_lshl_b32 s{sA}, s{sT}, 13")
    A(f"s_add_u32 s{sB}, s{sA}, 4096")
    A(f"v_bfe_u32 v{QO}, v{vL}, 1, 4")
    A(f"v_lshlrev_b32 v{QO}, 6, v{QO}")
    A(f"v_lshrrev_b32 v{vT1}, 5, v{vL}")
    A(f"v_lshl_add_u32 v{QO}, v{vT1}, 4, v{QO}")
    A(f"v_and_b32 v{vT1}, 1, v{vL}")
    A(f"v_lshl_add_u32 v{QO}, v{vT1}, 3, v{QO}")
    A(f"v_add_u32 v{QO}, {QL}, v{QO}")
    poll([f"buffer_load_dwordx4 {vr(QG + 4 * i, 4)}, v{vT2}, {sr(S_WS, 4)}, s{sA if i < 4 else sB} offen offset:{QP + 1024 * (i & 3)} sc1" for i in range(8)],
         lambda: tag_check(range(QG, QG + 32), TAGS, vT1))
    for p in range(0, 8, 2):
        A(f"v_pk_add_f32 {vr(QG + p, 2)}, {vr(QG + p, 2)}, {vr(QG + 8 + p, 2)}")
        A(f"v_pk_add_f32 {vr(QG + 16 + p, 2)}, {vr(QG + 16 + p, 2)}, {vr(QG + 24 + p, 2)}")
        A(f"v_pk_add_f32 {vr(QG + p, 2)}, {vr(QG + p, 2)}, {vr(QG + 16 + p, 2)}")
        A(f"v_cvt_pk_bf16_f32 v{QG + 32 + p // 2}, v{QG + p}, v{QG + p + 1}")
        A(f"v_min_u32 v{QG + 32 + p // 2}, -2, v{QG + 32 + p // 2}")
    A(f"ds_write_b64 v{QO}, {vr(QG + 32, 2)}")
    A(f"ds_write_b64 v{QO}, {vr(QG + 34, 2)} offset:32")
    A("s_branch L_k_setup")
    A("L_k_tag:")
    make_tag()
    A("L_k_setup:")
    A.c("K fragment LDS addresses: key(mu)*256 + ((4j + g) ^ mu)*16, key(mu) = 4*(mu&3) + (mu>>2)")
    A(f"v_and_b32 v{vT1}, 3, v{vN}")
    A(f"v_lshlrev_b32 v{QO}, 4, v{vT1}")
    A(f"v_lshlrev_b32 v{vT1}, 10, v{vT1}")
    A(f"v_lshrrev_b32 v{vT2}, 2, v{vN}")
    A(f"v_lshl_add_u32 v{vT1}, v{vT2}, 8, v{vT1}")
    A(f"v_xor_b32 v{vM}, v{vG}, v{vN}")
    A(f"v_lshl_add_u32 v{vT1}, v{vM}, 4, v{vT1}")
    for j in range(4):
        A(f"v_xor_b32 v{KA + j}, {64 * j}, v{vT1}")
        A(f"v_add_u32 v{KA + j}, s{sLB}, v{KA + j}")
    A(f"v_add_u32 v{QO + 1}, {ML}, v{QO}")
    A(f"v_lshl_add_u32 v{QO}, v{vG}, 6, v{QO}")
    A.c("probability slot of tile tau: PB + (tau>>3)*1024 + (tau&3)*256 + g*64 + h*16 + ((tau>>2)&1)*8")
    for a in range(3):
        A(f"v_add_u32 v{vT1}, {4 * a}, v{vT2}")
        A(f"v_mul_lo_u32 v{vT1}, s{sSTR}, v{vT1}")
        A(f"v_add_u32 v{vT1}, s{sD}, v{vT1}")
        A(f"v_lshrrev_b32 v{vM}, 3, v{vT1}")
        A(f"v_lshl_add_u32 v{PA + a}, v{vM}, 10, v{QO}")
        A(f"v_and_b32 v{vM}, 3, v{vT1}")
        A(f"v_lshl_add_u32 v{PA + a}, v{vM}, 8, v{PA + a}")
        A(f"v_bfe_u32 v{vM}, v{vT1}, 2, 1")
        A(f"v_lshl_add_u32 v{PA + a}, v{vM}, 3, v{PA + a}")
        A(f"v_add_u32 v{PA + a}, {PB}, v{PA + a}")
    A(f"v_add_u32 v{QO}, {QL}, v{QO}")
    A.c("lanes whose tile exists: s[16:17] for accumulator 1, s[18:19] for accumulator 2")
    A(f"v_add_u32 v{vT1}, 4, v{vT2}")
    A(f"v_cmp_gt_u32 s[16:17], s{sNT}, v{vT1}")
    A(f"v_add_u32 v{vT1}, 8, v{vT2}")
    A(f"v_cmp_gt_u32 s[18:19], s{sNT}, v{vT1}")
    set_masks()
    for i in range(64):
        A(f"v_mov_b32 v{QM + i}, 0")
    for i in range(8, 12):
        A(f"v_mov_b32 v{S + i}, 0")
    poll([f"ds_read_b128 {vr(Q + 4 * j, 4)}, v{QO} offset:{256 * j}" for j in range(4)],
         lambda: sentinel_check(range(Q, Q + 16), vT1), wait="s_waitcnt lgkmcnt(0)", sleep=2)
    for rho in range(4):
        A(f"s_mov_b64 exec, {sr(sMASK + 2 * rho, 2)}")
        for j in range(4):
            A(f"ds_read_b128 {vr(QM + 16 * rho + 4 * j, 4)}, v{QO} offset:{256 * j}")
        if rho & 1:
            A("s_waitcnt lgkmcnt(0)")
    A("s_mov_b64 exec, -1")
    A("s_waitcnt vmcnt(0)")
    stamp(3)

    def qk_reads(slot):
        for j in range(4):
            A(f"ds_read_b128 {vr(KF + 16 * (slot & 1) + 4 * j, 4)}, v{KA + j} offset:{4096 * slot}")

    qk_reads(0)
    for slot in range(10):
        if slot in (6, 7):
            A(f"s_cmp_le_u32 s{sNT}, {slot}")
            A("s_cbranch_scc1 L_qk_done")
        if slot < 9:
            qk_reads(slot + 1)
            A("s_waitcnt lgkmcnt(4)")
        else:
            A("s_waitcnt lgkmcnt(0)")
        for j in range(4):
            mfma16(S + 4 * (slot >> 2), KF + 16 * (slot & 1) + 4 * j, QM + 16 * (slot & 3) + 4 * j, j == 0 and (slot & 3) == 0)
    A("L_qk_done:")
    A.c("scores: bf16(bf16(q.k) * Dh^-0.5); absent tiles get -inf")
    A(f"s_mov_b32 s{sA}, 0x3db504f3")
    A(f"s_mov_b32 s{sB}, 0x3fb8aa3b")
    A(f"v_mov_b32 v{vT1}, 0xff800000")
    for i in range(0, 12, 2):
        p = S + i
        A(f"v_cvt_pk_bf16_f32 v{p + 1}, v{p}, v{p + 1}")
        A(f"v_lshlrev_b32 v{p}, 16, v{p + 1}")
        A(f"v_and_b32 v{p + 1}, 0xffff0000, v{p + 1}")
        A(f"v_mul_f32 v{p}, s{sA}, v{p}")
        A(f"v_mul_f32 v{p + 1}, s{sA}, v{p + 1}")
        A(f"v_cvt_pk_bf16_f32 v{p + 1}, v{p}, v{p + 1}")
        A(f"v_lshlrev_b32 v{p}, 16, v{p + 1}")
        A(f"v_and_b32 v{p + 1}, 0xffff0000, v{p + 1}")
        if i >= 4:
            m = "s[16:17]" if i < 8 else "s[18:19]"
            A(f"v_cndmask_b32 v{p}, v{vT1}, v{p}, {m}")
            A(f"v_cndmask_b32 v{p + 1}, v{vT1}, v{p + 1}, {m}")
    A(f"v_max_f32 v{vM}, v{S}, v{S + 1}")
    for i in range(2, 12, 2):
        A(f"v_max3_f32 v{vM}, v{vM}, v{S + i}, v{S + i + 1}")
    dpp_red("v_max_f32", [vM], [8, 4])
    allred_rows("v_max_f32", vM, vT1)
    A(f"v_min_u32 v{vM}, -2, v{vM}")
    A(f"s_lshl_b32 s{sA}, s{sW}, 2")
    A(f"v_add_u32 v{vT2}, s{sA}, v{QO + 1}")
    A("s_mov_b64 exec, 15")
    A(f"ds_write_b32 v{vT2}, v{vM}")
    A("s_mov_b64 exec, -1")
    poll([f"ds_read_b128 {vr(Q, 4)}, v{QO + 1}"], lambda: sentinel_check(range(Q, Q + 4), vT1),
         wait="s_waitcnt lgkmcnt(0)", sleep=1)
    A(f"v_max_f32 v{vM}, v{Q}, v{Q + 1}")
    A(f"v_max3_f32 v{vM}, v{vM}, v{Q + 2}, v{Q + 3}")
    for i in range(12):
        A(f"v_sub_f32 v{S + i}, v{S + i}, v{vM}")
        A(f"v_mul_f32 v{S + i}, s{sB}, v{S + i}")
        A(f"v_exp_f32 v{S + i}, v{S + i}")
    A(f"v_mul_f32 v{vM}, s{sB}, v{vM}")
    for i in range(6):
        A(f"v_cvt_pk_bf16_f32 v{Q + i}, v{S + 2 * i}, v{S + 2 * i + 1}")
    A(f"ds_write_b64 v{PA}, {vr(Q, 2)}")
    A("s_mov_b64 exec, s[16:17]")
    A(f"ds_write_b64 v{PA + 1}, {vr(Q + 2, 2)}")
    A("s_mov_b64 exec, s[18:19]")
    A(f"ds_write_b64 v{PA + 2}, {vr(Q + 4, 2)}")
    A("s_mov_b64 exec, -1")
    A(f"v_add_f32 v{vLs}, v{S}, v{S + 1}")
    for i in range(2, 12):
        A(f"v_add_f32 v{vLs}, v{vLs}, v{S + i}")
    dpp_red("v_add_f32", [vLs], [8, 4])
    allred_rows("v_add_f32", vLs, vT1)
    A("s_mov_b64 exec, 15")
    A(f"ds_write_b32 v{vT2}, v{vLs} offset:{LL - ML}")
    A("s_mov_b64 exec, -1")
    A("s_waitcnt lgkmcnt(0)")
    stamp(4)
    A("s_barrier")
    A(f"s_cmp_ge_u32 s{sW}, 2")
    A("s_cbranch_scc1 L_k_lse")
    A.c("waves 0,1: thread G owns 16 bytes of the record, head G>>5, scaled by 1/L")
    A(f"v_and_b32 v{KA + 2}, 127, v0")
    A(f"v_lshrrev_b32 v{KA}, 5, v{KA + 2}")
    A(f"v_lshlrev_b32 v{KA + 3}, 1, v{KA}")
    A(f"v_lshlrev_b32 v{KA}, 4, v{KA}")
    A(f"v_add_u32 v{KA}, {LL}, v{KA}")
    A(f"ds_read_b128 {vr(Q, 4)}, v{KA}")
    A(f"v_xor_b32 v{KA + 3}, v{KA + 3}, v{KA + 2}")
    A(f"v_lshlrev_b32 v{KA + 3}, 4, v{KA + 3}")
    A(f"v_lshlrev_b32 v{KA + 2}, 4, v{KA + 2}")
    A("s_waitcnt lgkmcnt(0)")
    A(f"v_add_f32 v{Q}, v{Q}, v{Q + 1}")
    A(f"v_add_f32 v{Q + 2}, v{Q + 2}, v{Q + 3}")
    A(f"v_add_f32 v{Q}, v{Q}, v{Q + 2}")
    A(f"v_rcp_f32 v{vM}, v{Q}")
    A("s_barrier")
    for w in range(4):
        A(f"ds_read_b128 {vr(Q + 4 * w, 4)}, v{KA + 3} offset:{2048 * w}")
    A("s_waitcnt lgkmcnt(2)")
    A(f"v_pk_add_f32 {vr(Q, 2)}, {vr(Q, 2)}, {vr(Q + 4, 2)}")
    A(f"v_pk_add_f32 {vr(Q + 2, 2)}, {vr(Q + 2, 2)}, {vr(Q + 6, 2)}")
    A("s_waitcnt lgkmcnt(0)")
    A(f"v_pk_add_f32 {vr(Q + 8, 2)}, {vr(Q + 8, 2)}, {vr(Q + 12, 2)}")
    A(f"v_pk_add_f32 {vr(Q + 10, 2)}, {vr(Q + 10, 2)}, {vr(Q + 14, 2)}")
    A(f"v_pk_add_f32 {vr(Q, 2)}, {vr(Q, 2)}, {vr(Q + 8, 2)}")
    A(f"v_pk_add_f32 {vr(Q + 2, 2)}, {vr(Q + 2, 2)}, {vr(Q + 10, 2)}")
    A(f"v_pk_mul_f32 {vr(Q, 2)}, {vr(Q, 2)}, {vr(vM, 2)} op_sel_hi:[1,0]")
    A(f"v_pk_mul_f32 {vr(Q + 2, 2)}, {vr(Q + 2, 2)}, {vr(vM, 2)} op_sel_hi:[1,0]")
    tag_put(Q)
    A(f"buffer_store_dwordx4 {vr(Q, 4)}, v{KA + 2}, {sr(S_WST, 4)}, s{sREC} offen sc1")
    stamp(6)
    A("s_branch L_fin")
    A("L_k_lse:")
    A(f"s_cmp_lg_u32 s{sW}, 2")
    A("s_cbranch_scc1 L_k_idle")
    A(f"ds_read_b128 {vr(Q, 4)}, v{QO + 1} offset:{LL - ML}")
    A(f"v_lshlrev_b32 v{vT1}, 3, v{vL}")
    A(f"v_mov_b32 v{vLs}, s{sTAG}")
    A("s_waitcnt lgkmcnt(0)")
    A(f"v_add_f32 v{Q}, v{Q}, v{Q + 1}")
    A(f"v_add_f32 v{Q + 2}, v{Q + 2}, v{Q + 3}")
    A(f"v_add_f32 v{Q}, v{Q}, v{Q + 2}")
    A(f"v_log_f32 v{Q}, v{Q}")
    A(f"v_add_f32 v{vM}, v{vM}, v{Q}")
    A("s_mov_b64 exec, 15")
    A(f"buffer_store_dwordx2 {vr(vM, 2)}, v{vT1}, {sr(S_WST, 4)}, s{sREC} offen offset:2048 sc1")
    A("s_mov_b64 exec, -1")
    A("L_k_idle:")
    A("s_barrier")
    A("s_branch L_fin")

    A("L_vwave:")
    A.c("V wave v: value tiles v, v+4, .. in registers, transposed in-lane, P.V on the matrix core")
    VO, vPA, vRA = 4, 5, 6
    ACC, PM, VB = 8, 16, 48
    A("s_barrier")
    A(f"s_mov_b32 s{sSELLO}, 0x05040100")
    A(f"s_mov_b32 s{sSELHI}, 0x07060302")
    A(f"v_lshlrev_b32 v{VO}, 4, v{vL}")
    A(f"s_sub_u32 s{sD}, s{sW}, 4")
    A(f"s_lshl_b32 s{sA}, s{sD}, 12")
    A(f"s_add_u32 s{sT0}, s{sT0}, s{sA}")
    order = [9, 8, 0, 1, 2, 3, 4, 5, 6, 7]
    pair_seq = [4, 0, 1, 2, 3]
    raw_base = {k: VB + 32 * (n + 1) for n, k in enumerate(pair_seq)}
    out_base = {k: VB + 32 * n for n, k in enumerate(pair_seq)}

    def v_load(s):
        R = raw_base[s >> 1] + 16 * (s & 1)
        A(f"s_add_u32 s{sB}, s{sT0}, {16384 * s}")
        for j in range(4):
            A(f"buffer_load_dwordx4 {vr(R + 4 * j, 4)}, v{VO}, {sr(S_B, 4)}, s{sB} offen offset:{1024 * j} {kvflags}")

    def v_perm(s, i):
        R = raw_base[s >> 1] + 16 * (s & 1)
        q, sel = i >> 1, sSELHI if i & 1 else sSELLO
        d = out_base[s >> 1] + 4 * i + 2 * (s & 1)
        A(f"v_perm_b32 v{d}, v{R + 4 + q}, v{R + q}, s{sel}")
        A(f"v_perm_b32 v{d + 1}, v{R + 12 + q}, v{R + 8 + q}, s{sel}")

    def p_read(k, buf):
        for rho in range(4):
            A(f"s_mov_b64 exec, {sr(sMASK + 2 * rho, 2)}")
            A(f"ds_read_b128 {vr(PM + 16 * buf + 4 * rho, 4)}, v{vPA} offset:{1024 * k}")
        A("s_mov_b64 exec, -1")

    def pv(k, buf, i, first):
        mfma16(ACC + 4 * (i >> 2), out_base[k] + 4 * i, PM + 16 * buf + 4 * (i & 3), first and (i & 3) == 0)

    A(f"s_add_u32 s{sA}, s{sD}, 36")
    A(f"s_cmp_lt_u32 s{sA}, s{sNT}")
    A("s_cbranch_scc1 L_v9_load")
    for i in range(16):
        A(f"v_mov_b32 v{raw_base[4] + 16 + i}, 0")
    A("s_branch L_v9_done")
    A("L_v9_load:")
    v_load(9)
    A("L_v9_done:")
    for s in order[1:window]:
        v_load(s)
    set_masks()
    for i in range(32):
        A(f"v_mov_b32 v{PM + i}, 0")
    A(f"v_and_b32 v7, 3, v{vN}")
    A(f"v_lshlrev_b32 v{vPA}, 4, v7")
    A(f"v_lshl_add_u32 v{vPA}, v{vG}, 6, v{vPA}")
    A(f"s_lshl_b32 s{sA}, s{sD}, 8")
    A(f"s_add_u32 s{sA}, s{sA}, {PB}")
    A(f"v_add_u32 v{vPA}, s{sA}, v{vPA}")
    A.c("reduction slot: h*32 + ((16a + 4g + rho) ^ 2h)")
    A(f"v_lshrrev_b32 v{vRA}, 2, v{vL}")
    A(f"v_lshlrev_b32 v{ACC}, 1, v7")
    A(f"v_xor_b32 v{vRA}, v{vRA}, v{ACC}")
    A(f"v_lshl_add_u32 v{vRA}, v7, 5, v{vRA}")
    A(f"v_lshlrev_b32 v{vRA}, 4, v{vRA}")
    A(f"s_lshl_b32 s{sA}, s{sD}, 11")
    A(f"v_add_u32 v{vRA}, s{sA}, v{vRA}")
    done = 0
    for n in range(10 - window):
        A(f"s_waitcnt vmcnt({4 * (window - 1)})")
        v_load(order[n + window])
        for i in range(8):
            v_perm(order[n], i)
        done = n + 1
    stamp(2)
    A("s_barrier")
    stamp(4)
    p_read(pair_seq[0], 0)
    for n, k in enumerate(pair_seq):
        if n < 4:
            p_read(pair_seq[n + 1], (n + 1) & 1)
        first_t, second_t = 2 * n, 2 * n + 1
        if first_t >= done:
            A(f"s_waitcnt vmcnt({4 * (9 - first_t)})")
            for i in range(8):
                v_perm(order[first_t], i)
        lg = f"lgkmcnt({4 if n < 4 else 0})"
        if second_t >= done:
            A(f"s_waitcnt vmcnt({4 * (9 - second_t)}) {lg}")
            if n == 4:
                stamp(5)
            seq = [0, 4, 1, 5, 2, 6, 3, 7]
            v_perm(order[second_t], seq[0])
            for m, i in enumerate(seq):
                if m < 7:
                    v_perm(order[second_t], seq[m + 1])
                pv(k, n & 1, i, n == 0)
        else:
            A(f"s_waitcnt {lg}")
            for i in (0, 4, 1, 5, 2, 6, 3, 7):
                pv(k, n & 1, i, n == 0)
    A(f"ds_write_b128 v{vRA}, {vr(ACC, 4)}")
    A(f"ds_write_b128 v{vRA}, {vr(ACC + 4, 4)} offset:256")
    A("s_waitcnt lgkmcnt(0)")
    A("s_barrier")
    A("s_branch L_fin")

    A("L_tail:")
    A.c("tail workgroup t: head t of wo, 64 FFN channels, 16 columns of h and of the output")
    srd(S_WG, 16, 512 * 3584)
    srd(S_WU, 18, 512 * 3584)
    srd(S_OUT, 22, 4096)
    srd(S_DBG, 24, 256)
    A(f"s_cmp_lt_u32 s{sT}, 28")
    A(f"s_cselect_b32 s{S_WG + 2}, {512 * 3584}, 0")
    A(f"s_cselect_b32 s{S_WU + 2}, {512 * 3584}, 0")
    AO, D, PT, BWO, BGU, BWD = 16, 32, 48, 64, 128, 192
    vTR, vGUo = 4, 8
    vWOo, vWDo = 224, 226
    vLin, vP, vLse, vOw, vHs, vSs, vAr, vAw, vOs, vXr, vCs, vH, vRw, vRr, vYs, vTg0, vTg1 = range(228, 245)
    t1, t2, t3, t4 = 12, 13, 14, 15
    RED2, RED4, OL, AL = 16384, 18432, 20480 + 16384, 20480 + 17408
    A(f"s_getreg_b32 s{sFAST}, hwreg(HW_REG_XCC_ID, 0, 3)")
    A(f"s_lshl_b32 s{sFAST}, s{sFAST}, 3")
    A(f"v_lshlrev_b32 v{vLin}, 4, v{vL}")
    A(f"s_cmp_eq_u32 s{sW}, 0")
    A("s_cbranch_scc1 L_no_clear")
    A("s_barrier")
    A(f"s_cmp_lg_u32 s{sW}, 1")
    A("s_cbranch_scc1 L_no_clear")
    A.c("wave 1: mark 256 B of the h hand-off buffers empty, then count in (one byte field per XCC)")
    A(f"s_lshl_b32 s{sA}, s{sT}, 8")
    A(f"s_add_u32 s{sA}, s{sA}, {HBUF}")
    A("s_mov_b64 exec, 0xffff")
    A(f"buffer_store_dwordx4 v[8:11], v{vLin}, {sr(S_WST, 4)}, s{sA} offen sc1")
    A(f"s_lshl_b64 {sr(sC, 2)}, 1, s{sFAST}")
    A(f"v_mov_b32 v{AO + 4}, s{sC}")
    A(f"v_mov_b32 v{AO + 5}, s{sD}")
    A("s_waitcnt vmcnt(0)")
    A("s_mov_b64 exec, 1")
    A(f"buffer_atomic_add_x2 {vr(AO + 4, 2)}, v{vLin}, {sr(S_DBG, 4)}, 0 offen offset:{FLAG_OFF} sc1")
    A("s_mov_b64 exec, -1")
    A("L_no_clear:")
    A(f"s_mul_i32 s{sLB}, s{sW}, 20480")
    A.c("wo rows follow the channel permutation of the partial records; wave w takes columns 64w..64w+63")
    swz_chunk(t1, t2)
    A(f"s_lshl_b32 s{sA}, s{sW}, 7")
    A(f"v_add_u32 v{t1}, s{sA}, v{t1}")
    A(f"v_lshrrev_b32 v{t2}, 3, v{vL}")
    A(f"v_lshl_add_u32 v{vWDo}, v{t2}, 10, v{t1}")
    A(f"s_lshl_b32 s{sA}, s{sT}, 16")
    A(f"v_add_u32 v{vWDo}, s{sA}, v{vWDo}")
    A(f"v_xor_b32 v{vWDo + 1}, 64, v{vWDo}")
    A(f"v_and_b32 v{t2}, 3, v{t2}")
    A(f"v_lshl_add_u32 v{vWOo}, v{t2}, 13, v{t1}")
    A(f"v_lshrrev_b32 v{t2}, 5, v{vL}")
    A(f"v_lshl_add_u32 v{vWOo}, v{t2}, 10, v{vWOo}")
    A(f"s_lshl_b32 s{sA}, s{sT}, 17")
    A(f"v_add_u32 v{vWOo}, s{sA}, v{vWOo}")
    A(f"v_xor_b32 v{vWOo + 1}, 64, v{vWOo}")

    def dma(slot, voff, srd_, soff, flags):
        A(f"s_add_u32 s{sA}, s{sLB}, {1024 * slot}")
        A(f"s_mov_b32 m0, s{sA}")
        A(f"s_mov_b32 s{sB}, {soff}")
        A(f"buffer_load_dwordx4 v{voff}, {sr(srd_, 4)}, s{sB} offen {flags} lds")

    for i in range(16):
        j, g = i >> 2, i & 3
        dma(i, vWOo + (i & 1), S_A, (64 * (j & 1) + 4 * (j >> 1) + 32 * (g >> 1) + 2 * (g & 1)) * 1024, woflags)
    for i in range(4):
        dma(16 + i, vWDo + (i & 1), S_B, 8192 * i, wdflags)
    A.c("gate/up DMA: row 64w + 8i + (l>>3), chunk (l&7) ^ (((l>>4)&1) | (i&1)<<1 | mat<<2)")
    A(f"v_lshrrev_b32 v{t1}, 3, v{vL}")
    A(f"s_lshl_b32 s{sA}, s{sW}, 6")
    A(f"v_add_u32 v{t1}, s{sA}, v{t1}")
    A(f"v_mul_u32_u24 v{t1}, 3584, v{t1}")
    A(f"s_lshl_b32 s{sA}, s{sT}, 7")
    A(f"v_add_u32 v{t1}, s{sA}, v{t1}")
    A(f"v_and_b32 v{t2}, 7, v{vL}")
    A(f"v_and_b32 v{t3}, 1, v{vG}")
    A(f"v_xor_b32 v{t2}, v{t2}, v{t3}")
    for k in range(4):
        A(f"v_xor_b32 v{t3}, {2 * k}, v{t2}")
        A(f"v_lshl_add_u32 v{vGUo + k}, v{t3}, 4, v{t1}")
    line_tile_addr(vTR, sLB, t1, t2)
    for c in range(4):
        A("s_waitcnt vmcnt(16)")
        line_tile_read(lambda i: BWO + 16 * i + 4 * c, vTR, 4096 * c)
        A("s_waitcnt lgkmcnt(0)")
        for i in range(4 * c, 4 * c + 4):
            mat, ii = i >> 3, i & 7
            dma(i, vGUo + (ii & 1) + 2 * mat, S_WU if mat else S_WG, 8 * ii * 3584, guflags)
    A("s_waitcnt vmcnt(16)")
    line_tile_read(lambda i: BWD + 8 * i, vTR, 16384)
    A("s_waitcnt lgkmcnt(0)")
    for i in range(4, 8):
        dma(12 + i, vWDo + (i & 1), S_B, 8192 * i, wdflags)
    A.c("addresses of the hand-off stages; stage 1: wave b reads the records of pair (b, t>>2), head t&3")
    A(f"s_and_b32 s{sB}, s{sW}, 3")
    A(f"s_lshl_b32 s{sA}, s{sB}, 3")
    A(f"s_lshr_b32 s{sC}, s{sT}, 2")
    A(f"s_add_u32 s{sA}, s{sA}, s{sC}")
    A(f"s_mul_i32 s{sREC}, s{sA}, {8 * REC}")
    A(f"s_add_u32 s{sREC}, s{sREC}, {OBUF}")
    A(f"s_and_b32 s{sC}, s{sT}, 3")
    A(f"s_lshl_b32 s{sA}, s{sC}, 9")
    A(f"s_add_u32 s{sA}, s{sA}, s{sREC}")
    A(f"v_lshlrev_b32 v{vP}, 3, v{vL}")
    A(f"v_add_u32 v{vP}, s{sA}, v{vP}")
    A(f"v_and_b32 v{t1}, 7, v{vL}")
    A(f"v_min_u32 v{t1}, 6, v{t1}")
    A(f"v_mul_u32_u24 v{t1}, {REC}, v{t1}")
    A(f"s_lshl_b32 s{sA}, s{sC}, 3")
    A(f"s_add_u32 s{sA}, s{sA}, s{sREC}")
    A(f"v_add_u32 v{vLse}, s{sA}, v{t1}")
    A.c("LDS activations in operand order [k-step][g][b][16 B]")
    A(f"v_lshrrev_b32 v{t1}, 2, v{vL}")
    A(f"v_lshlrev_b32 v{t1}, 6, v{t1}")
    A(f"v_and_b32 v{t2}, 3, v{vL}")
    A(f"v_lshl_add_u32 v{t1}, v{t2}, 2, v{t1}")
    A(f"s_lshl_b32 s{sB}, s{sB}, 4")
    A(f"v_add_u32 v{vOw}, s{sB}, v{t1}")
    A(f"v_lshlrev_b32 v{vAr}, 4, v{t2}")
    A(f"v_lshl_add_u32 v{vAr}, v{vG}, 6, v{vAr}")
    A(f"v_and_b32 v{t2}, 7, v{vN}")
    A(f"v_lshlrev_b32 v{vAw}, 4, v{vG}")
    A(f"v_lshl_add_u32 v{vAw}, v{t2}, 1, v{vAw}")
    A(f"s_lshl_b32 s{sA}, s{sW}, 6")
    A(f"v_add_u32 v{vAw}, s{sA}, v{vAw}")
    A.c("partial-sum slot [consumer 4w + tile][producer t][n][b]")
    A(f"s_lshl_b32 s{sA}, s{sW}, 15")
    A(f"s_lshl_b32 s{sB}, s{sT}, 8")
    A(f"s_add_u32 s{sA}, s{sA}, s{sB}")
    A(f"v_lshlrev_b32 v{vYs}, 4, v{vN}")
    A(f"v_lshl_add_u32 v{vYs}, v{vG}, 13, v{vYs}")
    A(f"v_add_u32 v{vYs}, s{sA}, v{vYs}")
    A.c("HBUF byte = (j*64 + g*16 + 4rho + b)*16 + 2e, rho = t>>3, j = (t>>1)&3, g = 2(t&1) + (n>>3)")
    A(f"v_lshrrev_b32 v{t1}, 3, v{vN}")
    A(f"v_lshlrev_b32 v{t1}, 8, v{t1}")
    A(f"v_lshl_add_u32 v{t1}, v{vG}, 4, v{t1}")
    A(f"v_lshl_add_u32 v{t1}, v{t2}, 1, v{t1}")
    A(f"s_and_b32 s{sA}, s{sT}, 7")
    A(f"s_lshl_b32 s{sA}, s{sA}, 9")
    A(f"s_lshr_b32 s{sB}, s{sT}, 3")
    A(f"s_lshl_b32 s{sB}, s{sB}, 6")
    A(f"s_add_u32 s{sA}, s{sA}, s{sB}")
    A(f"s_add_u32 s{sA}, s{sA}, {HBUF}")
    A(f"v_add_u32 v{vHs}, s{sA}, v{t1}")
    A(f"s_lshl_b32 s{sA}, s{sT}, 3")
    A(f"s_add_u32 s{sA}, s{sA}, {HSTAT}")
    A(f"v_lshlrev_b32 v{vSs}, 8, v{vG}")
    A(f"v_add_u32 v{vSs}, s{sA}, v{vSs}")
    A(f"v_lshlrev_b32 v{vOs}, 10, v{vG}")
    A(f"v_lshl_add_u32 v{vOs}, v{vN}, 1, v{vOs}")
    A(f"s_lshl_b32 s{sA}, s{sT}, 5")
    A(f"v_add_u32 v{vOs}, s{sA}, v{vOs}")
    A(f"v_lshlrev_b32 v{vRr}, 2, v{vL}")
    A(f"s_lshl_b32 s{sA}, s{sW}, 8")
    A(f"v_add_u32 v{vRw}, s{sA}, v{vRr}")
    A(f"buffer_load_ushort v{vXr}, v{vOs}, {sr(S_X, 4)}, 0 offen")
    A.c("inbox offsets; one early read makes the lines resident in this XCD's L2")
    A(f"s_lshl_b32 s16, s{sT}, 13")
    A(f"s_lshl_b32 s{sA}, s{sW}, 10")
    A(f"s_add_u32 s16, s16, s{sA}")
    A(f"s_add_u32 s17, s16, {ZBUF}")
    A(f"s_add_u32 s16, s16, {YBUF}")
    A(f"s_mov_b32 s18, {YBUF}")
    A(f"s_mov_b32 s19, {ZBUF}")
    A(f"buffer_load_dwordx4 {vr(PT, 4)}, v{vLin}, {sr(S_WS, 4)}, s16 offen sc1")
    A(f"buffer_load_dwordx4 {vr(PT + 4, 4)}, v{vLin}, {sr(S_WS, 4)}, s17 offen sc1")
    A.c("gate/up fragments: row (8g + r)*128 + ((w ^ f)*16) + (c&1)*8 + mat*8192")
    A(f"v_bfe_u32 v{t1}, v{vN}, 3, 1")
    A(f"v_and_b32 v{t2}, 1, v{vG}")
    A(f"v_lshl_or_b32 v{t1}, v{t2}, 1, v{t1}")
    A(f"v_bfe_u32 v{t2}, v{vN}, 1, 1")
    A(f"v_lshl_or_b32 v{t1}, v{t2}, 2, v{t1}")
    A(f"v_xor_b32 v{t1}, s{sW}, v{t1}")
    A(f"v_lshlrev_b32 v{t1}, 4, v{t1}")
    A(f"v_lshl_add_u32 v{t1}, v{t2}, 13, v{t1}")
    A(f"v_and_b32 v{t2}, 1, v{vN}")
    A(f"v_lshl_add_u32 v{t1}, v{t2}, 3, v{t1}")
    A(f"v_lshrrev_b32 v{t2}, 2, v{vN}")
    A(f"v_lshl_add_u32 v{t1}, v{t2}, 7, v{t1}")
    A(f"v_lshl_add_u32 v{t1}, v{vG}, 10, v{t1}")
    A(f"s_cmp_eq_u32 s{sW}, 0")
    A("s_cbranch_scc1 L_has_tag")
    make_tag()
    A("L_has_tag:")
    A(f"v_and_b32 v{t2}, 1, v{vL}")
    A(f"v_lshlrev_b32 v{t2}, 4, v{t2}")
    A(f"v_lshrrev_b32 v{t2}, v{t2}, s{sTAG}")
    A(f"v_and_b32 v{vTg0}, 0xff, v{t2}")
    A(f"v_bfe_u32 v{vTg1}, v{t2}, 8, 8")
    A("s_waitcnt vmcnt(0)")
    line_tile_read(lambda i: BWD + 8 * i + 4, vTR, 16384)
    A("s_waitcnt lgkmcnt(0)")
    A("s_barrier")
    stamp(2)
    A(f"v_lshlrev_b32 v{vXr}, 16, v{vXr}")
    for ks in range(16):
        if ks and ks % 4 == 0:
            A("s_waitcnt lgkmcnt(0)")
            A(f"v_add_u32 v{t1}, {2 * 20480}, v{t1}")
        off = ((ks >> 1) & 1) * 20480 + (ks & 1) * 4096
        A(f"ds_read_b64_tr_b16 {vr(BGU + 4 * ks, 2)}, v{t1} offset:{off}")
        A(f"ds_read_b64_tr_b16 {vr(BGU + 4 * ks + 2, 2)}, v{t1} offset:{off + 512}")
    for i in range(4):
        A(f"v_mov_b32 v{AO + i}, 0x3f803f80")
    A(f"v_mov_b32 v{t3}, 0")
    A("s_waitcnt lgkmcnt(0)")
    for ks in range(16):
        mfma16(D, AO, BGU + 4 * ks, ks == 0)
    A.c("wait until all tail workgroups have counted in; all on this XCC selects the L2-local stores")

    def flag_check():
        A(f"v_readfirstlane_b32 s{sC}, v{t1}")
        A(f"v_readfirstlane_b32 s{sD}, v{t2}")
        A(f"v_add_u32 v{t4}, v{t1}, v{t2}")
        A(f"v_sad_u8 v{t4}, v{t4}, 0, 0")
        A(f"v_cmp_ne_u32 vcc, 32, v{t4}")
    poll([f"buffer_load_dwordx2 {vr(t1, 2)}, v{t3}, {sr(S_DBG, 4)}, 0 offen offset:{FLAG_OFF} sc1"], flag_check)
    A(f"s_lshr_b64 {sr(sC, 2)}, {sr(sC, 2)}, s{sFAST}")
    A(f"s_and_b32 s{sC}, s{sC}, 0xff")
    A(f"s_cmp_eq_u32 s{sC}, {99 if force_slow else 32}")
    A(f"s_cselect_b32 s{sFAST}, 1, 0")
    A(f"v_mov_b32 v{vCs}, v{D}")
    if dry:
        A.c("pass 0 walks the stages once with hand-off stores dropped (descriptor size 0) and no waiting")
        A(f"s_mov_b32 s{sPASS}, 0")
        A(f"s_mov_b32 s{sLIM}, 1")
        A(f"s_mov_b32 s{S_WST + 2}, 0")
    else:
        A(f"s_lshl_b32 s{sA}, s{sW}, 10")
        A(f"s_add_u32 s{sA}, s{sA}, {HBUF}")
        A(f"buffer_load_dwordx4 {vr(PT, 4)}, v{vLin}, {sr(S_WS, 4)}, s{sA} offen sc1")
        A(f"s_cmp_lg_u32 s{sW}, 0")
        A("s_cbranch_scc1 L_pass")
        A(f"buffer_store_short v{vXr}, v{vOs}, {sr(S_OUT, 4)}, 0 offen")
    A("L_pass:")
    stamp(3)
    A(f"s_cmp_ge_u32 s{sW}, 4")
    A("s_cbranch_scc1 L_s1_done")
    A.c("stage 1: combine the seven partial outputs of batch w, then y_t = o_t @ wo[head t]")
    poll([f"buffer_load_dwordx2 {vr(t1, 2)}, v{vLse}, {sr(S_WS, 4)}, 0 offen offset:2048 sc1"],
         lambda: A(f"v_cmp_ne_u32 vcc, s{sTAG}, v{t2}"))
    A(f"v_mov_b32 v{t2}, v{t1}")
    dpp_red("v_max_f32", [t2], [4, 2, 1])
    A(f"v_sub_f32 v{t1}, v{t1}, v{t2}")
    A(f"v_exp_f32 v{t1}, v{t1}")
    A(f"v_and_b32 v{t3}, 7, v{vL}")
    A(f"v_cmp_eq_u32 vcc, 7, v{t3}")
    A(f"v_cndmask_b32 v{t1}, v{t1}, 0, vcc")
    A(f"v_mov_b32 v{t2}, v{t1}")
    dpp_red("v_add_f32", [t2], [4, 2, 1])
    A(f"v_rcp_f32 v{t2}, v{t2}")
    A(f"v_mul_f32 v{t1}, v{t1}, v{t2}")
    for s in range(7):
        A(f"v_readlane_b32 s{sMASK + s}, v{t1}, {s}")
    A(f"s_mov_b32 s{sA}, {2 * REC}")
    A(f"s_mov_b32 s{sB}, {4 * REC}")
    A(f"s_mov_b32 s{sC}, {6 * REC}")
    so = ["0", f"s{sA}", f"s{sB}", f"s{sC}"]
    poll([f"buffer_load_dwordx2 {vr(PT + 2 * s, 2)}, v{vP}, {sr(S_WS, 4)}, {so[s >> 1]} offen offset:{(s & 1) * REC} sc1" for s in range(7)],
         lambda: tag_check(range(PT, PT + 14), [f"v{vTg0}", f"v{vTg1}"], t2))
    A(f"v_mul_f32 v{t1}, s{sMASK}, v{PT}")
    A(f"v_mul_f32 v{t2}, s{sMASK}, v{PT + 1}")
    for s in range(1, 7):
        A(f"v_fmac_f32 v{t1}, s{sMASK + s}, v{PT + 2 * s}")
        A(f"v_fmac_f32 v{t2}, s{sMASK + s}, v{PT + 2 * s + 1}")
    A(f"v_cvt_pk_bf16_f32 v{t1}, v{t1}, v{t2}")
    A(f"ds_write_b32 v{vOw}, v{t1} offset:{OL}")
    A("s_waitcnt lgkmcnt(0)")
    A("L_s1_done:")
    A("s_barrier")

    def ksplit_gemm(nk, lds_off, B, soff):
        for j in range(nk):
            A(f"ds_read_b128 {vr(AO + 4 * j, 4)}, v{vAr} offset:{lds_off + 256 * j}")
        for j in range(nk):
            A(f"s_waitcnt lgkmcnt({nk - 1 - j})")
            for i in range(4):
                mfma16(D + 4 * i, AO + 4 * j, B + 4 * nk * i + 4 * j, j == 0)
        for rho in (1, 2, 3):
            for r in range(4):
                A(f"v_mov_b32_dpp v{D + r}, v{D + 4 * rho + r} quad_perm:[0,1,2,3] row_mask:{1 << rho:#x} bank_mask:0xf")
        tag_put(D)
        store_mode([f"buffer_store_dwordx4 {vr(D, 4)}, v{vYs}, {sr(S_WST, 4)}, {soff} offen"])

    def gather_sum(soff, red, skip7):
        if skip7:
            A(f"v_mov_b32 v{PT}, 0")
            A(f"s_cmp_eq_u32 s{sW}, 7")
            A("s_cbranch_scc1 L_no_z")
        poll([f"buffer_load_dwordx4 {vr(PT, 4)}, v{vLin}, {sr(S_WS, 4)}, {soff} offen sc1"],
             lambda: tag_check(range(PT, PT + 4), TAGS, t1))
        rows_to_batches(PT)
        if skip7:
            A("L_no_z:")
        A(f"ds_write_b32 v{vRw}, v{PT} offset:{red}")
        A("s_waitcnt lgkmcnt(0)")
        A("s_barrier")

    def cross_sum(red):
        for i in range(4):
            A(f"ds_read2st64_b32 {vr(D + 2 * i, 2)}, v{vRr} offset0:{red // 256 + 2 * i} offset1:{red // 256 + 2 * i + 1}")
        A("s_waitcnt lgkmcnt(2)")
        A(f"v_pk_add_f32 {vr(D, 2)}, {vr(D, 2)}, {vr(D + 2, 2)}")
        A("s_waitcnt lgkmcnt(0)")
        A(f"v_pk_add_f32 {vr(D + 4, 2)}, {vr(D + 4, 2)}, {vr(D + 6, 2)}")
        A(f"v_pk_add_f32 {vr(D, 2)}, {vr(D, 2)}, {vr(D + 4, 2)}")
        A(f"v_add_f32 v{D}, v{D}, v{D + 1}")
        rb(D, D)

    ksplit_gemm(4, OL, BWO, "s18")
    stamp(4)
    A.c("stage 2: h = x + sum of the 32 head contributions, for 16 columns")
    gather_sum("s16", RED2, False)
    A(f"s_cmp_lg_u32 s{sW}, 0")
    A("s_cbranch_scc1 L_s2_done")
    cross_sum(RED2)
    A(f"v_add_f32 v{D}, v{D}, v{vXr}")
    A(f"v_mov_b32_dpp v{D + 1}, v{D} quad_perm:[1,1,3,3] row_mask:0xf bank_mask:0xf")
    A(f"v_cvt_pk_bf16_f32 v{D}, v{D}, v{D + 1}")
    A(f"v_min_u32 v{D + 1}, -2, v{D}")
    A("s_mov_b32 exec_lo, 0x55555555")
    A("s_mov_b32 exec_hi, 0x55555555")
    store_mode([f"buffer_store_dword v{D + 1}, v{vHs}, {sr(S_WST, 4)}, 0 offen"])
    A("s_mov_b64 exec, -1")
    A(f"v_lshlrev_b32 v{vH}, 16, v{D}")
    A(f"v_mov_b32_dpp v{t1}, v{vH} row_newbcast:0 row_mask:0xf bank_mask:0xf")
    A(f"v_sub_f32 v{t2}, v{vH}, v{t1}")
    A(f"v_mul_f32 v{t3}, v{t2}, v{t2}")
    dpp_red("v_add_f32", [t2, t3], [8, 4, 2, 1])
    A(f"v_mul_f32 v{t4}, 0x3d800000, v{t2}")
    A(f"v_fma_f32 v{t2}, -v{t4}, v{t2}, v{t3}")
    A(f"v_add_f32 v{t1}, v{t1}, v{t4}")
    A(f"v_min_u32 v{t1}, -2, v{t1}")
    A(f"v_min_u32 v{t2}, -2, v{t2}")
    A("s_mov_b32 exec_lo, 0x00010001")
    A("s_mov_b32 exec_hi, 0x00010001")
    store_mode([f"buffer_store_dwordx2 {vr(t1, 2)}, v{vSs}, {sr(S_WST, 4)}, 0 offen"])
    A("s_mov_b64 exec, -1")
    A("L_s2_done:")
    A("s_barrier")
    stamp(5)
    A(f"s_cmp_ge_u32 s{sT}, 28")
    A("s_cbranch_scc1 L_s3_done")
    A.c("stage 3: LayerNorm folded around h @ [w_gate | w_up], silu(g) * u, then act_t @ w_down[64 rows]")
    A(f"s_mov_b32 s{sA}, {HBUF}")
    A(f"s_mov_b32 s{sB}, {HSTAT}")
    poll([f"buffer_load_dwordx4 {vr(AO + 4 * j, 4)}, v{vLin}, {sr(S_WS, 4)}, s{sA} offen offset:{1024 * j} sc1" for j in range(4)],
         lambda: sentinel_check(range(AO, AO + 16), t1))
    statload = f"buffer_load_dwordx4 {vr(PT, 4)}, v{vLin}, {sr(S_WS, 4)}, s{sB} offen sc1"
    A(statload)
    for j in range(4):
        for rho in range(4):
            mfma16(D + 4 * rho, AO + 4 * j, BGU + 4 * (4 * rho + j), j == 0)
    A("s_waitcnt vmcnt(0)")
    sentinel_check(range(PT, PT + 4), t1)
    A("s_cbranch_vccz L_stat_ok")
    poll([statload], lambda: sentinel_check(range(PT, PT + 4), t1))
    A("L_stat_ok:")
    A(f"v_add_f32 v{t1}, v{PT}, v{PT + 2}")
    dpp_red("v_add_f32", [t1], [8, 4, 2, 1])
    A(f"v_mul_f32 v{t1}, 0x3d000000, v{t1}")
    A(f"v_sub_f32 v{PT}, v{PT}, v{t1}")
    A(f"v_sub_f32 v{PT + 2}, v{PT + 2}, v{t1}")
    A(f"v_mul_f32 v{PT}, v{PT}, v{PT}")
    A(f"v_fmac_f32 v{PT}, v{PT + 2}, v{PT + 2}")
    A(f"v_add_f32 v{t2}, v{PT + 1}, v{PT + 3}")
    A(f"v_fmac_f32 v{t2}, 0x41800000, v{PT}")
    dpp_red("v_add_f32", [t2], [8, 4, 2, 1])
    A(f"v_mul_f32 v{t2}, 0x3b000000, v{t2}")
    rb(t1, t1)
    rb(t2, t2)
    A(f"v_add_f32 v{t2}, 0x3727c5ac, v{t2}")
    rb(t2, t2)
    A(f"v_sqrt_f32 v{t2}, v{t2}")
    rb(t2, t2)
    A(f"v_rcp_f32 v{t2}, v{t2}")
    fold_d(D)
    A(f"v_fma_f32 v{D}, -v{t1}, v{vCs}, v{D}")
    A(f"v_mul_f32 v{D}, v{D}, v{t2}")
    A(f"v_mul_f32 v{t1}, 0xbfb8aa3b, v{D}")
    A(f"v_exp_f32 v{t1}, v{t1}")
    A(f"v_mul_f32_dpp v{D + 1}, v{D}, v{D} row_ror:8 row_mask:0xf bank_mask:0xf")
    A(f"v_add_f32 v{t1}, 1.0, v{t1}")
    A(f"v_rcp_f32 v{t1}, v{t1}")
    A(f"v_mul_f32 v{D}, v{D + 1}, v{t1}")
    A(f"v_cvt_pk_bf16_f32 v{D}, v{D}, v{D}")
    A("s_mov_b32 exec_lo, 0x00ff00ff")
    A("s_mov_b32 exec_hi, 0x00ff00ff")
    A(f"ds_write_b16 v{vAw}, v{D} offset:{AL}")
    A("s_mov_b64 exec, -1")
    A("s_waitcnt lgkmcnt(0)")
    A("s_barrier")
    ksplit_gemm(2, AL, BWD, "s19")
    A("L_s3_done:")
    stamp(6)
    A.c("stage 4: out = h + sum of the 28 down-projection contributions")
    gather_sum("s17", RED4, True)
    A(f"s_cmp_lg_u32 s{sW}, 0")
    A("s_cbranch_scc1 L_s4_done")
    cross_sum(RED4)
    A(f"v_add_f32 v{D}, v{D}, v{vH}")
    A(f"v_cvt_pk_bf16_f32 v{D}, v{D}, v{D}")
    A(f"buffer_store_short v{D}, v{vOs}, {sr(S_OUT, 4)}, 0 offen")
    A(f"s_cmp_lg_u32 s{sT}, 0")
    A("s_cbranch_scc1 L_s4_done")
    A.c("advance the epoch so that the next launch rejects this launch's hand-offs")
    A(f"v_mov_b32 v{t1}, s{sTAG}")
    A(f"v_mov_b32 v{t2}, {EPOCH}")
    A("s_mov_b64 exec, 1")
    A(f"buffer_store_dword v{t1}, v{t2}, {sr(S_WST, 4)}, 0 offen")
    A("s_mov_b64 exec, -1")
    A("L_s4_done:")
    if dry:
        A(f"s_cmp_lg_u32 s{sPASS}, 0")
        A("s_cbranch_scc1 L_fin")
        A(f"s_mov_b32 s{sPASS}, 1")
        A(f"s_mov_b32 s{sLIM}, {limit}")
        A(f"s_mov_b32 s{S_WST + 2}, {WS_SIZE:#x}")
        A("s_branch L_pass")

    A("L_fin:")
    if stamps:
        A("s_waitcnt vmcnt(0)")
        stamp(7)
        A("s_waitcnt lgkmcnt(0)")
        for i in range(8):
            A(f"v_mov_b32 v{16 + i}, s{sST + 2 * i}")
        A(f"s_lshl_b32 s{sA}, s2, 3")
        A(f"s_add_u32 s{sA}, s{sA}, s{sW}")
        A(f"s_lshl_b32 s{sA}, s{sA}, 5")
        A(f"s_add_u32 s{sA}, s{sA}, {STAMPS}")
        A("v_mov_b32 v4, 0")
        A("s_mov_b64 exec, 1")
        A(f"buffer_store_dwordx4 v[16:19], v4, {sr(S_WS, 4)}, s{sA} offen")
        A(f"buffer_store_dwordx4 v[20:23], v4, {sr(S_WS, 4)}, s{sA} offen offset:16")
    A("L_end:")
    A("s_endpgm")

    body, n = insert_waits(A.lines)
    out = HEADER
    out += "; @launch grid=(256,1,1) block=(512,1,1) lds=163840\n"
    out += '.amdgcn_target "amdgcn-amd-amdhsa--gfx950"\n.text\n'
    out += f".globl {NAME}\n.p2align 8\n.type {NAME},@function\n"
    out += "\n".join(("" if t.endswith(":") else "    ") + t for t in body) + "\n"
    out += f""".section .rodata,"a"
.p2align 6
.amdhsa_kernel {NAME}
  .amdhsa_next_free_vgpr 256
  .amdhsa_next_free_sgpr 102
  .amdhsa_accum_offset 256
  .amdhsa_group_segment_fixed_size 0
  .amdhsa_kernarg_size 96
  .amdhsa_user_sgpr_count 2
  .amdhsa_user_sgpr_kernarg_segment_ptr 1
  .amdhsa_system_sgpr_workgroup_id_x 1
  .amdhsa_float_denorm_mode_32 3
.end_amdhsa_kernel
"""
    return out


if __name__ == "__main__":
    kw = {}
    for a in sys.argv[2:]:
        k, v = a.split("=")
        kw[k] = eval(v)
    open(sys.argv[1], "w").write(gen(**kw))
```

```python
import sys
sys.path.insert(0, "exp")
from asmlib import Asm, vr, sr, insert_waits

NAME = "sequential_preLN__sliding_block_cached__swiglu_ffn__decode_kernel"
HEADER = open("sequential_preLN__sliding_block_cached__swiglu_ffn__decode.s.ref").read().split("; Override launch")[0]

QP, YBUF, ZBUF, HBUF, HSTAT, EPOCH, OBUF, STAMPS = 0x0, 0x40000, 0x80000, 0xc0000, 0xc1000, 0xc2000, 0xc4000, 0x180000
VERSION = 3
REC = 2176
WS_SIZE = 0x200000
FLAG_OFF = 0

S_X, S_WQ, S_WS, S_WST, S_A, S_B, S_WG, S_WU, S_OUT, S_DBG = 28, 32, 36, 40, 44, 48, 52, 56, 60, 64
sW, sXI, sT, sLIM, sCNT, sPASS, sFAST, sLB, sT0, sNT = 68, 69, 70, 71, 72, 73, 74, 75, 76, 77
sA, sB, sC, sD = 78, 79, 80, 81
sSELLO, sSELHI, sREC, sTAG = 82, 83, 84, 85
sSTR = 3
sMASK = 4
sTB = 12
sST = 86
vL, vN, vG = 1, 2, 3
vFF = 255
QL, ML, LL, PB = 151552, 152576, 152640, 153600


def gen(tailx=7, kvflags="nt", wqflags="nt", woflags="nt", guflags="nt", wdflags="nt", stamps=False, force_slow=False,
        dry=False, limit=0x40000, window=6, kprio=0, amp=None):
    A = Asm()

    def stamp(i):
        if stamps or (amp and i in (0, amp[0])):
            A(f"s_memrealtime {sr(sST + 2 * i, 2)}")

    def srd(base, ptr, size):
        A(f"s_mov_b32 s{base}, s{ptr}")
        A(f"s_mov_b32 s{base + 1}, s{ptr + 1}")
        A(f"s_mov_b32 s{base + 2}, {size:#x}")
        A(f"s_mov_b32 s{base + 3}, 0x20000")

    def rb(dst, src):
        A(f"v_cvt_pk_bf16_f32 v{dst}, v{src}, v{src}")
        A(f"v_lshlrev_b32 v{dst}, 16, v{dst}")

    def allred_rows(op, v, t):
        A(f"v_mov_b32 v{t}, v{v}")
        A(f"v_permlane32_swap_b32 v{v}, v{t}")
        A(f"{op} v{v}, v{v}, v{t}")
        A(f"v_mov_b32 v{t}, v{v}")
        A(f"v_permlane16_swap_b32 v{v}, v{t}")
        A(f"{op} v{v}, v{v}, v{t}")

    def dpp_red(op, regs, rots):
        for r in rots:
            for v in regs:
                A(f"{op}_dpp v{v}, v{v}, v{v} row_ror:{r} row_mask:0xf bank_mask:0xf")

    def rows_to_batches(D):
        A(f"v_permlane32_swap_b32 v{D}, v{D + 2}")
        A(f"v_permlane32_swap_b32 v{D + 1}, v{D + 3}")
        A(f"v_add_f32 v{D}, v{D}, v{D + 2}")
        A(f"v_add_f32 v{D + 1}, v{D + 1}, v{D + 3}")
        A(f"v_permlane16_swap_b32 v{D}, v{D + 1}")
        A(f"v_add_f32 v{D}, v{D}, v{D + 1}")

    def fold_d(D):
        for rho in (1, 2, 3):
            for r in range(4):
                A(f"v_mov_b32_dpp v{D + r}, v{D + 4 * rho + r} quad_perm:[0,1,2,3] row_mask:{1 << rho:#x} bank_mask:0xf")
        rows_to_batches(D)

    def mfma16(D, Areg, Breg, first):
        c = "0" if first else vr(D, 4)
        A(f"v_mfma_f32_16x16x32_bf16 {vr(D, 4)}, {vr(Areg, 4)}, {vr(Breg, 4)}, {c}")

    def sentinel_check(regs, t):
        regs = list(regs)
        if len(regs) % 2 == 0:
            A(f"v_max_u32 v{t}, v{regs[0]}, v{regs[1]}")
            rest = regs[2:]
        else:
            A(f"v_max3_u32 v{t}, v{regs[0]}, v{regs[1]}, v{regs[2]}")
            rest = regs[3:]
        for i in range(0, len(rest), 2):
            A(f"v_max3_u32 v{t}, v{t}, v{rest[i]}, v{rest[i + 1]}")
        A(f"v_cmp_eq_u32 vcc, -1, v{t}")

    def tag_check(regs, tags, t):
        regs = list(regs)
        for i, r in enumerate(regs):
            A(f"v_xor_b32 v{r}, {tags[i % len(tags)]}, v{r}")
        A(f"v_or_b32 v{t}, v{regs[0]}, v{regs[1]}")
        for i in range(2, len(regs), 2):
            A(f"v_or3_b32 v{t}, v{t}, v{regs[i]}, v{regs[i + 1]}")
        A(f"v_and_b32 v{t}, 0xff, v{t}")
        A(f"v_cmp_ne_u32 vcc, 0, v{t}")

    TAGS = [f"s{sTB + i}" for i in range(4)]

    def tag_put(D):
        for i in range(4):
            A(f"v_bfi_b32 v{D + i}, v{vFF}, s{sTB + i}, v{D + i}")

    def poll(loads, check, wait="s_waitcnt vmcnt(0)", sleep=0):
        top, out = A.label("poll"), A.label("polled")
        A(f"s_mov_b32 s{sCNT}, 0")
        A(f"{top}:")
        for l in loads:
            A(l)
        A(f"s_add_u32 s{sCNT}, s{sCNT}, 1")
        A(f"s_cmp_ge_u32 s{sCNT}, s{sLIM}")
        A(wait)
        check()
        A(f"s_cbranch_scc1 {out}")
        if sleep:
            A(f"s_cbranch_vccz {out}")
            A(f"s_sleep {sleep}")
            A(f"s_branch {top}")
        else:
            A(f"s_cbranch_vccnz {top}")
        A(f"{out}:")

    def make_tag():
        A("s_waitcnt lgkmcnt(0)")
        A(f"s_add_u32 s{sTAG}, s{sTAG}, 0x9e3779b1")
        for i in range(4):
            A(f"s_bfe_u32 s{sTB + i}, s{sTAG}, {0x80000 + 8 * i:#x}")

    def set_masks():
        for i in range(4):
            A(f"s_mov_b32 s{sMASK + 2 * i}, {0x000f000f << (4 * i):#x}")
            A(f"s_mov_b32 s{sMASK + 2 * i + 1}, {0x000f000f << (4 * i):#x}")

    def store_mode(texts):
        slow, done = A.label("slow"), A.label("stored")
        A(f"s_cmp_eq_u32 s{sFAST}, 0")
        A(f"s_cbranch_scc1 {slow}")
        for t in texts:
            A(t)
        A(f"s_branch {done}")
        A(f"{slow}:")
        for t in texts:
            A(t + " sc1" if t.startswith("buffer_") else t)
        A(f"{done}:")

    def line_tile_addr(dst, base_s, t1, t2):
        A(f"v_bfe_u32 v{t1}, v{vN}, 3, 1")
        A(f"v_and_b32 v{t2}, 1, v{vG}")
        A(f"v_lshl_or_b32 v{t1}, v{t2}, 1, v{t1}")
        A(f"v_lshlrev_b32 v{t1}, 5, v{t1}")
        A(f"v_and_b32 v{t2}, 3, v{vN}")
        A(f"v_lshl_add_u32 v{t1}, v{t2}, 3, v{t1}")
        A(f"v_lshrrev_b32 v{t2}, 2, v{vN}")
        A(f"v_lshl_add_u32 v{t1}, v{t2}, 7, v{t1}")
        A(f"v_lshl_add_u32 v{t1}, v{vG}, 10, v{t1}")
        for i in range(4):
            A(f"v_xor_b32 v{dst + i}, {32 * i}, v{t1}")
            if base_s is not None:
                A(f"v_add_u32 v{dst + i}, s{base_s}, v{dst + i}")

    def line_tile_read(dst, addr, off):
        for i in range(4):
            A(f"ds_read_b64_tr_b16 {vr(dst(i), 2)}, v{addr + i} offset:{off}")
            A(f"ds_read_b64_tr_b16 {vr(dst(i) + 2, 2)}, v{addr + i} offset:{off + 512}")

    def swz_chunk(dst, t):
        A(f"v_and_b32 v{t}, 1, v{vG}")
        A(f"v_lshlrev_b32 v{t}, 1, v{t}")
        A(f"v_and_b32 v{dst}, 7, v{vL}")
        A(f"v_xor_b32 v{dst}, v{dst}, v{t}")
        A(f"v_lshlrev_b32 v{dst}, 4, v{dst}")

    A(f"{NAME}:")
    stamp(0)
    A("s_cmp_ge_u32 s2, 256")
    A("s_cbranch_scc1 L_end")
    A("s_load_dwordx16 s[4:19], s[0:1], 0")
    A("s_load_dwordx8 s[20:27], s[0:1], 64")
    A("v_lshrrev_b32 v4, 6, v0")
    A(f"v_and_b32 v{vL}, 63, v0")
    A(f"v_readfirstlane_b32 s{sW}, v4")
    A(f"v_and_b32 v{vN}, 15, v0")
    A(f"v_bfe_u32 v{vG}, v0, 4, 2")
    A(f"v_mov_b32 v{vFF}, 0xff")
    A(f"s_and_b32 s{sXI}, s2, 7")
    A(f"s_lshr_b32 s{sT}, s2, 3")
    A(f"s_mov_b32 s{sLIM}, {limit}")
    A.c("LDS: q copy and max slots start empty, probabilities of absent tiles are zero")
    for i in range(4):
        A(f"v_mov_b32 v{8 + i}, -1")
        A(f"v_mov_b32 v{12 + i}, 0")
    A(f"v_lshlrev_b32 v6, 4, v{vL}")
    A(f"v_add_u32 v7, {QL}, v6")
    A("ds_write_b128 v7, v[8:11]")
    A("ds_write_b128 v7, v[8:11] offset:1024")
    A(f"ds_write_b128 v7, v[12:15] offset:{PB + 4096 - QL}")
    A.c("split = (x - tailx - 1) & 7 and the record offset of this attention workgroup")
    A(f"s_sub_u32 s{sB}, s{sXI}, {tailx + 1}")
    A(f"s_and_b32 s{sB}, s{sB}, 7")
    A(f"s_lshl_b32 s{sREC}, s{sT}, 3")
    A(f"s_add_u32 s{sREC}, s{sREC}, s{sB}")
    A(f"s_mul_i32 s{sREC}, s{sREC}, {REC}")
    A(f"s_add_u32 s{sREC}, s{sREC}, {OBUF}")
    A.c("effective split s' = (split + pair) mod 7, byte offset of its first tile, tile count")
    A(f"s_add_u32 s{sB}, s{sB}, s{sT}")
    A(f"s_mul_i32 s{sA}, s{sB}, 37")
    A(f"s_lshr_b32 s{sA}, s{sA}, 8")
    A(f"s_mul_i32 s{sA}, s{sA}, 7")
    A(f"s_sub_u32 s{sB}, s{sB}, s{sA}")
    A(f"s_mul_i32 s{sT0}, s{sB}, 37")
    A(f"s_max_u32 s{sA}, s{sB}, 4")
    A(f"s_sub_u32 s{sA}, s{sA}, 4")
    A(f"s_sub_u32 s{sT0}, s{sT0}, s{sA}")
    A(f"s_cmp_lt_u32 s{sB}, 4")
    A(f"s_cselect_b32 s{sNT}, 37, 36")
    A(f"s_lshl_b32 s{sT0}, s{sT0}, 12")
    A(f"s_lshl_b32 s{sA}, s{sT}, 22")
    A(f"s_add_u32 s{sT0}, s{sT0}, s{sA}")
    A(f"s_add_u32 s{sT0}, s{sT0}, 0x300000")
    A("s_waitcnt lgkmcnt(0)")
    A(f"s_load_dword s{sTAG}, s[26:27], {EPOCH}")
    srd(S_WS, 26, WS_SIZE)
    srd(S_WST, 26, WS_SIZE)
    srd(S_X, 4, 4096)
    A(f"s_cmp_eq_u32 s{sXI}, {tailx}")
    A("s_cbranch_scc1 L_tail_srd")
    srd(S_A, 6, 0x8000000)
    srd(S_B, 8, 0x8000000)
    A("s_branch L_srd_done")
    A("L_tail_srd:")
    srd(S_A, 12, 4096 * 1024)
    srd(S_B, 20, 1792 * 1024)
    A("L_srd_done:")
    A(f"s_cmp_lg_u32 s{sW}, 0")
    A("s_cbranch_scc1 L_after_q")

    A.c("q job: LayerNorm(x)[:, 128 kq : 128 kq + 128] @ wq[those rows, 64 columns]")
    srd(S_WQ, 10, 512 * 8192)
    XR, XF, QB, QD = 16, 32, 64, 128
    A(f"v_and_b32 v4, 3, v{vN}")
    A("v_lshlrev_b32 v4, 10, v4")
    A(f"v_lshrrev_b32 v5, 2, v{vN}")
    A("v_lshl_add_u32 v4, v5, 8, v4")
    A(f"v_lshl_add_u32 v4, v{vG}, 4, v4")
    for j in range(4):
        A(f"buffer_load_dwordx4 {vr(XR + 4 * j, 4)}, v4, {sr(S_X, 4)}, 0 offen offset:{64 * j}")
    swz_chunk(5, 6)
    A(f"v_lshrrev_b32 v6, 3, v{vL}")
    A("v_lshl_add_u32 v5, v6, 13, v5")
    A("v_xor_b32 v6, 64, v5")
    A(f"s_lshl_b32 s{sA}, s{sXI}, 10")
    A(f"s_lshr_b32 s{sB}, s{sT}, 2")
    A(f"s_lshl_b32 s{sB}, s{sB}, 7")
    A(f"s_add_u32 s{sA}, s{sA}, s{sB}")
    A(f"s_and_b32 s{sB}, s{sT}, 3")
    A(f"s_lshl_b32 s{sB}, s{sB}, 20")
    A(f"s_add_u32 s{sA}, s{sA}, s{sB}")
    for i in range(16):
        A(f"s_mov_b32 m0, {1024 * i}")
        if i:
            A(f"s_add_u32 s{sA}, s{sA}, {8 * 8192}")
        A(f"buffer_load_dwordx4 v{5 + (i & 1)}, {sr(S_WQ, 4)}, s{sA} offen {wqflags} lds")
    A("s_barrier")
    line_tile_addr(8, None, 6, 7)
    A("s_waitcnt vmcnt(16)")
    for i in range(16):
        A(f"v_lshlrev_b32 v{XF + 2 * i}, 16, v{XR + i}")
        A(f"v_and_b32 v{XF + 2 * i + 1}, 0xffff0000, v{XR + i}")
    A(f"v_pk_add_f32 v[12:13], {vr(XF, 2)}, {vr(XF + 2, 2)}")
    A(f"v_pk_add_f32 v[14:15], {vr(XF + 4, 2)}, {vr(XF + 6, 2)}")
    for i in range(4, 16, 2):
        A(f"v_pk_add_f32 v[12:13], v[12:13], {vr(XF + 2 * i, 2)}")
        A(f"v_pk_add_f32 v[14:15], v[14:15], {vr(XF + 2 * i + 2, 2)}")
    A("v_pk_add_f32 v[12:13], v[12:13], v[14:15]")
    A("v_add_f32 v12, v12, v13")
    dpp_red("v_add_f32", [12], [8, 4])
    allred_rows("v_add_f32", 12, 13)
    A("v_mul_f32 v12, 0x3b000000, v12")
    A("v_mov_b32 v14, 0")
    A("v_mov_b32 v15, 0")
    for i in range(16):
        A(f"v_pk_add_f32 v[144:145], {vr(XF + 2 * i, 2)}, v[12:13] op_sel_hi:[1,0] neg_lo:[0,1] neg_hi:[0,1]")
        A("v_pk_fma_f32 v[14:15], v[144:145], v[144:145], v[14:15]")
    A("v_add_f32 v14, v14, v15")
    dpp_red("v_add_f32", [14], [8, 4])
    allred_rows("v_add_f32", 14, 15)
    A("v_mul_f32 v14, 0x3b000000, v14")
    rb(12, 12)
    rb(14, 14)
    A("v_add_f32 v14, 0x3727c5ac, v14")
    rb(14, 14)
    A("v_sqrt_f32 v14, v14")
    rb(14, 14)
    A("v_rcp_f32 v14, v14")
    for i in range(16):
        p = XF + 2 * i
        A(f"v_pk_add_f32 {vr(p, 2)}, {vr(p, 2)}, v[12:13] op_sel_hi:[1,0] neg_lo:[0,1] neg_hi:[0,1]")
        A(f"v_cvt_pk_bf16_f32 v{p + 1}, v{p}, v{p + 1}")
        A(f"v_lshlrev_b32 v{p}, 16, v{p + 1}")
        A(f"v_and_b32 v{p + 1}, 0xffff0000, v{p + 1}")
        A(f"v_pk_mul_f32 {vr(p, 2)}, {vr(p, 2)}, v[14:15] op_sel_hi:[1,0]")
        A(f"v_cvt_pk_bf16_f32 v{XR + i}, v{p}, v{p + 1}")
    A("s_waitcnt vmcnt(0)")
    for j in range(4):
        line_tile_read(lambda i: QB + 16 * i + 4 * j, 8, 4096 * j)
        A("s_waitcnt lgkmcnt(0)")
        for i in range(4):
            mfma16(QD + 4 * i, QB + 16 * i + 4 * j, XR + 4 * j, j == 0)
    A.c("QP byte = (b*8 + x)*8192 + kq*2048 + (64*(t>>2) + 16*tile + 4g)*4, lanes of column group kq hold it")
    make_tag()
    A(f"s_lshl_b32 s{sA}, s{sXI}, 13")
    A(f"s_and_b32 s{sB}, s{sT}, 3")
    A(f"s_lshl_b32 s{sC}, s{sB}, 11")
    A(f"s_add_u32 s{sA}, s{sA}, s{sC}")
    A(f"s_lshr_b32 s{sC}, s{sT}, 2")
    A(f"s_lshl_b32 s{sC}, s{sC}, 8")
    A(f"s_add_u32 s{sA}, s{sA}, s{sC}")
    A(f"s_lshl_b32 s{sB}, s{sB}, 2")
    A(f"s_lshl_b32 s{sB}, 0x000f000f, s{sB}")
    A(f"v_and_b32 v4, 3, v{vN}")
    A("v_lshlrev_b32 v4, 16, v4")
    A(f"v_lshl_add_u32 v4, v{vG}, 4, v4")
    for i in range(16):
        A(f"v_add_u32 v{QD + i}, 0x80, v{QD + i}")
    for i in range(4):
        tag_put(QD + 4 * i)
    A(f"s_mov_b32 exec_lo, s{sB}")
    A(f"s_mov_b32 exec_hi, s{sB}")
    for i in range(4):
        A(f"buffer_store_dwordx4 {vr(QD + 4 * i, 4)}, v4, {sr(S_WST, 4)}, s{sA} offen offset:{QP + 64 * i} sc1")
    A("s_mov_b64 exec, -1")
    stamp(1)
    A("L_after_q:")
    A(f"s_cmp_eq_u32 s{sXI}, {tailx}")
    A("s_cbranch_scc1 L_tail")
    A(f"s_cmp_ge_u32 s{sW}, 4")
    A("s_cbranch_scc1 L_vwave")

    A.c("K wave k: stage its key tiles in LDS, scores, workgroup max, probabilities")
    KO, KA, QO = 4, 8, 12
    vM, vLs, vT1, vT2 = 14, 15, 62, 63
    Q, S, PA, QM, KF, QG = 16, 32, 44, 64, 128, 160
    if kprio:
        A(f"s_setprio {kprio}")
    A(f"v_lshlrev_b32 v{vT1}, 2, v{vG}")
    A(f"v_xor_b32 v{vT1}, v{vT1}, v{vN}")
    A(f"v_lshlrev_b32 v{vT1}, 4, v{vT1}")
    A(f"v_lshl_add_u32 v{KO}, v{vG}, 8, v{vT1}")
    for i in (1, 2, 3):
        A(f"v_xor_b32 v{KO + i}, {16 * i}, v{KO}")
    A.c("wave 0: tiles 30.., stride 1; waves 1-3: tiles k-1, k+2, ..")
    A(f"s_mul_i32 s{sLB}, s{sW}, 40960")
    A(f"s_sub_u32 s{sLB}, s{sLB}, 12288")
    A(f"s_sub_u32 s{sD}, s{sW}, 1")
    A(f"s_sub_u32 s{sNT}, s{sNT}, 30")
    A(f"s_cmp_eq_u32 s{sW}, 0")
    A(f"s_cselect_b32 s{sLB}, 0, s{sLB}")
    A(f"s_cselect_b32 s{sD}, 30, s{sD}")
    A(f"s_cselect_b32 s{sSTR}, 1, 3")
    A(f"s_cselect_b32 s{sNT}, s{sNT}, 10")
    A(f"s_lshl_b32 s{sA}, s{sD}, 12")
    A(f"s_add_u32 s{sB}, s{sT0}, s{sA}")
    A(f"s_lshl_b32 s{sC}, s{sSTR}, 12")
    A(f"s_mov_b32 s{sA}, s{sLB}")
    for slot in range(10):
        if slot >= 6 and slot <= 7:
            A(f"s_cmp_le_u32 s{sNT}, {slot}")
            A("s_cbranch_scc1 L_k_issued")
        A(f"s_mov_b32 m0, s{sA}")
        A(f"s_add_u32 s{sA}, s{sA}, 4096")
        for i in range(4):
            A(f"buffer_load_dwordx4 v{KO + i}, {sr(S_A, 4)}, s{sB} offen offset:{1024 * i} {kvflags} lds")
        A(f"s_add_u32 s{sB}, s{sB}, s{sC}")
        if slot == 0:
            A(f"s_cmp_eq_u32 s{sW}, 0")
            A("s_cbranch_scc1 L_k_nobar")
            A("s_barrier")
            A("L_k_nobar:")
    A("L_k_issued:")
    stamp(2)
    A(f"s_cmp_lg_u32 s{sW}, 0")
    A("s_cbranch_scc1 L_k_tag")
    A.c("wave 0 sums the four q partials of this batch / kv head into LDS (operand order)")
    A(f"v_lshlrev_b32 v{vT2}, 4, v{vL}")
    A(f"s_lshl_b32 s{sA}, s{sT}, 13")
    A(f"s_add_u32 s{sB}, s{sA}, 4096")
    A(f"v_bfe_u32 v{QO}, v{vL}, 1, 4")
    A(f"v_lshlrev_b32 v{QO}, 6, v{QO}")
    A(f"v_lshrrev_b32 v{vT1}, 5, v{vL}")
    A(f"v_lshl_add_u32 v{QO}, v{vT1}, 4, v{QO}")
    A(f"v_and_b32 v{vT1}, 1, v{vL}")
    A(f"v_lshl_add_u32 v{QO}, v{vT1}, 3, v{QO}")
    A(f"v_add_u32 v{QO}, {QL}, v{QO}")
    poll([f"buffer_load_dwordx4 {vr(QG + 4 * i, 4)}, v{vT2}, {sr(S_WS, 4)}, s{sA if i < 4 else sB} offen offset:{QP + 1024 * (i & 3)} sc1" for i in range(8)],
         lambda: tag_check(range(QG, QG + 32), TAGS, vT1))
    for p in range(0, 8, 2):
        A(f"v_pk_add_f32 {vr(QG + p, 2)}, {vr(QG + p, 2)}, {vr(QG + 8 + p, 2)}")
        A(f"v_pk_add_f32 {vr(QG + 16 + p, 2)}, {vr(QG + 16 + p, 2)}, {vr(QG + 24 + p, 2)}")
        A(f"v_pk_add_f32 {vr(QG + p, 2)}, {vr(QG + p, 2)}, {vr(QG + 16 + p, 2)}")
        A(f"v_cvt_pk_bf16_f32 v{QG + 32 + p // 2}, v{QG + p}, v{QG + p + 1}")
        A(f"v_min_u32 v{QG + 32 + p // 2}, -2, v{QG + 32 + p // 2}")
    A(f"ds_write_b64 v{QO}, {vr(QG + 32, 2)}")
    A(f"ds_write_b64 v{QO}, {vr(QG + 34, 2)} offset:32")
    A("s_branch L_k_setup")
    A("L_k_tag:")
    make_tag()
    A("L_k_setup:")
    A.c("K fragment LDS addresses: key(mu)*256 + ((4j + g) ^ mu)*16, key(mu) = 4*(mu&3) + (mu>>2)")
    A(f"v_and_b32 v{vT1}, 3, v{vN}")
    A(f"v_lshlrev_b32 v{QO}, 4, v{vT1}")
    A(f"v_lshlrev_b32 v{vT1}, 10, v{vT1}")
    A(f"v_lshrrev_b32 v{vT2}, 2, v{vN}")
    A(f"v_lshl_add_u32 v{vT1}, v{vT2}, 8, v{vT1}")
    A(f"v_xor_b32 v{vM}, v{vG}, v{vN}")
    A(f"v_lshl_add_u32 v{vT1}, v{vM}, 4, v{vT1}")
    for j in range(4):
        A(f"v_xor_b32 v{KA + j}, {64 * j}, v{vT1}")
        A(f"v_add_u32 v{KA + j}, s{sLB}, v{KA + j}")
    A(f"v_add_u32 v{QO + 1}, {ML}, v{QO}")
    A(f"v_lshl_add_u32 v{QO}, v{vG}, 6, v{QO}")
    A.c("probability slot of tile tau: PB + (tau>>3)*1024 + (tau&3)*256 + g*64 + h*16 + ((tau>>2)&1)*8")
    for a in range(3):
        A(f"v_add_u32 v{vT1}, {4 * a}, v{vT2}")
        A(f"v_mul_lo_u32 v{vT1}, s{sSTR}, v{vT1}")
        A(f"v_add_u32 v{vT1}, s{sD}, v{vT1}")
        A(f"v_lshrrev_b32 v{vM}, 3, v{vT1}")
        A(f"v_lshl_add_u32 v{PA + a}, v{vM}, 10, v{QO}")
        A(f"v_and_b32 v{vM}, 3, v{vT1}")
        A(f"v_lshl_add_u32 v{PA + a}, v{vM}, 8, v{PA + a}")
        A(f"v_bfe_u32 v{vM}, v{vT1}, 2, 1")
        A(f"v_lshl_add_u32 v{PA + a}, v{vM}, 3, v{PA + a}")
        A(f"v_add_u32 v{PA + a}, {PB}, v{PA + a}")
    A(f"v_add_u32 v{QO}, {QL}, v{QO}")
    A.c("lanes whose tile exists: s[16:17] for accumulator 1, s[18:19] for accumulator 2")
    A(f"v_add_u32 v{vT1}, 4, v{vT2}")
    A(f"v_cmp_gt_u32 s[16:17], s{sNT}, v{vT1}")
    A(f"v_add_u32 v{vT1}, 8, v{vT2}")
    A(f"v_cmp_gt_u32 s[18:19], s{sNT}, v{vT1}")
    set_masks()
    for i in range(64):
        A(f"v_mov_b32 v{QM + i}, 0")
    for i in range(8, 12):
        A(f"v_mov_b32 v{S + i}, 0")
    poll([f"ds_read_b128 {vr(Q + 4 * j, 4)}, v{QO} offset:{256 * j}" for j in range(4)],
         lambda: sentinel_check(range(Q, Q + 16), vT1), wait="s_waitcnt lgkmcnt(0)", sleep=2)
    for rho in range(4):
        A(f"s_mov_b64 exec, {sr(sMASK + 2 * rho, 2)}")
        for j in range(4):
            A(f"ds_read_b128 {vr(QM + 16 * rho + 4 * j, 4)}, v{QO} offset:{256 * j}")
        if rho & 1:
            A("s_waitcnt lgkmcnt(0)")
    A("s_mov_b64 exec, -1")
    A("s_waitcnt vmcnt(0)")
    stamp(3)

    def qk_reads(slot):
        for j in range(4):
            A(f"ds_read_b128 {vr(KF + 16 * (slot & 1) + 4 * j, 4)}, v{KA + j} offset:{4096 * slot}")

    qk_reads(0)
    for slot in range(10):
        if slot in (6, 7):
            A(f"s_cmp_le_u32 s{sNT}, {slot}")
            A("s_cbranch_scc1 L_qk_done")
        if slot < 9:
            qk_reads(slot + 1)
            A("s_waitcnt lgkmcnt(4)")
        else:
            A("s_waitcnt lgkmcnt(0)")
        for j in range(4):
            mfma16(S + 4 * (slot >> 2), KF + 16 * (slot & 1) + 4 * j, QM + 16 * (slot & 3) + 4 * j, j == 0 and (slot & 3) == 0)
    A("L_qk_done:")
    A.c("scores: bf16(bf16(q.k) * Dh^-0.5); absent tiles get -inf")
    A(f"s_mov_b32 s{sA}, 0x3db504f3")
    A(f"s_mov_b32 s{sB}, 0x3fb8aa3b")
    A(f"v_mov_b32 v{vT1}, 0xff800000")
    for i in range(0, 12, 2):
        p = S + i
        A(f"v_cvt_pk_bf16_f32 v{p + 1}, v{p}, v{p + 1}")
        A(f"v_lshlrev_b32 v{p}, 16, v{p + 1}")
        A(f"v_and_b32 v{p + 1}, 0xffff0000, v{p + 1}")
        A(f"v_mul_f32 v{p}, s{sA}, v{p}")
        A(f"v_mul_f32 v{p + 1}, s{sA}, v{p + 1}")
        A(f"v_cvt_pk_bf16_f32 v{p + 1}, v{p}, v{p + 1}")
        A(f"v_lshlrev_b32 v{p}, 16, v{p + 1}")
        A(f"v_and_b32 v{p + 1}, 0xffff0000, v{p + 1}")
        if i >= 4:
            m = "s[16:17]" if i < 8 else "s[18:19]"
            A(f"v_cndmask_b32 v{p}, v{vT1}, v{p}, {m}")
            A(f"v_cndmask_b32 v{p + 1}, v{vT1}, v{p + 1}, {m}")
    A(f"v_max_f32 v{vM}, v{S}, v{S + 1}")
    for i in range(2, 12, 2):
        A(f"v_max3_f32 v{vM}, v{vM}, v{S + i}, v{S + i + 1}")
    dpp_red("v_max_f32", [vM], [8, 4])
    allred_rows("v_max_f32", vM, vT1)
    A(f"v_min_u32 v{vM}, -2, v{vM}")
    A(f"s_lshl_b32 s{sA}, s{sW}, 2")
    A(f"v_add_u32 v{vT2}, s{sA}, v{QO + 1}")
    A("s_mov_b64 exec, 15")
    A(f"ds_write_b32 v{vT2}, v{vM}")
    A("s_mov_b64 exec, -1")
    poll([f"ds_read_b128 {vr(Q, 4)}, v{QO + 1}"], lambda: sentinel_check(range(Q, Q + 4), vT1),
         wait="s_waitcnt lgkmcnt(0)", sleep=1)
    A(f"v_max_f32 v{vM}, v{Q}, v{Q + 1}")
    A(f"v_max3_f32 v{vM}, v{vM}, v{Q + 2}, v{Q + 3}")
    for i in range(12):
        A(f"v_sub_f32 v{S + i}, v{S + i}, v{vM}")
        A(f"v_mul_f32 v{S + i}, s{sB}, v{S + i}")
        A(f"v_exp_f32 v{S + i}, v{S + i}")
    A(f"v_mul_f32 v{vM}, s{sB}, v{vM}")
    for i in range(6):
        A(f"v_cvt_pk_bf16_f32 v{Q + i}, v{S + 2 * i}, v{S + 2 * i + 1}")
    A(f"ds_write_b64 v{PA}, {vr(Q, 2)}")
    A("s_mov_b64 exec, s[16:17]")
    A(f"ds_write_b64 v{PA + 1}, {vr(Q + 2, 2)}")
    A("s_mov_b64 exec, s[18:19]")
    A(f"ds_write_b64 v{PA + 2}, {vr(Q + 4, 2)}")
    A("s_mov_b64 exec, -1")
    A(f"v_add_f32 v{vLs}, v{S}, v{S + 1}")
    for i in range(2, 12):
        A(f"v_add_f32 v{vLs}, v{vLs}, v{S + i}")
    dpp_red("v_add_f32", [vLs], [8, 4])
    allred_rows("v_add_f32", vLs, vT1)
    A("s_mov_b64 exec, 15")
    A(f"ds_write_b32 v{vT2}, v{vLs} offset:{LL - ML}")
    A("s_mov_b64 exec, -1")
    A("s_waitcnt lgkmcnt(0)")
    stamp(4)
    A("s_barrier")
    A(f"s_cmp_ge_u32 s{sW}, 2")
    A("s_cbranch_scc1 L_k_lse")
    A.c("waves 0,1: thread G owns 16 bytes of the record, head G>>5, scaled by 1/L")
    A(f"v_and_b32 v{KA + 2}, 127, v0")
    A(f"v_lshrrev_b32 v{KA}, 5, v{KA + 2}")
    A(f"v_lshlrev_b32 v{KA + 3}, 1, v{KA}")
    A(f"v_lshlrev_b32 v{KA}, 4, v{KA}")
    A(f"v_add_u32 v{KA}, {LL}, v{KA}")
    A(f"ds_read_b128 {vr(Q, 4)}, v{KA}")
    A(f"v_xor_b32 v{KA + 3}, v{KA + 3}, v{KA + 2}")
    A(f"v_lshlrev_b32 v{KA + 3}, 4, v{KA + 3}")
    A(f"v_lshlrev_b32 v{KA + 2}, 4, v{KA + 2}")
    A("s_waitcnt lgkmcnt(0)")
    A(f"v_add_f32 v{Q}, v{Q}, v{Q + 1}")
    A(f"v_add_f32 v{Q + 2}, v{Q + 2}, v{Q + 3}")
    A(f"v_add_f32 v{Q}, v{Q}, v{Q + 2}")
    A(f"v_rcp_f32 v{vM}, v{Q}")
    A("s_barrier")
    for w in range(4):
        A(f"ds_read_b128 {vr(Q + 4 * w, 4)}, v{KA + 3} offset:{2048 * w}")
    A("s_waitcnt lgkmcnt(2)")
    A(f"v_pk_add_f32 {vr(Q, 2)}, {vr(Q, 2)}, {vr(Q + 4, 2)}")
    A(f"v_pk_add_f32 {vr(Q + 2, 2)}, {vr(Q + 2, 2)}, {vr(Q + 6, 2)}")
    A("s_waitcnt lgkmcnt(0)")
    A(f"v_pk_add_f32 {vr(Q + 8, 2)}, {vr(Q + 8, 2)}, {vr(Q + 12, 2)}")
    A(f"v_pk_add_f32 {vr(Q + 10, 2)}, {vr(Q + 10, 2)}, {vr(Q + 14, 2)}")
    A(f"v_pk_add_f32 {vr(Q, 2)}, {vr(Q, 2)}, {vr(Q + 8, 2)}")
    A(f"v_pk_add_f32 {vr(Q + 2, 2)}, {vr(Q + 2, 2)}, {vr(Q + 10, 2)}")
    A(f"v_pk_mul_f32 {vr(Q, 2)}, {vr(Q, 2)}, {vr(vM, 2)} op_sel_hi:[1,0]")
    A(f"v_pk_mul_f32 {vr(Q + 2, 2)}, {vr(Q + 2, 2)}, {vr(vM, 2)} op_sel_hi:[1,0]")
    tag_put(Q)
    A(f"buffer_store_dwordx4 {vr(Q, 4)}, v{KA + 2}, {sr(S_WST, 4)}, s{sREC} offen sc1")
    stamp(6)
    A("s_branch L_fin")
    A("L_k_lse:")
    A(f"s_cmp_lg_u32 s{sW}, 2")
    A("s_cbranch_scc1 L_k_idle")
    A(f"ds_read_b128 {vr(Q, 4)}, v{QO + 1} offset:{LL - ML}")
    A(f"v_lshlrev_b32 v{vT1}, 3, v{vL}")
    A(f"v_mov_b32 v{vLs}, s{sTAG}")
    A("s_waitcnt lgkmcnt(0)")
    A(f"v_add_f32 v{Q}, v{Q}, v{Q + 1}")
    A(f"v_add_f32 v{Q + 2}, v{Q + 2}, v{Q + 3}")
    A(f"v_add_f32 v{Q}, v{Q}, v{Q + 2}")
    A(f"v_log_f32 v{Q}, v{Q}")
    A(f"v_add_f32 v{vM}, v{vM}, v{Q}")
    A("s_mov_b64 exec, 15")
    A(f"buffer_store_dwordx2 {vr(vM, 2)}, v{vT1}, {sr(S_WST, 4)}, s{sREC} offen offset:2048 sc1")
    A("s_mov_b64 exec, -1")
    A("L_k_idle:")
    A("s_barrier")
    A("s_branch L_fin")

    A("L_vwave:")
    A.c("V wave v: value tiles v, v+4, .. in registers, transposed in-lane, P.V on the matrix core")
    VO, vPA, vRA = 4, 5, 6
    ACC, PM, VB = 8, 16, 48
    A("s_barrier")
    A(f"s_mov_b32 s{sSELLO}, 0x05040100")
    A(f"s_mov_b32 s{sSELHI}, 0x07060302")
    A(f"v_lshlrev_b32 v{VO}, 4, v{vL}")
    A(f"s_sub_u32 s{sD}, s{sW}, 4")
    A(f"s_lshl_b32 s{sA}, s{sD}, 12")
    A(f"s_add_u32 s{sT0}, s{sT0}, s{sA}")
    order = [9, 8, 0, 1, 2, 3, 4, 5, 6, 7]
    pair_seq = [4, 0, 1, 2, 3]
    raw_base = {k: VB + 32 * (n + 1) for n, k in enumerate(pair_seq)}
    out_base = {k: VB + 32 * n for n, k in enumerate(pair_seq)}

    def v_load(s):
        R = raw_base[s >> 1] + 16 * (s & 1)
        A(f"s_add_u32 s{sB}, s{sT0}, {16384 * s}")
        for j in range(4):
            A(f"buffer_load_dwordx4 {vr(R + 4 * j, 4)}, v{VO}, {sr(S_B, 4)}, s{sB} offen offset:{1024 * j} {kvflags}")

    def v_perm(s, i):
        R = raw_base[s >> 1] + 16 * (s & 1)
        q, sel = i >> 1, sSELHI if i & 1 else sSELLO
        d = out_base[s >> 1] + 4 * i + 2 * (s & 1)
        A(f"v_perm_b32 v{d}, v{R + 4 + q}, v{R + q}, s{sel}")
        A(f"v_perm_b32 v{d + 1}, v{R + 12 + q}, v{R + 8 + q}, s{sel}")

    def p_read(k, buf):
        for rho in range(4):
            A(f"s_mov_b64 exec, {sr(sMASK + 2 * rho, 2)}")
            A(f"ds_read_b128 {vr(PM + 16 * buf + 4 * rho, 4)}, v{vPA} offset:{1024 * k}")
        A("s_mov_b64 exec, -1")

    def pv(k, buf, i, first):
        mfma16(ACC + 4 * (i >> 2), out_base[k] + 4 * i, PM + 16 * buf + 4 * (i & 3), first and (i & 3) == 0)

    A(f"s_add_u32 s{sA}, s{sD}, 36")
    A(f"s_cmp_lt_u32 s{sA}, s{sNT}")
    A("s_cbranch_scc1 L_v9_load")
    for i in range(16):
        A(f"v_mov_b32 v{raw_base[4] + 16 + i}, 0")
    A("s_branch L_v9_done")
    A("L_v9_load:")
    v_load(9)
    A("L_v9_done:")
    for s in order[1:window]:
        v_load(s)
    set_masks()
    for i in range(32):
        A(f"v_mov_b32 v{PM + i}, 0")
    A(f"v_and_b32 v7, 3, v{vN}")
    A(f"v_lshlrev_b32 v{vPA}, 4, v7")
    A(f"v_lshl_add_u32 v{vPA}, v{vG}, 6, v{vPA}")
    A(f"s_lshl_b32 s{sA}, s{sD}, 8")
    A(f"s_add_u32 s{sA}, s{sA}, {PB}")
    A(f"v_add_u32 v{vPA}, s{sA}, v{vPA}")
    A.c("reduction slot: h*32 + ((16a + 4g + rho) ^ 2h)")
    A(f"v_lshrrev_b32 v{vRA}, 2, v{vL}")
    A(f"v_lshlrev_b32 v{ACC}, 1, v7")
    A(f"v_xor_b32 v{vRA}, v{vRA}, v{ACC}")
    A(f"v_lshl_add_u32 v{vRA}, v7, 5, v{vRA}")
    A(f"v_lshlrev_b32 v{vRA}, 4, v{vRA}")
    A(f"s_lshl_b32 s{sA}, s{sD}, 11")
    A(f"v_add_u32 v{vRA}, s{sA}, v{vRA}")
    done = 0
    for n in range(10 - window):
        A(f"s_waitcnt vmcnt({4 * (window - 1)})")
        v_load(order[n + window])
        for i in range(8):
            v_perm(order[n], i)
        done = n + 1
    stamp(2)
    A("s_barrier")
    stamp(4)
    p_read(pair_seq[0], 0)
    for n, k in enumerate(pair_seq):
        if n < 4:
            p_read(pair_seq[n + 1], (n + 1) & 1)
        first_t, second_t = 2 * n, 2 * n + 1
        if first_t >= done:
            A(f"s_waitcnt vmcnt({4 * (9 - first_t)})")
            for i in range(8):
                v_perm(order[first_t], i)
        lg = f"lgkmcnt({4 if n < 4 else 0})"
        if second_t >= done:
            A(f"s_waitcnt vmcnt({4 * (9 - second_t)}) {lg}")
            if n == 4:
                stamp(5)
            seq = [0, 4, 1, 5, 2, 6, 3, 7]
            v_perm(order[second_t], seq[0])
            for m, i in enumerate(seq):
                if m < 7:
                    v_perm(order[second_t], seq[m + 1])
                pv(k, n & 1, i, n == 0)
        else:
            A(f"s_waitcnt {lg}")
            for i in (0, 4, 1, 5, 2, 6, 3, 7):
                pv(k, n & 1, i, n == 0)
    A(f"ds_write_b128 v{vRA}, {vr(ACC, 4)}")
    A(f"ds_write_b128 v{vRA}, {vr(ACC + 4, 4)} offset:256")
    A("s_waitcnt lgkmcnt(0)")
    A("s_barrier")
    A("s_branch L_fin")

    A("L_tail:")
    A.c("tail workgroup t: head t of wo, 64 FFN channels, 16 columns of h and of the output")
    srd(S_WG, 16, 512 * 3584)
    srd(S_WU, 18, 512 * 3584)
    srd(S_OUT, 22, 4096)
    srd(S_DBG, 24, 256)
    A(f"s_cmp_lt_u32 s{sT}, 28")
    A(f"s_cselect_b32 s{S_WG + 2}, {512 * 3584}, 0")
    A(f"s_cselect_b32 s{S_WU + 2}, {512 * 3584}, 0")
    AO, D, PT, BWO, BGU, BWD = 16, 32, 48, 64, 128, 192
    vTR, vGUo = 4, 8
    vWOo, vWDo = 224, 226
    vLin, vP, vLse, vOw, vHs, vSs, vAr, vAw, vOs, vXr, vCs, vH, vRw, vRr, vYs, vTg0, vTg1 = range(228, 245)
    t1, t2, t3, t4 = 12, 13, 14, 15
    RED2, RED4, OL, AL = 16384, 18432, 20480 + 16384, 20480 + 17408
    A(f"s_getreg_b32 s{sFAST}, hwreg(HW_REG_XCC_ID, 0, 3)")
    A(f"s_lshl_b32 s{sFAST}, s{sFAST}, 3")
    A(f"v_lshlrev_b32 v{vLin}, 4, v{vL}")
    A(f"s_cmp_eq_u32 s{sW}, 0")
    A("s_cbranch_scc1 L_no_clear")
    A("s_barrier")
    A(f"s_cmp_lg_u32 s{sW}, 1")
    A("s_cbranch_scc1 L_no_clear")
    A.c("wave 1: mark 256 B of the h hand-off buffers empty, then count in (one byte field per XCC)")
    A(f"s_lshl_b32 s{sA}, s{sT}, 8")
    A(f"s_add_u32 s{sA}, s{sA}, {HBUF}")
    A("s_mov_b64 exec, 0xffff")
    A(f"buffer_store_dwordx4 v[8:11], v{vLin}, {sr(S_WST, 4)}, s{sA} offen sc1")
    A(f"s_lshl_b64 {sr(sC, 2)}, 1, s{sFAST}")
    A(f"v_mov_b32 v{AO + 4}, s{sC}")
    A(f"v_mov_b32 v{AO + 5}, s{sD}")
    A("s_waitcnt vmcnt(0)")
    A("s_mov_b64 exec, 1")
    A(f"buffer_atomic_add_x2 {vr(AO + 4, 2)}, v{vLin}, {sr(S_DBG, 4)}, 0 offen offset:{FLAG_OFF} sc1")
    A("s_mov_b64 exec, -1")
    A("L_no_clear:")
    A(f"s_mul_i32 s{sLB}, s{sW}, 20480")
    A.c("wo rows follow the channel permutation of the partial records; wave w takes columns 64w..64w+63")
    swz_chunk(t1, t2)
    A(f"s_lshl_b32 s{sA}, s{sW}, 7")
    A(f"v_add_u32 v{t1}, s{sA}, v{t1}")
    A(f"v_lshrrev_b32 v{t2}, 3, v{vL}")
    A(f"v_lshl_add_u32 v{vWDo}, v{t2}, 10, v{t1}")
    A(f"s_lshl_b32 s{sA}, s{sT}, 16")
    A(f"v_add_u32 v{vWDo}, s{sA}, v{vWDo}")
    A(f"v_xor_b32 v{vWDo + 1}, 64, v{vWDo}")
    A(f"v_and_b32 v{t2}, 3, v{t2}")
    A(f"v_lshl_add_u32 v{vWOo}, v{t2}, 13, v{t1}")
    A(f"v_lshrrev_b32 v{t2}, 5, v{vL}")
    A(f"v_lshl_add_u32 v{vWOo}, v{t2}, 10, v{vWOo}")
    A(f"s_lshl_b32 s{sA}, s{sT}, 17")
    A(f"v_add_u32 v{vWOo}, s{sA}, v{vWOo}")
    A(f"v_xor_b32 v{vWOo + 1}, 64, v{vWOo}")

    def dma(slot, voff, srd_, soff, flags):
        A(f"s_add_u32 s{sA}, s{sLB}, {1024 * slot}")
        A(f"s_mov_b32 m0, s{sA}")
        A(f"s_mov_b32 s{sB}, {soff}")
        A(f"buffer_load_dwordx4 v{voff}, {sr(srd_, 4)}, s{sB} offen {flags} lds")

    for i in range(16):
        j, g = i >> 2, i & 3
        dma(i, vWOo + (i & 1), S_A, (64 * (j & 1) + 4 * (j >> 1) + 32 * (g >> 1) + 2 * (g & 1)) * 1024, woflags)
    for i in range(4):
        dma(16 + i, vWDo + (i & 1), S_B, 8192 * i, wdflags)
    A.c("gate/up DMA: row 64w + 8i + (l>>3), chunk (l&7) ^ (((l>>4)&1) | (i&1)<<1 | mat<<2)")
    A(f"v_lshrrev_b32 v{t1}, 3, v{vL}")
    A(f"s_lshl_b32 s{sA}, s{sW}, 6")
    A(f"v_add_u32 v{t1}, s{sA}, v{t1}")
    A(f"v_mul_u32_u24 v{t1}, 3584, v{t1}")
    A(f"s_lshl_b32 s{sA}, s{sT}, 7")
    A(f"v_add_u32 v{t1}, s{sA}, v{t1}")
    A(f"v_and_b32 v{t2}, 7, v{vL}")
    A(f"v_and_b32 v{t3}, 1, v{vG}")
    A(f"v_xor_b32 v{t2}, v{t2}, v{t3}")
    for k in range(4):
        A(f"v_xor_b32 v{t3}, {2 * k}, v{t2}")
        A(f"v_lshl_add_u32 v{vGUo + k}, v{t3}, 4, v{t1}")
    line_tile_addr(vTR, sLB, t1, t2)
    for c in range(4):
        A("s_waitcnt vmcnt(16)")
        line_tile_read(lambda i: BWO + 16 * i + 4 * c, vTR, 4096 * c)
        A("s_waitcnt lgkmcnt(0)")
        for i in range(4 * c, 4 * c + 4):
            mat, ii = i >> 3, i & 7
            dma(i, vGUo + (ii & 1) + 2 * mat, S_WU if mat else S_WG, 8 * ii * 3584, guflags)
    A("s_waitcnt vmcnt(16)")
    line_tile_read(lambda i: BWD + 8 * i, vTR, 16384)
    A("s_waitcnt lgkmcnt(0)")
    for i in range(4, 8):
        dma(12 + i, vWDo + (i & 1), S_B, 8192 * i, wdflags)
    A.c("addresses of the hand-off stages; stage 1: wave b reads the records of pair (b, t>>2), head t&3")
    A(f"s_and_b32 s{sB}, s{sW}, 3")
    A(f"s_lshl_b32 s{sA}, s{sB}, 3")
    A(f"s_lshr_b32 s{sC}, s{sT}, 2")
    A(f"s_add_u32 s{sA}, s{sA}, s{sC}")
    A(f"s_mul_i32 s{sREC}, s{sA}, {8 * REC}")
    A(f"s_add_u32 s{sREC}, s{sREC}, {OBUF}")
    A(f"s_and_b32 s{sC}, s{sT}, 3")
    A(f"s_lshl_b32 s{sA}, s{sC}, 9")
    A(f"s_add_u32 s{sA}, s{sA}, s{sREC}")
    A(f"v_lshlrev_b32 v{vP}, 3, v{vL}")
    A(f"v_add_u32 v{vP}, s{sA}, v{vP}")
    A(f"v_and_b32 v{t1}, 7, v{vL}")
    A(f"v_min_u32 v{t1}, 6, v{t1}")
    A(f"v_mul_u32_u24 v{t1}, {REC}, v{t1}")
    A(f"s_lshl_b32 s{sA}, s{sC}, 3")
    A(f"s_add_u32 s{sA}, s{sA}, s{sREC}")
    A(f"v_add_u32 v{vLse}, s{sA}, v{t1}")
    A.c("LDS activations in operand order [k-step][g][b][16 B]")
    A(f"v_lshrrev_b32 v{t1}, 2, v{vL}")
    A(f"v_lshlrev_b32 v{t1}, 6, v{t1}")
    A(f"v_and_b32 v{t2}, 3, v{vL}")
    A(f"v_lshl_add_u32 v{t1}, v{t2}, 2, v{t1}")
    A(f"s_lshl_b32 s{sB}, s{sB}, 4")
    A(f"v_add_u32 v{vOw}, s{sB}, v{t1}")
    A(f"v_lshlrev_b32 v{vAr}, 4, v{t2}")
    A(f"v_lshl_add_u32 v{vAr}, v{vG}, 6, v{vAr}")
    A(f"v_and_b32 v{t2}, 7, v{vN}")
    A(f"v_lshlrev_b32 v{vAw}, 4, v{vG}")
    A(f"v_lshl_add_u32 v{vAw}, v{t2}, 1, v{vAw}")
    A(f"s_lshl_b32 s{sA}, s{sW}, 6")
    A(f"v_add_u32 v{vAw}, s{sA}, v{vAw}")
    A.c("partial-sum slot [consumer 4w + tile][producer t][n][b]")
    A(f"s_lshl_b32 s{sA}, s{sW}, 15")
    A(f"s_lshl_b32 s{sB}, s{sT}, 8")
    A(f"s_add_u32 s{sA}, s{sA}, s{sB}")
    A(f"v_lshlrev_b32 v{vYs}, 4, v{vN}")
    A(f"v_lshl_add_u32 v{vYs}, v{vG}, 13, v{vYs}")
    A(f"v_add_u32 v{vYs}, s{sA}, v{vYs}")
    A.c("HBUF byte = (j*64 + g*16 + 4rho + b)*16 + 2e, rho = t>>3, j = (t>>1)&3, g = 2(t&1) + (n>>3)")
    A(f"v_lshrrev_b32 v{t1}, 3, v{vN}")
    A(f"v_lshlrev_b32 v{t1}, 8, v{t1}")
    A(f"v_lshl_add_u32 v{t1}, v{vG}, 4, v{t1}")
    A(f"v_lshl_add_u32 v{t1}, v{t2}, 1, v{t1}")
    A(f"s_and_b32 s{sA}, s{sT}, 7")
    A(f"s_lshl_b32 s{sA}, s{sA}, 9")
    A(f"s_lshr_b32 s{sB}, s{sT}, 3")
    A(f"s_lshl_b32 s{sB}, s{sB}, 6")
    A(f"s_add_u32 s{sA}, s{sA}, s{sB}")
    A(f"s_add_u32 s{sA}, s{sA}, {HBUF}")
    A(f"v_add_u32 v{vHs}, s{sA}, v{t1}")
    A(f"s_lshl_b32 s{sA}, s{sT}, 3")
    A(f"s_add_u32 s{sA}, s{sA}, {HSTAT}")
    A(f"v_lshlrev_b32 v{vSs}, 8, v{vG}")
    A(f"v_add_u32 v{vSs}, s{sA}, v{vSs}")
    A(f"v_lshlrev_b32 v{vOs}, 10, v{vG}")
    A(f"v_lshl_add_u32 v{vOs}, v{vN}, 1, v{vOs}")
    A(f"s_lshl_b32 s{sA}, s{sT}, 5")
    A(f"v_add_u32 v{vOs}, s{sA}, v{vOs}")
    A(f"v_lshlrev_b32 v{vRr}, 2, v{vL}")
    A(f"s_lshl_b32 s{sA}, s{sW}, 8")
    A(f"v_add_u32 v{vRw}, s{sA}, v{vRr}")
    A(f"buffer_load_ushort v{vXr}, v{vOs}, {sr(S_X, 4)}, 0 offen")
    A.c("inbox offsets; one early read makes the lines resident in this XCD's L2")
    A(f"s_lshl_b32 s16, s{sT}, 13")
    A(f"s_lshl_b32 s{sA}, s{sW}, 10")
    A(f"s_add_u32 s16, s16, s{sA}")
    A(f"s_add_u32 s17, s16, {ZBUF}")
    A(f"s_add_u32 s16, s16, {YBUF}")
    A(f"s_mov_b32 s18, {YBUF}")
    A(f"s_mov_b32 s19, {ZBUF}")
    A(f"buffer_load_dwordx4 {vr(PT, 4)}, v{vLin}, {sr(S_WS, 4)}, s16 offen sc1")
    A(f"buffer_load_dwordx4 {vr(PT + 4, 4)}, v{vLin}, {sr(S_WS, 4)}, s17 offen sc1")
    A.c("gate/up fragments: row (8g + r)*128 + ((w ^ f)*16) + (c&1)*8 + mat*8192")
    A(f"v_bfe_u32 v{t1}, v{vN}, 3, 1")
    A(f"v_and_b32 v{t2}, 1, v{vG}")
    A(f"v_lshl_or_b32 v{t1}, v{t2}, 1, v{t1}")
    A(f"v_bfe_u32 v{t2}, v{vN}, 1, 1")
    A(f"v_lshl_or_b32 v{t1}, v{t2}, 2, v{t1}")
    A(f"v_xor_b32 v{t1}, s{sW}, v{t1}")
    A(f"v_lshlrev_b32 v{t1}, 4, v{t1}")
    A(f"v_lshl_add_u32 v{t1}, v{t2}, 13, v{t1}")
    A(f"v_and_b32 v{t2}, 1, v{vN}")
    A(f"v_lshl_add_u32 v{t1}, v{t2}, 3, v{t1}")
    A(f"v_lshrrev_b32 v{t2}, 2, v{vN}")
    A(f"v_lshl_add_u32 v{t1}, v{t2}, 7, v{t1}")
    A(f"v_lshl_add_u32 v{t1}, v{vG}, 10, v{t1}")
    A(f"s_cmp_eq_u32 s{sW}, 0")
    A("s_cbranch_scc1 L_has_tag")
    make_tag()
    A("L_has_tag:")
    A(f"v_and_b32 v{t2}, 1, v{vL}")
    A(f"v_lshlrev_b32 v{t2}, 4, v{t2}")
    A(f"v_lshrrev_b32 v{t2}, v{t2}, s{sTAG}")
    A(f"v_and_b32 v{vTg0}, 0xff, v{t2}")
    A(f"v_bfe_u32 v{vTg1}, v{t2}, 8, 8")
    A("s_waitcnt vmcnt(0)")
    line_tile_read(lambda i: BWD + 8 * i + 4, vTR, 16384)
    A("s_waitcnt lgkmcnt(0)")
    A("s_barrier")
    stamp(2)
    A(f"v_lshlrev_b32 v{vXr}, 16, v{vXr}")
    for ks in range(16):
        if ks and ks % 4 == 0:
            A("s_waitcnt lgkmcnt(0)")
            A(f"v_add_u32 v{t1}, {2 * 20480}, v{t1}")
        off = ((ks >> 1) & 1) * 20480 + (ks & 1) * 4096
        A(f"ds_read_b64_tr_b16 {vr(BGU + 4 * ks, 2)}, v{t1} offset:{off}")
        A(f"ds_read_b64_tr_b16 {vr(BGU + 4 * ks + 2, 2)}, v{t1} offset:{off + 512}")
    for i in range(4):
        A(f"v_mov_b32 v{AO + i}, 0x3f803f80")
    A(f"v_mov_b32 v{t3}, 0")
    A("s_waitcnt lgkmcnt(0)")
    for ks in range(16):
        mfma16(D, AO, BGU + 4 * ks, ks == 0)
    A.c("wait until all tail workgroups have counted in; all on this XCC selects the L2-local stores")

    def flag_check():
        A(f"v_readfirstlane_b32 s{sC}, v{t1}")
        A(f"v_readfirstlane_b32 s{sD}, v{t2}")
        A(f"v_add_u32 v{t4}, v{t1}, v{t2}")
        A(f"v_sad_u8 v{t4}, v{t4}, 0, 0")
        A(f"v_cmp_ne_u32 vcc, 32, v{t4}")
    poll([f"buffer_load_dwordx2 {vr(t1, 2)}, v{t3}, {sr(S_DBG, 4)}, 0 offen offset:{FLAG_OFF} sc1"], flag_check)
    A(f"s_lshr_b64 {sr(sC, 2)}, {sr(sC, 2)}, s{sFAST}")
    A(f"s_and_b32 s{sC}, s{sC}, 0xff")
    A(f"s_cmp_eq_u32 s{sC}, {99 if force_slow else 32}")
    A(f"s_cselect_b32 s{sFAST}, 1, 0")
    A(f"v_mov_b32 v{vCs}, v{D}")
    if dry:
        A.c("pass 0 walks the stages once with hand-off stores dropped (descriptor size 0) and no waiting")
        A(f"s_mov_b32 s{sPASS}, 0")
        A(f"s_mov_b32 s{sLIM}, 1")
        A(f"s_mov_b32 s{S_WST + 2}, 0")
    else:
        A(f"s_lshl_b32 s{sA}, s{sW}, 10")
        A(f"s_add_u32 s{sA}, s{sA}, {HBUF}")
        A(f"buffer_load_dwordx4 {vr(PT, 4)}, v{vLin}, {sr(S_WS, 4)}, s{sA} offen sc1")
        A(f"s_cmp_lg_u32 s{sW}, 0")
        A("s_cbranch_scc1 L_pass")
        A(f"buffer_store_short v{vXr}, v{vOs}, {sr(S_OUT, 4)}, 0 offen")
    A("L_pass:")
    stamp(3)
    A(f"s_cmp_ge_u32 s{sW}, 4")
    A("s_cbranch_scc1 L_s1_done")
    A.c("stage 1: combine the seven partial outputs of batch w, then y_t = o_t @ wo[head t]")
    poll([f"buffer_load_dwordx2 {vr(t1, 2)}, v{vLse}, {sr(S_WS, 4)}, 0 offen offset:2048 sc1"],
         lambda: A(f"v_cmp_ne_u32 vcc, s{sTAG}, v{t2}"))
    A(f"v_mov_b32 v{t2}, v{t1}")
    dpp_red("v_max_f32", [t2], [4, 2, 1])
    A(f"v_sub_f32 v{t1}, v{t1}, v{t2}")
    A(f"v_exp_f32 v{t1}, v{t1}")
    A(f"v_and_b32 v{t3}, 7, v{vL}")
    A(f"v_cmp_eq_u32 vcc, 7, v{t3}")
    A(f"v_cndmask_b32 v{t1}, v{t1}, 0, vcc")
    A(f"v_mov_b32 v{t2}, v{t1}")
    dpp_red("v_add_f32", [t2], [4, 2, 1])
    A(f"v_rcp_f32 v{t2}, v{t2}")
    A(f"v_mul_f32 v{t1}, v{t1}, v{t2}")
    for s in range(7):
        A(f"v_readlane_b32 s{sMASK + s}, v{t1}, {s}")
    A(f"s_mov_b32 s{sA}, {2 * REC}")
    A(f"s_mov_b32 s{sB}, {4 * REC}")
    A(f"s_mov_b32 s{sC}, {6 * REC}")
    so = ["0", f"s{sA}", f"s{sB}", f"s{sC}"]
    poll([f"buffer_load_dwordx2 {vr(PT + 2 * s, 2)}, v{vP}, {sr(S_WS, 4)}, {so[s >> 1]} offen offset:{(s & 1) * REC} sc1" for s in range(7)],
         lambda: tag_check(range(PT, PT + 14), [f"v{vTg0}", f"v{vTg1}"], t2))
    A(f"v_mul_f32 v{t1}, s{sMASK}, v{PT}")
    A(f"v_mul_f32 v{t2}, s{sMASK}, v{PT + 1}")
    for s in range(1, 7):
        A(f"v_fmac_f32 v{t1}, s{sMASK + s}, v{PT + 2 * s}")
        A(f"v_fmac_f32 v{t2}, s{sMASK + s}, v{PT + 2 * s + 1}")
    A(f"v_cvt_pk_bf16_f32 v{t1}, v{t1}, v{t2}")
    A(f"ds_write_b32 v{vOw}, v{t1} offset:{OL}")
    A("s_waitcnt lgkmcnt(0)")
    A("L_s1_done:")
    A("s_barrier")

    def ksplit_gemm(nk, lds_off, B, soff):
        for j in range(nk):
            A(f"ds_read_b128 {vr(AO + 4 * j, 4)}, v{vAr} offset:{lds_off + 256 * j}")
        for j in range(nk):
            A(f"s_waitcnt lgkmcnt({nk - 1 - j})")
            for i in range(4):
                mfma16(D + 4 * i, AO + 4 * j, B + 4 * nk * i + 4 * j, j == 0)
        for rho in (1, 2, 3):
            for r in range(4):
                A(f"v_mov_b32_dpp v{D + r}, v{D + 4 * rho + r} quad_perm:[0,1,2,3] row_mask:{1 << rho:#x} bank_mask:0xf")
        tag_put(D)
        store_mode([f"buffer_store_dwordx4 {vr(D, 4)}, v{vYs}, {sr(S_WST, 4)}, {soff} offen"])

    def gather_sum(soff, red, skip7):
        if skip7:
            A(f"v_mov_b32 v{PT}, 0")
            A(f"s_cmp_eq_u32 s{sW}, 7")
            A("s_cbranch_scc1 L_no_z")
        poll([f"buffer_load_dwordx4 {vr(PT, 4)}, v{vLin}, {sr(S_WS, 4)}, {soff} offen sc1"],
             lambda: tag_check(range(PT, PT + 4), TAGS, t1))
        rows_to_batches(PT)
        if skip7:
            A("L_no_z:")
        A(f"ds_write_b32 v{vRw}, v{PT} offset:{red}")
        A("s_waitcnt lgkmcnt(0)")
        A("s_barrier")

    def cross_sum(red):
        for i in range(4):
            A(f"ds_read2st64_b32 {vr(D + 2 * i, 2)}, v{vRr} offset0:{red // 256 + 2 * i} offset1:{red // 256 + 2 * i + 1}")
        A("s_waitcnt lgkmcnt(2)")
        A(f"v_pk_add_f32 {vr(D, 2)}, {vr(D, 2)}, {vr(D + 2, 2)}")
        A("s_waitcnt lgkmcnt(0)")
        A(f"v_pk_add_f32 {vr(D + 4, 2)}, {vr(D + 4, 2)}, {vr(D + 6, 2)}")
        A(f"v_pk_add_f32 {vr(D, 2)}, {vr(D, 2)}, {vr(D + 4, 2)}")
        A(f"v_add_f32 v{D}, v{D}, v{D + 1}")
        rb(D, D)

    ksplit_gemm(4, OL, BWO, "s18")
    stamp(4)
    A.c("stage 2: h = x + sum of the 32 head contributions, for 16 columns")
    gather_sum("s16", RED2, False)
    A(f"s_cmp_lg_u32 s{sW}, 0")
    A("s_cbranch_scc1 L_s2_done")
    cross_sum(RED2)
    A(f"v_add_f32 v{D}, v{D}, v{vXr}")
    A(f"v_mov_b32_dpp v{D + 1}, v{D} quad_perm:[1,1,3,3] row_mask:0xf bank_mask:0xf")
    A(f"v_cvt_pk_bf16_f32 v{D}, v{D}, v{D + 1}")
    A(f"v_min_u32 v{D + 1}, -2, v{D}")
    A("s_mov_b32 exec_lo, 0x55555555")
    A("s_mov_b32 exec_hi, 0x55555555")
    store_mode([f"buffer_store_dword v{D + 1}, v{vHs}, {sr(S_WST, 4)}, 0 offen"])
    A("s_mov_b64 exec, -1")
    A(f"v_lshlrev_b32 v{vH}, 16, v{D}")
    A(f"v_mov_b32_dpp v{t1}, v{vH} row_newbcast:0 row_mask:0xf bank_mask:0xf")
    A(f"v_sub_f32 v{t2}, v{vH}, v{t1}")
    A(f"v_mul_f32 v{t3}, v{t2}, v{t2}")
    dpp_red("v_add_f32", [t2, t3], [8, 4, 2, 1])
    A(f"v_mul_f32 v{t4}, 0x3d800000, v{t2}")
    A(f"v_fma_f32 v{t2}, -v{t4}, v{t2}, v{t3}")
    A(f"v_add_f32 v{t1}, v{t1}, v{t4}")
    A(f"v_min_u32 v{t1}, -2, v{t1}")
    A(f"v_min_u32 v{t2}, -2, v{t2}")
    A("s_mov_b32 exec_lo, 0x00010001")
    A("s_mov_b32 exec_hi, 0x00010001")
    store_mode([f"buffer_store_dwordx2 {vr(t1, 2)}, v{vSs}, {sr(S_WST, 4)}, 0 offen"])
    A("s_mov_b64 exec, -1")
    A("L_s2_done:")
    A("s_barrier")
    stamp(5)
    A(f"s_cmp_ge_u32 s{sT}, 28")
    A("s_cbranch_scc1 L_s3_done")
    A.c("stage 3: LayerNorm folded around h @ [w_gate | w_up], silu(g) * u, then act_t @ w_down[64 rows]")
    A(f"s_mov_b32 s{sA}, {HBUF}")
    A(f"s_mov_b32 s{sB}, {HSTAT}")
    poll([f"buffer_load_dwordx4 {vr(AO + 4 * j, 4)}, v{vLin}, {sr(S_WS, 4)}, s{sA} offen offset:{1024 * j} sc1" for j in range(4)],
         lambda: sentinel_check(range(AO, AO + 16), t1))
    statload = f"buffer_load_dwordx4 {vr(PT, 4)}, v{vLin}, {sr(S_WS, 4)}, s{sB} offen sc1"
    A(statload)
    for j in range(4):
        for rho in range(4):
            mfma16(D + 4 * rho, AO + 4 * j, BGU + 4 * (4 * rho + j), j == 0)
    A("s_waitcnt vmcnt(0)")
    sentinel_check(range(PT, PT + 4), t1)
    A("s_cbranch_vccz L_stat_ok")
    poll([statload], lambda: sentinel_check(range(PT, PT + 4), t1))
    A("L_stat_ok:")
    A(f"v_add_f32 v{t1}, v{PT}, v{PT + 2}")
    dpp_red("v_add_f32", [t1], [8, 4, 2, 1])
    A(f"v_mul_f32 v{t1}, 0x3d000000, v{t1}")
    A(f"v_sub_f32 v{PT}, v{PT}, v{t1}")
    A(f"v_sub_f32 v{PT + 2}, v{PT + 2}, v{t1}")
    A(f"v_mul_f32 v{PT}, v{PT}, v{PT}")
    A(f"v_fmac_f32 v{PT}, v{PT + 2}, v{PT + 2}")
    A(f"v_add_f32 v{t2}, v{PT + 1}, v{PT + 3}")
    A(f"v_fmac_f32 v{t2}, 0x41800000, v{PT}")
    dpp_red("v_add_f32", [t2], [8, 4, 2, 1])
    A(f"v_mul_f32 v{t2}, 0x3b000000, v{t2}")
    rb(t1, t1)
    rb(t2, t2)
    A(f"v_add_f32 v{t2}, 0x3727c5ac, v{t2}")
    rb(t2, t2)
    A(f"v_sqrt_f32 v{t2}, v{t2}")
    rb(t2, t2)
    A(f"v_rcp_f32 v{t2}, v{t2}")
    fold_d(D)
    A(f"v_fma_f32 v{D}, -v{t1}, v{vCs}, v{D}")
    A(f"v_mul_f32 v{D}, v{D}, v{t2}")
    A(f"v_mul_f32 v{t1}, 0xbfb8aa3b, v{D}")
    A(f"v_exp_f32 v{t1}, v{t1}")
    A(f"v_mul_f32_dpp v{D + 1}, v{D}, v{D} row_ror:8 row_mask:0xf bank_mask:0xf")
    A(f"v_add_f32 v{t1}, 1.0, v{t1}")
    A(f"v_rcp_f32 v{t1}, v{t1}")
    A(f"v_mul_f32 v{D}, v{D + 1}, v{t1}")
    A(f"v_cvt_pk_bf16_f32 v{D}, v{D}, v{D}")
    A("s_mov_b32 exec_lo, 0x00ff00ff")
    A("s_mov_b32 exec_hi, 0x00ff00ff")
    A(f"ds_write_b16 v{vAw}, v{D} offset:{AL}")
    A("s_mov_b64 exec, -1")
    A("s_waitcnt lgkmcnt(0)")
    A("s_barrier")
    ksplit_gemm(2, AL, BWD, "s19")
    A("L_s3_done:")
    stamp(6)
    A.c("stage 4: out = h + sum of the 28 down-projection contributions")
    gather_sum("s17", RED4, True)
    A(f"s_cmp_lg_u32 s{sW}, 0")
    A("s_cbranch_scc1 L_s4_done")
    cross_sum(RED4)
    A(f"v_add_f32 v{D}, v{D}, v{vH}")
    A(f"v_cvt_pk_bf16_f32 v{D}, v{D}, v{D}")
    A(f"buffer_store_short v{D}, v{vOs}, {sr(S_OUT, 4)}, 0 offen")
    A(f"s_cmp_lg_u32 s{sT}, 0")
    A("s_cbranch_scc1 L_s4_done")
    A.c("advance the epoch so that the next launch rejects this launch's hand-offs")
    A(f"v_mov_b32 v{t1}, s{sTAG}")
    A(f"v_mov_b32 v{t2}, {EPOCH}")
    A("s_mov_b64 exec, 1")
    A(f"buffer_store_dword v{t1}, v{t2}, {sr(S_WST, 4)}, 0 offen")
    A("s_mov_b64 exec, -1")
    A("L_s4_done:")
    if dry:
        A(f"s_cmp_lg_u32 s{sPASS}, 0")
        A("s_cbranch_scc1 L_fin")
        A(f"s_mov_b32 s{sPASS}, 1")
        A(f"s_mov_b32 s{sLIM}, {limit}")
        A(f"s_mov_b32 s{S_WST + 2}, {WS_SIZE:#x}")
        A("s_branch L_pass")

    A("L_fin:")
    if amp:
        idx, role, wave = amp
        A("s_waitcnt vmcnt(0)")
        stamp(7)
        A(f"s_cmp_lg_u32 s{sW}, {wave}")
        A("s_cbranch_scc1 L_end")
        A(f"s_cmp_eq_u32 s{sXI}, {tailx}")
        A("s_cbranch_scc0 L_end" if role == "tail" else "s_cbranch_scc1 L_end")
        A("s_waitcnt lgkmcnt(0)")
        A(f"s_sub_u32 s{sA}, s{sST + 2 * idx}, s{sST}")
        A(f"s_min_u32 s{sA}, s{sA}, 20000")
        A(f"s_lshl_b32 s{sA}, s{sA}, 3")
        A(f"s_add_u32 s{sA}, s{sA}, 6000")
        A("L_amp:")
        A(f"s_memrealtime {sr(sC, 2)}")
        A("s_waitcnt lgkmcnt(0)")
        A(f"s_sub_u32 s{sB}, s{sC}, s{sST}")
        A(f"s_cmp_lt_u32 s{sB}, s{sA}")
        A("s_cbranch_scc1 L_amp")
    if stamps:
        A("s_waitcnt vmcnt(0)")
        stamp(7)
        A("s_waitcnt lgkmcnt(0)")
        for i in range(8):
            A(f"v_mov_b32 v{16 + i}, s{sST + 2 * i}")
        A(f"s_lshl_b32 s{sA}, s2, 3")
        A(f"s_add_u32 s{sA}, s{sA}, s{sW}")
        A(f"s_lshl_b32 s{sA}, s{sA}, 5")
        A(f"s_add_u32 s{sA}, s{sA}, {STAMPS}")
        A("v_mov_b32 v4, 0")
        A("s_mov_b64 exec, 1")
        A(f"buffer_store_dwordx4 v[16:19], v4, {sr(S_WS, 4)}, s{sA} offen")
        A(f"buffer_store_dwordx4 v[20:23], v4, {sr(S_WS, 4)}, s{sA} offen offset:16")
    A("L_end:")
    A("s_endpgm")

    body, n = insert_waits(A.lines)
    out = HEADER
    out += "; @launch grid=(256,1,1) block=(512,1,1) lds=163840\n"
    out += '.amdgcn_target "amdgcn-amd-amdhsa--gfx950"\n.text\n'
    out += f".globl {NAME}\n.p2align 8\n.type {NAME},@function\n"
    out += "\n".join(("" if t.endswith(":") else "    ") + t for t in body) + "\n"
    out += f""".section .rodata,"a"
.p2align 6
.amdhsa_kernel {NAME}
  .amdhsa_next_free_vgpr 256
  .amdhsa_next_free_sgpr 102
  .amdhsa_accum_offset 256
  .amdhsa_group_segment_fixed_size 0
  .amdhsa_kernarg_size 96
  .amdhsa_user_sgpr_count 2
  .amdhsa_user_sgpr_kernarg_segment_ptr 1
  .amdhsa_system_sgpr_workgroup_id_x 1
  .amdhsa_float_denorm_mode_32 3
.end_amdhsa_kernel
"""
    return out


if __name__ == "__main__":
    kw = {}
    for a in sys.argv[2:]:
        k, v = a.split("=")
        kw[k] = eval(v)
    open(sys.argv[1], "w").write(gen(**kw))
```

```python
import sys
sys.path.insert(0, "exp")
from asmlib import Asm, vr, sr, insert_waits

NAME = "sequential_preLN__sliding_block_cached__swiglu_ffn__decode_kernel"
HEADER = open("sequential_preLN__sliding_block_cached__swiglu_ffn__decode.s.ref").read().split("; Override launch")[0]

QP, YBUF, ZBUF, HBUF, HSTAT, EPOCH, XBUF, OBUF, STAMPS = 0x0, 0x40000, 0x80000, 0xc0000, 0xc1000, 0xc2000, 0xc3000, 0xc4000, 0x180000
VERSION = 7
REC = 2176
WS_SIZE = 0x200000
FLAG_OFF = 0

S_X, S_WQ, S_WS, S_WST, S_A, S_B, S_WG, S_WU, S_OUT, S_DBG = 28, 32, 36, 40, 44, 48, 52, 56, 60, 64
sW, sXI, sT, sLIM, sCNT, sPASS, sFAST, sLB, sT0, sNT = 68, 69, 70, 71, 72, 73, 74, 75, 76, 77
sA, sB, sC, sD = 78, 79, 80, 81
sSELLO, sSELHI, sREC, sTAG = 82, 83, 84, 85
sXQ = 3
sHQ, sKQ = 64, 65
sMASK = 4
sTB = 12
sST = 86
vL, vN, vG = 1, 2, 3
vFF = 255
QL, ML, LL, PB = 151552, 152576, 152640, 153600


def gen(tailx=7, kvflags="nt", wqflags="nt", woflags="nt", guflags="nt", wdflags="nt", stamps=False, force_slow=False,
        dry=False, limit=0x40000, vwin=6, kwin=6, vbar=8, gsched=(4, 3, 3, 3, 3), kprio=0, amp=None, kbar=0, qprio=3, gather_before=0, qmap=1, drop='', codepf=False, tprio=True, slp=16, slp2=0, qstflags='sc1', touchflags='sc1', qwarm=None, qwb=False):
    A = Asm()

    def stamp(i):
        if stamps or (amp and i in (0, amp[0])):
            A(f"s_memrealtime {sr(sST + 2 * i, 2)}")

    def srd(base, ptr, size):
        A(f"s_mov_b32 s{base}, s{ptr}")
        A(f"s_mov_b32 s{base + 1}, s{ptr + 1}")
        A(f"s_mov_b32 s{base + 2}, {size:#x}")
        A(f"s_mov_b32 s{base + 3}, 0x20000")

    def rb(dst, src):
        A(f"v_cvt_pk_bf16_f32 v{dst}, v{src}, v{src}")
        A(f"v_lshlrev_b32 v{dst}, 16, v{dst}")

    def allred_rows(op, v, t):
        A(f"v_mov_b32 v{t}, v{v}")
        A(f"v_permlane32_swap_b32 v{v}, v{t}")
        A(f"{op} v{v}, v{v}, v{t}")
        A(f"v_mov_b32 v{t}, v{v}")
        A(f"v_permlane16_swap_b32 v{v}, v{t}")
        A(f"{op} v{v}, v{v}, v{t}")

    def dpp_red(op, regs, rots):
        for r in rots:
            for v in regs:
                A(f"{op}_dpp v{v}, v{v}, v{v} row_ror:{r} row_mask:0xf bank_mask:0xf")

    def rows_to_batches(D):
        A(f"v_permlane32_swap_b32 v{D}, v{D + 2}")
        A(f"v_permlane32_swap_b32 v{D + 1}, v{D + 3}")
        A(f"v_add_f32 v{D}, v{D}, v{D + 2}")
        A(f"v_add_f32 v{D + 1}, v{D + 1}, v{D + 3}")
        A(f"v_permlane16_swap_b32 v{D}, v{D + 1}")
        A(f"v_add_f32 v{D}, v{D}, v{D + 1}")

    def fold_d(D):
        for rho in (1, 2, 3):
            for r in range(4):
                A(f"v_mov_b32_dpp v{D + r}, v{D + 4 * rho + r} quad_perm:[0,1,2,3] row_mask:{1 << rho:#x} bank_mask:0xf")
        rows_to_batches(D)

    def mfma16(D, Areg, Breg, first):
        c = "0" if first else vr(D, 4)
        A(f"v_mfma_f32_16x16x32_bf16 {vr(D, 4)}, {vr(Areg, 4)}, {vr(Breg, 4)}, {c}")

    def sentinel_check(regs, t):
        regs = list(regs)
        if len(regs) % 2 == 0:
            A(f"v_max_u32 v{t}, v{regs[0]}, v{regs[1]}")
            rest = regs[2:]
        else:
            A(f"v_max3_u32 v{t}, v{regs[0]}, v{regs[1]}, v{regs[2]}")
            rest = regs[3:]
        for i in range(0, len(rest), 2):
            A(f"v_max3_u32 v{t}, v{t}, v{rest[i]}, v{rest[i + 1]}")
        A(f"v_cmp_eq_u32 vcc, -1, v{t}")

    def tag_check(regs, tags, t):
        regs = list(regs)
        for i, r in enumerate(regs):
            A(f"v_xor_b32 v{r}, {tags[i % len(tags)]}, v{r}")
        A(f"v_or_b32 v{t}, v{regs[0]}, v{regs[1]}")
        for i in range(2, len(regs), 2):
            A(f"v_or3_b32 v{t}, v{t}, v{regs[i]}, v{regs[i + 1]}")
        A(f"v_and_b32 v{t}, 0xff, v{t}")
        A(f"v_cmp_ne_u32 vcc, 0, v{t}")

    TAGS = [f"s{sTB + i}" for i in range(4)]

    def tag_put(D):
        for i in range(4):
            A(f"v_bfi_b32 v{D + i}, v{vFF}, s{sTB + i}, v{D + i}")

    def poll(loads, check, wait="s_waitcnt vmcnt(0)", sleep=0):
        top, out = A.label("poll"), A.label("polled")
        A(f"s_mov_b32 s{sCNT}, 0")
        A(f"{top}:")
        for l in loads:
            A(l)
        A(f"s_add_u32 s{sCNT}, s{sCNT}, 1")
        A(f"s_cmp_ge_u32 s{sCNT}, s{sLIM}")
        A(wait)
        check()
        A(f"s_cbranch_scc1 {out}")
        if sleep:
            A(f"s_cbranch_vccz {out}")
            A(f"s_sleep {sleep}")
            A(f"s_branch {top}")
        else:
            A(f"s_cbranch_vccnz {top}")
        A(f"{out}:")

    def make_tag():
        A("s_waitcnt lgkmcnt(0)")
        A(f"s_add_u32 s{sTAG}, s{sTAG}, 0x9e3779b1")
        for i in range(4):
            A(f"s_bfe_u32 s{sTB + i}, s{sTAG}, {0x80000 + 8 * i:#x}")

    def set_masks():
        for i in range(4):
            A(f"s_mov_b32 s{sMASK + 2 * i}, {0x000f000f << (4 * i):#x}")
            A(f"s_mov_b32 s{sMASK + 2 * i + 1}, {0x000f000f << (4 * i):#x}")

    def store_mode(texts):
        slow, done = A.label("slow"), A.label("stored")
        A(f"s_cmp_eq_u32 s{sFAST}, 0")
        A(f"s_cbranch_scc1 {slow}")
        for t in texts:
            A(t)
        A(f"s_branch {done}")
        A(f"{slow}:")
        for t in texts:
            A(t + " sc1" if t.startswith("buffer_") else t)
        A(f"{done}:")

    def line_tile_addr(dst, base_s, t1, t2):
        A(f"v_bfe_u32 v{t1}, v{vN}, 3, 1")
        A(f"v_and_b32 v{t2}, 1, v{vG}")
        A(f"v_lshl_or_b32 v{t1}, v{t2}, 1, v{t1}")
        A(f"v_lshlrev_b32 v{t1}, 5, v{t1}")
        A(f"v_and_b32 v{t2}, 3, v{vN}")
        A(f"v_lshl_add_u32 v{t1}, v{t2}, 3, v{t1}")
        A(f"v_lshrrev_b32 v{t2}, 2, v{vN}")
        A(f"v_lshl_add_u32 v{t1}, v{t2}, 7, v{t1}")
        A(f"v_lshl_add_u32 v{t1}, v{vG}, 10, v{t1}")
        for i in range(4):
            A(f"v_xor_b32 v{dst + i}, {32 * i}, v{t1}")
            if base_s is not None:
                A(f"v_add_u32 v{dst + i}, s{base_s}, v{dst + i}")

    def line_tile_read(dst, addr, off):
        for i in range(4):
            A(f"ds_read_b64_tr_b16 {vr(dst(i), 2)}, v{addr + i} offset:{off}")
            A(f"ds_read_b64_tr_b16 {vr(dst(i) + 2, 2)}, v{addr + i} offset:{off + 512}")

    def swz_chunk(dst, t):
        A(f"v_and_b32 v{t}, 1, v{vG}")
        A(f"v_lshlrev_b32 v{t}, 1, v{t}")
        A(f"v_and_b32 v{dst}, 7, v{vL}")
        A(f"v_xor_b32 v{dst}, v{dst}, v{t}")
        A(f"v_lshlrev_b32 v{dst}, 4, v{dst}")

    A(f"{NAME}:")
    stamp(0)
    A("s_cmp_ge_u32 s2, 256")
    A("s_cbranch_scc1 L_end")
    A("s_load_dwordx16 s[4:19], s[0:1], 0")
    A("s_load_dwordx8 s[20:27], s[0:1], 64")
    A("v_lshrrev_b32 v4, 6, v0")
    A(f"v_and_b32 v{vL}, 63, v0")
    A(f"v_readfirstlane_b32 s{sW}, v4")
    A(f"v_and_b32 v{vN}, 15, v0")
    A(f"v_bfe_u32 v{vG}, v0, 4, 2")
    if codepf:
        A.c("pull the kernel's code into this XCD's L2 before the streams saturate memory")
        A(f"s_getpc_b64 {sr(sC, 2)}")
        A(f"s_and_b32 s{sC}, s{sC}, 0xffffff00")
        A("v_lshlrev_b32 v250, 5, v0")
        A(f"global_load_dword v251, v250, {sr(sC, 2)}")
    A(f"v_mov_b32 v{vFF}, 0xff")
    A(f"s_and_b32 s{sXI}, s2, 7")
    A(f"s_lshr_b32 s{sT}, s2, 3")
    A(f"s_mov_b32 s{sLIM}, {limit}")
    A(f"s_mov_b32 s{sSELLO}, 0x05040100")
    A(f"s_mov_b32 s{sSELHI}, 0x07060302")
    A(f"s_cmp_eq_u32 s{sXI}, {tailx}")
    A("s_cbranch_scc1 L_tail")
    A.c("split = (x - tailx - 1) & 7 and the record offset of this attention workgroup")
    A(f"s_sub_u32 s{sB}, s{sXI}, {tailx + 1}")
    A(f"s_and_b32 s{sB}, s{sB}, 7")
    A(f"s_lshl_b32 s{sREC}, s{sT}, 3")
    A(f"s_add_u32 s{sREC}, s{sREC}, s{sB}")
    A(f"s_mul_i32 s{sREC}, s{sREC}, {REC}")
    A(f"s_add_u32 s{sREC}, s{sREC}, {OBUF}")
    A.c("effective split s' = (split + pair) mod 7, byte offset of its first tile, tile count")
    A(f"s_add_u32 s{sB}, s{sB}, s{sT}")
    A(f"s_mul_i32 s{sA}, s{sB}, 37")
    A(f"s_lshr_b32 s{sA}, s{sA}, 8")
    A(f"s_mul_i32 s{sA}, s{sA}, 7")
    A(f"s_sub_u32 s{sB}, s{sB}, s{sA}")
    A(f"s_mul_i32 s{sT0}, s{sB}, 37")
    A(f"s_max_u32 s{sA}, s{sB}, 4")
    A(f"s_sub_u32 s{sA}, s{sA}, 4")
    A(f"s_sub_u32 s{sT0}, s{sT0}, s{sA}")
    A(f"s_cmp_eq_u32 s{sB}, 6")
    A(f"s_cselect_b32 s{sPASS}, 5, 4")
    A(f"s_cmp_lt_u32 s{sB}, 4")
    A(f"s_cselect_b32 s{sNT}, 37, 36")
    A(f"s_lshl_b32 s{sT0}, s{sT0}, 12")
    A(f"s_lshl_b32 s{sA}, s{sT}, 22")
    A(f"s_add_u32 s{sT0}, s{sT0}, s{sA}")
    A(f"s_add_u32 s{sT0}, s{sT0}, 0x300000")
    A(f"s_cmp_lt_u32 s{sW}, 4")
    A("s_cbranch_scc1 L_kwave")
    if 'j' in drop:
        A(f"s_mov_b32 s{sPASS}, 0")
    A(f"s_cmp_gt_u32 s{sW}, s{sPASS}")
    A("s_cbranch_scc1 L_v_init")

    A("L_qjob:")
    A.c("q job: LayerNorm(x)[:, 128 kq : 128 kq + 128] @ wq[those rows, column block xq of kv head hq]")
    if qprio:
        A(f"s_setprio {qprio}")
    A(f"s_cmp_eq_u32 s{sW}, 4")
    A(f"s_cselect_b32 s{sA}, s{sXI}, {tailx}")
    if qmap == 0:
        A(f"s_and_b32 s{sKQ}, s{sT}, 3")
        A(f"s_lshr_b32 s{sHQ}, s{sT}, 2")
        A(f"s_add_u32 s{sXQ}, s{sA}, s{sT}")
        A(f"s_and_b32 s{sXQ}, s{sXQ}, 7")
    else:
        A(f"s_lshr_b32 s{sKQ}, s{sT}, 3")
        A(f"s_and_b32 s{sXQ}, s{sT}, 7")
        A(f"s_lshl_b32 s{sHQ}, s{sKQ}, 1")
        A(f"s_add_u32 s{sHQ}, s{sHQ}, s{sA}")
        A(f"s_and_b32 s{sHQ}, s{sHQ}, 7")
    XR, XF, QR, QB, QD, QS = 16, 32, 64, 128, 192, 208
    A(f"v_and_b32 v4, 3, v{vN}")
    A("v_lshlrev_b32 v4, 10, v4")
    A(f"v_lshrrev_b32 v5, 2, v{vN}")
    A("v_lshl_add_u32 v4, v5, 8, v4")
    A(f"v_lshl_add_u32 v4, v{vG}, 4, v4")
    A(f"v_lshlrev_b32 v5, 16, v{vG}")
    A(f"v_lshl_add_u32 v5, v{vN}, 3, v5")
    A(f"s_lshl_b32 s{sA}, s{sXQ}, 7")
    A(f"s_lshl_b32 s{sB}, s{sHQ}, 10")
    A(f"s_add_u32 s{sA}, s{sA}, s{sB}")
    A(f"s_lshl_b32 s{sB}, s{sKQ}, 20")
    A(f"s_add_u32 s{sA}, s{sA}, s{sB}")
    A(f"s_lshl_b32 s60, s{sHQ}, 13")
    A(f"s_lshl_b32 s{sC}, s{sKQ}, 11")
    A(f"s_add_u32 s60, s60, s{sC}")
    A(f"s_lshl_b32 s{sC}, s{sXQ}, 8")
    A(f"s_add_u32 s60, s60, s{sC}")
    for r in range(1, 4):
        A(f"s_add_u32 s{60 + r}, s60, {65536 * r}")
    A(f"v_lshlrev_b32 v6, 16, v{vG}")
    A(f"v_lshl_add_u32 v6, v{vN}, 4, v6")
    A("s_waitcnt lgkmcnt(0)")
    srd(S_X, 4, 4096)
    srd(S_WST, 26, WS_SIZE)
    if qwarm is not None:
        A(f"buffer_load_dword v7, v6, {sr(S_WST, 4)}, s60 offen {qwarm}")
    for j in range(4):
        A(f"buffer_load_dwordx4 {vr(XR + 4 * j, 4)}, v4, {sr(S_X, 4)}, 0 offen offset:{64 * j}")
    srd(S_WQ, 10, 0 if 'q' in drop else 512 * 8192)
    for j in range(4):
        for e in range(8):
            A(f"buffer_load_dwordx2 {vr(QR + 16 * j + 2 * e, 2)}, v5, {sr(S_WQ, 4)}, s{sA} offen {wqflags}")
            if (j, e) != (3, 7):
                A(f"s_add_u32 s{sA}, s{sA}, {8192 if e < 7 else 8192 * 25}")
    A("s_barrier")
    A(f"s_load_dword s{sTAG}, s[26:27], {EPOCH}")
    A("s_waitcnt vmcnt(32)")
    for i in range(16):
        A(f"v_lshlrev_b32 v{XF + 2 * i}, 16, v{XR + i}")
        A(f"v_and_b32 v{XF + 2 * i + 1}, 0xffff0000, v{XR + i}")
    A(f"v_pk_add_f32 v[12:13], {vr(XF, 2)}, {vr(XF + 2, 2)}")
    A(f"v_pk_add_f32 v[14:15], {vr(XF + 4, 2)}, {vr(XF + 6, 2)}")
    for i in range(4, 16, 2):
        A(f"v_pk_add_f32 v[12:13], v[12:13], {vr(XF + 2 * i, 2)}")
        A(f"v_pk_add_f32 v[14:15], v[14:15], {vr(XF + 2 * i + 2, 2)}")
    A("v_pk_add_f32 v[12:13], v[12:13], v[14:15]")
    A("v_add_f32 v12, v12, v13")
    dpp_red("v_add_f32", [12], [8, 4])
    allred_rows("v_add_f32", 12, 13)
    A("v_mul_f32 v12, 0x3b000000, v12")
    A("v_mov_b32 v14, 0")
    A("v_mov_b32 v15, 0")
    for i in range(16):
        A(f"v_pk_add_f32 v[8:9], {vr(XF + 2 * i, 2)}, v[12:13] op_sel_hi:[1,0] neg_lo:[0,1] neg_hi:[0,1]")
        A("v_pk_fma_f32 v[14:15], v[8:9], v[8:9], v[14:15]")
    A("v_add_f32 v14, v14, v15")
    dpp_red("v_add_f32", [14], [8, 4])
    allred_rows("v_add_f32", 14, 15)
    A("v_mul_f32 v14, 0x3b000000, v14")
    rb(12, 12)
    rb(14, 14)
    A("v_add_f32 v14, 0x3727c5ac, v14")
    rb(14, 14)
    A("v_sqrt_f32 v14, v14")
    rb(14, 14)
    A("v_rcp_f32 v14, v14")
    for i in range(16):
        p = XF + 2 * i
        A(f"v_pk_add_f32 {vr(p, 2)}, {vr(p, 2)}, v[12:13] op_sel_hi:[1,0] neg_lo:[0,1] neg_hi:[0,1]")
        A(f"v_cvt_pk_bf16_f32 v{p + 1}, v{p}, v{p + 1}")
        A(f"v_lshlrev_b32 v{p}, 16, v{p + 1}")
        A(f"v_and_b32 v{p + 1}, 0xffff0000, v{p + 1}")
        A(f"v_pk_mul_f32 {vr(p, 2)}, {vr(p, 2)}, v[14:15] op_sel_hi:[1,0]")
        A(f"v_cvt_pk_bf16_f32 v{XR + i}, v{p}, v{p + 1}")
    for j in range(4):
        A(f"s_waitcnt vmcnt({24 - 8 * j})")
        for i in range(4):
            for e2 in range(4):
                R = QR + 16 * j + 4 * e2 + (i >> 1)
                A(f"v_perm_b32 v{QB + 16 * j + 4 * i + e2}, v{R + 2}, v{R}, s{sSELHI if i & 1 else sSELLO}")
        for i in range(4):
            mfma16(QD + 4 * i, XR + 4 * j, QB + 16 * j + 4 * i, j == 0)
    A.c("QP byte = (b*8 + hq)*8192 + kq*2048 + (64xq + 4c + i)*4; lane row kq holds the valid sums, register = batch")
    make_tag()
    A(f"s_lshl_b32 s{sB}, s{sKQ}, 4")
    A(f"s_lshl_b64 {sr(sC, 2)}, 0xffff, s{sB}")
    A(f"v_lshlrev_b32 v4, 4, v{vN}")
    for i in range(16):
        A(f"v_add_u32 v{QD + i}, 0x80, v{QD + i}")
    for r in range(4):
        for i in range(4):
            A(f"v_bfi_b32 v{QS + 4 * r + i}, v{vFF}, s{sTB + i}, v{QD + 4 * i + r}")
    A(f"s_mov_b64 exec, {sr(sC, 2)}")
    for r in range(0 if 'S' in drop else 4):
        A(f"buffer_store_dwordx4 {vr(QS + 4 * r, 4)}, v4, {sr(S_WST, 4)}, s{60 + r} offen {qstflags}")
    if qwb:
        A("s_waitcnt vmcnt(0)")
        A("buffer_wbl2 sc1")
    A("s_mov_b64 exec, -1")
    if qprio:
        A("s_setprio 0")
    stamp(1)
    A("s_branch L_vwave")

    A("L_kwave:")
    A.c("K wave k: stage its key tiles k, k+4, .. in LDS, scores, workgroup max, probabilities")
    KO, KA, QO = 4, 8, 12
    vM, vLs, vT1, vT2, vGA = 14, 15, 62, 63, 61
    Q, S, PA, QM, KF, QG = 16, 32, 44, 64, 128, 160
    if kprio:
        A(f"s_setprio {kprio}")
    A(f"v_lshlrev_b32 v{vT1}, 2, v{vG}")
    A(f"v_xor_b32 v{vT1}, v{vT1}, v{vN}")
    A(f"v_lshlrev_b32 v{vT1}, 4, v{vT1}")
    A(f"v_lshl_add_u32 v{KO}, v{vG}, 8, v{vT1}")
    for i in (1, 2, 3):
        A(f"v_xor_b32 v{KO + i}, {16 * i}, v{KO}")
    A(f"s_mul_i32 s{sLB}, s{sW}, 36864")
    A(f"s_min_u32 s{sA}, s{sW}, 1")
    A(f"s_lshl_b32 s{sA}, s{sA}, 12")
    A(f"s_add_u32 s{sLB}, s{sLB}, s{sA}")
    A(f"s_add_u32 s{sA}, s{sW}, 36")
    A(f"s_cmp_lt_u32 s{sA}, s{sNT}")
    A(f"s_cselect_b32 s{sNT}, 10, 9")
    A(f"s_lshl_b32 s{sA}, s{sW}, 12")
    A(f"s_add_u32 s{sD}, s{sT0}, s{sA}")
    A(f"s_mov_b32 s{sC}, s{sLB}")
    A.c("q partials of head k: lane half picks the k quarter")
    A(f"v_and_b32 v{vGA}, 31, v{vL}")
    A(f"v_lshlrev_b32 v{vGA}, 4, v{vGA}")
    A(f"v_lshrrev_b32 v{vT1}, 5, v{vL}")
    A(f"v_lshl_add_u32 v{vGA}, v{vT1}, 11, v{vGA}")
    A(f"s_lshl_b32 s{sA}, s{sT}, 13")
    A(f"s_lshl_b32 s{sB}, s{sW}, 9")
    A(f"s_add_u32 s{sA}, s{sA}, s{sB}")
    A(f"s_add_u32 s{sB}, s{sA}, 4096")
    gloads = [f"buffer_load_dwordx4 {vr(QG + 4 * i, 4)}, v{vGA}, {sr(S_WS, 4)}, s{sB if i else sA} offen sc1" for i in range(2)]
    if 'G' in drop:
        gloads = []
    A("s_waitcnt lgkmcnt(0)")
    srd(S_A, 6, 0 if 'k' in drop else 0x8000000)
    if kbar < 0:
        A("s_barrier")
    for slot in range(10):
        if slot == 9 - gather_before and gather_before:
            for l in gloads:
                A(l)
        if slot == 9:
            A(f"s_cmp_le_u32 s{sNT}, {slot}")
            A("s_cbranch_scc1 L_k_issued")
        A(f"s_mov_b32 m0, s{sC}")
        A(f"s_add_u32 s{sC}, s{sC}, 4096")
        for i in range(4):
            if kwin and 4 * slot + i >= kwin:
                A(f"s_waitcnt vmcnt({kwin - 1})")
            A(f"buffer_load_dwordx4 v{KO + i}, {sr(S_A, 4)}, s{sD} offen offset:{1024 * i} {kvflags} lds")
        A(f"s_add_u32 s{sD}, s{sD}, 16384")
        if slot == 0:
            A(f"s_load_dword s{sTAG}, s[26:27], {EPOCH}")
            srd(S_WS, 26, WS_SIZE)
            srd(S_WST, 26, WS_SIZE)
        if slot == kbar:
            A("s_barrier")
        if slot == vbar:
            A("s_barrier")
    A("L_k_issued:")
    if not gather_before:
        for l in gloads:
            A(l)
    stamp(2)
    make_tag()
    A.c("K fragment LDS addresses: key(mu)*256 + ((4j + g) ^ mu)*16, key(mu) = 4*(mu&3) + (mu>>2)")
    A(f"v_and_b32 v{vT1}, 3, v{vN}")
    A(f"v_lshlrev_b32 v{QO}, 4, v{vT1}")
    A(f"v_lshlrev_b32 v{vT1}, 10, v{vT1}")
    A(f"v_lshrrev_b32 v{vT2}, 2, v{vN}")
    A(f"v_lshl_add_u32 v{vT1}, v{vT2}, 8, v{vT1}")
    A(f"v_xor_b32 v{vM}, v{vG}, v{vN}")
    A(f"v_lshl_add_u32 v{vT1}, v{vM}, 4, v{vT1}")
    for j in range(4):
        A(f"v_xor_b32 v{KA + j}, {64 * j}, v{vT1}")
        A(f"v_add_u32 v{KA + j}, s{sLB}, v{KA + j}")
    A(f"v_add_u32 v{QO + 1}, {ML}, v{QO}")
    A(f"v_lshl_add_u32 v{QO}, v{vG}, 6, v{QO}")
    A.c("probability slot of slot s = 4a + rho: PB + (s>>1)*1024 + k*256 + g*64 + h*16 + (s&1)*8")
    A(f"v_lshrrev_b32 v{vM}, 1, v{vT2}")
    A(f"v_lshl_add_u32 v{PA}, v{vM}, 10, v{QO}")
    A(f"v_and_b32 v{vM}, 1, v{vT2}")
    A(f"v_lshl_add_u32 v{PA}, v{vM}, 3, v{PA}")
    A(f"s_lshl_b32 s{sC}, s{sW}, 8")
    A(f"s_add_u32 s{sC}, s{sC}, {PB}")
    A(f"v_add_u32 v{PA}, s{sC}, v{PA}")
    A(f"v_add_u32 v{QO}, {QL}, v{QO}")
    A.c("s[18:19]: lanes of accumulator 2 whose tile exists")
    A(f"v_add_u32 v{vT1}, 8, v{vT2}")
    A(f"v_cmp_gt_u32 s[18:19], s{sNT}, v{vT1}")
    set_masks()
    for i in range(64):
        A(f"v_mov_b32 v{QM + i}, 0")
    A.c("sum the four q partials of head k into LDS (operand order)")
    A(f"v_bfe_u32 v{Q}, v{vL}, 1, 4")
    A(f"v_lshlrev_b32 v{Q}, 6, v{Q}")
    A(f"v_and_b32 v{vT1}, 1, v{vL}")
    A(f"v_lshl_add_u32 v{Q}, v{vT1}, 3, v{Q}")
    A(f"s_lshl_b32 s{sC}, s{sW}, 4")
    A(f"s_add_u32 s{sC}, s{sC}, {QL}")
    A(f"v_add_u32 v{Q}, s{sC}, v{Q}")
    A(f"s_waitcnt vmcnt({4 * gather_before})")
    tag_check(range(QG, QG + 8), TAGS, vT1)
    A("s_cbranch_vccz L_k_gathered")
    poll(gloads, lambda: tag_check(range(QG, QG + 8), TAGS, vT1))
    A("L_k_gathered:")
    for i in range(4):
        A(f"v_permlane32_swap_b32 v{QG + i}, v{QG + 4 + i}")
    A(f"v_pk_add_f32 {vr(QG, 2)}, {vr(QG, 2)}, {vr(QG + 4, 2)}")
    A(f"v_pk_add_f32 {vr(QG + 2, 2)}, {vr(QG + 2, 2)}, {vr(QG + 6, 2)}")
    for i in range(4):
        A(f"v_mov_b32 v{QG + 4 + i}, v{QG + i}")
    for i in range(4):
        A(f"v_permlane32_swap_b32 v{QG + i}, v{QG + 4 + i}")
    A(f"v_pk_add_f32 {vr(QG, 2)}, {vr(QG, 2)}, {vr(QG + 4, 2)}")
    A(f"v_pk_add_f32 {vr(QG + 2, 2)}, {vr(QG + 2, 2)}, {vr(QG + 6, 2)}")
    for i in range(2):
        A(f"v_cvt_pk_bf16_f32 v{QG + i}, v{QG + 2 * i}, v{QG + 2 * i + 1}")
        A(f"v_min_u32 v{QG + i}, -2, v{QG + i}")
    A(f"ds_write_b64 v{Q}, {vr(QG, 2)}")
    poll([f"ds_read_b128 {vr(Q + 4 * j, 4)}, v{QO} offset:{256 * j}" for j in range(4)],
         lambda: sentinel_check(range(Q, Q + 16), vT1), wait="s_waitcnt lgkmcnt(0)", sleep=2)
    for rho in range(4):
        A(f"s_mov_b64 exec, {sr(sMASK + 2 * rho, 2)}")
        for j in range(4):
            A(f"ds_read_b128 {vr(QM + 16 * rho + 4 * j, 4)}, v{QO} offset:{256 * j}")
        if rho & 1:
            A("s_waitcnt lgkmcnt(0)")
    A("s_mov_b64 exec, -1")
    A("s_waitcnt vmcnt(0)")
    stamp(3)

    def qk_reads(slot):
        for j in range(4):
            A(f"ds_read_b128 {vr(KF + 16 * (slot & 1) + 4 * j, 4)}, v{KA + j} offset:{4096 * slot}")

    qk_reads(0)
    for slot in range(10):
        if slot == 9:
            A(f"s_cmp_le_u32 s{sNT}, {slot}")
            A("s_cbranch_scc1 L_qk_done")
        if slot < 9:
            qk_reads(slot + 1)
            A("s_waitcnt lgkmcnt(4)")
        else:
            A("s_waitcnt lgkmcnt(0)")
        for j in range(4):
            mfma16(S + 4 * (slot >> 2), KF + 16 * (slot & 1) + 4 * j, QM + 16 * (slot & 3) + 4 * j, j == 0 and (slot & 3) == 0)
    A("L_qk_done:")
    A.c("scores: bf16(bf16(q.k) * Dh^-0.5); absent tiles get -inf")
    A(f"s_mov_b32 s{sA}, 0x3db504f3")
    A(f"s_mov_b32 s{sB}, 0x3fb8aa3b")
    A(f"v_mov_b32 v{vT1}, 0xff800000")
    for i in range(0, 12, 2):
        p = S + i
        A(f"v_cvt_pk_bf16_f32 v{p + 1}, v{p}, v{p + 1}")
        A(f"v_lshlrev_b32 v{p}, 16, v{p + 1}")
        A(f"v_and_b32 v{p + 1}, 0xffff0000, v{p + 1}")
        A(f"v_mul_f32 v{p}, s{sA}, v{p}")
        A(f"v_mul_f32 v{p + 1}, s{sA}, v{p + 1}")
        A(f"v_cvt_pk_bf16_f32 v{p + 1}, v{p}, v{p + 1}")
        A(f"v_lshlrev_b32 v{p}, 16, v{p + 1}")
        A(f"v_and_b32 v{p + 1}, 0xffff0000, v{p + 1}")
        if i >= 8:
            m = "s[18:19]"
            A(f"v_cndmask_b32 v{p}, v{vT1}, v{p}, {m}")
            A(f"v_cndmask_b32 v{p + 1}, v{vT1}, v{p + 1}, {m}")
    A(f"v_max_f32 v{vM}, v{S}, v{S + 1}")
    for i in range(2, 12, 2):
        A(f"v_max3_f32 v{vM}, v{vM}, v{S + i}, v{S + i + 1}")
    dpp_red("v_max_f32", [vM], [8, 4])
    allred_rows("v_max_f32", vM, vT1)
    A(f"v_min_u32 v{vM}, -2, v{vM}")
    A(f"s_lshl_b32 s{sA}, s{sW}, 2")
    A(f"v_add_u32 v{vT2}, s{sA}, v{QO + 1}")
    A("s_mov_b64 exec, 15")
    A(f"ds_write_b32 v{vT2}, v{vM}")
    A("s_mov_b64 exec, -1")
    poll([f"ds_read_b128 {vr(Q, 4)}, v{QO + 1}"], lambda: sentinel_check(range(Q, Q + 4), vT1),
         wait="s_waitcnt lgkmcnt(0)", sleep=1)
    A(f"v_max_f32 v{vM}, v{Q}, v{Q + 1}")
    A(f"v_max3_f32 v{vM}, v{vM}, v{Q + 2}, v{Q + 3}")
    for i in range(12):
        A(f"v_sub_f32 v{S + i}, v{S + i}, v{vM}")
        A(f"v_mul_f32 v{S + i}, s{sB}, v{S + i}")
        A(f"v_exp_f32 v{S + i}, v{S + i}")
    A(f"v_mul_f32 v{vM}, s{sB}, v{vM}")
    for i in range(6):
        A(f"v_cvt_pk_bf16_f32 v{Q + i}, v{S + 2 * i}, v{S + 2 * i + 1}")
    A(f"ds_write_b64 v{PA}, {vr(Q, 2)}")
    A(f"ds_write_b64 v{PA}, {vr(Q + 2, 2)} offset:2048")
    A("s_mov_b32 exec_lo, 0x00ff00ff")
    A("s_mov_b32 exec_hi, 0x00ff00ff")
    A(f"ds_write_b64 v{PA}, {vr(Q + 4, 2)} offset:4096")
    A("s_mov_b64 exec, -1")
    A(f"v_add_f32 v{vLs}, v{S}, v{S + 1}")
    for i in range(2, 12):
        A(f"v_add_f32 v{vLs}, v{vLs}, v{S + i}")
    dpp_red("v_add_f32", [vLs], [8, 4])
    allred_rows("v_add_f32", vLs, vT1)
    A("s_mov_b64 exec, 15")
    A(f"ds_write_b32 v{vT2}, v{vLs} offset:{LL - ML}")
    A("s_mov_b64 exec, -1")
    A("s_waitcnt lgkmcnt(0)")
    stamp(4)
    A("s_barrier")
    A(f"s_cmp_ge_u32 s{sW}, 2")
    A("s_cbranch_scc1 L_k_lse")
    A.c("waves 0,1: thread G owns 16 bytes of the record, head G>>5, scaled by 1/L")
    A(f"v_and_b32 v{KA + 2}, 127, v0")
    A(f"v_lshrrev_b32 v{KA}, 5, v{KA + 2}")
    A(f"v_lshlrev_b32 v{KA + 3}, 1, v{KA}")
    A(f"v_lshlrev_b32 v{KA}, 4, v{KA}")
    A(f"v_add_u32 v{KA}, {LL}, v{KA}")
    A(f"ds_read_b128 {vr(Q, 4)}, v{KA}")
    A(f"v_xor_b32 v{KA + 3}, v{KA + 3}, v{KA + 2}")
    A(f"v_lshlrev_b32 v{KA + 3}, 4, v{KA + 3}")
    A(f"v_lshlrev_b32 v{KA + 2}, 4, v{KA + 2}")
    A("s_waitcnt lgkmcnt(0)")
    A(f"v_add_f32 v{Q}, v{Q}, v{Q + 1}")
    A(f"v_add_f32 v{Q + 2}, v{Q + 2}, v{Q + 3}")
    A(f"v_add_f32 v{Q}, v{Q}, v{Q + 2}")
    A(f"v_rcp_f32 v{vM}, v{Q}")
    A("s_barrier")
    for w in range(4):
        A(f"ds_read_b128 {vr(Q + 4 * w, 4)}, v{KA + 3} offset:{2048 * w}")
    A("s_waitcnt lgkmcnt(2)")
    A(f"v_pk_add_f32 {vr(Q, 2)}, {vr(Q, 2)}, {vr(Q + 4, 2)}")
    A(f"v_pk_add_f32 {vr(Q + 2, 2)}, {vr(Q + 2, 2)}, {vr(Q + 6, 2)}")
    A("s_waitcnt lgkmcnt(0)")
    A(f"v_pk_add_f32 {vr(Q + 8, 2)}, {vr(Q + 8, 2)}, {vr(Q + 12, 2)}")
    A(f"v_pk_add_f32 {vr(Q + 10, 2)}, {vr(Q + 10, 2)}, {vr(Q + 14, 2)}")
    A(f"v_pk_add_f32 {vr(Q, 2)}, {vr(Q, 2)}, {vr(Q + 8, 2)}")
    A(f"v_pk_add_f32 {vr(Q + 2, 2)}, {vr(Q + 2, 2)}, {vr(Q + 10, 2)}")
    A(f"v_pk_mul_f32 {vr(Q, 2)}, {vr(Q, 2)}, {vr(vM, 2)} op_sel_hi:[1,0]")
    A(f"v_pk_mul_f32 {vr(Q + 2, 2)}, {vr(Q + 2, 2)}, {vr(vM, 2)} op_sel_hi:[1,0]")
    tag_put(Q)
    A(f"buffer_store_dwordx4 {vr(Q, 4)}, v{KA + 2}, {sr(S_WST, 4)}, s{sREC} offen sc1")
    stamp(6)
    A("s_branch L_fin")
    A("L_k_lse:")
    A(f"s_cmp_lg_u32 s{sW}, 2")
    A("s_cbranch_scc1 L_k_idle")
    A(f"ds_read_b128 {vr(Q, 4)}, v{QO + 1} offset:{LL - ML}")
    A(f"v_lshlrev_b32 v{vT1}, 3, v{vL}")
    A(f"v_mov_b32 v{vLs}, s{sTAG}")
    A("s_waitcnt lgkmcnt(0)")
    A(f"v_add_f32 v{Q}, v{Q}, v{Q + 1}")
    A(f"v_add_f32 v{Q + 2}, v{Q + 2}, v{Q + 3}")
    A(f"v_add_f32 v{Q}, v{Q}, v{Q + 2}")
    A(f"v_log_f32 v{Q}, v{Q}")
    A(f"v_add_f32 v{vM}, v{vM}, v{Q}")
    A("s_mov_b64 exec, 15")
    A(f"buffer_store_dwordx2 {vr(vM, 2)}, v{vT1}, {sr(S_WST, 4)}, s{sREC} offen offset:2048 sc1")
    A("s_mov_b64 exec, -1")
    A("L_k_idle:")
    A("s_barrier")
    A("s_branch L_fin")

    A("L_v_init:")
    A.c("LDS: the q copy and the max slots start empty")
    for i in range(4):
        A(f"v_mov_b32 v{8 + i}, -1")
    A(f"v_lshlrev_b32 v6, 4, v{vL}")
    A(f"v_add_u32 v7, {QL}, v6")
    A("ds_write_b128 v7, v[8:11]")
    A("ds_write_b128 v7, v[8:11] offset:1024")
    A("s_waitcnt lgkmcnt(0)")
    A("s_barrier")
    A("L_vwave:")
    srd(S_B, 8, 0 if 'v' in drop else 0x8000000)
    if stamps:
        srd(S_WS, 26, WS_SIZE)
    A.c("V wave v: value tiles v, v+4, .. in registers, transposed in-lane, P.V on the matrix core")
    VO, vPA, vRA = 4, 5, 6
    ACC, PM, VB = 8, 16, 48
    A(f"v_lshlrev_b32 v{VO}, 4, v{vL}")
    A(f"s_sub_u32 s{sD}, s{sW}, 4")
    A(f"s_lshl_b32 s{sA}, s{sD}, 12")
    A(f"s_add_u32 s{sT0}, s{sT0}, s{sA}")
    order = [9, 8, 0, 1, 2, 3, 4, 5, 6, 7]
    pair_seq = [4, 0, 1, 2, 3]
    raw_base = {k: VB + 32 * (n + 1) for n, k in enumerate(pair_seq)}
    out_base = {k: VB + 32 * n for n, k in enumerate(pair_seq)}

    def v_load(s):
        R = raw_base[s >> 1] + 16 * (s & 1)
        A(f"s_add_u32 s{sB}, s{sT0}, {16384 * s}")
        for j in range(4):
            A(f"buffer_load_dwordx4 {vr(R + 4 * j, 4)}, v{VO}, {sr(S_B, 4)}, s{sB} offen offset:{1024 * j} {kvflags}")

    def v_perm(s, i):
        R = raw_base[s >> 1] + 16 * (s & 1)
        q, sel = i >> 1, sSELHI if i & 1 else sSELLO
        d = out_base[s >> 1] + 4 * i + 2 * (s & 1)
        A(f"v_perm_b32 v{d}, v{R + 4 + q}, v{R + q}, s{sel}")
        A(f"v_perm_b32 v{d + 1}, v{R + 12 + q}, v{R + 8 + q}, s{sel}")

    def p_read(k, buf):
        for rho in range(4):
            A(f"s_mov_b64 exec, {sr(sMASK + 2 * rho, 2)}")
            A(f"ds_read_b128 {vr(PM + 16 * buf + 4 * rho, 4)}, v{vPA} offset:{1024 * k}")
        A("s_mov_b64 exec, -1")

    def pv(k, buf, i, first):
        mfma16(ACC + 4 * (i >> 2), out_base[k] + 4 * i, PM + 16 * buf + 4 * (i & 3), first and (i & 3) == 0)

    for i in range(16):
        A(f"v_mov_b32 v{raw_base[4] + 16 + i}, 0")
    set_masks()
    for i in range(32):
        A(f"v_mov_b32 v{PM + i}, 0")
    A(f"v_and_b32 v7, 3, v{vN}")
    A(f"v_lshlrev_b32 v{vPA}, 4, v7")
    A(f"v_lshl_add_u32 v{vPA}, v{vG}, 6, v{vPA}")
    A(f"s_lshl_b32 s{sA}, s{sD}, 8")
    A(f"s_add_u32 s{sA}, s{sA}, {PB}")
    A(f"v_add_u32 v{vPA}, s{sA}, v{vPA}")
    A.c("reduction slot: h*32 + ((16a + 4g + rho) ^ 2h)")
    A(f"v_lshrrev_b32 v{vRA}, 2, v{vL}")
    A(f"v_lshlrev_b32 v{ACC}, 1, v7")
    A(f"v_xor_b32 v{vRA}, v{vRA}, v{ACC}")
    A(f"v_lshl_add_u32 v{vRA}, v7, 5, v{vRA}")
    A(f"v_lshlrev_b32 v{vRA}, 4, v{vRA}")
    A(f"s_lshl_b32 s{sA}, s{sD}, 11")
    A(f"v_add_u32 v{vRA}, s{sA}, v{vRA}")
    if vbar is not None:
        A("s_barrier")
    A(f"s_add_u32 s{sA}, s{sD}, 36")
    A(f"s_cmp_ge_u32 s{sA}, s{sNT}")
    A("s_cbranch_scc1 L_v9_done")
    v_load(9)
    A("L_v9_done:")
    done = 0
    for n in range(4, 40):
        s_, j = order[n >> 2], n & 3
        R = raw_base[s_ >> 1] + 16 * (s_ & 1)
        if j == 0:
            A(f"s_add_u32 s{sB}, s{sT0}, {16384 * s_}")
        if n >= vwin:
            A(f"s_waitcnt vmcnt({vwin - 1})")
        A(f"buffer_load_dwordx4 {vr(R + 4 * j, 4)}, v{VO}, {sr(S_B, 4)}, s{sB} offen offset:{1024 * j} {kvflags}")
        if n >= vwin and (n - vwin) % 4 == 3:
            for i in range(8):
                v_perm(order[done], i)
            done += 1
    stamp(2)
    A("s_barrier")
    stamp(4)
    p_read(pair_seq[0], 0)
    for n, k in enumerate(pair_seq):
        if n < 4:
            p_read(pair_seq[n + 1], (n + 1) & 1)
        first_t, second_t = 2 * n, 2 * n + 1
        if first_t >= done:
            A(f"s_waitcnt vmcnt({4 * (9 - first_t)})")
            for i in range(8):
                v_perm(order[first_t], i)
        lg = f"lgkmcnt({4 if n < 4 else 0})"
        if second_t >= done:
            A(f"s_waitcnt vmcnt({4 * (9 - second_t)}) {lg}")
            if n == 4:
                stamp(5)
            seq = [0, 4, 1, 5, 2, 6, 3, 7]
            v_perm(order[second_t], seq[0])
            for m, i in enumerate(seq):
                if m < 7:
                    v_perm(order[second_t], seq[m + 1])
                pv(k, n & 1, i, n == 0)
        else:
            A(f"s_waitcnt {lg}")
            for i in (0, 4, 1, 5, 2, 6, 3, 7):
                pv(k, n & 1, i, n == 0)
    A(f"ds_write_b128 v{vRA}, {vr(ACC, 4)}")
    A(f"ds_write_b128 v{vRA}, {vr(ACC + 4, 4)} offset:256")
    A("s_waitcnt lgkmcnt(0)")
    A("s_barrier")
    A("s_branch L_fin")

    A("L_tail:")
    A.c("tail workgroup t: head t of wo, 64 FFN channels, 16 columns of h and of the output")
    if 'T' in drop:
        A("s_waitcnt lgkmcnt(0)")
        srd(S_WS, 26, WS_SIZE)
        A("s_branch L_fin")
    AO, D, PT, BGU, BWO, BWD = 16, 32, 48, 64, 128, 192
    vTR, vGUo, vWOo, vWDo = 4, 8, 224, 226
    vLin, vP, vLse, vOw, vHs, vSs, vAr, vAw, vOs, vXr, vCs, vH, vRw, vRr, vYs, vTg0, vTg1 = range(228, 245)
    t1, t2, t3, t4 = 12, 13, 14, 15
    SM = 131072
    RED2, RED4, OL, AL = 0, 2048, 4096, 5120
    sRING = sT0
    A(f"s_getreg_b32 s{sFAST}, hwreg(HW_REG_XCC_ID, 0, 3)")
    A(f"v_lshlrev_b32 v{vLin}, 4, v{vL}")
    A(f"s_lshl_b32 s{sLB}, s{sW}, 14")
    A(f"s_lshl_b32 s{sRING}, s{sW}, 12")
    A(f"s_add_u32 s{sRING}, s{sRING}, {SM}")
    A.c("wo rows follow the channel permutation of the partial records; wave w takes columns 64w..64w+63")
    swz_chunk(t1, t2)
    A(f"s_lshl_b32 s{sA}, s{sW}, 7")
    A(f"v_add_u32 v{t1}, s{sA}, v{t1}")
    A(f"v_lshrrev_b32 v{t2}, 3, v{vL}")
    A(f"v_lshl_add_u32 v{vWDo}, v{t2}, 10, v{t1}")
    A(f"s_lshl_b32 s{sA}, s{sT}, 16")
    A(f"v_add_u32 v{vWDo}, s{sA}, v{vWDo}")
    A(f"v_xor_b32 v{vWDo + 1}, 64, v{vWDo}")
    A(f"v_and_b32 v{t2}, 3, v{t2}")
    A(f"v_lshl_add_u32 v{vWOo}, v{t2}, 13, v{t1}")
    A(f"v_lshrrev_b32 v{t2}, 5, v{vL}")
    A(f"v_lshl_add_u32 v{vWOo}, v{t2}, 10, v{vWOo}")
    A(f"s_lshl_b32 s{sA}, s{sT}, 17")
    A(f"v_add_u32 v{vWOo}, s{sA}, v{vWOo}")
    A.c("odd waves take k-steps in the order 2,1,0,3 -> address bit 12 differs between neighbouring waves")
    A(f"s_and_b32 s{sXQ}, s{sW}, 1")
    A(f"s_lshl_b32 s{sXQ}, s{sXQ}, 12")
    A(f"v_xor_b32 v{vWOo + 1}, 64, v{vWOo}")
    A.c("gate/up DMA: row 64w + 8i + (l>>3), chunk (l&7) ^ (((l>>4)&1) | (i&1)<<1 | mat<<2)")
    A(f"v_lshrrev_b32 v{t1}, 3, v{vL}")
    A(f"s_lshl_b32 s{sA}, s{sW}, 6")
    A(f"v_add_u32 v{t1}, s{sA}, v{t1}")
    A(f"v_mul_u32_u24 v{t1}, 3584, v{t1}")
    A(f"s_lshl_b32 s{sA}, s{sT}, 7")
    A(f"v_add_u32 v{t1}, s{sA}, v{t1}")
    A(f"v_and_b32 v{t2}, 7, v{vL}")
    A(f"v_and_b32 v{t3}, 1, v{vG}")
    A(f"v_xor_b32 v{t2}, v{t2}, v{t3}")
    for k in range(4):
        A(f"v_xor_b32 v{t3}, {2 * k}, v{t2}")
        A(f"v_lshl_add_u32 v{vGUo + k}, v{t3}, 4, v{t1}")
    for i in range(4):
        A(f"v_mov_b32 v{AO + i}, -1")
    A("s_waitcnt lgkmcnt(0)")
    srd(S_A, 12, 0 if 'o' in drop else 4096 * 1024)
    srd(S_WST, 26, WS_SIZE)
    A(f"s_load_dword s{sTAG}, s[26:27], {EPOCH}")
    A(f"s_cmp_lg_u32 s{sW}, {9 if 'C' in drop else 3}")
    A("s_cbranch_scc1 L_no_clear")
    A.c("wave 3: mark 256 B of the h hand-off buffers empty; the check-in word follows once that store is done")
    A(f"s_lshl_b32 s{sA}, s{sT}, 8")
    A(f"s_add_u32 s{sA}, s{sA}, {HBUF}")
    A("s_mov_b64 exec, 0xffff")
    A(f"buffer_store_dwordx4 {vr(AO, 4)}, v{vLin}, {sr(S_WST, 4)}, s{sA} offen sc1")
    A("s_mov_b64 exec, -1")
    A("L_no_clear:")

    def ring_issue(c):
        for g in range(4):
            A(f"s_add_u32 s{sA}, s{sRING}, {1024 * g}")
            A(f"s_mov_b32 m0, s{sA}")
            if c < 4:
                A(f"s_xor_b32 s{sB}, s{sXQ}, {(64 * (c & 1) + 4 * (c >> 1) + 32 * (g >> 1) + 2 * (g & 1)) * 1024}")
                A(f"buffer_load_dwordx4 v{vWOo + (g & 1)}, {sr(S_A, 4)}, s{sB} offen {woflags} lds")
            else:
                A(f"s_mov_b32 s{sB}, {(32 * (c - 4) + 8 * g) * 1024}")
                A(f"buffer_load_dwordx4 v{vWDo + (g & 1)}, {sr(S_B, 4)}, s{sB} offen {wdflags} lds")

    def gu_issue(n):
        mat, ii = n & 1, n >> 1
        A(f"s_add_u32 s{sA}, s{sLB}, {1024 * (8 * mat + ii)}")
        A(f"s_mov_b32 m0, s{sA}")
        A(f"s_mov_b32 s{sB}, {8 * ii * 3584}")
        A(f"buffer_load_dwordx4 v{vGUo + (ii & 1) + 2 * mat}, {sr(S_WU if mat else S_WG, 4)}, s{sB} offen {guflags} lds")

    def ring_read(c):
        line_tile_read(lambda i: (BWO + 16 * c if c < 4 else BWD + 16 * (c - 4)) + 4 * i, vTR, 0)

    ring_issue(0)
    srd(S_WG, 16, 512 * 3584)
    srd(S_WU, 18, 512 * 3584)
    A(f"s_cmp_lt_u32 s{sT}, 28")
    A(f"s_cselect_b32 s{S_WG + 2}, {0 if 'g' in drop else 512 * 3584}, 0")
    A(f"s_cselect_b32 s{S_WU + 2}, {0 if 'g' in drop else 512 * 3584}, 0")
    ng = 0
    for c in range(5):
        for n in range(ng, ng + gsched[c]):
            gu_issue(n)
        ng += gsched[c]
        if c == 0:
            srd(S_B, 20, 0 if 'd' in drop else 1792 * 1024)
            srd(S_WS, 26, WS_SIZE)
            srd(S_X, 4, 4096)
            srd(S_OUT, 22, 4096)
            line_tile_addr(vTR, sRING, t1, t2)
            make_tag()
        A(f"s_waitcnt vmcnt({gsched[c]})")
        ring_read(c)
        if c == 0:
            A(f"s_cmp_lg_u32 s{sW}, {9 if 'X' in drop else 3}")
            A("s_cbranch_scc1 L_no_checkin")
            A(f"v_mov_b32 v{t1}, s{sFAST}")
            A(f"v_mov_b32 v{t2}, s{sTAG}")
            A(f"s_lshl_b32 s{sA}, s{sT}, 3")
            A(f"s_add_u32 s{sA}, s{sA}, {XBUF}")
            A("s_mov_b64 exec, 1")
            A(f"buffer_store_dwordx2 {vr(t1, 2)}, v{vLin}, {sr(S_WST, 4)}, s{sA} offen sc1")
            A("s_mov_b64 exec, -1")
            A("L_no_checkin:")
        A("s_waitcnt lgkmcnt(0)")
        ring_issue(c + 1)
    assert ng == 16
    A(f"s_cmp_lt_u32 s{sT}, 28")
    A("s_cbranch_scc1 L_touched")
    A.c("workgroups without FFN weights read the partial-sum inboxes once so that the lines are resident in L2")
    A(f"s_sub_u32 s{sA}, s{sT}, 28")
    A(f"s_lshl_b32 s{sA}, s{sA}, 3")
    A(f"s_add_u32 s{sA}, s{sA}, s{sW}")
    A(f"s_lshl_b32 s{sA}, s{sA}, 14")
    A(f"s_add_u32 s{sA}, s{sA}, {YBUF}")
    if 'P' in drop:
        A(f"s_mov_b32 s{sA}, {WS_SIZE}")
    for n in range(16):
        A(f"buffer_load_dwordx4 {vr(PT, 4)}, v{vLin}, {sr(S_WS, 4)}, s{sA} offen offset:{1024 * (n & 3)} {touchflags}")
        if n & 3 == 3:
            A(f"s_add_u32 s{sA}, s{sA}, 4096")
    A("L_touched:")
    A.c("addresses of the hand-off stages; stage 1: wave b reads the records of pair (b, t>>2), head t&3")
    A(f"s_and_b32 s{sB}, s{sW}, 3")
    A(f"s_lshl_b32 s{sA}, s{sB}, 3")
    A(f"s_lshr_b32 s{sC}, s{sT}, 2")
    A(f"s_add_u32 s{sA}, s{sA}, s{sC}")
    A(f"s_mul_i32 s{sREC}, s{sA}, {8 * REC}")
    A(f"s_add_u32 s{sREC}, s{sREC}, {OBUF}")
    A(f"s_and_b32 s{sC}, s{sT}, 3")
    A(f"s_lshl_b32 s{sA}, s{sC}, 9")
    A(f"s_add_u32 s{sA}, s{sA}, s{sREC}")
    A(f"v_lshlrev_b32 v{vP}, 3, v{vL}")
    A(f"v_add_u32 v{vP}, s{sA}, v{vP}")
    A(f"v_and_b32 v{t1}, 7, v{vL}")
    A(f"v_min_u32 v{t1}, 6, v{t1}")
    A(f"v_mul_u32_u24 v{t1}, {REC}, v{t1}")
    A(f"s_lshl_b32 s{sA}, s{sC}, 3")
    A(f"s_add_u32 s{sA}, s{sA}, s{sREC}")
    A(f"v_add_u32 v{vLse}, s{sA}, v{t1}")
    A.c("LDS activations in operand order [k-step][g][b][16 B]")
    A(f"v_lshrrev_b32 v{t1}, 2, v{vL}")
    A(f"v_lshlrev_b32 v{t1}, 6, v{t1}")
    A(f"v_and_b32 v{t2}, 3, v{vL}")
    A(f"v_lshl_add_u32 v{t1}, v{t2}, 2, v{t1}")
    A(f"s_lshl_b32 s{sB}, s{sB}, 4")
    A(f"s_add_u32 s{sB}, s{sB}, {SM}")
    A(f"v_add_u32 v{vOw}, s{sB}, v{t1}")
    A(f"v_lshlrev_b32 v{vAr}, 4, v{t2}")
    A(f"v_lshl_add_u32 v{vAr}, v{vG}, 6, v{vAr}")
    A(f"v_add_u32 v{vAr}, {SM}, v{vAr}")
    A(f"s_lshr_b32 s{sA}, s{sXQ}, 3")
    A(f"v_add_u32 v{vWOo}, s{sA}, v{vAr}")
    A(f"v_xor_b32 v{vWOo + 1}, 512, v{vWOo}")
    A(f"v_and_b32 v{t2}, 7, v{vN}")
    A(f"v_lshlrev_b32 v{vAw}, 4, v{vG}")
    A(f"v_lshl_add_u32 v{vAw}, v{t2}, 1, v{vAw}")
    A(f"s_lshl_b32 s{sA}, s{sW}, 6")
    A(f"s_add_u32 s{sA}, s{sA}, {SM}")
    A(f"v_add_u32 v{vAw}, s{sA}, v{vAw}")
    A.c("partial-sum slot [consumer 4w + tile][producer t][n][b]")
    A(f"s_lshl_b32 s{sA}, s{sW}, 15")
    A(f"s_lshl_b32 s{sB}, s{sT}, 8")
    A(f"s_add_u32 s{sA}, s{sA}, s{sB}")
    A(f"v_lshlrev_b32 v{vYs}, 4, v{vN}")
    A(f"v_lshl_add_u32 v{vYs}, v{vG}, 13, v{vYs}")
    A(f"v_add_u32 v{vYs}, s{sA}, v{vYs}")
    A.c("HBUF byte = (j*64 + g*16 + 4rho + b)*16 + 2e, rho = t>>3, j = (t>>1)&3, g = 2(t&1) + (n>>3)")
    A(f"v_lshrrev_b32 v{t1}, 3, v{vN}")
    A(f"v_lshlrev_b32 v{t1}, 8, v{t1}")
    A(f"v_lshl_add_u32 v{t1}, v{vG}, 4, v{t1}")
    A(f"v_lshl_add_u32 v{t1}, v{t2}, 1, v{t1}")
    A(f"s_and_b32 s{sA}, s{sT}, 7")
    A(f"s_lshl_b32 s{sA}, s{sA}, 9")
    A(f"s_lshr_b32 s{sB}, s{sT}, 3")
    A(f"s_lshl_b32 s{sB}, s{sB}, 6")
    A(f"s_add_u32 s{sA}, s{sA}, s{sB}")
    A(f"s_add_u32 s{sA}, s{sA}, {HBUF}")
    A(f"v_add_u32 v{vHs}, s{sA}, v{t1}")
    A(f"s_lshl_b32 s{sA}, s{sT}, 3")
    A(f"s_add_u32 s{sA}, s{sA}, {HSTAT}")
    A(f"v_lshlrev_b32 v{vSs}, 8, v{vG}")
    A(f"v_add_u32 v{vSs}, s{sA}, v{vSs}")
    A(f"v_lshlrev_b32 v{vOs}, 10, v{vG}")
    A(f"v_lshl_add_u32 v{vOs}, v{vN}, 1, v{vOs}")
    A(f"s_lshl_b32 s{sA}, s{sT}, 5")
    A(f"v_add_u32 v{vOs}, s{sA}, v{vOs}")
    A(f"v_lshlrev_b32 v{vRr}, 2, v{vL}")
    A(f"v_add_u32 v{vRr}, {SM}, v{vRr}")
    A(f"s_lshl_b32 s{sA}, s{sW}, 8")
    A(f"v_add_u32 v{vRw}, s{sA}, v{vRr}")
    A(f"buffer_load_ushort v{vXr}, v{vOs}, {sr(S_X, 4)}, 0 offen")
    A(f"v_and_b32 v{PT + 6}, 31, v{vL}")
    A(f"v_lshlrev_b32 v{PT + 6}, 3, v{PT + 6}")
    A(f"s_mov_b32 s{sD}, {XBUF}")
    xload = f"buffer_load_dwordx2 {vr(PT + 4, 2)}, v{PT + 6}, {sr(S_WS, 4)}, s{sD} offen sc1"
    A(xload)
    A.c("inbox offsets")
    A(f"s_lshl_b32 s16, s{sT}, 13")
    A(f"s_lshl_b32 s{sA}, s{sW}, 10")
    A(f"s_add_u32 s16, s16, s{sA}")
    A(f"s_add_u32 s17, s16, {ZBUF}")
    A(f"s_add_u32 s16, s16, {YBUF}")
    A(f"s_mov_b32 s18, {YBUF}")
    A(f"s_mov_b32 s19, {ZBUF}")
    A.c("gate/up fragments: row (8g + r)*128 + ((w ^ f)*16) + (c&1)*8 + mat*8192")
    A(f"v_bfe_u32 v{t1}, v{vN}, 3, 1")
    A(f"v_and_b32 v{t2}, 1, v{vG}")
    A(f"v_lshl_or_b32 v{t1}, v{t2}, 1, v{t1}")
    A(f"v_bfe_u32 v{t2}, v{vN}, 1, 1")
    A(f"v_lshl_or_b32 v{t1}, v{t2}, 2, v{t1}")
    A(f"v_xor_b32 v{t1}, s{sW}, v{t1}")
    A(f"v_lshlrev_b32 v{t1}, 4, v{t1}")
    A(f"v_lshl_add_u32 v{t1}, v{t2}, 13, v{t1}")
    A(f"v_and_b32 v{t2}, 1, v{vN}")
    A(f"v_lshl_add_u32 v{t1}, v{t2}, 3, v{t1}")
    A(f"v_lshrrev_b32 v{t2}, 2, v{vN}")
    A(f"v_lshl_add_u32 v{t1}, v{t2}, 7, v{t1}")
    A(f"v_lshl_add_u32 v{t1}, v{vG}, 10, v{t1}")
    A(f"v_and_b32 v{t2}, 1, v{vL}")
    A(f"v_lshlrev_b32 v{t2}, 4, v{t2}")
    A(f"v_lshrrev_b32 v{t2}, v{t2}, s{sTAG}")
    A(f"v_and_b32 v{vTg0}, 0xff, v{t2}")
    A(f"v_bfe_u32 v{vTg1}, v{t2}, 8, 8")
    A("s_waitcnt vmcnt(6)")
    A("s_barrier")
    stamp(1)
    for ks in range(16):
        if ks == 8:
            A(f"v_add_u32 v{t1}, 65536, v{t1}")
        if ks and ks % 4 == 0:
            A("s_waitcnt lgkmcnt(4)")
        off = ((ks >> 1) & 3) * 16384 + (ks & 1) * 4096
        A(f"ds_read_b64_tr_b16 {vr(BGU + 4 * ks, 2)}, v{t1} offset:{off}")
        A(f"ds_read_b64_tr_b16 {vr(BGU + 4 * ks + 2, 2)}, v{t1} offset:{off + 512}")
    for i in range(4):
        A(f"v_mov_b32 v{AO + i}, 0x3f803f80")
    A("s_waitcnt lgkmcnt(0)")
    for ks in range(16):
        mfma16(D, AO, BGU + 4 * ks, ks == 0)
    A.c("all tail workgroups must have checked in; all on this XCC selects the L2-local stores")
    A("s_waitcnt vmcnt(0)")
    ring_read(5)
    A(f"v_cmp_ne_u32 vcc, s{sTAG}, v{PT + 5}")
    A("s_cbranch_vccz L_checked")
    poll([xload], lambda: A(f"v_cmp_ne_u32 vcc, s{sTAG}, v{PT + 5}"), sleep=slp)
    A("L_checked:")
    A(f"v_cmp_ne_u32 vcc, s{sFAST}, v{PT + 4}")
    A("s_cmp_eq_u64 vcc, 0")
    A(f"s_cselect_b32 s{sFAST}, {0 if force_slow else 1}, 0")
    A(f"v_mov_b32 v{vCs}, v{D}")
    A(f"v_lshlrev_b32 v{vXr}, 16, v{vXr}")
    A("s_waitcnt lgkmcnt(0)")
    A("s_barrier")
    stamp(2)
    if dry:
        A.c("pass 0 walks the stages once with hand-off stores dropped (descriptor size 0) and no waiting")
        A(f"s_mov_b32 s{sPASS}, 0")
        A(f"s_mov_b32 s{sLIM}, 1")
        A(f"s_mov_b32 s{S_WST + 2}, 0")
    else:
        A(f"s_lshl_b32 s{sA}, s{sW}, 10")
        A(f"s_add_u32 s{sA}, s{sA}, {HBUF}")
        A(f"buffer_load_dwordx4 {vr(PT, 4)}, v{vLin}, {sr(S_WS, 4)}, s{sA} offen sc1")
        A(f"s_cmp_lg_u32 s{sW}, 0")
        A("s_cbranch_scc1 L_pass")
        A(f"buffer_store_short v{vXr}, v{vOs}, {sr(S_OUT, 4)}, 0 offen")
    A("L_pass:")
    stamp(3)
    A(f"s_cmp_ge_u32 s{sW}, 4")
    A("s_cbranch_scc1 L_s1_done")
    A.c("stage 1: combine the seven partial outputs of batch w, then y_t = o_t @ wo[head t]")
    poll([f"buffer_load_dwordx2 {vr(t1, 2)}, v{vLse}, {sr(S_WS, 4)}, 0 offen offset:2048 sc1"],
         lambda: A(f"v_cmp_ne_u32 vcc, s{sTAG}, v{t2}"), sleep=slp)
    A(f"v_mov_b32 v{t2}, v{t1}")
    dpp_red("v_max_f32", [t2], [4, 2, 1])
    A(f"v_sub_f32 v{t1}, v{t1}, v{t2}")
    A(f"v_exp_f32 v{t1}, v{t1}")
    A(f"v_and_b32 v{t3}, 7, v{vL}")
    A(f"v_cmp_eq_u32 vcc, 7, v{t3}")
    A(f"v_cndmask_b32 v{t1}, v{t1}, 0, vcc")
    A(f"v_mov_b32 v{t2}, v{t1}")
    dpp_red("v_add_f32", [t2], [4, 2, 1])
    A(f"v_rcp_f32 v{t2}, v{t2}")
    A(f"v_mul_f32 v{t1}, v{t1}, v{t2}")
    for s in range(7):
        A(f"v_readlane_b32 s{sMASK + s}, v{t1}, {s}")
    A(f"s_mov_b32 s{sA}, {2 * REC}")
    A(f"s_mov_b32 s{sB}, {4 * REC}")
    A(f"s_mov_b32 s{sC}, {6 * REC}")
    so = ["0", f"s{sA}", f"s{sB}", f"s{sC}"]
    poll([f"buffer_load_dwordx2 {vr(PT + 2 * s, 2)}, v{vP}, {sr(S_WS, 4)}, {so[s >> 1]} offen offset:{(s & 1) * REC} sc1" for s in range(7)],
         lambda: tag_check(range(PT, PT + 14), [f"v{vTg0}", f"v{vTg1}"], t2), sleep=slp2)
    A(f"v_mul_f32 v{t1}, s{sMASK}, v{PT}")
    A(f"v_mul_f32 v{t2}, s{sMASK}, v{PT + 1}")
    for s in range(1, 7):
        A(f"v_fmac_f32 v{t1}, s{sMASK + s}, v{PT + 2 * s}")
        A(f"v_fmac_f32 v{t2}, s{sMASK + s}, v{PT + 2 * s + 1}")
    A(f"v_cvt_pk_bf16_f32 v{t1}, v{t1}, v{t2}")
    A(f"ds_write_b32 v{vOw}, v{t1} offset:{OL}")
    A("s_waitcnt lgkmcnt(0)")
    A("L_s1_done:")
    A("s_barrier")

    def ksplit_gemm(nk, lds_off, B, soff):
        for j in range(nk):
            if nk == 4:
                A(f"ds_read_b128 {vr(AO + 4 * j, 4)}, v{vWOo + (j >> 1)} offset:{lds_off + 256 * (j & 1)}")
            else:
                A(f"ds_read_b128 {vr(AO + 4 * j, 4)}, v{vAr} offset:{lds_off + 256 * j}")
        for j in range(nk):
            A(f"s_waitcnt lgkmcnt({nk - 1 - j})")
            for i in range(4):
                mfma16(D + 4 * i, AO + 4 * j, B + 16 * j + 4 * i, j == 0)
        for rho in (1, 2, 3):
            for r in range(4):
                A(f"v_mov_b32_dpp v{D + r}, v{D + 4 * rho + r} quad_perm:[0,1,2,3] row_mask:{1 << rho:#x} bank_mask:0xf")
        tag_put(D)
        store_mode([f"buffer_store_dwordx4 {vr(D, 4)}, v{vYs}, {sr(S_WST, 4)}, {soff} offen"])

    def gather_sum(soff, red, skip7):
        if skip7:
            A(f"v_mov_b32 v{PT}, 0")
            A(f"s_cmp_eq_u32 s{sW}, 7")
            A("s_cbranch_scc1 L_no_z")
        poll([f"buffer_load_dwordx4 {vr(PT, 4)}, v{vLin}, {sr(S_WS, 4)}, {soff} offen sc1"],
             lambda: tag_check(range(PT, PT + 4), TAGS, t1))
        rows_to_batches(PT)
        if skip7:
            A("L_no_z:")
        A(f"ds_write_b32 v{vRw}, v{PT} offset:{red}")
        A("s_waitcnt lgkmcnt(0)")
        A("s_barrier")

    def cross_sum(red):
        for i in range(4):
            A(f"ds_read2st64_b32 {vr(D + 2 * i, 2)}, v{vRr} offset0:{red // 256 + 2 * i} offset1:{red // 256 + 2 * i + 1}")
        A("s_waitcnt lgkmcnt(2)")
        A(f"v_pk_add_f32 {vr(D, 2)}, {vr(D, 2)}, {vr(D + 2, 2)}")
        A("s_waitcnt lgkmcnt(0)")
        A(f"v_pk_add_f32 {vr(D + 4, 2)}, {vr(D + 4, 2)}, {vr(D + 6, 2)}")
        A(f"v_pk_add_f32 {vr(D, 2)}, {vr(D, 2)}, {vr(D + 4, 2)}")
        A(f"v_add_f32 v{D}, v{D}, v{D + 1}")
        rb(D, D)

    ksplit_gemm(4, OL, BWO, "s18")
    stamp(4)
    A.c("stage 2: h = x + sum of the 32 head contributions, for 16 columns")
    gather_sum("s16", RED2, False)
    A(f"s_cmp_lg_u32 s{sW}, 0")
    A("s_cbranch_scc1 L_s2_done")
    cross_sum(RED2)
    A(f"v_add_f32 v{D}, v{D}, v{vXr}")
    A(f"v_mov_b32_dpp v{D + 1}, v{D} quad_perm:[1,1,3,3] row_mask:0xf bank_mask:0xf")
    A(f"v_cvt_pk_bf16_f32 v{D}, v{D}, v{D + 1}")
    A(f"v_min_u32 v{D + 1}, -2, v{D}")
    A("s_mov_b32 exec_lo, 0x55555555")
    A("s_mov_b32 exec_hi, 0x55555555")
    store_mode([f"buffer_store_dword v{D + 1}, v{vHs}, {sr(S_WST, 4)}, 0 offen"])
    A("s_mov_b64 exec, -1")
    A(f"v_lshlrev_b32 v{vH}, 16, v{D}")
    A(f"v_mov_b32_dpp v{t1}, v{vH} row_newbcast:0 row_mask:0xf bank_mask:0xf")
    A(f"v_sub_f32 v{t2}, v{vH}, v{t1}")
    A(f"v_mul_f32 v{t3}, v{t2}, v{t2}")
    dpp_red("v_add_f32", [t2, t3], [8, 4, 2, 1])
    A(f"v_mul_f32 v{t4}, 0x3d800000, v{t2}")
    A(f"v_fma_f32 v{t2}, -v{t4}, v{t2}, v{t3}")
    A(f"v_add_f32 v{t1}, v{t1}, v{t4}")
    A(f"v_min_u32 v{t1}, -2, v{t1}")
    A(f"v_min_u32 v{t2}, -2, v{t2}")
    A("s_mov_b32 exec_lo, 0x00010001")
    A("s_mov_b32 exec_hi, 0x00010001")
    store_mode([f"buffer_store_dwordx2 {vr(t1, 2)}, v{vSs}, {sr(S_WST, 4)}, 0 offen"])
    A("s_mov_b64 exec, -1")
    A("L_s2_done:")
    A("s_barrier")
    stamp(5)
    A(f"s_cmp_ge_u32 s{sT}, 28")
    A("s_cbranch_scc1 L_s3_done")
    A.c("stage 3: LayerNorm folded around h @ [w_gate | w_up], silu(g) * u, then act_t @ w_down[64 rows]")
    A(f"s_mov_b32 s{sA}, {HBUF}")
    A(f"s_mov_b32 s{sB}, {HSTAT}")
    poll([f"buffer_load_dwordx4 {vr(AO + 4 * j, 4)}, v{vLin}, {sr(S_WS, 4)}, s{sA} offen offset:{1024 * j} sc1" for j in range(4)],
         lambda: sentinel_check(range(AO, AO + 16), t1))
    statload = f"buffer_load_dwordx4 {vr(PT, 4)}, v{vLin}, {sr(S_WS, 4)}, s{sB} offen sc1"
    A(statload)
    for j in range(4):
        for rho in range(4):
            mfma16(D + 4 * rho, AO + 4 * j, BGU + 4 * (4 * rho + j), j == 0)
    A("s_waitcnt vmcnt(0)")
    sentinel_check(range(PT, PT + 4), t1)
    A("s_cbranch_vccz L_stat_ok")
    poll([statload], lambda: sentinel_check(range(PT, PT + 4), t1))
    A("L_stat_ok:")
    A(f"v_add_f32 v{t1}, v{PT}, v{PT + 2}")
    dpp_red("v_add_f32", [t1], [8, 4, 2, 1])
    A(f"v_mul_f32 v{t1}, 0x3d000000, v{t1}")
    A(f"v_sub_f32 v{PT}, v{PT}, v{t1}")
    A(f"v_sub_f32 v{PT + 2}, v{PT + 2}, v{t1}")
    A(f"v_mul_f32 v{PT}, v{PT}, v{PT}")
    A(f"v_fmac_f32 v{PT}, v{PT + 2}, v{PT + 2}")
    A(f"v_add_f32 v{t2}, v{PT + 1}, v{PT + 3}")
    A(f"v_fmac_f32 v{t2}, 0x41800000, v{PT}")
    dpp_red("v_add_f32", [t2], [8, 4, 2, 1])
    A(f"v_mul_f32 v{t2}, 0x3b000000, v{t2}")
    rb(t1, t1)
    rb(t2, t2)
    A(f"v_add_f32 v{t2}, 0x3727c5ac, v{t2}")
    rb(t2, t2)
    A(f"v_sqrt_f32 v{t2}, v{t2}")
    rb(t2, t2)
    A(f"v_rcp_f32 v{t2}, v{t2}")
    fold_d(D)
    A(f"v_fma_f32 v{D}, -v{t1}, v{vCs}, v{D}")
    A(f"v_mul_f32 v{D}, v{D}, v{t2}")
    A(f"v_mul_f32 v{t1}, 0xbfb8aa3b, v{D}")
    A(f"v_exp_f32 v{t1}, v{t1}")
    A(f"v_mul_f32_dpp v{D + 1}, v{D}, v{D} row_ror:8 row_mask:0xf bank_mask:0xf")
    A(f"v_add_f32 v{t1}, 1.0, v{t1}")
    A(f"v_rcp_f32 v{t1}, v{t1}")
    A(f"v_mul_f32 v{D}, v{D + 1}, v{t1}")
    A(f"v_cvt_pk_bf16_f32 v{D}, v{D}, v{D}")
    A("s_mov_b32 exec_lo, 0x00ff00ff")
    A("s_mov_b32 exec_hi, 0x00ff00ff")
    A(f"ds_write_b16 v{vAw}, v{D} offset:{AL}")
    A("s_mov_b64 exec, -1")
    A("s_waitcnt lgkmcnt(0)")
    A("s_barrier")
    ksplit_gemm(2, AL, BWD, "s19")
    A("L_s3_done:")
    stamp(6)
    A.c("stage 4: out = h + sum of the 28 down-projection contributions")
    gather_sum("s17", RED4, True)
    A(f"s_cmp_lg_u32 s{sW}, 0")
    A("s_cbranch_scc1 L_s4_done")
    cross_sum(RED4)
    A(f"v_add_f32 v{D}, v{D}, v{vH}")
    A(f"v_cvt_pk_bf16_f32 v{D}, v{D}, v{D}")
    A(f"buffer_store_short v{D}, v{vOs}, {sr(S_OUT, 4)}, 0 offen")
    A(f"s_cmp_lg_u32 s{sT}, 0")
    A("s_cbranch_scc1 L_s4_done")
    A.c("advance the epoch so that the next launch rejects this launch's hand-offs")
    A(f"v_mov_b32 v{t1}, s{sTAG}")
    A(f"v_mov_b32 v{t2}, {EPOCH}")
    A("s_mov_b64 exec, 1")
    A(f"buffer_store_dword v{t1}, v{t2}, {sr(S_WST, 4)}, 0 offen")
    A("s_mov_b64 exec, -1")
    A("L_s4_done:")
    if dry:
        A(f"s_cmp_lg_u32 s{sPASS}, 0")
        A("s_cbranch_scc1 L_fin")
        A(f"s_mov_b32 s{sPASS}, 1")
        A(f"s_mov_b32 s{sLIM}, {limit}")
        A(f"s_mov_b32 s{S_WST + 2}, {WS_SIZE:#x}")
        A("s_branch L_pass")

    A("L_fin:")
    if amp:
        idx, role, wave = amp
        A("s_waitcnt vmcnt(0)")
        stamp(7)
        A(f"s_cmp_lg_u32 s{sW}, {wave}")
        A("s_cbranch_scc1 L_end")
        A(f"s_cmp_eq_u32 s{sXI}, {tailx}")
        A("s_cbranch_scc0 L_end" if role == "tail" else "s_cbranch_scc1 L_end")
        A("s_waitcnt lgkmcnt(0)")
        A(f"s_sub_u32 s{sA}, s{sST + 2 * idx}, s{sST}")
        A(f"s_min_u32 s{sA}, s{sA}, 20000")
        A(f"s_lshl_b32 s{sA}, s{sA}, 3")
        A(f"s_add_u32 s{sA}, s{sA}, 6000")
        A("L_amp:")
        A(f"s_memrealtime {sr(sC, 2)}")
        A("s_waitcnt lgkmcnt(0)")
        A(f"s_sub_u32 s{sB}, s{sC}, s{sST}")
        A(f"s_cmp_lt_u32 s{sB}, s{sA}")
        A("s_cbranch_scc1 L_amp")
    if stamps:
        A("s_waitcnt vmcnt(0)")
        stamp(7)
        A("s_waitcnt lgkmcnt(0)")
        for i in range(8):
            A(f"v_mov_b32 v{16 + i}, s{sST + 2 * i}")
        A(f"s_lshl_b32 s{sA}, s2, 3")
        A(f"s_add_u32 s{sA}, s{sA}, s{sW}")
        A(f"s_lshl_b32 s{sA}, s{sA}, 5")
        A(f"s_add_u32 s{sA}, s{sA}, {STAMPS}")
        A("v_mov_b32 v4, 0")
        A("s_mov_b64 exec, 1")
        A(f"buffer_store_dwordx4 v[16:19], v4, {sr(S_WS, 4)}, s{sA} offen")
        A(f"buffer_store_dwordx4 v[20:23], v4, {sr(S_WS, 4)}, s{sA} offen offset:16")
    A("L_end:")
    A("s_endpgm")
    if codepf:
        A(".fill 256, 4, 0xbf800000")

    body, n = insert_waits(A.lines)
    out = HEADER
    out += "; @launch grid=(256,1,1) block=(512,1,1) lds=163840\n"
    out += '.amdgcn_target "amdgcn-amd-amdhsa--gfx950"\n.text\n'
    out += f".globl {NAME}\n.p2align 8\n.type {NAME},@function\n"
    out += "\n".join(("" if t.endswith(":") else "    ") + t for t in body) + "\n"
    out += f""".section .rodata,"a"
.p2align 6
.amdhsa_kernel {NAME}
  .amdhsa_next_free_vgpr 256
  .amdhsa_next_free_sgpr 102
  .amdhsa_accum_offset 256
  .amdhsa_group_segment_fixed_size 0
  .amdhsa_kernarg_size 96
  .amdhsa_user_sgpr_count 2
  .amdhsa_user_sgpr_kernarg_segment_ptr 1
  .amdhsa_system_sgpr_workgroup_id_x 1
  .amdhsa_float_denorm_mode_32 3
.end_amdhsa_kernel
"""
    return out


if __name__ == "__main__":
    kw = {}
    for a in sys.argv[2:]:
        k, v = a.split("=")
        kw[k] = eval(v)
    open(sys.argv[1], "w").write(gen(**kw))
```

```python
import sys
sys.path.insert(0, "exp")
from asmlib import Asm, vr, sr, insert_waits

NAME = "sequential_preLN__sliding_block_cached__swiglu_ffn__decode_kernel"
HEADER = open("sequential_preLN__sliding_block_cached__swiglu_ffn__decode.s.ref").read().split("; Override launch")[0]

QP, YBUF, HBUF, EPOCH, XBUF, OBUF, STAMPS = 0x0, 0x40000, 0x80000, 0x82000, 0x83000, 0x84000, 0x180000
TAGC = 0x9e3779b1
VERSION = 11
REC = 2176
WS_SIZE = 0x200000
FLAG_OFF = 0

S_X, S_WQ, S_WS, S_WST, S_A, S_B, S_WG, S_WU, S_OUT, S_DBG = 28, 32, 36, 40, 44, 48, 52, 56, 60, 64
sW, sXI, sT, sLIM, sCNT, sPASS, sFAST, sLB, sT0, sNT = 68, 69, 70, 71, 72, 73, 74, 75, 76, 77
sA, sB, sC, sD = 78, 79, 80, 81
sSELLO, sSELHI, sREC, sTAG = 82, 83, 84, 85
sXQ = 3
sHQ, sKQ = 64, 65
sMASK = 4
sTB = 12
sST = 86
vL, vN, vG = 1, 2, 3
vFF = 255
QL, ML, LL, PB = 151552, 152576, 152640, 153600


def gen(tailx=7, kvflags="nt", wqflags="nt", woflags="nt", guflags="nt", wdflags="nt", stamps=False, force_slow=False,
        dry=False, limit=0x40000, vwin=6, kwin=0, vbar=9, gsched=(4, 3, 3, 3, 3), kprio=0, amp=None, kbar=0, qprio=3, gather_before=0, qmap=1, drop='', codepf=False, tprio=True, slp=8, slp2=0, qstflags='sc1', touchflags='sc1', qwarm=None, qwb=False, fine=False, gyoung=True, nsets=(3, 2, 2, 2), gap=(1, 2, 2, 2), gwin=12, r1at=7, oprio=1, gprio=1, mimic2=True, vtile=None, ktile=None, ampx=None):
    A = Asm()

    def stamp(i):
        if stamps or (amp and i in (0, amp[0])):
            A(f"s_memrealtime {sr(sST + 2 * i, 2)}")

    FS = [44, 46, 48, 50, 52, 54, 56, 58, 20, 32, 24, 28, 30]

    def fs(i):
        if fine:
            A(f"s_memtime {sr(FS[i], 2)}")

    def srd(base, ptr, size):
        A(f"s_mov_b32 s{base}, s{ptr}")
        A(f"s_mov_b32 s{base + 1}, s{ptr + 1}")
        A(f"s_mov_b32 s{base + 2}, {size:#x}")
        A(f"s_mov_b32 s{base + 3}, 0x20000")

    def rb(dst, src):
        A(f"v_cvt_pk_bf16_f32 v{dst}, v{src}, v{src}")
        A(f"v_lshlrev_b32 v{dst}, 16, v{dst}")

    def allred_rows(op, v, t):
        A(f"v_mov_b32 v{t}, v{v}")
        A(f"v_permlane32_swap_b32 v{v}, v{t}")
        A(f"{op} v{v}, v{v}, v{t}")
        A(f"v_mov_b32 v{t}, v{v}")
        A(f"v_permlane16_swap_b32 v{v}, v{t}")
        A(f"{op} v{v}, v{v}, v{t}")

    def dpp_red(op, regs, rots):
        for r in rots:
            for v in regs:
                A(f"{op}_dpp v{v}, v{v}, v{v} row_ror:{r} row_mask:0xf bank_mask:0xf")

    def rows_to_batches(D):
        A(f"v_permlane32_swap_b32 v{D}, v{D + 2}")
        A(f"v_permlane32_swap_b32 v{D + 1}, v{D + 3}")
        A(f"v_add_f32 v{D}, v{D}, v{D + 2}")
        A(f"v_add_f32 v{D + 1}, v{D + 1}, v{D + 3}")
        A(f"v_permlane16_swap_b32 v{D}, v{D + 1}")
        A(f"v_add_f32 v{D}, v{D}, v{D + 1}")

    def fold_d(D):
        for rho in (1, 2, 3):
            for r in range(4):
                A(f"v_mov_b32_dpp v{D + r}, v{D + 4 * rho + r} quad_perm:[0,1,2,3] row_mask:{1 << rho:#x} bank_mask:0xf")
        rows_to_batches(D)

    def mfma16(D, Areg, Breg, first):
        c = "0" if first else vr(D, 4)
        A(f"v_mfma_f32_16x16x32_bf16 {vr(D, 4)}, {vr(Areg, 4)}, {vr(Breg, 4)}, {c}")

    def sentinel_check(regs, t):
        regs = list(regs)
        if len(regs) % 2 == 0:
            A(f"v_max_u32 v{t}, v{regs[0]}, v{regs[1]}")
            rest = regs[2:]
        else:
            A(f"v_max3_u32 v{t}, v{regs[0]}, v{regs[1]}, v{regs[2]}")
            rest = regs[3:]
        for i in range(0, len(rest), 2):
            A(f"v_max3_u32 v{t}, v{t}, v{rest[i]}, v{rest[i + 1]}")
        A(f"v_cmp_eq_u32 vcc, -1, v{t}")

    def tag_check(regs, tags, t, src=None, x=""):
        regs = list(regs)
        for i, r in enumerate(regs):
            A(f"v_xor_b32 v{r}, {tags[i % len(tags)]}, v{r if src is None else src + i}")
        A(f"v_or_b32 v{t}, v{regs[0]}, v{regs[1]}")
        for i in range(2, len(regs), 2):
            A(f"v_or3_b32 v{t}, v{t}, v{regs[i]}, v{regs[i + 1]}")
        A(f"v_cmp{x}_ne_u32_sdwa vcc, v{t}, 0 src0_sel:BYTE_0 src1_sel:DWORD")

    TAGS = [f"s{sTB + i}" for i in range(4)]

    def tag_put(D, tb=sTB):
        for i in range(4):
            A(f"v_bfi_b32 v{D + i}, v{vFF}, s{tb + i}, v{D + i}")

    def poll(loads, check, wait="s_waitcnt vmcnt(0)", sleep=0):
        top, out = A.label("poll"), A.label("polled")
        A(f"s_mov_b32 s{sCNT}, 0")
        A(f"{top}:")
        for l in loads:
            A(l)
        A(f"s_add_u32 s{sCNT}, s{sCNT}, 1")
        A(f"s_cmp_ge_u32 s{sCNT}, s{sLIM}")
        A(wait)
        check()
        A(f"s_cbranch_scc1 {out}")
        if sleep:
            A(f"s_cbranch_vccz {out}")
            A(f"s_sleep {sleep}")
            A(f"s_branch {top}")
        else:
            A(f"s_cbranch_vccnz {top}")
        A(f"{out}:")

    def mpoll(n, g, mk_loads, mk_check):
        top, out = A.label("poll"), A.label("polled")
        nl = len(mk_loads(0))
        for u in range(n - 1):
            for l in mk_loads(u):
                A(l)
            if g:
                A(f"s_sleep {g}")
        A(f"{top}:")
        for u in range(n):
            for l in mk_loads((u + n - 1) % n):
                A(l)
            if u == n - 1:
                A(f"s_add_u32 s{sCNT}, s{sCNT}, 1")
                A(f"s_cmp_lt_u32 s{sCNT}, s{sLIM}")
            A(f"s_waitcnt vmcnt({(n - 1) * nl})")
            mk_check(u)
            A(f"s_cbranch_execz {out}")
        A(f"s_cbranch_scc1 {top}")
        A(f"{out}:")
        A("s_mov_b64 exec, -1")

    def smf(D, Areg, Breg, idx):
        A(f"v_smfmac_f32_16x16x64_bf16 {vr(D, 4)}, {vr(Areg, 4)}, {vr(Breg, 8)}, v{idx}")

    def make_tag():
        A("s_waitcnt lgkmcnt(0)")
        A(f"s_add_u32 s{sTAG}, s{sTAG}, {TAGC:#x}")
        for i in range(4):
            A(f"s_bfe_u32 s{sTB + i}, s{sTAG}, {0x80000 + 8 * i:#x}")

    def set_masks():
        for i in range(4):
            A(f"s_mov_b32 s{sMASK + 2 * i}, {0x000f000f << (4 * i):#x}")
            A(f"s_mov_b32 s{sMASK + 2 * i + 1}, {0x000f000f << (4 * i):#x}")

    def store_mode(texts):
        slow, done = A.label("slow"), A.label("stored")
        A(f"s_cmp_eq_u32 s{sFAST}, 0")
        A(f"s_cbranch_scc1 {slow}")
        for t in texts:
            A(t)
        A(f"s_branch {done}")
        A(f"{slow}:")
        for t in texts:
            A(t + " sc1" if t.startswith("buffer_") else t)
        A(f"{done}:")

    def line_tile_addr(dst, base_s, t1, t2):
        A(f"v_bfe_u32 v{t1}, v{vN}, 3, 1")
        A(f"v_and_b32 v{t2}, 1, v{vG}")
        A(f"v_lshl_or_b32 v{t1}, v{t2}, 1, v{t1}")
        A(f"v_lshlrev_b32 v{t1}, 5, v{t1}")
        A(f"v_and_b32 v{t2}, 3, v{vN}")
        A(f"v_lshl_add_u32 v{t1}, v{t2}, 3, v{t1}")
        A(f"v_lshrrev_b32 v{t2}, 2, v{vN}")
        A(f"v_lshl_add_u32 v{t1}, v{t2}, 7, v{t1}")
        A(f"v_lshl_add_u32 v{t1}, v{vG}, 10, v{t1}")
        for i in range(4):
            A(f"v_xor_b32 v{dst + i}, {32 * i}, v{t1}")
            if base_s is not None:
                A(f"v_add_u32 v{dst + i}, s{base_s}, v{dst + i}")

    def line_tile_read(dst, addr, off):
        for i in range(4):
            A(f"ds_read_b64_tr_b16 {vr(dst(i), 2)}, v{addr + i} offset:{off}")
            A(f"ds_read_b64_tr_b16 {vr(dst(i) + 2, 2)}, v{addr + i} offset:{off + 512}")

    def swz_chunk(dst, t):
        A(f"v_and_b32 v{t}, 1, v{vG}")
        A(f"v_lshlrev_b32 v{t}, 1, v{t}")
        A(f"v_and_b32 v{dst}, 7, v{vL}")
        A(f"v_xor_b32 v{dst}, v{dst}, v{t}")
        A(f"v_lshlrev_b32 v{dst}, 4, v{dst}")

    A(f"{NAME}:")
    stamp(0)
    A("s_cmp_ge_u32 s2, 256")
    A("s_cbranch_scc1 L_end")
    A("s_load_dwordx16 s[4:19], s[0:1], 0")
    A("s_load_dwordx8 s[20:27], s[0:1], 64")
    A("v_lshrrev_b32 v4, 6, v0")
    A(f"v_and_b32 v{vL}, 63, v0")
    A(f"v_readfirstlane_b32 s{sW}, v4")
    A(f"v_and_b32 v{vN}, 15, v0")
    A(f"v_bfe_u32 v{vG}, v0, 4, 2")
    if codepf:
        A.c("pull the kernel's code into this XCD's L2 before the streams saturate memory")
        A(f"s_getpc_b64 {sr(sC, 2)}")
        A(f"s_and_b32 s{sC}, s{sC}, 0xffffff00")
        if codepf == 1:
            A("v_lshlrev_b32 v250, 6, v0")
            A(f"v_min_u32 v250, L_code_end - {NAME} - 4, v250")
            A(f"global_load_dword v253, v250, {sr(sC, 2)}")
        else:
            A("s_lshr_b32 s3, s2, 3")
            A("s_and_b32 s3, s3, 3")
            A("s_lshl_b32 s3, s3, 13")
            A("v_lshl_add_u32 v250, v1, 7, s3")
            A(f"v_min_u32 v250, L_code_end - {NAME} - 4, v250")
            A(f"s_cmp_lg_u32 s{sW}, 7")
            A("s_cbranch_scc1 L_no_pf")
            A(f"global_load_dword v253, v250, {sr(sC, 2)}")
            A("L_no_pf:")
    A(f"v_mov_b32 v{vFF}, 0xff")
    A(f"s_and_b32 s{sXI}, s2, 7")
    A(f"s_lshr_b32 s{sT}, s2, 3")
    A(f"s_mov_b32 s{sLIM}, {limit}")
    A(f"s_mov_b32 s{sSELLO}, 0x05040100")
    A(f"s_mov_b32 s{sSELHI}, 0x07060302")
    A(f"s_cmp_eq_u32 s{sXI}, {tailx}")
    A("s_cbranch_scc1 L_tail")
    A.c("split = (x - tailx - 1) & 7 and the record offset of this attention workgroup")
    A(f"s_sub_u32 s{sB}, s{sXI}, {tailx + 1}")
    A(f"s_and_b32 s{sB}, s{sB}, 7")
    A(f"s_lshl_b32 s{sREC}, s{sT}, 3")
    A(f"s_add_u32 s{sREC}, s{sREC}, s{sB}")
    A(f"s_mul_i32 s{sREC}, s{sREC}, {REC}")
    A(f"s_add_u32 s{sREC}, s{sREC}, {OBUF}")
    A.c("effective split s' = (split + pair) mod 7, byte offset of its first tile, tile count")
    A(f"s_add_u32 s{sB}, s{sB}, s{sT}")
    A(f"s_mul_i32 s{sA}, s{sB}, 37")
    A(f"s_lshr_b32 s{sA}, s{sA}, 8")
    A(f"s_mul_i32 s{sA}, s{sA}, 7")
    A(f"s_sub_u32 s{sB}, s{sB}, s{sA}")
    A(f"s_mul_i32 s{sT0}, s{sB}, 37")
    A(f"s_min_u32 s{sT0}, s{sT0}, 221")
    A(f"s_max_u32 s{sA}, s{sB}, 4")
    A(f"s_sub_u32 s{sNT}, 41, s{sA}")
    A(f"s_cmp_eq_u32 s{sB}, 6")
    A(f"s_cselect_b32 s{sPASS}, 5, 4")
    A(f"s_lshl_b32 s{sT0}, s{sT0}, 12")
    A(f"s_lshl_b32 s{sA}, s{sT}, 22")
    A(f"s_add_u32 s{sT0}, s{sT0}, s{sA}")
    A(f"s_add_u32 s{sT0}, s{sT0}, 0x300000")
    A(f"s_cmp_lt_u32 s{sW}, 4")
    A("s_cbranch_scc1 L_kwave")
    if 'j' in drop:
        A(f"s_mov_b32 s{sPASS}, 0")
    A(f"s_cmp_gt_u32 s{sW}, s{sPASS}")
    A("s_cbranch_scc1 L_v_init")

    A("L_qjob:")
    A.c("q job: LayerNorm(x)[:, 128 kq : 128 kq + 128] @ wq[those rows, column block xq of kv head hq]")
    if qprio:
        A(f"s_setprio {qprio}")
    A.c("column block by split: 2,4,5,6,7 for the long splits, 3 for the 36-tile split, 0 and 1 for the 35-tile split")
    A(f"s_add_u32 s{sA}, s{sB}, s{sW}")
    A(f"s_sub_u32 s{sA}, s{sA}, 4")
    A(f"s_lshl_b32 s{sA}, s{sA}, 2")
    A(f"s_lshr_b32 s{sXQ}, 0x10376542, s{sA}")
    A(f"s_and_b32 s{sXQ}, s{sXQ}, 7")
    A(f"s_and_b32 s{sKQ}, s{sT}, 3")
    A(f"s_lshr_b32 s{sHQ}, s{sT}, 2")
    XR, XF, QR, QB, QD, QS = 16, 32, 64, 128, 192, 208
    A(f"v_and_b32 v4, 3, v{vN}")
    A("v_lshlrev_b32 v4, 10, v4")
    A(f"v_lshrrev_b32 v5, 2, v{vN}")
    A("v_lshl_add_u32 v4, v5, 8, v4")
    A(f"v_lshl_add_u32 v4, v{vG}, 4, v4")
    A(f"v_lshlrev_b32 v5, 16, v{vG}")
    A(f"v_lshl_add_u32 v5, v{vN}, 3, v5")
    A(f"s_lshl_b32 s{sA}, s{sXQ}, 7")
    A(f"s_lshl_b32 s{sB}, s{sHQ}, 10")
    A(f"s_add_u32 s{sA}, s{sA}, s{sB}")
    A(f"s_lshl_b32 s{sB}, s{sKQ}, 20")
    A(f"s_add_u32 s{sA}, s{sA}, s{sB}")
    A(f"s_lshl_b32 s60, s{sHQ}, 13")
    A(f"s_lshl_b32 s{sC}, s{sKQ}, 11")
    A(f"s_add_u32 s60, s60, s{sC}")
    A(f"s_lshl_b32 s{sC}, s{sXQ}, 8")
    A(f"s_add_u32 s60, s60, s{sC}")
    for r in range(1, 4):
        A(f"s_add_u32 s{60 + r}, s60, {65536 * r}")
    A(f"v_lshlrev_b32 v6, 16, v{vG}")
    A(f"v_lshl_add_u32 v6, v{vN}, 4, v6")
    A("s_waitcnt lgkmcnt(0)")
    srd(S_X, 4, 4096)
    srd(S_WST, 26, WS_SIZE)
    if qwarm is not None:
        A(f"buffer_load_dword v7, v6, {sr(S_WST, 4)}, s60 offen {qwarm}")
    for j in range(4):
        A(f"buffer_load_dwordx4 {vr(XR + 4 * j, 4)}, v4, {sr(S_X, 4)}, 0 offen offset:{64 * j}")
    srd(S_WQ, 10, 0 if 'q' in drop else 512 * 8192)
    for j in range(4):
        for e in range(8):
            A(f"buffer_load_dwordx2 {vr(QR + 16 * j + 2 * e, 2)}, v5, {sr(S_WQ, 4)}, s{sA} offen {wqflags}")
            if (j, e) != (3, 7):
                A(f"s_add_u32 s{sA}, s{sA}, {8192 if e < 7 else 8192 * 25}")
    A("s_barrier")
    A(f"s_load_dword s{sTAG}, s[26:27], {EPOCH}")
    A("s_waitcnt vmcnt(32)")
    for i in range(16):
        A(f"v_lshlrev_b32 v{XF + 2 * i}, 16, v{XR + i}")
        A(f"v_and_b32 v{XF + 2 * i + 1}, 0xffff0000, v{XR + i}")
    A(f"v_pk_add_f32 v[12:13], {vr(XF, 2)}, {vr(XF + 2, 2)}")
    A(f"v_pk_add_f32 v[14:15], {vr(XF + 4, 2)}, {vr(XF + 6, 2)}")
    for i in range(4, 16, 2):
        A(f"v_pk_add_f32 v[12:13], v[12:13], {vr(XF + 2 * i, 2)}")
        A(f"v_pk_add_f32 v[14:15], v[14:15], {vr(XF + 2 * i + 2, 2)}")
    A("v_pk_add_f32 v[12:13], v[12:13], v[14:15]")
    A("v_add_f32 v12, v12, v13")
    dpp_red("v_add_f32", [12], [8, 4])
    allred_rows("v_add_f32", 12, 13)
    A("v_mul_f32 v12, 0x3b000000, v12")
    A("v_mov_b32 v14, 0")
    A("v_mov_b32 v15, 0")
    for i in range(16):
        A(f"v_pk_add_f32 v[8:9], {vr(XF + 2 * i, 2)}, v[12:13] op_sel_hi:[1,0] neg_lo:[0,1] neg_hi:[0,1]")
        A("v_pk_fma_f32 v[14:15], v[8:9], v[8:9], v[14:15]")
    A("v_add_f32 v14, v14, v15")
    dpp_red("v_add_f32", [14], [8, 4])
    allred_rows("v_add_f32", 14, 15)
    A("v_mul_f32 v14, 0x3b000000, v14")
    rb(12, 12)
    rb(14, 14)
    A("v_add_f32 v14, 0x3727c5ac, v14")
    rb(14, 14)
    A("v_sqrt_f32 v14, v14")
    rb(14, 14)
    A("v_rcp_f32 v14, v14")
    for i in range(16):
        p = XF + 2 * i
        A(f"v_pk_add_f32 {vr(p, 2)}, {vr(p, 2)}, v[12:13] op_sel_hi:[1,0] neg_lo:[0,1] neg_hi:[0,1]")
        A(f"v_cvt_pk_bf16_f32 v{p + 1}, v{p}, v{p + 1}")
        A(f"v_lshlrev_b32 v{p}, 16, v{p + 1}")
        A(f"v_and_b32 v{p + 1}, 0xffff0000, v{p + 1}")
        A(f"v_pk_mul_f32 {vr(p, 2)}, {vr(p, 2)}, v[14:15] op_sel_hi:[1,0]")
        A(f"v_cvt_pk_bf16_f32 v{XR + i}, v{p}, v{p + 1}")
    for j in range(4):
        A(f"s_waitcnt vmcnt({24 - 8 * j})")
        for i in range(4):
            for e2 in range(4):
                R = QR + 16 * j + 4 * e2 + (i >> 1)
                A(f"v_perm_b32 v{QB + 16 * j + 4 * i + e2}, v{R + 2}, v{R}, s{sSELHI if i & 1 else sSELLO}")
        for i in range(4):
            mfma16(QD + 4 * i, XR + 4 * j, QB + 16 * j + 4 * i, j == 0)
    A.c("QP byte = (b*8 + hq)*8192 + kq*2048 + (64xq + 4c + i)*4; lane row kq holds the valid sums, register = batch")
    make_tag()
    A(f"s_lshl_b32 s{sB}, s{sKQ}, 4")
    A(f"s_lshl_b64 {sr(sC, 2)}, 0xffff, s{sB}")
    A(f"v_lshlrev_b32 v4, 4, v{vN}")
    for i in range(16):
        A(f"v_add_u32 v{QD + i}, 0x80, v{QD + i}")
    for r in range(4):
        for i in range(4):
            A(f"v_bfi_b32 v{QS + 4 * r + i}, v{vFF}, s{sTB + i}, v{QD + 4 * i + r}")
    A(f"s_mov_b64 exec, {sr(sC, 2)}")
    for r in range(0 if 'S' in drop else 4):
        A(f"buffer_store_dwordx4 {vr(QS + 4 * r, 4)}, v4, {sr(S_WST, 4)}, s{60 + r} offen {qstflags}")
    if qwb:
        A("s_waitcnt vmcnt(0)")
        A("buffer_wbl2 sc1")
    A("s_mov_b64 exec, -1")
    if qprio:
        A("s_setprio 0")
    stamp(1)
    A("s_branch L_vwave")

    A("L_kwave:")
    A.c("K wave k: stage its key tiles k, k+4, .. in LDS, scores, workgroup max, probabilities")
    KO, KA, QO = 4, 8, 12
    vM, vLs, vT1, vT2, vGA = 14, 15, 62, 63, 61
    Q, S, PA, QM, KF, QG = 16, 32, 44, 64, 128, 160
    if kprio:
        A(f"s_setprio {kprio}")
    A(f"v_lshlrev_b32 v{vT1}, 2, v{vG}")
    A(f"v_xor_b32 v{vT1}, v{vT1}, v{vN}")
    A(f"v_lshlrev_b32 v{vT1}, 4, v{vT1}")
    A(f"v_lshl_add_u32 v{KO}, v{vG}, 8, v{vT1}")
    for i in (1, 2, 3):
        A(f"v_xor_b32 v{KO + i}, {16 * i}, v{KO}")
    A(f"s_mul_i32 s{sLB}, s{sW}, 36864")
    A(f"s_min_u32 s{sA}, s{sW}, 1")
    A(f"s_lshl_b32 s{sA}, s{sA}, 12")
    A(f"s_add_u32 s{sLB}, s{sLB}, s{sA}")
    A(f"s_sub_u32 s{sNT}, s{sNT}, s{sW}")
    A(f"s_add_u32 s{sNT}, s{sNT}, 3")
    A(f"s_lshr_b32 s{sNT}, s{sNT}, 2")
    A(f"s_lshl_b32 s{sA}, s{sW}, 12")
    A(f"s_add_u32 s{sD}, s{sT0}, s{sA}")
    A.c("q partials of head k: lane half picks the k quarter")
    A(f"v_and_b32 v{vGA}, 31, v{vL}")
    A(f"v_lshlrev_b32 v{vGA}, 4, v{vGA}")
    A(f"v_lshrrev_b32 v{vT1}, 5, v{vL}")
    A(f"v_lshl_add_u32 v{vGA}, v{vT1}, 11, v{vGA}")
    A(f"s_lshl_b32 s{sA}, s{sT}, 13")
    A(f"s_lshl_b32 s{sB}, s{sW}, 9")
    A(f"s_add_u32 s{sA}, s{sA}, s{sB}")
    A(f"s_add_u32 s{sB}, s{sA}, 4096")
    gloads = [f"buffer_load_dwordx4 {vr(QG + 4 * i, 4)}, v{vGA}, {sr(S_WS, 4)}, s{sB if i else sA} offen sc1" for i in range(2)]
    if 'G' in drop:
        gloads = []
    A("s_waitcnt lgkmcnt(0)")
    srd(S_A, 6, 0 if 'k' in drop else 0x8000000)
    if kbar < 0:
        A("s_barrier")
    def k_tile(slot, n0):
        A(f"s_add_u32 s{sC}, s{sLB}, {4096 * slot}")
        A(f"s_mov_b32 m0, s{sC}")
        A(f"s_add_u32 s{sC}, s{sD}, {16384 * slot}")
        if ktile is not None and n0 >= 8:
            A(f"s_waitcnt vmcnt({ktile})")
        for i in range(4):
            if kwin and n0 + i >= kwin:
                A(f"s_waitcnt vmcnt({kwin - 1})")
            A(f"buffer_load_dwordx4 v{KO + i}, {sr(S_A, 4)}, s{sC} offen offset:{1024 * i} {kvflags} lds")

    for n, slot in enumerate([0, 1, 9, 8, 2, 3, 4, 5, 6, 7]):
        if n == 10 - gather_before:
            for l in gloads:
                A(l)
        if slot >= 8:
            A(f"s_cmp_le_u32 s{sNT}, {slot}")
            A(f"s_cbranch_scc1 L_k_skip{slot}")
        k_tile(slot, 4 * n)
        if slot >= 8:
            A(f"L_k_skip{slot}:")
        if n == 0:
            A(f"s_load_dword s{sTAG}, s[26:27], {EPOCH}")
            srd(S_WS, 26, WS_SIZE)
            srd(S_WST, 26, WS_SIZE)
        if n == kbar:
            A("s_barrier")
        if n == 9 and not gather_before:
            for l in gloads:
                A(l)
        if n == vbar:
            A("s_barrier")
    stamp(2)
    make_tag()
    A.c("K fragment LDS addresses: key(mu)*256 + ((4j + g) ^ mu)*16, key(mu) = 4*(mu&3) + (mu>>2)")
    A(f"v_and_b32 v{vT1}, 3, v{vN}")
    A(f"v_lshlrev_b32 v{QO}, 4, v{vT1}")
    A(f"v_lshlrev_b32 v{vT1}, 10, v{vT1}")
    A(f"v_lshrrev_b32 v{vT2}, 2, v{vN}")
    A(f"v_lshl_add_u32 v{vT1}, v{vT2}, 8, v{vT1}")
    A(f"v_xor_b32 v{vM}, v{vG}, v{vN}")
    A(f"v_lshl_add_u32 v{vT1}, v{vM}, 4, v{vT1}")
    for j in range(4):
        A(f"v_xor_b32 v{KA + j}, {64 * j}, v{vT1}")
        A(f"v_add_u32 v{KA + j}, s{sLB}, v{KA + j}")
    A(f"v_add_u32 v{QO + 1}, {ML}, v{QO}")
    A(f"v_lshl_add_u32 v{QO}, v{vG}, 6, v{QO}")
    A.c("probability slot of slot s = 4a + rho: PB + (s>>1)*1024 + k*256 + g*64 + h*16 + (s&1)*8")
    A(f"v_lshrrev_b32 v{vM}, 1, v{vT2}")
    A(f"v_lshl_add_u32 v{PA}, v{vM}, 10, v{QO}")
    A(f"v_and_b32 v{vM}, 1, v{vT2}")
    A(f"v_lshl_add_u32 v{PA}, v{vM}, 3, v{PA}")
    A(f"s_lshl_b32 s{sC}, s{sW}, 8")
    A(f"s_add_u32 s{sC}, s{sC}, {PB}")
    A(f"v_add_u32 v{PA}, s{sC}, v{PA}")
    A(f"v_add_u32 v{QO}, {QL}, v{QO}")
    A.c("s[18:19]: lanes of accumulator 2 whose tile exists")
    A(f"v_add_u32 v{vT1}, 8, v{vT2}")
    A(f"v_cmp_gt_u32 s[18:19], s{sNT}, v{vT1}")
    set_masks()
    for i in range(64):
        A(f"v_mov_b32 v{QM + i}, 0")
    A.c("sum the four q partials of head k into LDS (operand order)")
    A(f"v_bfe_u32 v{Q}, v{vL}, 1, 4")
    A(f"v_lshlrev_b32 v{Q}, 6, v{Q}")
    A(f"v_and_b32 v{vT1}, 1, v{vL}")
    A(f"v_lshl_add_u32 v{Q}, v{vT1}, 3, v{Q}")
    A(f"s_lshl_b32 s{sC}, s{sW}, 4")
    A(f"s_add_u32 s{sC}, s{sC}, {QL}")
    A(f"v_add_u32 v{Q}, s{sC}, v{Q}")
    A(f"s_waitcnt vmcnt({4 * gather_before})")
    tag_check(range(QG, QG + 8), TAGS, vT1)
    A("s_cbranch_vccz L_k_gathered")
    poll(gloads, lambda: tag_check(range(QG, QG + 8), TAGS, vT1))
    A("L_k_gathered:")
    for i in range(4):
        A(f"v_permlane32_swap_b32 v{QG + i}, v{QG + 4 + i}")
    A(f"v_pk_add_f32 {vr(QG, 2)}, {vr(QG, 2)}, {vr(QG + 4, 2)}")
    A(f"v_pk_add_f32 {vr(QG + 2, 2)}, {vr(QG + 2, 2)}, {vr(QG + 6, 2)}")
    for i in range(4):
        A(f"v_mov_b32 v{QG + 4 + i}, v{QG + i}")
    for i in range(4):
        A(f"v_permlane32_swap_b32 v{QG + i}, v{QG + 4 + i}")
    A(f"v_pk_add_f32 {vr(QG, 2)}, {vr(QG, 2)}, {vr(QG + 4, 2)}")
    A(f"v_pk_add_f32 {vr(QG + 2, 2)}, {vr(QG + 2, 2)}, {vr(QG + 6, 2)}")
    for i in range(2):
        A(f"v_cvt_pk_bf16_f32 v{QG + i}, v{QG + 2 * i}, v{QG + 2 * i + 1}")
        A(f"v_min_u32 v{QG + i}, -2, v{QG + i}")
    A(f"ds_write_b64 v{Q}, {vr(QG, 2)}")
    poll([f"ds_read_b128 {vr(Q + 4 * j, 4)}, v{QO} offset:{256 * j}" for j in range(4)],
         lambda: sentinel_check(range(Q, Q + 16), vT1), wait="s_waitcnt lgkmcnt(0)", sleep=2)
    for rho in range(4):
        A(f"s_mov_b64 exec, {sr(sMASK + 2 * rho, 2)}")
        for j in range(4):
            A(f"ds_read_b128 {vr(QM + 16 * rho + 4 * j, 4)}, v{QO} offset:{256 * j}")
        if rho & 1:
            A("s_waitcnt lgkmcnt(0)")
    A("s_mov_b64 exec, -1")
    A("s_waitcnt vmcnt(0)")
    stamp(3)

    def qk_reads(slot):
        for j in range(4):
            A(f"ds_read_b128 {vr(KF + 16 * (slot & 1) + 4 * j, 4)}, v{KA + j} offset:{4096 * slot}")

    qk_reads(0)
    for slot in range(10):
        if slot >= 8:
            A(f"s_cmp_le_u32 s{sNT}, {slot}")
            A("s_cbranch_scc1 L_qk_done")
        if slot < 9:
            qk_reads(slot + 1)
            A("s_waitcnt lgkmcnt(4)")
        else:
            A("s_waitcnt lgkmcnt(0)")
        for j in range(4):
            mfma16(S + 4 * (slot >> 2), KF + 16 * (slot & 1) + 4 * j, QM + 16 * (slot & 3) + 4 * j, j == 0 and (slot & 3) == 0)
    A("L_qk_done:")
    A.c("scores: bf16(bf16(q.k) * Dh^-0.5); absent tiles get -inf")
    A(f"s_mov_b32 s{sA}, 0x3db504f3")
    A(f"s_mov_b32 s{sB}, 0x3fb8aa3b")
    A(f"v_mov_b32 v{vT1}, 0xff800000")
    for i in range(0, 12, 2):
        p = S + i
        A(f"v_cvt_pk_bf16_f32 v{p + 1}, v{p}, v{p + 1}")
        A(f"v_lshlrev_b32 v{p}, 16, v{p + 1}")
        A(f"v_and_b32 v{p + 1}, 0xffff0000, v{p + 1}")
        A(f"v_mul_f32 v{p}, s{sA}, v{p}")
        A(f"v_mul_f32 v{p + 1}, s{sA}, v{p + 1}")
        A(f"v_cvt_pk_bf16_f32 v{p + 1}, v{p}, v{p + 1}")
        A(f"v_lshlrev_b32 v{p}, 16, v{p + 1}")
        A(f"v_and_b32 v{p + 1}, 0xffff0000, v{p + 1}")
        if i >= 8:
            m = "s[18:19]"
            A(f"v_cndmask_b32 v{p}, v{vT1}, v{p}, {m}")
            A(f"v_cndmask_b32 v{p + 1}, v{vT1}, v{p + 1}, {m}")
    A(f"v_max_f32 v{vM}, v{S}, v{S + 1}")
    for i in range(2, 12, 2):
        A(f"v_max3_f32 v{vM}, v{vM}, v{S + i}, v{S + i + 1}")
    dpp_red("v_max_f32", [vM], [8, 4])
    allred_rows("v_max_f32", vM, vT1)
    A(f"v_min_u32 v{vM}, -2, v{vM}")
    A(f"s_lshl_b32 s{sA}, s{sW}, 2")
    A(f"v_add_u32 v{vT2}, s{sA}, v{QO + 1}")
    A("s_mov_b64 exec, 15")
    A(f"ds_write_b32 v{vT2}, v{vM}")
    A("s_mov_b64 exec, -1")
    poll([f"ds_read_b128 {vr(Q, 4)}, v{QO + 1}"], lambda: sentinel_check(range(Q, Q + 4), vT1),
         wait="s_waitcnt lgkmcnt(0)", sleep=1)
    A(f"v_max_f32 v{vM}, v{Q}, v{Q + 1}")
    A(f"v_max3_f32 v{vM}, v{vM}, v{Q + 2}, v{Q + 3}")
    for i in range(12):
        A(f"v_sub_f32 v{S + i}, v{S + i}, v{vM}")
        A(f"v_mul_f32 v{S + i}, s{sB}, v{S + i}")
        A(f"v_exp_f32 v{S + i}, v{S + i}")
    A(f"v_mul_f32 v{vM}, s{sB}, v{vM}")
    for i in range(6):
        A(f"v_cvt_pk_bf16_f32 v{Q + i}, v{S + 2 * i}, v{S + 2 * i + 1}")
    A(f"ds_write_b64 v{PA}, {vr(Q, 2)}")
    A(f"ds_write_b64 v{PA}, {vr(Q + 2, 2)} offset:2048")
    A("s_mov_b32 exec_lo, 0x00ff00ff")
    A("s_mov_b32 exec_hi, 0x00ff00ff")
    A(f"ds_write_b64 v{PA}, {vr(Q + 4, 2)} offset:4096")
    A("s_mov_b64 exec, -1")
    A(f"v_add_f32 v{vLs}, v{S}, v{S + 1}")
    for i in range(2, 12):
        A(f"v_add_f32 v{vLs}, v{vLs}, v{S + i}")
    dpp_red("v_add_f32", [vLs], [8, 4])
    allred_rows("v_add_f32", vLs, vT1)
    A(f"v_min_u32 v{vLs}, -2, v{vLs}")
    A("s_mov_b64 exec, 15")
    A(f"ds_write_b32 v{vT2}, v{vLs} offset:{LL - ML}")
    A("s_mov_b64 exec, -1")
    A(f"s_cmp_lg_u32 s{sW}, 2")
    A("s_cbranch_scc1 L_k_nolse")
    poll([f"ds_read_b128 {vr(Q, 4)}, v{QO + 1} offset:{LL - ML}"], lambda: sentinel_check(range(Q, Q + 4), vT1),
         wait="s_waitcnt lgkmcnt(0)", sleep=1)
    A(f"v_lshlrev_b32 v{vT1}, 3, v{vL}")
    A(f"v_mov_b32 v{vLs}, s{sTAG}")
    A(f"v_add_f32 v{Q}, v{Q}, v{Q + 1}")
    A(f"v_add_f32 v{Q + 2}, v{Q + 2}, v{Q + 3}")
    A(f"v_add_f32 v{Q}, v{Q}, v{Q + 2}")
    A(f"v_log_f32 v{Q}, v{Q}")
    A(f"v_add_f32 v{vM}, v{vM}, v{Q}")
    A("s_mov_b64 exec, 15")
    A(f"buffer_store_dwordx2 {vr(vM, 2)}, v{vT1}, {sr(S_WST, 4)}, s{sREC} offen offset:2048 sc1")
    A("s_mov_b64 exec, -1")
    A("L_k_nolse:")
    A("s_waitcnt lgkmcnt(0)")
    stamp(4)
    A("s_barrier")
    A(f"s_cmp_ge_u32 s{sW}, 2")
    A("s_cbranch_scc1 L_k_idle")
    A.c("waves 0,1: thread G owns 16 bytes of the record, head G>>5, scaled by 1/L")
    A(f"v_and_b32 v{KA + 2}, 127, v0")
    A(f"v_lshrrev_b32 v{KA}, 5, v{KA + 2}")
    A(f"v_lshlrev_b32 v{KA + 3}, 1, v{KA}")
    A(f"v_lshlrev_b32 v{KA}, 4, v{KA}")
    A(f"v_add_u32 v{KA}, {LL}, v{KA}")
    A(f"ds_read_b128 {vr(Q, 4)}, v{KA}")
    A(f"v_xor_b32 v{KA + 3}, v{KA + 3}, v{KA + 2}")
    A(f"v_lshlrev_b32 v{KA + 3}, 4, v{KA + 3}")
    A(f"v_lshlrev_b32 v{KA + 2}, 4, v{KA + 2}")
    A("s_waitcnt lgkmcnt(0)")
    A(f"v_add_f32 v{Q}, v{Q}, v{Q + 1}")
    A(f"v_add_f32 v{Q + 2}, v{Q + 2}, v{Q + 3}")
    A(f"v_add_f32 v{Q}, v{Q}, v{Q + 2}")
    A(f"v_rcp_f32 v{vM}, v{Q}")
    A("s_barrier")
    for w in range(4):
        A(f"ds_read_b128 {vr(Q + 4 * w, 4)}, v{KA + 3} offset:{2048 * w}")
    A("s_waitcnt lgkmcnt(2)")
    A(f"v_pk_add_f32 {vr(Q, 2)}, {vr(Q, 2)}, {vr(Q + 4, 2)}")
    A(f"v_pk_add_f32 {vr(Q + 2, 2)}, {vr(Q + 2, 2)}, {vr(Q + 6, 2)}")
    A("s_waitcnt lgkmcnt(0)")
    A(f"v_pk_add_f32 {vr(Q + 8, 2)}, {vr(Q + 8, 2)}, {vr(Q + 12, 2)}")
    A(f"v_pk_add_f32 {vr(Q + 10, 2)}, {vr(Q + 10, 2)}, {vr(Q + 14, 2)}")
    A(f"v_pk_add_f32 {vr(Q, 2)}, {vr(Q, 2)}, {vr(Q + 8, 2)}")
    A(f"v_pk_add_f32 {vr(Q + 2, 2)}, {vr(Q + 2, 2)}, {vr(Q + 10, 2)}")
    A(f"v_pk_mul_f32 {vr(Q, 2)}, {vr(Q, 2)}, {vr(vM, 2)} op_sel_hi:[1,0]")
    A(f"v_pk_mul_f32 {vr(Q + 2, 2)}, {vr(Q + 2, 2)}, {vr(vM, 2)} op_sel_hi:[1,0]")
    tag_put(Q)
    A(f"buffer_store_dwordx4 {vr(Q, 4)}, v{KA + 2}, {sr(S_WST, 4)}, s{sREC} offen sc1")
    stamp(6)
    A("s_branch L_fin")
    A("L_k_idle:")
    A("s_barrier")
    A("s_branch L_fin")

    A("L_v_init:")
    A.c("LDS: the q copy and the max slots start empty")
    for i in range(4):
        A(f"v_mov_b32 v{8 + i}, -1")
    A(f"v_lshlrev_b32 v6, 4, v{vL}")
    A(f"v_add_u32 v7, {QL}, v6")
    A("ds_write_b128 v7, v[8:11]")
    A("ds_write_b128 v7, v[8:11] offset:1024")
    A("s_waitcnt lgkmcnt(0)")
    A("s_barrier")
    A("L_vwave:")
    srd(S_B, 8, 0 if 'v' in drop else 0x8000000)
    if stamps:
        srd(S_WS, 26, WS_SIZE)
    A.c("V wave v: value tiles v, v+4, .. in registers, transposed in-lane, P.V on the matrix core")
    VO, vPA, vRA = 4, 5, 6
    ACC, PM, VB = 8, 16, 48
    A(f"v_lshlrev_b32 v{VO}, 4, v{vL}")
    A(f"s_sub_u32 s{sD}, s{sW}, 4")
    A(f"s_lshl_b32 s{sA}, s{sD}, 12")
    A(f"s_add_u32 s{sT0}, s{sT0}, s{sA}")
    order = [9, 8, 0, 1, 2, 3, 4, 5, 6, 7]
    pair_seq = [4, 0, 1, 2, 3]
    raw_base = {k: VB + 32 * (n + 1) for n, k in enumerate(pair_seq)}
    out_base = {k: VB + 32 * n for n, k in enumerate(pair_seq)}

    def v_load(s):
        R = raw_base[s >> 1] + 16 * (s & 1)
        A(f"s_add_u32 s{sB}, s{sT0}, {16384 * s}")
        for j in range(4):
            A(f"buffer_load_dwordx4 {vr(R + 4 * j, 4)}, v{VO}, {sr(S_B, 4)}, s{sB} offen offset:{1024 * j} {kvflags}")

    def v_perm(s, i):
        R = raw_base[s >> 1] + 16 * (s & 1)
        q, sel = i >> 1, sSELHI if i & 1 else sSELLO
        d = out_base[s >> 1] + 4 * i + 2 * (s & 1)
        A(f"v_perm_b32 v{d}, v{R + 4 + q}, v{R + q}, s{sel}")
        A(f"v_perm_b32 v{d + 1}, v{R + 12 + q}, v{R + 8 + q}, s{sel}")

    def p_read(k, buf):
        for rho in range(4):
            A(f"s_mov_b64 exec, {sr(sMASK + 2 * rho, 2)}")
            A(f"ds_read_b128 {vr(PM + 16 * buf + 4 * rho, 4)}, v{vPA} offset:{1024 * k}")
        A("s_mov_b64 exec, -1")

    def pv(k, buf, i, first):
        mfma16(ACC + 4 * (i >> 2), out_base[k] + 4 * i, PM + 16 * buf + 4 * (i & 3), first and (i & 3) == 0)

    for i in range(32):
        A(f"v_mov_b32 v{raw_base[4] + i}, 0")
    set_masks()
    for i in range(32):
        A(f"v_mov_b32 v{PM + i}, 0")
    A(f"v_and_b32 v7, 3, v{vN}")
    A(f"v_lshlrev_b32 v{vPA}, 4, v7")
    A(f"v_lshl_add_u32 v{vPA}, v{vG}, 6, v{vPA}")
    A(f"s_lshl_b32 s{sA}, s{sD}, 8")
    A(f"s_add_u32 s{sA}, s{sA}, {PB}")
    A(f"v_add_u32 v{vPA}, s{sA}, v{vPA}")
    A.c("reduction slot: h*32 + ((16a + 4g + rho) ^ 2h)")
    A(f"v_lshrrev_b32 v{vRA}, 2, v{vL}")
    A(f"v_lshlrev_b32 v{ACC}, 1, v7")
    A(f"v_xor_b32 v{vRA}, v{vRA}, v{ACC}")
    A(f"v_lshl_add_u32 v{vRA}, v7, 5, v{vRA}")
    A(f"v_lshlrev_b32 v{vRA}, 4, v{vRA}")
    A(f"s_lshl_b32 s{sA}, s{sD}, 11")
    A(f"v_add_u32 v{vRA}, s{sA}, v{vRA}")
    if vbar is not None:
        A("s_barrier")
    A(f"s_add_u32 s{sA}, s{sD}, 36")
    A(f"s_cmp_ge_u32 s{sA}, s{sNT}")
    A("s_cbranch_scc1 L_v9_done")
    v_load(9)
    A("L_v9_done:")
    assert vwin >= 5
    done = 0
    for n in range(4, 40):
        s_, j = order[n >> 2], n & 3
        R = raw_base[s_ >> 1] + 16 * (s_ & 1)
        if n == 4:
            A(f"s_add_u32 s{sA}, s{sD}, 32")
            A(f"s_cmp_ge_u32 s{sA}, s{sNT}")
            A("s_cbranch_scc1 L_v8_done")
        if n == 8:
            A("L_v8_done:")
        if j == 0:
            A(f"s_add_u32 s{sB}, s{sT0}, {16384 * s_}")
        if vtile is not None:
            if j == 0 and n >= 8:
                A(f"s_waitcnt vmcnt({vtile})")
        elif n >= vwin:
            A(f"s_waitcnt vmcnt({vwin - 1})")
        A(f"buffer_load_dwordx4 {vr(R + 4 * j, 4)}, v{VO}, {sr(S_B, 4)}, s{sB} offen offset:{1024 * j} {kvflags}")
        landed = ((n - 3 - vtile) // 4 if j == 3 and n >= 8 else 0) if vtile is not None else (n - vwin + 1) // 4
        while done < landed:
            for i in range(8):
                v_perm(order[done], i)
            done += 1
    stamp(2)
    A("s_barrier")
    stamp(4)
    p_read(pair_seq[0], 0)
    for n, k in enumerate(pair_seq):
        if n < 4:
            p_read(pair_seq[n + 1], (n + 1) & 1)
        first_t, second_t = 2 * n, 2 * n + 1
        if first_t >= done:
            A(f"s_waitcnt vmcnt({4 * (9 - first_t)})")
            for i in range(8):
                v_perm(order[first_t], i)
        lg = f"lgkmcnt({4 if n < 4 else 0})"
        if second_t >= done:
            A(f"s_waitcnt vmcnt({4 * (9 - second_t)}) {lg}")
            if n == 4:
                stamp(5)
            seq = [0, 4, 1, 5, 2, 6, 3, 7]
            v_perm(order[second_t], seq[0])
            for m, i in enumerate(seq):
                if m < 7:
                    v_perm(order[second_t], seq[m + 1])
                pv(k, n & 1, i, n == 0)
        else:
            A(f"s_waitcnt {lg}")
            for i in (0, 4, 1, 5, 2, 6, 3, 7):
                pv(k, n & 1, i, n == 0)
    A(f"ds_write_b128 v{vRA}, {vr(ACC, 4)}")
    A(f"ds_write_b128 v{vRA}, {vr(ACC + 4, 4)} offset:256")
    A("s_waitcnt lgkmcnt(0)")
    A("s_barrier")
    A("s_branch L_fin")

    A("L_tail:")
    A.c("tail workgroup t: head t of wo, 64 FFN channels, 16 columns of h and of the output")
    if 'T' in drop:
        A("s_waitcnt lgkmcnt(0)")
        srd(S_WS, 26, WS_SIZE)
        A("s_branch L_fin")
    t1, t2, t3, t4 = 12, 13, 14, 15
    RING = 131072
    OL, AL, HL, SL = 0, 512, 2048, 6144
    sRING, sU, sTZ = sT0, sXQ, 4
    vIdx = 254
    A(f"s_getreg_b32 s{sFAST}, hwreg(HW_REG_XCC_ID, 0, 3)")
    A(f"s_and_b32 s{sU}, s{sW}, 3")

    def set_idx(bit):
        A(f"v_bfe_u32 v{vIdx}, v{vN}, {bit}, 1")
        A(f"v_mul_u32_u24 v{vIdx}, 0xaaaa, v{vIdx}")
        A(f"v_add_u32 v{vIdx}, 0x4444, v{vIdx}")

    def tail_consts():
        make_tag()
        A(f"s_add_u32 s{sA}, s{sTAG}, {TAGC:#x}")
        for i in range(4):
            A(f"s_bfe_u32 s{sTZ + i}, s{sA}, {0x80000 + 8 * i:#x}")
        A("s_mov_b32 s8, 0x00ff00ff")
        A("s_mov_b32 s9, 0x00ff00ff")
        A("s_not_b64 s[10:11], s[8:9]")

    def checkin_read(R, first):
        xl = f"buffer_load_dwordx2 {vr(R, 2)}, v{R + 2}, {sr(S_WS, 4)}, s{sD} offen sc1"
        if first:
            A(f"v_and_b32 v{R + 2}, 31, v{vL}")
            A(f"v_lshlrev_b32 v{R + 2}, 3, v{R + 2}")
            A(f"s_mov_b32 s{sD}, {XBUF}")
            A(xl)
            return
        ok = A.label("checked")
        A(f"v_cmp_ne_u32 vcc, s{sTAG}, v{R + 1}")
        A(f"s_cbranch_vccz {ok}")
        poll([xl], lambda: A(f"v_cmp_ne_u32 vcc, s{sTAG}, v{R + 1}"), sleep=slp)
        A(f"{ok}:")
        A(f"v_cmp_ne_u32 vcc, s{sFAST}, v{R}")
        A("s_cmp_eq_u64 vcc, 0")
        A(f"s_cselect_b32 s{sFAST}, {0 if force_slow else 1}, 0")

    A(f"s_cmp_ge_u32 s{sW}, 4")
    A("s_cbranch_scc1 L_gwave")

    A.c("O wave u: columns 128u..128u+127 of wo[head t] and of w_down[64t..64t+63], staged through a two-slot ring")
    AO, DO, BWO, BWD = 16, 32, 48, 176
    vTR, vWOo, vAr, vYs, XO, A4 = 4, 14, 240, 241, 242, 246
    A(f"s_lshl_b32 s{sRING}, s{sU}, 13")
    A(f"s_add_u32 s{sRING}, s{sRING}, {RING}")
    A.c("ring chunk n = 16 consecutive rows; row 4g'+r keeps its 64-byte block i at i ^ r, bit 4 flips with g'&1 .. see reads")
    A(f"v_lshlrev_b32 v{t1}, 2, v{vG}")
    A(f"v_xor_b32 v{t1}, v{t1}, v{vN}")
    A(f"v_lshlrev_b32 v{t1}, 4, v{t1}")
    A(f"v_lshl_add_u32 v{vWOo}, v{vG}, 10, v{t1}")
    A(f"s_lshl_b32 s{sA}, s{sU}, 8")
    A(f"v_add_u32 v{vWOo}, s{sA}, v{vWOo}")
    A(f"s_lshl_b32 s{sC}, s{sT}, 17")
    A(f"s_lshl_b32 s{sLB}, s{sT}, 16")

    def ring_issue(n):
        for g in range(4):
            A(f"s_add_u32 s{sA}, s{sRING}, {4096 * (n & 1) + 1024 * g}")
            A(f"s_mov_b32 m0, s{sA}")
            if n < 8:
                A(f"s_add_u32 s{sB}, s{sC}, {(16 * n + 4 * g) * 1024}")
                A(f"buffer_load_dwordx4 v{vWOo}, {sr(S_A, 4)}, s{sB} offen {woflags} lds")
            else:
                A(f"s_add_u32 s{sB}, s{sLB}, {(16 * (n - 8) + 4 * g) * 1024}")
                A(f"buffer_load_dwordx4 v{vWOo}, {sr(S_B, 4)}, s{sB} offen {wdflags} lds")

    def ring_read(n):
        base = BWO + 64 * (n >> 2) + 2 * (n & 3)
        for blk in range(4):
            for sel in range(2):
                A(f"ds_read_b64_tr_b16 {vr(base + 16 * blk + 8 * sel, 2)}, v{vTR + blk} offset:{4096 * (n & 1) + 8 * sel}")

    A("s_waitcnt lgkmcnt(0)")
    srd(S_A, 12, 0 if 'o' in drop else 4096 * 1024)
    ring_issue(0)
    ring_issue(1)
    A(f"s_load_dword s{sTAG}, s[26:27], {EPOCH}")
    srd(S_B, 20, 0 if 'd' in drop else 1792 * 1024)
    srd(S_WS, 26, WS_SIZE)
    srd(S_WST, 26, WS_SIZE)
    A(f"v_lshrrev_b32 v{t1}, 2, v{vN}")
    A(f"v_and_b32 v{t2}, 3, v{vN}")
    A(f"v_mul_u32_u24 v{t1}, 320, v{t1}")
    A(f"v_lshl_add_u32 v{t1}, v{t2}, 4, v{t1}")
    A(f"v_lshl_add_u32 v{t1}, v{vG}, 10, v{t1}")
    for blk in range(4):
        A(f"v_xor_b32 v{vTR + blk}, {64 * blk}, v{t1}")
        A(f"v_add_u32 v{vTR + blk}, s{sRING}, v{vTR + blk}")
    A.c("matrix row m = (half, b1, sigma, b0); activation chunk (J, sigma, g) at 1024J + 256 sigma + 128(g>>1) + 32b + 16(g&1)")
    set_idx(1)
    A(f"v_and_b32 v{t1}, 1, v{vN}")
    A(f"v_lshlrev_b32 v{vAr}, 5, v{t1}")
    A(f"v_bfe_u32 v{t1}, v{vN}, 2, 1")
    A(f"v_lshl_add_u32 v{vAr}, v{t1}, 6, v{vAr}")
    A(f"v_and_b32 v{t1}, 1, v{vG}")
    A(f"v_lshl_add_u32 v{vAr}, v{t1}, 4, v{vAr}")
    A(f"v_lshrrev_b32 v{t1}, 1, v{vG}")
    A(f"v_lshl_add_u32 v{vAr}, v{t1}, 7, v{vAr}")
    A(f"v_bfe_u32 v{t1}, v{vN}, 1, 1")
    A(f"v_lshl_add_u32 v{vAr}, v{t1}, 8, v{vAr}")
    A.c("partial-sum slot [consumer 8u + 4q + 2half + (n>>3)][b1][octet][producer t][n&3][sel][b0]")
    A(f"s_lshl_b32 s{sA}, s{sU}, 16")
    A(f"s_lshl_b32 s{sB}, s{sT}, 6")
    A(f"s_add_u32 s{sA}, s{sA}, s{sB}")
    A(f"v_lshlrev_b32 v{vYs}, 4, v{t2}")
    A(f"v_bfe_u32 v{t1}, v{vN}, 2, 1")
    A(f"v_lshl_add_u32 v{vYs}, v{t1}, 11, v{vYs}")
    A(f"v_and_b32 v{t1}, 1, v{vG}")
    A(f"v_lshl_add_u32 v{vYs}, v{t1}, 12, v{vYs}")
    A(f"v_lshrrev_b32 v{t1}, 3, v{vN}")
    A(f"v_lshl_add_u32 v{vYs}, v{t1}, 13, v{vYs}")
    A(f"v_lshrrev_b32 v{t1}, 1, v{vG}")
    A(f"v_lshl_add_u32 v{vYs}, v{t1}, 14, v{vYs}")
    A(f"v_add_u32 v{vYs}, s{sA}, v{vYs}")
    A(f"s_mov_b32 s16, {YBUF}")
    A(f"s_mov_b32 s17, {YBUF + 32768}")
    for i in list(range(AO, BWO)) + list(range(A4, A4 + 8)):
        A(f"v_mov_b32 v{i}, 0")
    tail_consts()
    for n in range(10):
        A("s_waitcnt vmcnt(4)")
        ring_read(n)
        if n == 7:
            checkin_read(XO, True)
        A("s_waitcnt lgkmcnt(0)")
        ring_issue(n + 2)
        if n + 2 == r1at:
            A("s_barrier")
    checkin_read(XO, False)
    if oprio:
        A(f"s_setprio {oprio}")
    stamp(2)
    A(f"s_cmp_eq_u32 s{sFAST}, 0")
    A("s_mov_b64 exec, s[8:9]")
    A("s_cbranch_scc1 L_o_far")

    def o_stages(sc):
        def publish(q, tb):
            D = DO + 8 * q
            L = [f"v_pk_add_f32 {vr(D, 2)}, {vr(D, 2)}, {vr(D + 2, 2)}",
                 f"v_pk_add_f32 {vr(D + 2, 2)}, {vr(D + 4, 2)}, {vr(D + 6, 2)}"]
            L += [f"v_bfi_b32 v{D + i}, v{vFF}, s{tb + i}, v{D + i}" for i in range(4)]
            L += [f"buffer_store_dwordx4 {vr(D, 4)}, v{vYs}, {sr(S_WST, 4)}, s{16 + q} offen {sc}"]
            return L

        A.c("y_t = o_t @ wo[head t]")
        A("s_barrier")
        fs(1)
        for J in range(2):
            A(f"ds_read_b128 {vr(AO + 4 * J, 4)}, v{vAr} offset:{OL + 1024 * J}")
        A("s_mov_b64 exec, s[10:11]")
        for J in range(2):
            A(f"ds_read_b128 {vr(AO + 8 + 4 * J, 4)}, v{vAr} offset:{OL + 1024 * J}")
        A("s_mov_b64 exec, -1")
        for q in range(2):
            for n in range(4):
                half, J = n >> 1, n & 1
                if q == 0:
                    A(f"s_waitcnt lgkmcnt({3 - n})")
                for sel in range(2):
                    smf(DO + 8 * q + 4 * sel, AO + 4 * n, BWO + 64 * J + 16 * (2 * q + half) + 8 * sel, vIdx)
        for l in publish(0, sTB) + publish(1, sTB):
            A(l)
        stamp(4)
        fs(2)
        A("s_barrier")
        A("s_waitcnt vmcnt(0)")
        ring_read(10)
        A("s_waitcnt lgkmcnt(4)")
        ring_read(11)
        for i in range(16):
            A(f"v_mov_b32 v{DO + i}, 0")
        A("s_mov_b64 exec, s[8:9]")
        A("s_waitcnt lgkmcnt(0)")
        A("s_barrier")
        A.c("z_t = act_t @ w_down[64 rows]")
        A("s_barrier")
        fs(8)
        A(f"ds_read_b128 {vr(A4, 4)}, v{vAr} offset:{AL}")
        A("s_mov_b64 exec, s[10:11]")
        A(f"ds_read_b128 {vr(A4 + 4, 4)}, v{vAr} offset:{AL}")
        A("s_mov_b64 exec, -1")
        for q in range(2):
            for hi in range(2):
                if q == 0:
                    A(f"s_waitcnt lgkmcnt({1 - hi})")
                for i in range(2):
                    smf(DO + 8 * q + 4 * i, A4 + 4 * hi, BWD + 16 * (2 * q + hi) + 8 * i, vIdx)
        for l in publish(0, sTZ) + publish(1, sTZ):
            A(l)
        stamp(6)
        fs(9)
        A("s_barrier")
        fine_out()
        A("s_branch L_fin")

    def fine_out():
        if fine:
            A("s_waitcnt lgkmcnt(0)")
            for i in range(13):
                A(f"v_mov_b32 v{64 + i}, s{FS[i]}")
            A(f"s_lshl_b32 s{sA}, s{sT}, 3")
            A(f"s_add_u32 s{sA}, s{sA}, s{sW}")
            A(f"s_lshl_b32 s{sA}, s{sA}, 6")
            A(f"s_add_u32 s{sA}, s{sA}, {STAMPS + 0x20000}")
            A("v_mov_b32 v80, 0")
            A("s_mov_b64 exec, 1")
            for i in range(4):
                A(f"buffer_store_dwordx4 {vr(64 + 4 * i, 4)}, v80, {sr(S_WST, 4)}, s{sA} offen offset:{16 * i}")

    o_stages("")
    A("L_o_far:")
    o_stages("sc1")

    A("L_gwave:")
    A.c("G wave v: 16 FFN channels of w_gate and w_up; batch v in stage 1; four columns in stages 2 and 4")
    AG, DG, PT, BGU, RS = 16, 32, 48, 64, 192
    vLin, vP0, vP1, vOw, vHs, vAw, vOs, vXr = range(4, 12)
    vCg, vCu, vH, vHw, vSw = range(248, 253)
    vGUo, vW0, vW1, XG = RS, RS + 2, RS + 3, RS + 4
    A(f"v_lshlrev_b32 v{vLin}, 4, v{vL}")
    A(f"s_lshl_b32 s{sLB}, s{sU}, 15")
    A.c("gate/up DMA: row 128v + 8i + (l>>3), chunk (l&7) ^ ((l>>5)<<1) ^ ((v&1)<<2)")
    A(f"v_lshrrev_b32 v{t1}, 3, v{vL}")
    A(f"s_lshl_b32 s{sA}, s{sU}, 7")
    A(f"v_add_u32 v{t1}, s{sA}, v{t1}")
    A(f"v_mul_u32_u24 v{t1}, 3584, v{t1}")
    A(f"s_lshl_b32 s{sA}, s{sT}, 7")
    A(f"v_add_u32 v{t1}, s{sA}, v{t1}")
    A(f"v_and_b32 v{t2}, 7, v{vL}")
    A(f"v_and_b32 v{t3}, 2, v{vG}")
    A(f"v_xor_b32 v{t2}, v{t2}, v{t3}")
    A(f"s_and_b32 s{sA}, s{sU}, 1")
    A(f"s_lshl_b32 s{sA}, s{sA}, 2")
    A(f"v_xor_b32 v{t2}, s{sA}, v{t2}")
    A(f"v_lshl_add_u32 v{vGUo}, v{t2}, 4, v{t1}")
    for i in range(4):
        A(f"v_mov_b32 v{AG + i}, -1")
    if gprio:
        A(f"s_setprio {gprio}")
    A("s_waitcnt lgkmcnt(0)")
    srd(S_WG, 16, 512 * 3584)
    srd(S_WU, 18, 512 * 3584)
    srd(S_WST, 26, WS_SIZE)
    A(f"s_load_dword s{sTAG}, s[26:27], {EPOCH}")
    A(f"s_cmp_lt_u32 s{sT}, 28")
    A(f"s_cselect_b32 s{S_WG + 2}, {0 if 'g' in drop else 512 * 3584}, 0")
    A(f"s_cselect_b32 s{S_WU + 2}, {0 if 'g' in drop else 512 * 3584}, 0")
    A(f"s_cmp_lg_u32 s{sU}, 3")
    A("s_cbranch_scc1 L_no_clear")
    A.c("mark 128 B of the h hand-off buffer empty; the check-in word follows once that store is done")
    A(f"s_lshl_b32 s{sA}, s{sT}, 7")
    A(f"s_add_u32 s{sA}, s{sA}, {HBUF}")
    A("s_mov_b64 exec, 0xff")
    A(f"buffer_store_dwordx4 {vr(AG, 4)}, v{vLin}, {sr(S_WST, 4)}, s{sA} offen sc1")
    A("s_mov_b64 exec, -1")
    A("L_no_clear:")
    for n in range(32):
        mat, ii = n & 1, n >> 1
        if n == gwin:
            srd(S_WS, 26, WS_SIZE)
            srd(S_X, 4, 4096)
            srd(S_OUT, 22, 4096)
            tail_consts()
        if n >= gwin:
            A(f"s_waitcnt vmcnt({gwin - 1})")
        if n == gwin:
            A(f"s_cmp_lg_u32 s{sU}, 3")
            A("s_cbranch_scc1 L_no_checkin")
            A(f"v_mov_b32 v{t1}, s{sFAST}")
            A(f"v_mov_b32 v{t2}, s{sTAG}")
            A(f"s_lshl_b32 s{sA}, s{sT}, 3")
            A(f"s_add_u32 s{sA}, s{sA}, {XBUF}")
            A("s_mov_b64 exec, 1")
            A(f"buffer_store_dwordx2 {vr(t1, 2)}, v{vLin}, {sr(S_WST, 4)}, s{sA} offen sc1")
            A("s_mov_b64 exec, -1")
            A("L_no_checkin:")
        A(f"s_add_u32 s{sA}, s{sLB}, {16384 * (ii >> 3) + 8192 * mat + 1024 * (ii & 7)}")
        A(f"s_mov_b32 m0, s{sA}")
        A(f"s_mov_b32 s{sB}, {8 * ii * 3584}")
        A(f"buffer_load_dwordx4 v{vGUo}, {sr(S_WU if mat else S_WG, 4)}, s{sB} offen {guflags} lds")
    if gprio:
        A("s_setprio 0")
    A(f"s_cmp_lt_u32 s{sT}, 28")
    A("s_cbranch_scc1 L_touched")
    A.c("workgroups without FFN weights read the partial-sum inboxes once so that the lines are resident in L2")
    A(f"s_sub_u32 s{sA}, s{sT}, 28")
    A(f"s_lshl_b32 s{sA}, s{sA}, 2")
    A(f"s_add_u32 s{sA}, s{sA}, s{sU}")
    A(f"s_lshl_b32 s{sA}, s{sA}, 14")
    A(f"s_add_u32 s{sA}, s{sA}, {YBUF}")
    for n in range(16):
        A(f"buffer_load_dwordx4 {vr(PT, 4)}, v{vLin}, {sr(S_WS, 4)}, s{sA} offen offset:{1024 * (n & 3)} {touchflags}")
        if n & 3 == 3:
            A(f"s_add_u32 s{sA}, s{sA}, 4096")
    A("L_touched:")
    A.c("stage 1 reads head t&3 of pair (v, t>>2); lane row g takes splits g and 4+g")
    A(f"s_lshl_b32 s{sA}, s{sU}, 3")
    A(f"s_lshr_b32 s{sC}, s{sT}, 2")
    A(f"s_add_u32 s{sA}, s{sA}, s{sC}")
    A(f"s_mul_i32 s{sREC}, s{sA}, {8 * REC}")
    A(f"s_add_u32 s{sREC}, s{sREC}, {OBUF}")
    A(f"s_and_b32 s{sC}, s{sT}, 3")
    A(f"s_lshl_b32 s16, s{sC}, 3")
    A(f"s_add_u32 s16, s16, s{sREC}")
    A(f"s_lshl_b32 s{sA}, s{sC}, 9")
    A(f"s_add_u32 s{sREC}, s{sREC}, s{sA}")
    A(f"v_mul_u32_u24 v{vW0}, {REC}, v{vG}")
    A(f"v_min_u32 v{t1}, 2, v{vG}")
    A(f"v_add_u32 v{t1}, 4, v{t1}")
    A(f"v_mul_u32_u24 v{vW1}, {REC}, v{t1}")
    A(f"v_lshl_add_u32 v{vP0}, v{vN}, 4, v{vW0}")
    A(f"v_lshl_add_u32 v{vP1}, v{vN}, 4, v{vW1}")
    A.c("weight row d sits at position 64(d>>6) + 32((d>>1)&1) + 16((d>>5)&1) + 4((d>>2)&3) + 2((d>>4)&1) + (d&1)")
    A.c("stage 1 lane (c, g), half a holds channel d = 32(c>>2) + 8g + 4a + (c&3); it lands in this wave's own 32-byte units of the image")
    A(f"v_lshrrev_b32 v{t4}, 3, v{vN}")
    A(f"v_lshlrev_b32 v{t1}, 10, v{t4}")
    A(f"v_bfe_u32 v{t2}, v{vN}, 1, 1")
    A(f"v_lshlrev_b32 v{vAw}, 8, v{t2}")
    A(f"v_and_b32 v{t2}, 1, v{vN}")
    A(f"v_lshl_add_u32 v{vAw}, v{t2}, 1, v{vAw}")
    A(f"v_add_u32 v{t1}, v{t1}, v{vAw}")
    A(f"v_bfe_u32 v{t2}, v{vN}, 2, 1")
    A(f"v_lshl_add_u32 v{t1}, v{t2}, 7, v{t1}")
    A(f"v_lshl_add_u32 v{vAw}, v{t2}, 3, v{vAw}")
    A(f"v_lshl_add_u32 v{vAw}, v{t4}, 4, v{vAw}")
    A(f"v_lshl_add_u32 v{vAw}, v{vG}, 5, v{vAw}")
    A(f"v_and_b32 v{t2}, 1, v{vG}")
    A(f"v_lshl_add_u32 v{t1}, v{t2}, 4, v{t1}")
    A(f"v_lshrrev_b32 v{t3}, 1, v{vG}")
    A(f"v_lshl_add_u32 v{t1}, v{t3}, 2, v{t1}")
    A(f"s_lshl_b32 s{sB}, s{sU}, 5")
    A(f"v_add_u32 v{vOw}, s{sB}, v{t1}")
    A(f"s_lshr_b32 s{sB}, s{sU}, 1")
    A(f"s_and_b32 s{sC}, s{sU}, 1")
    A(f"s_lshl_b32 s{sA}, s{sB}, 7")
    A(f"s_lshl_b32 s17, s{sC}, 2")
    A(f"s_add_u32 s{sA}, s{sA}, s17")
    A(f"v_add_u32 v{vAw}, s{sA}, v{vAw}")
    A(f"s_lshl_b32 s17, s{sT}, 13")
    A(f"s_lshl_b32 s{sA}, s{sU}, 11")
    A(f"s_add_u32 s17, s17, s{sA}")
    A(f"s_add_u32 s17, s17, {YBUF}")
    A.c("stages 2/4: wave v = (b1, octet), lane row (sel, b0): column 16t + 8 octet + 4 sel + cc of batch 2 b1 + b0")
    A.c("HBUF byte = (j*64 + g*16 + 4b + rho)*16 + 2e")
    A(f"v_and_b32 v{t1}, 3, v{vN}")
    A(f"v_lshlrev_b32 v{t1}, 1, v{t1}")
    A(f"v_lshl_add_u32 v{t1}, v{t3}, 3, v{t1}")
    A(f"v_lshl_add_u32 v{vHs}, v{t2}, 6, v{t1}")
    A(f"v_lshl_add_u32 v{vOs}, v{t2}, 10, v{t1}")
    A(f"s_and_b32 s{sA}, s{sT}, 7")
    A(f"s_lshl_b32 s{sA}, s{sA}, 9")
    A(f"s_lshr_b32 s18, s{sT}, 3")
    A(f"s_lshl_b32 s18, s18, 4")
    A(f"s_add_u32 s{sA}, s{sA}, s18")
    A(f"s_lshl_b32 s18, s{sC}, 8")
    A(f"s_add_u32 s{sA}, s{sA}, s18")
    A(f"s_lshl_b32 s18, s{sB}, 7")
    A(f"s_add_u32 s{sA}, s{sA}, s18")
    A(f"s_add_u32 s{sA}, s{sA}, {HBUF}")
    A(f"v_add_u32 v{vHs}, s{sA}, v{vHs}")
    A(f"s_lshl_b32 s{sA}, s{sT}, 5")
    A(f"s_lshl_b32 s18, s{sC}, 4")
    A(f"s_add_u32 s{sA}, s{sA}, s18")
    A(f"s_lshl_b32 s18, s{sB}, 11")
    A(f"s_add_u32 s{sA}, s{sA}, s18")
    A(f"v_add_u32 v{vOs}, s{sA}, v{vOs}")
    A(f"s_lshl_b32 s18, s{sU}, 10")
    A(f"v_add_u32 v{vHw}, s18, v{vLin}")
    A(f"s_add_u32 s18, s18, {HBUF}")
    A.c("LayerNorm partial sums: slot [v>>1][b][4g + rho][v&1][8 B]")
    A(f"s_lshl_b32 s{sB}, s{sB}, 10")
    A(f"s_lshl_b32 s{sC}, s{sC}, 3")
    A(f"s_add_u32 s{sB}, s{sB}, s{sC}")
    A(f"v_and_b32 v{t3}, 3, v{vN}")
    A(f"v_lshrrev_b32 v{t2}, 2, v{vN}")
    A(f"v_lshlrev_b32 v{t2}, 8, v{t2}")
    A(f"v_lshl_add_u32 v{t2}, v{vG}, 6, v{t2}")
    A(f"v_lshl_add_u32 v{t2}, v{t3}, 4, v{t2}")
    A(f"v_add_u32 v{vSw}, s{sB}, v{t2}")
    set_idx(0)
    A(f"buffer_load_ushort v{vXr}, v{vOs}, {sr(S_X, 4)}, 0 offen")
    A.c("gate/up fragments: row 128(r>>1) + 4g + (r&1), 32-byte unit v ^ ((g&1) | (r>>1)<<1)")
    A(f"v_and_b32 v{t1}, 1, v{vG}")
    A(f"v_lshl_or_b32 v{t1}, v{t4}, 1, v{t1}")
    A(f"v_xor_b32 v{t1}, s{sU}, v{t1}")
    A(f"v_lshlrev_b32 v{t1}, 5, v{t1}")
    A(f"v_lshl_add_u32 v{t1}, v{t3}, 3, v{t1}")
    A(f"v_bfe_u32 v{t2}, v{vN}, 2, 1")
    A(f"v_lshl_add_u32 v{t1}, v{t2}, 7, v{t1}")
    A(f"v_lshl_add_u32 v{t1}, v{vG}, 9, v{t1}")
    A(f"v_lshl_add_u32 v{t1}, v{t4}, 15, v{t1}")
    A(f"v_add_u32 v{t2}, 65536, v{t1}")
    for i in range(4):
        A(f"v_mov_b32 v{AG + i}, 0x3f803f80")
    for i in range(8):
        A(f"v_mov_b32 v{DG + i}, 0")
    A("s_waitcnt vmcnt(0)")
    A("s_barrier")
    stamp(1)
    checkin_read(XG, True)
    bgu = lambda mat, r1, j: BGU + 64 * mat + 32 * r1 + 8 * j
    for r1 in range(2):
        for j in range(4):
            for mat in range(2):
                for p in range(4):
                    off = mat * 8192 + (j >> 1) * 16384 + ((j & 1) * 32 + 16 * (p >> 1) + 2 * (p & 1)) * 128
                    A(f"ds_read_b64_tr_b16 {vr(bgu(mat, r1, j) + 2 * p, 2)}, v{t1 + r1} offset:{off}")
            A("s_waitcnt lgkmcnt(4)")
    A("s_waitcnt lgkmcnt(0)")
    A.c("column sums of the weights")
    for r1 in range(2):
        for j in range(4):
            for mat in range(2):
                smf(DG + 4 * mat, AG, bgu(mat, r1, j), vIdx)

    def fold2(D):
        for a in (D, D + 4):
            A(f"v_permlane32_swap_b32 v{a}, v{a + 2}")
            A(f"v_permlane32_swap_b32 v{a + 1}, v{a + 3}")
        for a in (D, D + 4):
            A(f"v_pk_add_f32 {vr(a, 2)}, {vr(a, 2)}, {vr(a + 2, 2)}")
        for a in (D, D + 4):
            A(f"v_permlane16_swap_b32 v{a}, v{a + 1}")
        for a in (D, D + 4):
            A(f"v_add_f32 v{a}, v{a}, v{a + 1}")

    A("s_waitcnt vmcnt(0)")
    checkin_read(XG, False)
    A(f"buffer_load_dwordx4 {vr(PT, 4)}, v{vLin}, {sr(S_WS, 4)}, s18 offen sc1")
    A(f"v_lshlrev_b32 v{vXr}, 16, v{vXr}")
    A(f"buffer_store_short v{vXr}, v{vOs}, {sr(S_OUT, 4)}, 0 offen")
    A(f"v_add_f32 v{vCg}, v{DG}, v{DG + 1}")
    A(f"v_add_f32 v{vCu}, v{DG + 4}, v{DG + 5}")
    for i in range(DG, DG + 16):
        A(f"v_mov_b32 v{i}, 0")
    stamp(2)
    A.c("softmax weights of the seven splits")
    poll([f"buffer_load_dwordx2 {vr(PT + 2 * i, 2)}, v{vW0 + i}, {sr(S_WS, 4)}, s16 offen offset:2048 sc1" for i in range(2)],
         lambda: A(f"""v_xor_b32 v{t1}, s{sTAG}, v{PT + 1}
                       v_xor_b32 v{t2}, s{sTAG}, v{PT + 3}
                       v_or_b32 v{t1}, v{t1}, v{t2}
                       v_cmp_ne_u32 vcc, 0, v{t1}"""), sleep=slp)
    A(f"v_max_f32 v{t1}, v{PT}, v{PT + 2}")
    allred_rows("v_max_f32", t1, t2)
    A(f"v_sub_f32 v{PT}, v{PT}, v{t1}")
    A(f"v_sub_f32 v{PT + 2}, v{PT + 2}, v{t1}")
    A(f"v_exp_f32 v{PT}, v{PT}")
    A(f"v_exp_f32 v{PT + 2}, v{PT + 2}")
    A(f"v_cmp_eq_u32 vcc, 3, v{vG}")
    A(f"v_cndmask_b32 v{PT + 2}, v{PT + 2}, 0, vcc")
    A(f"v_add_f32 v{t1}, v{PT}, v{PT + 2}")
    allred_rows("v_add_f32", t1, t2)
    A(f"v_rcp_f32 v{t1}, v{t1}")
    A(f"v_mul_f32 v{t3}, v{PT + 2}, v{t1}")
    A(f"v_mul_f32 v{t1}, v{PT}, v{t1}")
    A(f"s_mov_b32 s{sCNT}, 0")
    A(f"s_mov_b32 s{sA}, 0x3f803f80")
    A("s_mov_b32 s20, 0x00050005" if not fine else "s_mov_b32 s26, 0x00050005")
    A("s_mov_b32 s21, 0x00050005" if not fine else "s_mov_b32 s27, 0x00050005")
    hmask = "s[20:21]" if not fine else "s[26:27]"
    A("s_mov_b32 s22, 0x3b000000")
    A("s_mov_b32 s23, 0x3b000000")
    stamp(3)
    A.c("stage 1: combine the partial outputs of batch v")
    mpoll(nsets[0], gap[0],
          lambda u: [f"buffer_load_dwordx4 {vr(RS + 16 * u + 8 * i + 4 * hf, 4)}, v{vP0 + i}, {sr(S_WS, 4)}, s{sREC} offen offset:{256 * hf} sc1"
                     for i in range(2) for hf in range(2)],
          lambda u: tag_check(range(PT, PT + 16), TAGS, t2, RS + 16 * u, "x"))
    fs(0)
    for p in range(0, 8, 2):
        A(f"v_pk_mul_f32 {vr(PT + p, 2)}, {vr(PT + p, 2)}, {vr(t1, 2)} op_sel_hi:[1,0]")
    for p in range(0, 8, 2):
        A(f"v_pk_fma_f32 {vr(PT + p, 2)}, {vr(PT + 8 + p, 2)}, {vr(t3, 2)}, {vr(PT + p, 2)} op_sel_hi:[1,0,1]")
    fold2(PT)
    A(f"v_cvt_pk_bf16_f32 v{PT}, v{PT}, v{PT + 4}")
    A(f"ds_write_b16 v{vOw}, v{PT} offset:{OL}")
    A(f"ds_write_b16_d16_hi v{vOw}, v{PT} offset:{OL + 8}")
    A("s_waitcnt lgkmcnt(0)")
    A("s_barrier")
    fs(1)
    A("s_barrier")
    fs(2)

    def column_sums(tags, f, k):
        mpoll(nsets[k], gap[k],
              lambda u: [f"buffer_load_dwordx4 {vr(RS + 8 * u + 4 * i, 4)}, v{vLin}, {sr(S_WS, 4)}, s17 offen offset:{1024 * i} sc1" for i in range(2)],
              lambda u: tag_check(range(PT, PT + 8), tags, t2, RS + 8 * u, "x"))
        fs(f)
        A(f"v_pk_add_f32 {vr(PT, 2)}, {vr(PT, 2)}, {vr(PT + 4, 2)}")
        A(f"v_pk_add_f32 {vr(PT + 2, 2)}, {vr(PT + 2, 2)}, {vr(PT + 6, 2)}")
        rows_to_batches(PT)
        dpp_red("v_add_f32", [PT], [8, 4])
        rb(PT, PT)

    A.c("stage 2: h = x + sum of the 32 head contributions")
    column_sums(TAGS, 3, 1)
    A(f"v_add_f32 v{PT}, v{PT}, v{vXr}")
    A(f"s_cmp_eq_u32 s{sFAST}, 0")
    A(f"v_mov_b32_dpp v{PT + 1}, v{PT} quad_perm:[1,1,3,3] row_mask:0xf bank_mask:0xf")
    A(f"v_cvt_pk_bf16_f32 v{vH}, v{PT}, v{PT + 1}")
    A(f"v_min_u32 v{t2}, -2, v{vH}")
    A(f"s_mov_b64 exec, {hmask}")
    A("s_cbranch_scc1 L_h_far")
    A(f"buffer_store_dword v{t2}, v{vHs}, {sr(S_WST, 4)}, 0 offen")
    A("L_h_sent:")
    A("s_mov_b64 exec, -1")
    stamp(5)
    fs(4)
    A.c("stage 3: gather h, LayerNorm folded around h @ [w_gate | w_up], act = silu(g) * u")

    def hchk(u):
        R = RS + 4 * u
        A(f"v_pk_mov_b32 {vr(PT, 2)}, {vr(R, 2)}, {vr(R, 2)} op_sel:[0,1]")
        A(f"v_pk_mov_b32 {vr(PT + 2, 2)}, {vr(R + 2, 2)}, {vr(R + 2, 2)} op_sel:[0,1]")
        A(f"v_max_u32 v{t1}, v{R}, v{R + 1}")
        A(f"v_max3_u32 v{t1}, v{t1}, v{R + 2}, v{R + 3}")
        A(f"v_cmpx_eq_u32 vcc, -1, v{t1}")
    mpoll(nsets[2], gap[2], lambda u: [f"buffer_load_dwordx4 {vr(RS + 4 * u, 4)}, v{vLin}, {sr(S_WS, 4)}, s18 offen sc1"], hchk)
    fs(5)
    A(f"ds_write_b128 v{vHw}, {vr(PT, 4)} offset:{HL}")
    A(f"v_dot2_f32_bf16 v{t1}, v{PT}, s{sA}, 0")
    A(f"v_dot2_f32_bf16 v{t2}, v{PT}, v{PT}, 0")
    for i in range(1, 4):
        A(f"v_dot2_f32_bf16 v{t1}, v{PT + i}, s{sA}, v{t1}")
        A(f"v_dot2_f32_bf16 v{t2}, v{PT + i}, v{PT + i}, v{t2}")
    A(f"v_lshlrev_b32 v{vH}, 16, v{vH}")
    A(f"ds_write_b64 v{vSw}, {vr(t1, 2)} offset:{SL}")
    A("s_waitcnt lgkmcnt(0)")
    A("s_barrier")
    fs(6)
    hrd = lambda j: f"ds_read_b128 {vr(AG + 4 * j, 4)}, v{vLin} offset:{HL + 1024 * j}"
    A(hrd(0))
    A(f"ds_read_b128 {vr(PT, 4)}, v{vLin} offset:{SL}")
    A(f"ds_read_b128 {vr(PT + 4, 4)}, v{vLin} offset:{SL + 1024}")
    A(hrd(1))
    dp = lambda v, r: f"v_add_f32_dpp v{v}, v{v}, v{v} row_ror:{r} row_mask:0xf bank_mask:0xf"
    chain = [[hrd(2)], [hrd(3), "s_waitcnt lgkmcnt(3)", f"v_pk_add_f32 {vr(PT, 2)}, {vr(PT, 2)}, {vr(PT + 2, 2)}"],
             [f"v_pk_add_f32 {vr(PT + 4, 2)}, {vr(PT + 4, 2)}, {vr(PT + 6, 2)}"],
             [f"v_pk_add_f32 {vr(PT, 2)}, {vr(PT, 2)}, {vr(PT + 4, 2)}"]]
    for r in (8, 4, 2, 1):
        chain += [[dp(PT, r)], [dp(PT + 1, r)]]
    if mimic2:
        chain += [[f"v_pk_mul_f32 {vr(t1, 2)}, {vr(PT, 2)}, s[22:23]"],
                  [f"v_fma_f32 v{t2}, -v{t1}, v{t1}, v{t2}", f"v_max_f32 v{t2}, 0, v{t2}"],
                  [f"v_cvt_pk_bf16_f32 v{t2}, v{t1}, v{t2}", f"v_lshlrev_b32 v{t1}, 16, v{t2}"],
                  [f"v_and_b32 v{t2}, 0xffff0000, v{t2}", f"v_add_f32 v{t2}, 0x3727c5ac, v{t2}",
                   f"v_cvt_pk_bf16_f32 v{t2}, v{t2}, v{t2}", f"v_lshlrev_b32 v{t2}, 16, v{t2}",
                   f"v_sqrt_f32 v{t2}, v{t2}", f"v_pk_mul_f32 {vr(vCg, 2)}, {vr(vCg, 2)}, {vr(t1, 2)} op_sel_hi:[1,0]",
                   f"v_cvt_pk_bf16_f32 v{t2}, v{t2}, v{t2}", f"v_lshlrev_b32 v{t2}, 16, v{t2}", f"v_rcp_f32 v{t2}, v{t2}"]]
    else:
        chain += [[f"v_pk_mul_f32 {vr(t1, 2)}, {vr(PT, 2)}, s[22:23]"],
                  [f"v_fma_f32 v{t2}, -v{t1}, v{t1}, v{t2}"],
                  [f"v_max_f32 v{t2}, 0, v{t2}"],
                  [f"v_add_f32 v{t2}, 0x3727c5ac, v{t2}", f"v_rsq_f32 v{t2}, v{t2}",
                   f"v_pk_mul_f32 {vr(vCg, 2)}, {vr(vCg, 2)}, {vr(t1, 2)} op_sel_hi:[1,0]"]]
    for n in range(16):
        j, r1, mat = n >> 2, (n >> 1) & 1, n & 1
        if n & 3 == 0:
            A(f"s_waitcnt lgkmcnt({3 - j})")
        smf(DG + 8 * mat + 4 * r1, AG + 4 * j, bgu(mat, r1, j), vIdx)
        for c in chain.pop(0):
            A(c)
    assert not chain
    fs(7)
    A(f"v_pk_add_f32 {vr(DG, 2)}, {vr(DG, 2)}, {vr(DG + 6, 2)}")
    A(f"v_mul_f32 v{t3}, 0xbfb8aa3b, v{t2}")
    A(f"v_add_f32 v{DG}, v{DG}, v{DG + 1}")
    A(f"v_sub_f32 v{DG}, v{DG}, v{vCg}")
    A(f"v_mul_f32 v{t1}, v{DG}, v{t3}")
    A(f"v_exp_f32 v{t1}, v{t1}")
    A(f"v_pk_add_f32 {vr(DG + 8, 2)}, {vr(DG + 8, 2)}, {vr(DG + 14, 2)}")
    A(f"v_add_f32 v{t1}, 1.0, v{t1}")
    A(f"v_rcp_f32 v{t1}, v{t1}")
    A(f"v_add_f32 v{DG + 1}, v{DG + 8}, v{DG + 9}")
    A(f"v_sub_f32 v{DG + 1}, v{DG + 1}, v{vCu}")
    A(f"v_pk_mul_f32 {vr(DG, 2)}, {vr(DG, 2)}, {vr(t1, 2)} op_sel:[0,1] op_sel_hi:[1,1]")
    A(f"v_mul_f32 v{DG}, v{DG}, v{t1}")
    A(f"v_mul_f32 v{DG}, v{DG}, v{DG + 1}")
    A(f"v_cvt_pk_bf16_f32 v{DG}, v{DG}, v{DG}")
    A(f"ds_write_b16 v{vAw}, v{DG} offset:{AL}")
    A("s_waitcnt lgkmcnt(0)")
    A("s_barrier")
    fs(8)
    A("s_barrier")
    fs(9)
    A.c("stage 4: out = h + sum of the down-projection contributions")
    column_sums([f"s{sTZ + i}" for i in range(4)], 10, 3)
    A(f"v_add_f32 v{PT}, v{PT}, v{vH}")
    A("s_mov_b32 exec_lo, 0x000f000f")
    A("s_mov_b32 exec_hi, 0x000f000f")
    A(f"v_cvt_pk_bf16_f32 v{PT}, v{PT}, v{PT}")
    A(f"buffer_store_short v{PT}, v{vOs}, {sr(S_OUT, 4)}, 0 offen")
    fs(11)
    if fine:
        A("s_waitcnt vmcnt(0)")
        fs(12)
        fine_out()
    A(f"s_or_b32 s{sA}, s{sT}, s{sU}")
    A("s_cbranch_scc1 L_fin")
    A.c("advance the epoch so that the next launch rejects this launch's hand-offs")
    A(f"s_add_u32 s{sA}, s{sTAG}, {TAGC:#x}")
    A(f"v_mov_b32 v{t1}, s{sA}")
    A(f"v_mov_b32 v{t2}, {EPOCH}")
    A("s_mov_b64 exec, 1")
    A(f"buffer_store_dword v{t1}, v{t2}, {sr(S_WST, 4)}, 0 offen")
    A("s_branch L_fin")
    A("L_h_far:")
    A(f"buffer_store_dword v{t2}, v{vHs}, {sr(S_WST, 4)}, 0 offen sc1")
    A("s_branch L_h_sent")

    A("L_fin:")
    if amp:
        idx, role, wave = amp
        A("s_waitcnt vmcnt(0)")
        stamp(7)
        A(f"s_cmp_lg_u32 s{sW}, {wave}")
        A("s_cbranch_scc1 L_end")
        A(f"s_cmp_eq_u32 s{sXI}, {tailx}")
        A("s_cbranch_scc0 L_end" if role == "tail" else "s_cbranch_scc1 L_end")
        A("s_waitcnt lgkmcnt(0)")
        A(f"s_sub_u32 s{sA}, s{sST + 2 * idx}, s{sST}")
        if ampx is not None:
            A(f"s_getreg_b32 s{sA}, hwreg(HW_REG_XCC_ID, 0, 3)")
            A(f"s_add_u32 s{sA}, s{sA}, {ampx}")
            A(f"s_and_b32 s{sA}, s{sA}, 7")
            A(f"s_mul_i32 s{sA}, s{sA}, 125")
        A(f"s_min_u32 s{sA}, s{sA}, 20000")
        A(f"s_lshl_b32 s{sA}, s{sA}, 3")
        A(f"s_add_u32 s{sA}, s{sA}, 6000")
        A("L_amp:")
        A(f"s_memrealtime {sr(sC, 2)}")
        A("s_waitcnt lgkmcnt(0)")
        A(f"s_sub_u32 s{sB}, s{sC}, s{sST}")
        A(f"s_cmp_lt_u32 s{sB}, s{sA}")
        A("s_cbranch_scc1 L_amp")
    if stamps:
        A("s_waitcnt vmcnt(0)")
        stamp(7)
        A("s_waitcnt lgkmcnt(0)")
        for i in range(8):
            A(f"v_mov_b32 v{16 + i}, s{sST + 2 * i}")
        A(f"s_lshl_b32 s{sA}, s2, 3")
        A(f"s_add_u32 s{sA}, s{sA}, s{sW}")
        A(f"s_lshl_b32 s{sA}, s{sA}, 5")
        A(f"s_add_u32 s{sA}, s{sA}, {STAMPS}")
        A("v_mov_b32 v4, 0")
        A("s_mov_b64 exec, 1")
        A(f"buffer_store_dwordx4 v[16:19], v4, {sr(S_WS, 4)}, s{sA} offen")
        A(f"buffer_store_dwordx4 v[20:23], v4, {sr(S_WS, 4)}, s{sA} offen offset:16")
    A("L_end:")
    A("s_endpgm")
    A("L_code_end:")

    body, n = insert_waits(A.lines)
    out = HEADER
    out += "; @launch grid=(256,1,1) block=(512,1,1) lds=163840\n"
    out += '.amdgcn_target "amdgcn-amd-amdhsa--gfx950"\n.text\n'
    out += f".globl {NAME}\n.p2align 8\n.type {NAME},@function\n"
    out += "\n".join(("" if t.endswith(":") else "    ") + t for t in body) + "\n"
    out += f""".section .rodata,"a"
.p2align 6
.amdhsa_kernel {NAME}
  .amdhsa_next_free_vgpr 256
  .amdhsa_next_free_sgpr 102
  .amdhsa_accum_offset 256
  .amdhsa_group_segment_fixed_size 0
  .amdhsa_kernarg_size 96
  .amdhsa_user_sgpr_count 2
  .amdhsa_user_sgpr_kernarg_segment_ptr 1
  .amdhsa_system_sgpr_workgroup_id_x 1
  .amdhsa_float_denorm_mode_32 3
.end_amdhsa_kernel
"""
    return out


if __name__ == "__main__":
    kw = {}
    for a in sys.argv[2:]:
        k, v = a.split("=")
        kw[k] = eval(v)
    open(sys.argv[1], "w").write(gen(**kw))
```

```python
import sys
sys.path.insert(0, "exp")
from asmlib import Asm, vr, sr, insert_waits

NAME = "sequential_preLN__sliding_block_cached__swiglu_ffn__decode_kernel"
HEADER = open("sequential_preLN__sliding_block_cached__swiglu_ffn__decode.s.ref").read().split("; Override launch")[0]

QP, YBUF, HBUF, EPOCH, XBUF, OBUF, STAMPS = 0x0, 0x40000, 0x80000, 0x82000, 0x83000, 0x84000, 0x1c0000
TAGC = 0x9e3779b1
VERSION = 18
REC = 4096
WS_SIZE = 0x200000
FLAG_OFF = 0

S_X, S_WQ, S_WS, S_WST, S_A, S_B, S_WG, S_WU, S_OUT, S_DBG = 28, 32, 36, 40, 44, 48, 52, 56, 60, 64
sW, sXI, sT, sLIM, sCNT, sPASS, sFAST, sLB, sT0, sNT = 68, 69, 70, 71, 72, 73, 74, 75, 76, 77
sA, sB, sC, sD = 78, 79, 80, 81
sSELLO, sSELHI, sREC, sTAG = 82, 83, 84, 85
sXQ = 3
sHQ, sKQ = 64, 65
sMASK = 4
sTB = 12
sST = 86
vL, vN, vG = 1, 2, 3
vFF = 255
QL, ML, LL, PB = 155648, 156672, 156736, 157696


def gen(tailx=0, kvflags="nt", wqflags="nt", woflags="nt", guflags="nt", wdflags="nt", stamps=False, force_slow=False,
        dry=False, limit=0x40000, vwin=6, kwin=0, vbar=9, gsched=(4, 3, 3, 3, 3), kprio=0, amp=None, kbar=0, qprio=3, gather_before=0, qmap=1, drop='', codepf=False, tprio=True, slp=8, slp2=0, qstflags='sc1', touchflags='sc1', qwarm=None, qwb=False, fine=False, gyoung=True, nsets=(2, 2, 2, 2), gap=(2, 2, 2, 1), gwin=12, r1at=7, oprio=1, gprio=1, mimic2=True, vtile=4, ktile=None, ampx=None, vtouch=False, shift=None, pmap=1, ackbar=(None, None), pre=(0, 2, 3, 4), early=False, hv=4, lsets=2, lgap=2, owarm=False, lslp=0):
    A = Asm()

    def stamp(i):
        if stamps or (amp and i in (0, amp[0])):
            A(f"s_memrealtime {sr(sST + 2 * i, 2)}")

    FS = [44, 46, 48, 50, 52, 54, 56, 58, 20, 32, 24, 28, 30]

    def fs(i):
        if fine:
            A(f"s_memtime {sr(FS[i], 2)}")

    def srd(base, ptr, size):
        A(f"s_mov_b32 s{base}, s{ptr}")
        A(f"s_mov_b32 s{base + 1}, s{ptr + 1}")
        A(f"s_mov_b32 s{base + 2}, {size:#x}")
        A(f"s_mov_b32 s{base + 3}, 0x20000")

    def rb(dst, src):
        A(f"v_cvt_pk_bf16_f32 v{dst}, v{src}, v{src}")
        A(f"v_lshlrev_b32 v{dst}, 16, v{dst}")

    def allred_rows(op, v, t):
        A(f"v_mov_b32 v{t}, v{v}")
        A(f"v_permlane32_swap_b32 v{v}, v{t}")
        A(f"{op} v{v}, v{v}, v{t}")
        A(f"v_mov_b32 v{t}, v{v}")
        A(f"v_permlane16_swap_b32 v{v}, v{t}")
        A(f"{op} v{v}, v{v}, v{t}")

    def dpp_red(op, regs, rots):
        for r in rots:
            for v in regs:
                A(f"{op}_dpp v{v}, v{v}, v{v} row_ror:{r} row_mask:0xf bank_mask:0xf")

    def quad_red(v):
        for p in ("[1,0,3,2]", "[2,3,0,1]"):
            A(f"v_add_f32_dpp v{v}, v{v}, v{v} quad_perm:{p} row_mask:0xf bank_mask:0xf")

    def rows_to_batches(D):
        A(f"v_permlane32_swap_b32 v{D}, v{D + 2}")
        A(f"v_permlane32_swap_b32 v{D + 1}, v{D + 3}")
        A(f"v_add_f32 v{D}, v{D}, v{D + 2}")
        A(f"v_add_f32 v{D + 1}, v{D + 1}, v{D + 3}")
        A(f"v_permlane16_swap_b32 v{D}, v{D + 1}")
        A(f"v_add_f32 v{D}, v{D}, v{D + 1}")

    def fold_d(D):
        for rho in (1, 2, 3):
            for r in range(4):
                A(f"v_mov_b32_dpp v{D + r}, v{D + 4 * rho + r} quad_perm:[0,1,2,3] row_mask:{1 << rho:#x} bank_mask:0xf")
        rows_to_batches(D)

    def mfma16(D, Areg, Breg, first):
        c = "0" if first else vr(D, 4)
        A(f"v_mfma_f32_16x16x32_bf16 {vr(D, 4)}, {vr(Areg, 4)}, {vr(Breg, 4)}, {c}")

    def sentinel_check(regs, t):
        regs = list(regs)
        if len(regs) % 2 == 0:
            A(f"v_max_u32 v{t}, v{regs[0]}, v{regs[1]}")
            rest = regs[2:]
        else:
            A(f"v_max3_u32 v{t}, v{regs[0]}, v{regs[1]}, v{regs[2]}")
            rest = regs[3:]
        for i in range(0, len(rest), 2):
            A(f"v_max3_u32 v{t}, v{t}, v{rest[i]}, v{rest[i + 1]}")
        A(f"v_cmp_eq_u32 vcc, -1, v{t}")

    def tag_check(regs, tags, t, src=None, x=""):
        regs = list(regs)
        for i, r in enumerate(regs):
            A(f"v_xor_b32 v{r}, {tags[i % len(tags)]}, v{r if src is None else src + i}")
        A(f"v_or_b32 v{t}, v{regs[0]}, v{regs[1]}")
        for i in range(2, len(regs), 2):
            A(f"v_or3_b32 v{t}, v{t}, v{regs[i]}, v{regs[i + 1]}")
        A(f"v_cmp{x}_ne_u32_sdwa vcc, v{t}, 0 src0_sel:BYTE_0 src1_sel:DWORD")

    TAGS = [f"s{sTB + i}" for i in range(4)]

    def tag_put(D, tb=sTB):
        for i in range(4):
            A(f"v_bfi_b32 v{D + i}, v{vFF}, s{tb + i}, v{D + i}")

    def poll(loads, check, wait="s_waitcnt vmcnt(0)", sleep=0):
        top, out = A.label("poll"), A.label("polled")
        A(f"s_mov_b32 s{sCNT}, 0")
        A(f"{top}:")
        for l in loads:
            A(l)
        A(f"s_add_u32 s{sCNT}, s{sCNT}, 1")
        A(f"s_cmp_ge_u32 s{sCNT}, s{sLIM}")
        A(wait)
        check()
        A(f"s_cbranch_scc1 {out}")
        if sleep:
            A(f"s_cbranch_vccz {out}")
            A(f"s_sleep {sleep}")
            A(f"s_branch {top}")
        else:
            A(f"s_cbranch_vccnz {top}")
        A(f"{out}:")

    cold = []

    def mpoll(n, g, mk_loads, mk_check, p=0, slp=0):
        top, more, out = A.label("poll"), A.label("more"), A.label("polled")
        nl = len(mk_loads(0))
        if p == "ack":
            A("s_waitcnt vmcnt(0)")
        elif p:
            A(f"s_sleep {p}")
        for u in range(n - 1):
            for l in mk_loads(u):
                A(l)
            if g:
                A(f"s_sleep {g}")
        A(f"{top}:")
        for l in mk_loads(n - 1):
            A(l)
        A(f"s_waitcnt vmcnt({(n - 1) * nl})")
        mk_check(0)
        A(f"s_cbranch_execnz {more}")
        A(f"{out}:")
        A("s_mov_b64 exec, -1")
        keep, A.lines = A.lines, []
        A(f"{more}:")
        for u in range(1, n):
            for l in mk_loads(u - 1):
                A(l)
            A(f"s_waitcnt vmcnt({(n - 1) * nl})")
            mk_check(u)
            A(f"s_cbranch_execz {out}")
        A(f"s_add_u32 s{sCNT}, s{sCNT}, 1")
        A(f"s_cmp_lt_u32 s{sCNT}, s{sLIM}")
        if slp:
            A(f"s_sleep {slp}")
        A(f"s_cbranch_scc1 {top}")
        A(f"s_branch {out}")
        cold.extend(A.lines)
        A.lines = keep

    def smf(D, Areg, Breg, idx):
        A(f"v_smfmac_f32_16x16x64_bf16 {vr(D, 4)}, {vr(Areg, 4)}, {vr(Breg, 8)}, v{idx}")

    def make_tag():
        A("s_waitcnt lgkmcnt(0)")
        A(f"s_add_u32 s{sTAG}, s{sTAG}, {TAGC:#x}")
        for i in range(4):
            A(f"s_bfe_u32 s{sTB + i}, s{sTAG}, {0x80000 + 8 * i:#x}")

    def set_masks():
        for i in range(4):
            A(f"s_mov_b32 s{sMASK + 2 * i}, {0x000f000f << (4 * i):#x}")
            A(f"s_mov_b32 s{sMASK + 2 * i + 1}, {0x000f000f << (4 * i):#x}")

    def store_mode(texts):
        slow, done = A.label("slow"), A.label("stored")
        A(f"s_cmp_eq_u32 s{sFAST}, 0")
        A(f"s_cbranch_scc1 {slow}")
        for t in texts:
            A(t)
        A(f"s_branch {done}")
        A(f"{slow}:")
        for t in texts:
            A(t + " sc1" if t.startswith("buffer_") else t)
        A(f"{done}:")

    def line_tile_addr(dst, base_s, t1, t2):
        A(f"v_bfe_u32 v{t1}, v{vN}, 3, 1")
        A(f"v_and_b32 v{t2}, 1, v{vG}")
        A(f"v_lshl_or_b32 v{t1}, v{t2}, 1, v{t1}")
        A(f"v_lshlrev_b32 v{t1}, 5, v{t1}")
        A(f"v_and_b32 v{t2}, 3, v{vN}")
        A(f"v_lshl_add_u32 v{t1}, v{t2}, 3, v{t1}")
        A(f"v_lshrrev_b32 v{t2}, 2, v{vN}")
        A(f"v_lshl_add_u32 v{t1}, v{t2}, 7, v{t1}")
        A(f"v_lshl_add_u32 v{t1}, v{vG}, 10, v{t1}")
        for i in range(4):
            A(f"v_xor_b32 v{dst + i}, {32 * i}, v{t1}")
            if base_s is not None:
                A(f"v_add_u32 v{dst + i}, s{base_s}, v{dst + i}")

    def line_tile_read(dst, addr, off):
        for i in range(4):
            A(f"ds_read_b64_tr_b16 {vr(dst(i), 2)}, v{addr + i} offset:{off}")
            A(f"ds_read_b64_tr_b16 {vr(dst(i) + 2, 2)}, v{addr + i} offset:{off + 512}")

    def swz_chunk(dst, t):
        A(f"v_and_b32 v{t}, 1, v{vG}")
        A(f"v_lshlrev_b32 v{t}, 1, v{t}")
        A(f"v_and_b32 v{dst}, 7, v{vL}")
        A(f"v_xor_b32 v{dst}, v{dst}, v{t}")
        A(f"v_lshlrev_b32 v{dst}, 4, v{dst}")

    A(f"{NAME}:")
    stamp(0)
    A("s_cmp_ge_u32 s2, 256")
    A("s_cbranch_scc1 L_end")
    A("s_load_dwordx16 s[4:19], s[0:1], 0")
    A("s_load_dwordx8 s[20:27], s[0:1], 64")
    A("v_lshrrev_b32 v4, 6, v0")
    A(f"v_and_b32 v{vL}, 63, v0")
    A(f"v_readfirstlane_b32 s{sW}, v4")
    A(f"v_and_b32 v{vN}, 15, v0")
    A(f"v_bfe_u32 v{vG}, v0, 4, 2")
    if codepf:
        A.c("pull the kernel's code into this XCD's L2 before the streams saturate memory")
        A(f"s_getpc_b64 {sr(sC, 2)}")
        A(f"s_and_b32 s{sC}, s{sC}, 0xffffff00")
        if codepf == 1:
            A("v_lshlrev_b32 v250, 6, v0")
            A(f"v_min_u32 v250, L_code_end - {NAME} - 4, v250")
            A(f"global_load_dword v253, v250, {sr(sC, 2)}")
        else:
            A("s_lshr_b32 s3, s2, 3")
            A("s_and_b32 s3, s3, 3")
            A("s_lshl_b32 s3, s3, 13")
            A("v_lshl_add_u32 v250, v1, 7, s3")
            A(f"v_min_u32 v250, L_code_end - {NAME} - 4, v250")
            A(f"s_cmp_lg_u32 s{sW}, 7")
            A("s_cbranch_scc1 L_no_pf")
            A(f"global_load_dword v253, v250, {sr(sC, 2)}")
            A("L_no_pf:")
    A(f"v_mov_b32 v{vFF}, 0xff")
    A(f"s_and_b32 s{sXI}, s2, 7")
    A(f"s_lshr_b32 s{sT}, s2, 3")
    A(f"s_mov_b32 s{sLIM}, {limit}")
    A(f"s_mov_b32 s{sSELLO}, 0x05040100")
    A(f"s_mov_b32 s{sSELHI}, 0x07060302")
    A(f"s_cmp_eq_u32 s{sXI}, {tailx}")
    A("s_cbranch_scc1 L_tail")
    A.c("split = (x - tailx - 1) & 7 and the record offset of this attention workgroup")
    A(f"s_sub_u32 s{sB}, s{sXI}, {tailx + 1}")
    A(f"s_and_b32 s{sB}, s{sB}, 7")
    if pmap:
        A.c("index 32*split + t -> (pair, role) keeps the splits of one pair on neighbouring workgroups of one die")
        A(f"s_lshl_b32 s{sB}, s{sB}, 5")
        A(f"s_add_u32 s{sB}, s{sB}, s{sT}")
        A(f"s_mul_i32 s{sT}, s{sB}, 9363")
        A(f"s_lshr_b32 s{sT}, s{sT}, 16")
        A(f"s_mul_i32 s{sA}, s{sT}, 7")
        A(f"s_sub_u32 s{sB}, s{sB}, s{sA}")
    A(f"s_lshl_b32 s{sREC}, s{sT}, 3")
    A(f"s_add_u32 s{sREC}, s{sREC}, s{sB}")
    A(f"s_mul_i32 s{sREC}, s{sREC}, {REC}")
    A(f"s_add_u32 s{sREC}, s{sREC}, {OBUF}")
    counts = list(shift or (37, 37, 37, 37, 37, 36, 35))
    assert sum(counts) == 256 and max(counts) <= 38 and min(counts) > 32
    starts = [sum(counts[:i]) for i in range(7)]
    if pmap:
        pass
    elif shift:
        A.c("role: even x take roles 0..2, odd x rotate through roles 3..6")
        A(f"s_lshr_b32 s{sB}, s{sXI}, 1")
        A(f"s_add_u32 s{sA}, s{sB}, s{sT}")
        A(f"s_and_b32 s{sA}, s{sA}, 3")
        A(f"s_add_u32 s{sA}, s{sA}, 3")
        A(f"s_sub_u32 s{sB}, s{sB}, 1")
        A(f"s_bitcmp1_b32 s{sXI}, 0")
        A(f"s_cselect_b32 s{sB}, s{sA}, s{sB}")
    else:
        A.c("role = (split + pair) mod 7")
        A(f"s_add_u32 s{sB}, s{sB}, s{sT}")
        A(f"s_mul_i32 s{sA}, s{sB}, 37")
        A(f"s_lshr_b32 s{sA}, s{sA}, 8")
        A(f"s_mul_i32 s{sA}, s{sA}, 7")
        A(f"s_sub_u32 s{sB}, s{sB}, s{sA}")
    A.c("first tile and tile count of the role")
    pk = lambda v: sum(x << (8 * i) for i, x in enumerate(v))
    A(f"s_mov_b32 s{sC}, {pk(starts[:4]):#x}")
    A(f"s_mov_b32 s{sD}, {pk(starts[4:]):#x}")
    A(f"s_lshl_b32 s{sA}, s{sB}, 3")
    A(f"s_lshr_b64 {sr(sC, 2)}, {sr(sC, 2)}, s{sA}")
    A(f"s_and_b32 s{sT0}, s{sC}, 0xff")
    A(f"s_lshl_b32 s{sA}, s{sB}, 2")
    A(f"s_lshr_b32 s{sNT}, {sum((c - 32) << (4 * i) for i, c in enumerate(counts)):#x}, s{sA}")
    A(f"s_and_b32 s{sNT}, s{sNT}, 15")
    A(f"s_add_u32 s{sNT}, s{sNT}, 32")
    A(f"s_cmp_eq_u32 s{sB}, 6")
    A(f"s_cselect_b32 s{sPASS}, 5, 4")
    A(f"s_lshl_b32 s{sT0}, s{sT0}, 12")
    A(f"s_lshl_b32 s{sA}, s{sT}, 22")
    A(f"s_add_u32 s{sT0}, s{sT0}, s{sA}")
    A(f"s_add_u32 s{sT0}, s{sT0}, 0x300000")
    A(f"s_cmp_lt_u32 s{sW}, 4")
    A("s_cbranch_scc1 L_kwave")
    if 'j' in drop:
        A(f"s_mov_b32 s{sPASS}, 0")
    A(f"s_cmp_gt_u32 s{sW}, s{sPASS}")
    A("s_cbranch_scc1 L_v_init")

    A("L_qjob:")
    A.c("q job: LayerNorm(x)[:, 128 kq : 128 kq + 128] @ wq[those rows, column block xq of kv head hq]")
    if qprio:
        A(f"s_setprio {qprio}")
    A.c("column block by split: 2,4,5,6,7 for the long splits, 3 for the 36-tile split, 0 and 1 for the 35-tile split")
    A(f"s_add_u32 s{sA}, s{sB}, s{sW}")
    A(f"s_sub_u32 s{sA}, s{sA}, 4")
    A(f"s_lshl_b32 s{sA}, s{sA}, 2")
    A(f"s_lshr_b32 s{sXQ}, 0x10376542, s{sA}")
    A(f"s_and_b32 s{sXQ}, s{sXQ}, 7")
    A(f"s_and_b32 s{sKQ}, s{sT}, 3")
    A(f"s_lshr_b32 s{sHQ}, s{sT}, 2")
    XR, XF, QR, QB, QD = 16, 32, 64, 128, 160
    A.c("matrix row (b, rho), lane group g: x[b][128 j' + 32g + 8 rho ..], block j' = kq comes first")
    A(f"v_lshrrev_b32 v4, 2, v{vN}")
    A("v_lshlrev_b32 v4, 10, v4")
    A(f"v_and_b32 v5, 3, v{vN}")
    A("v_lshl_add_u32 v4, v5, 4, v4")
    A(f"v_lshl_add_u32 v4, v{vG}, 6, v4")
    for j in range(4):
        A(f"s_add_u32 s{56 + j}, s{sKQ}, {j}")
        A(f"s_and_b32 s{56 + j}, s{56 + j}, 3")
        A(f"s_lshl_b32 s{56 + j}, s{56 + j}, 8")
    A.c("matrix column (kappa, c): wq row 128kq + 32g + 16 r1 + 8 kappa + e, columns 8c..8c+7")
    A(f"v_lshlrev_b32 v5, 18, v{vG}")
    A(f"v_lshrrev_b32 v7, 3, v{vN}")
    A("v_lshl_add_u32 v5, v7, 16, v5")
    A(f"v_and_b32 v6, 7, v{vN}")
    A("v_lshl_add_u32 v5, v6, 4, v5")
    A(f"s_lshl_b32 s{sA}, s{sXQ}, 7")
    A(f"s_lshl_b32 s{sB}, s{sHQ}, 10")
    A(f"s_add_u32 s{sA}, s{sA}, s{sB}")
    A(f"s_lshl_b32 s{sB}, s{sKQ}, 20")
    A(f"s_add_u32 s44, s{sA}, s{sB}")
    for e in range(1, 8):
        A(f"s_add_u32 s{44 + e}, s44, {8192 * e}")
    A("v_add_u32 v10, 0x20000, v5")
    A.c("QP byte = (b*8 + hq)*8192 + kq*2048 + (64xq + 8c + 4 kappa)*4")
    A(f"s_lshl_b32 s60, s{sHQ}, 13")
    A(f"s_lshl_b32 s{sC}, s{sKQ}, 11")
    A(f"s_add_u32 s60, s60, s{sC}")
    A(f"s_lshl_b32 s{sC}, s{sXQ}, 8")
    A(f"s_add_u32 s60, s60, s{sC}")
    A(f"v_lshlrev_b32 v6, 5, v6")
    A(f"v_lshl_add_u32 v6, v7, 4, v6")
    A(f"v_lshl_add_u32 v6, v{vG}, 16, v6")
    A("s_waitcnt lgkmcnt(0)")
    srd(S_X, 4, 4096)
    srd(S_WQ, 10, 0 if 'q' in drop else 512 * 8192)
    for j in range(4):
        A(f"buffer_load_dwordx4 {vr(XR + 4 * j, 4)}, v4, {sr(S_X, 4)}, s{56 + j} offen")
    for r1 in range(2):
        for e in range(8):
            A(f"buffer_load_dwordx4 {vr(QR + 32 * r1 + 4 * e, 4)}, v{10 if r1 else 5}, {sr(S_WQ, 4)}, s{44 + e} offen {wqflags}")
    A("s_barrier")
    A(f"s_load_dword s{sTAG}, s[26:27], {EPOCH}")
    srd(S_WST, 26, WS_SIZE)
    A("s_mov_b32 s62, 0xff00ff00")
    A("s_mov_b32 s63, 0xff00ff00")
    A("s_waitcnt vmcnt(16)")
    for i in range(16):
        A(f"v_lshlrev_b32 v{XF + 2 * i}, 16, v{XR + i}")
        A(f"v_and_b32 v{XF + 2 * i + 1}, 0xffff0000, v{XR + i}")
    A(f"v_pk_add_f32 v[12:13], {vr(XF, 2)}, {vr(XF + 2, 2)}")
    A(f"v_pk_add_f32 v[14:15], {vr(XF + 4, 2)}, {vr(XF + 6, 2)}")
    for i in range(4, 16, 2):
        A(f"v_pk_add_f32 v[12:13], v[12:13], {vr(XF + 2 * i, 2)}")
        A(f"v_pk_add_f32 v[14:15], v[14:15], {vr(XF + 2 * i + 2, 2)}")
    A("v_pk_add_f32 v[12:13], v[12:13], v[14:15]")
    A("v_add_f32 v12, v12, v13")
    quad_red(12)
    allred_rows("v_add_f32", 12, 13)
    A("v_mul_f32 v12, 0x3b000000, v12")
    A("v_mov_b32 v14, 0")
    A("v_mov_b32 v15, 0")
    for i in range(16):
        A(f"v_pk_add_f32 v[8:9], {vr(XF + 2 * i, 2)}, v[12:13] op_sel_hi:[1,0] neg_lo:[0,1] neg_hi:[0,1]")
        A("v_pk_fma_f32 v[14:15], v[8:9], v[8:9], v[14:15]")
    A("v_add_f32 v14, v14, v15")
    quad_red(14)
    allred_rows("v_add_f32", 14, 15)
    A("v_mul_f32 v14, 0x3b000000, v14")
    rb(12, 12)
    rb(14, 14)
    A("v_add_f32 v14, 0x3727c5ac, v14")
    rb(14, 14)
    A("v_sqrt_f32 v14, v14")
    rb(14, 14)
    A("v_rcp_f32 v14, v14")
    for i in range(4):
        p = XF + 2 * i
        A(f"v_pk_add_f32 {vr(p, 2)}, {vr(p, 2)}, v[12:13] op_sel_hi:[1,0] neg_lo:[0,1] neg_hi:[0,1]")
        A(f"v_cvt_pk_bf16_f32 v{p + 1}, v{p}, v{p + 1}")
        A(f"v_lshlrev_b32 v{p}, 16, v{p + 1}")
        A(f"v_and_b32 v{p + 1}, 0xffff0000, v{p + 1}")
        A(f"v_pk_mul_f32 {vr(p, 2)}, {vr(p, 2)}, v[14:15] op_sel_hi:[1,0]")
        A(f"v_cvt_pk_bf16_f32 v{XR + i}, v{p}, v{p + 1}")
    for r1 in range(2):
        A(f"s_waitcnt vmcnt({8 - 8 * r1})")
        for i in range(8):
            for e2 in range(4):
                R = QR + 32 * r1 + 8 * e2 + (i >> 1)
                A(f"v_perm_b32 v{QB + 4 * i + e2}, v{R + 4}, v{R}, s{sSELHI if i & 1 else sSELLO}")
            if i:
                mfma16(QD + 32 * r1 + 4 * (i - 1), XR, QB + 4 * (i - 1), True)
        mfma16(QD + 32 * r1 + 28, XR, QB + 28, True)
    make_tag()
    A.c("valid sums sit in register 2 r1 + kappa; add the two kappa halves, lane kappa keeps columns 4 kappa .. 4 kappa + 3")
    for i in range(8):
        A(f"v_pk_add_f32 {vr(QD + 4 * i, 2)}, {vr(QD + 4 * i, 2)}, {vr(QD + 32 + 4 * i + 2, 2)}")
    for i in range(8):
        A(f"v_cndmask_b32 v{QD + 4 * i}, v{QD + 4 * i}, v{QD + 4 * i + 1}, s[62:63]")
    for i in range(8):
        A(f"v_add_f32_dpp v{QD + 4 * i}, v{QD + 4 * i}, v{QD + 4 * i} row_ror:8 row_mask:0xf bank_mask:0xf")
    for i in range(4):
        A(f"v_cndmask_b32 v{XF + i}, v{QD + 4 * i}, v{QD + 16 + 4 * i}, s[62:63]")
        A(f"v_add_u32 v{XF + i}, 0x80, v{XF + i}")
    tag_put(XF)
    if 'S' not in drop:
        A(f"buffer_store_dwordx4 {vr(XF, 4)}, v6, {sr(S_WST, 4)}, s60 offen {qstflags}")
    if qprio:
        A("s_setprio 0")
    stamp(1)
    A("s_branch L_vwave")

    A("L_kwave:")
    A.c("K wave k: stage its key tiles k, k+4, .. in LDS, scores, workgroup max, probabilities")
    KO, KA, QO = 4, 8, 12
    vM, vLs, vT1, vT2, vGA = 14, 15, 62, 63, 61
    Q, S, PA, QM, KF, QG = 16, 32, 44, 64, 128, 160
    if kprio:
        A(f"s_setprio {kprio}")
    A(f"v_lshlrev_b32 v{vT1}, 2, v{vG}")
    A(f"v_xor_b32 v{vT1}, v{vT1}, v{vN}")
    A(f"v_lshlrev_b32 v{vT1}, 4, v{vT1}")
    A(f"v_lshl_add_u32 v{KO}, v{vG}, 8, v{vT1}")
    for i in (1, 2, 3):
        A(f"v_xor_b32 v{KO + i}, {16 * i}, v{KO}")
    A(f"s_mul_i32 s{sLB}, s{sW}, 36864")
    A(f"s_min_u32 s{sA}, s{sW}, 2")
    A(f"s_lshl_b32 s{sA}, s{sA}, 12")
    A(f"s_add_u32 s{sLB}, s{sLB}, s{sA}")
    A(f"s_sub_u32 s{sNT}, s{sNT}, s{sW}")
    A(f"s_add_u32 s{sNT}, s{sNT}, 3")
    A(f"s_lshr_b32 s{sNT}, s{sNT}, 2")
    A(f"s_lshl_b32 s{sA}, s{sW}, 12")
    A(f"s_add_u32 s{sD}, s{sT0}, s{sA}")
    A.c("q partials of head k: lane half picks the k quarter")
    A(f"v_and_b32 v{vGA}, 31, v{vL}")
    A(f"v_lshlrev_b32 v{vGA}, 4, v{vGA}")
    A(f"v_lshrrev_b32 v{vT1}, 5, v{vL}")
    A(f"v_lshl_add_u32 v{vGA}, v{vT1}, 11, v{vGA}")
    A(f"s_lshl_b32 s{sA}, s{sT}, 13")
    A(f"s_lshl_b32 s{sB}, s{sW}, 9")
    A(f"s_add_u32 s{sA}, s{sA}, s{sB}")
    A(f"s_add_u32 s{sB}, s{sA}, 4096")
    gloads = [f"buffer_load_dwordx4 {vr(QG + 4 * i, 4)}, v{vGA}, {sr(S_WS, 4)}, s{sB if i else sA} offen sc1" for i in range(2)]
    if 'G' in drop:
        gloads = []
    A("s_waitcnt lgkmcnt(0)")
    srd(S_A, 6, 0 if 'k' in drop else 0x8000000)
    if kbar < 0:
        A("s_barrier")
    def k_tile(slot, n0):
        A(f"s_add_u32 s{sC}, s{sLB}, {4096 * slot}")
        A(f"s_mov_b32 m0, s{sC}")
        A(f"s_add_u32 s{sC}, s{sD}, {16384 * slot}")
        if ktile is not None and n0 >= 8:
            A(f"s_waitcnt vmcnt({ktile})")
        for i in range(4):
            if kwin and n0 + i >= kwin:
                A(f"s_waitcnt vmcnt({kwin - 1})")
            A(f"buffer_load_dwordx4 v{KO + i}, {sr(S_A, 4)}, s{sC} offen offset:{1024 * i} {kvflags} lds")

    for n, slot in enumerate([0, 1, 9, 8, 2, 3, 4, 5, 6, 7]):
        if n == 10 - gather_before:
            for l in gloads:
                A(l)
        if slot >= 8:
            A(f"s_cmp_le_u32 s{sNT}, {slot}")
            A(f"s_cbranch_scc1 L_k_skip{slot}")
        k_tile(slot, 4 * n)
        if slot >= 8:
            A(f"L_k_skip{slot}:")
        if n == 0:
            A(f"s_load_dword s{sTAG}, s[26:27], {EPOCH}")
            srd(S_WS, 26, WS_SIZE)
            srd(S_WST, 26, WS_SIZE)
        if n == kbar:
            A("s_barrier")
        if n == 9 and not gather_before:
            for l in gloads:
                A(l)
        if n == vbar:
            A("s_barrier")
    if owarm:
        A(f"s_cmp_lg_u32 s{sW}, 0")
        A("s_cbranch_scc1 L_no_owarm")
        A(f"v_lshlrev_b32 v{vT1}, 6, v{vL}")
        A("s_mov_b32 exec_lo, 0xff00ff00")
        A("s_mov_b32 exec_hi, 0xff00ff00")
        A(f"buffer_load_dword v{QG + 8}, v{vT1}, {sr(S_WS, 4)}, s{sREC} offen")
        A("s_mov_b64 exec, -1")
        A("L_no_owarm:")
    stamp(2)
    make_tag()
    A.c("K fragment LDS addresses: key(mu)*256 + ((4j + g) ^ mu)*16, key(mu) = 4*(mu&3) + (mu>>2)")
    A(f"v_and_b32 v{vT1}, 3, v{vN}")
    A(f"v_lshlrev_b32 v{QO}, 4, v{vT1}")
    A(f"v_lshlrev_b32 v{vT1}, 10, v{vT1}")
    A(f"v_lshrrev_b32 v{vT2}, 2, v{vN}")
    A(f"v_lshl_add_u32 v{vT1}, v{vT2}, 8, v{vT1}")
    A(f"v_xor_b32 v{vM}, v{vG}, v{vN}")
    A(f"v_lshl_add_u32 v{vT1}, v{vM}, 4, v{vT1}")
    for j in range(4):
        A(f"v_xor_b32 v{KA + j}, {64 * j}, v{vT1}")
        A(f"v_add_u32 v{KA + j}, s{sLB}, v{KA + j}")
    A(f"v_add_u32 v{QO + 1}, {ML}, v{QO}")
    A(f"v_lshl_add_u32 v{QO}, v{vG}, 6, v{QO}")
    A.c("probability slot of slot s = 4a + rho: PB + (s>>1)*1024 + k*256 + g*64 + h*16 + (s&1)*8")
    A(f"v_lshrrev_b32 v{vM}, 1, v{vT2}")
    A(f"v_lshl_add_u32 v{PA}, v{vM}, 10, v{QO}")
    A(f"v_and_b32 v{vM}, 1, v{vT2}")
    A(f"v_lshl_add_u32 v{PA}, v{vM}, 3, v{PA}")
    A(f"s_lshl_b32 s{sC}, s{sW}, 8")
    A(f"s_add_u32 s{sC}, s{sC}, {PB}")
    A(f"v_add_u32 v{PA}, s{sC}, v{PA}")
    A(f"v_add_u32 v{QO}, {QL}, v{QO}")
    A.c("s[18:19]: lanes of accumulator 2 whose tile exists")
    A(f"v_add_u32 v{vT1}, 8, v{vT2}")
    A(f"v_cmp_gt_u32 s[18:19], s{sNT}, v{vT1}")
    set_masks()
    for i in range(64):
        A(f"v_mov_b32 v{QM + i}, 0")
    A.c("sum the four q partials of head k into LDS (operand order)")
    A(f"v_bfe_u32 v{Q}, v{vL}, 1, 4")
    A(f"v_lshlrev_b32 v{Q}, 6, v{Q}")
    A(f"v_and_b32 v{vT1}, 1, v{vL}")
    A(f"v_lshl_add_u32 v{Q}, v{vT1}, 3, v{Q}")
    A(f"s_lshl_b32 s{sC}, s{sW}, 4")
    A(f"s_add_u32 s{sC}, s{sC}, {QL}")
    A(f"v_add_u32 v{Q}, s{sC}, v{Q}")
    A(f"s_waitcnt vmcnt({4 * gather_before})")
    tag_check(range(QG, QG + 8), TAGS, vT1)
    A("s_cbranch_vccz L_k_gathered")
    poll(gloads, lambda: tag_check(range(QG, QG + 8), TAGS, vT1))
    A("L_k_gathered:")
    for i in range(4):
        A(f"v_permlane32_swap_b32 v{QG + i}, v{QG + 4 + i}")
    A(f"v_pk_add_f32 {vr(QG, 2)}, {vr(QG, 2)}, {vr(QG + 4, 2)}")
    A(f"v_pk_add_f32 {vr(QG + 2, 2)}, {vr(QG + 2, 2)}, {vr(QG + 6, 2)}")
    for i in range(4):
        A(f"v_mov_b32 v{QG + 4 + i}, v{QG + i}")
    for i in range(4):
        A(f"v_permlane32_swap_b32 v{QG + i}, v{QG + 4 + i}")
    A(f"v_pk_add_f32 {vr(QG, 2)}, {vr(QG, 2)}, {vr(QG + 4, 2)}")
    A(f"v_pk_add_f32 {vr(QG + 2, 2)}, {vr(QG + 2, 2)}, {vr(QG + 6, 2)}")
    for i in range(2):
        A(f"v_cvt_pk_bf16_f32 v{QG + i}, v{QG + 2 * i}, v{QG + 2 * i + 1}")
        A(f"v_min_u32 v{QG + i}, -2, v{QG + i}")
    A(f"ds_write_b64 v{Q}, {vr(QG, 2)}")
    poll([f"ds_read_b128 {vr(Q + 4 * j, 4)}, v{QO} offset:{256 * j}" for j in range(4)],
         lambda: sentinel_check(range(Q, Q + 16), vT1), wait="s_waitcnt lgkmcnt(0)", sleep=2)
    for rho in range(4):
        A(f"s_mov_b64 exec, {sr(sMASK + 2 * rho, 2)}")
        for j in range(4):
            A(f"ds_read_b128 {vr(QM + 16 * rho + 4 * j, 4)}, v{QO} offset:{256 * j}")
        if rho & 1:
            A("s_waitcnt lgkmcnt(0)")
    A("s_mov_b64 exec, -1")
    A("s_waitcnt vmcnt(0)")
    stamp(3)

    def qk_reads(slot):
        for j in range(4):
            A(f"ds_read_b128 {vr(KF + 16 * (slot & 1) + 4 * j, 4)}, v{KA + j} offset:{4096 * slot}")

    qk_reads(0)
    for slot in range(10):
        if slot >= 8:
            A(f"s_cmp_le_u32 s{sNT}, {slot}")
            A("s_cbranch_scc1 L_qk_done")
        if slot < 9:
            qk_reads(slot + 1)
            A("s_waitcnt lgkmcnt(4)")
        else:
            A("s_waitcnt lgkmcnt(0)")
        for j in range(4):
            mfma16(S + 4 * (slot >> 2), KF + 16 * (slot & 1) + 4 * j, QM + 16 * (slot & 3) + 4 * j, j == 0 and (slot & 3) == 0)
    A("L_qk_done:")
    A.c("scores: bf16(bf16(q.k) * Dh^-0.5); absent tiles get -inf")
    A(f"s_mov_b32 s{sA}, 0x3db504f3")
    A(f"s_mov_b32 s{sB}, 0x3fb8aa3b")
    A(f"v_mov_b32 v{vT1}, 0xff800000")
    for i in range(0, 12, 2):
        p = S + i
        A(f"v_cvt_pk_bf16_f32 v{p + 1}, v{p}, v{p + 1}")
        A(f"v_lshlrev_b32 v{p}, 16, v{p + 1}")
        A(f"v_and_b32 v{p + 1}, 0xffff0000, v{p + 1}")
        A(f"v_mul_f32 v{p}, s{sA}, v{p}")
        A(f"v_mul_f32 v{p + 1}, s{sA}, v{p + 1}")
        A(f"v_cvt_pk_bf16_f32 v{p + 1}, v{p}, v{p + 1}")
        A(f"v_lshlrev_b32 v{p}, 16, v{p + 1}")
        A(f"v_and_b32 v{p + 1}, 0xffff0000, v{p + 1}")
        if i >= 8:
            m = "s[18:19]"
            A(f"v_cndmask_b32 v{p}, v{vT1}, v{p}, {m}")
            A(f"v_cndmask_b32 v{p + 1}, v{vT1}, v{p + 1}, {m}")
    A(f"v_max_f32 v{vM}, v{S}, v{S + 1}")
    for i in range(2, 12, 2):
        A(f"v_max3_f32 v{vM}, v{vM}, v{S + i}, v{S + i + 1}")
    dpp_red("v_max_f32", [vM], [8, 4])
    allred_rows("v_max_f32", vM, vT1)
    A(f"v_min_u32 v{vM}, -2, v{vM}")
    A(f"s_lshl_b32 s{sA}, s{sW}, 2")
    A(f"v_add_u32 v{vT2}, s{sA}, v{QO + 1}")
    A("s_mov_b64 exec, 15")
    A(f"ds_write_b32 v{vT2}, v{vM}")
    A("s_mov_b64 exec, -1")
    poll([f"ds_read_b128 {vr(Q, 4)}, v{QO + 1}"], lambda: sentinel_check(range(Q, Q + 4), vT1),
         wait="s_waitcnt lgkmcnt(0)", sleep=1)
    A(f"v_max_f32 v{vM}, v{Q}, v{Q + 1}")
    A(f"v_max3_f32 v{vM}, v{vM}, v{Q + 2}, v{Q + 3}")
    for i in range(12):
        A(f"v_sub_f32 v{S + i}, v{S + i}, v{vM}")
        A(f"v_mul_f32 v{S + i}, s{sB}, v{S + i}")
        A(f"v_exp_f32 v{S + i}, v{S + i}")
    A(f"v_mul_f32 v{vM}, s{sB}, v{vM}")
    for i in range(6):
        A(f"v_cvt_pk_bf16_f32 v{Q + i}, v{S + 2 * i}, v{S + 2 * i + 1}")
    A(f"ds_write_b64 v{PA}, {vr(Q, 2)}")
    A(f"ds_write_b64 v{PA}, {vr(Q + 2, 2)} offset:2048")
    A("s_mov_b32 exec_lo, 0x00ff00ff")
    A("s_mov_b32 exec_hi, 0x00ff00ff")
    A(f"ds_write_b64 v{PA}, {vr(Q + 4, 2)} offset:4096")
    A("s_mov_b64 exec, -1")
    A(f"v_add_f32 v{vLs}, v{S}, v{S + 1}")
    for i in range(2, 12):
        A(f"v_add_f32 v{vLs}, v{vLs}, v{S + i}")
    dpp_red("v_add_f32", [vLs], [8, 4])
    allred_rows("v_add_f32", vLs, vT1)
    A("s_mov_b64 exec, 15")
    A(f"ds_write_b32 v{vT2}, v{vLs} offset:{LL - ML}")
    A("s_mov_b64 exec, -1")
    A("s_waitcnt lgkmcnt(0)")
    stamp(4)
    A("s_barrier")
    A(f"s_cmp_ge_u32 s{sW}, 2")
    A("s_cbranch_scc1 L_k_lse")
    A.c("waves 0,1: thread G owns 16 bytes of the record, head G>>5, scaled by 1/L")
    A(f"v_and_b32 v{KA + 2}, 127, v0")
    A(f"v_lshrrev_b32 v{KA}, 5, v{KA + 2}")
    A(f"v_lshlrev_b32 v{KA + 3}, 1, v{KA}")
    A(f"v_lshlrev_b32 v{KA}, 4, v{KA}")
    A(f"v_add_u32 v{KA}, {LL}, v{KA}")
    A(f"ds_read_b128 {vr(Q, 4)}, v{KA}")
    A(f"v_xor_b32 v{KA + 3}, v{KA + 3}, v{KA + 2}")
    A(f"v_lshlrev_b32 v{KA + 3}, 4, v{KA + 3}")
    A(f"v_and_b32 v{KA + 1}, 0x60, v{KA + 2}")
    A(f"v_add_u32 v{KA + 2}, v{KA + 2}, v{KA + 1}")
    A(f"v_lshlrev_b32 v{KA + 2}, 4, v{KA + 2}")
    A("s_waitcnt lgkmcnt(0)")
    A(f"v_add_f32 v{Q}, v{Q}, v{Q + 1}")
    A(f"v_add_f32 v{Q + 2}, v{Q + 2}, v{Q + 3}")
    A(f"v_add_f32 v{Q}, v{Q}, v{Q + 2}")
    A(f"v_rcp_f32 v{vM}, v{Q}")
    A("s_barrier")
    A("s_barrier")
    for w in range(4):
        A(f"ds_read_b128 {vr(Q + 4 * w, 4)}, v{KA + 3} offset:{2048 * w}")
    A("s_waitcnt lgkmcnt(2)")
    A(f"v_pk_add_f32 {vr(Q, 2)}, {vr(Q, 2)}, {vr(Q + 4, 2)}")
    A(f"v_pk_add_f32 {vr(Q + 2, 2)}, {vr(Q + 2, 2)}, {vr(Q + 6, 2)}")
    A("s_waitcnt lgkmcnt(0)")
    A(f"v_pk_add_f32 {vr(Q + 8, 2)}, {vr(Q + 8, 2)}, {vr(Q + 12, 2)}")
    A(f"v_pk_add_f32 {vr(Q + 10, 2)}, {vr(Q + 10, 2)}, {vr(Q + 14, 2)}")
    A(f"v_pk_add_f32 {vr(Q, 2)}, {vr(Q, 2)}, {vr(Q + 8, 2)}")
    A(f"v_pk_add_f32 {vr(Q + 2, 2)}, {vr(Q + 2, 2)}, {vr(Q + 10, 2)}")
    A(f"v_pk_mul_f32 {vr(Q, 2)}, {vr(Q, 2)}, {vr(vM, 2)} op_sel_hi:[1,0]")
    A(f"v_pk_mul_f32 {vr(Q + 2, 2)}, {vr(Q + 2, 2)}, {vr(vM, 2)} op_sel_hi:[1,0]")
    tag_put(Q)
    A(f"buffer_store_dwordx4 {vr(Q, 4)}, v{KA + 2}, {sr(S_WST, 4)}, s{sREC} offen offset:512 sc1")
    stamp(6)
    A("s_branch L_fin")
    A("L_k_lse:")
    A.c("wave 2 sends log2-sum-exp once the last value tiles are landing; it tells the tail when to fetch the record")
    A(f"ds_read_b128 {vr(Q, 4)}, v{QO + 1} offset:{LL - ML}")
    A(f"v_lshlrev_b32 v{vT1}, 3, v{vL}")
    A(f"v_mov_b32 v{vLs}, s{sTAG}")
    A("s_waitcnt lgkmcnt(0)")
    A(f"v_add_f32 v{Q}, v{Q}, v{Q + 1}")
    A(f"v_add_f32 v{Q + 2}, v{Q + 2}, v{Q + 3}")
    A(f"v_add_f32 v{Q}, v{Q}, v{Q + 2}")
    A(f"v_log_f32 v{Q}, v{Q}")
    A(f"v_add_f32 v{vM}, v{vM}, v{Q}")
    A("s_mov_b64 exec, 15")
    A(f"s_cmp_lg_u32 s{sW}, 2")
    A("s_barrier")
    A("s_cbranch_scc1 L_k_idle")
    A(f"buffer_store_dwordx2 {vr(vM, 2)}, v{vT1}, {sr(S_WST, 4)}, s{sREC} offen sc1")
    A("L_k_idle:")
    stamp(6)
    A("s_mov_b64 exec, -1")
    A("s_barrier")
    A("s_branch L_fin")

    A("L_v_init:")
    A.c("LDS: the q copy and the max slots start empty")
    for i in range(4):
        A(f"v_mov_b32 v{8 + i}, -1")
    A(f"v_lshlrev_b32 v6, 4, v{vL}")
    A(f"v_add_u32 v7, {QL}, v6")
    A("ds_write_b128 v7, v[8:11]")
    A("ds_write_b128 v7, v[8:11] offset:1024")
    A("s_waitcnt lgkmcnt(0)")
    A("s_barrier")
    A("L_vwave:")
    srd(S_B, 8, 0 if 'v' in drop else 0x8000000)
    if stamps:
        srd(S_WS, 26, WS_SIZE)
    if vtouch:
        A.c("first touch of the V window ahead of its stream")
        A(f"s_cmp_lg_u32 s{sW}, 7")
        A("s_cbranch_scc1 L_no_vtouch")
        A("v_mov_b32 v250, 0")
        A("s_mov_b64 exec, 1")
        A("s_setprio 3")
        A(f"buffer_load_dword v251, v250, {sr(S_B, 4)}, s{sT0} offen {kvflags}")
        A("s_setprio 0")
        A("s_mov_b64 exec, -1")
        A("L_no_vtouch:")
    A.c("V wave v: value tiles v, v+4, .. in registers, transposed in-lane, P.V on the matrix core")
    VO, vPA, vRA = 4, 5, 6
    ACC, PM, VB = 8, 16, 48
    A(f"v_lshlrev_b32 v{VO}, 4, v{vL}")
    A(f"s_sub_u32 s{sD}, s{sW}, 4")
    A(f"s_lshl_b32 s{sA}, s{sD}, 12")
    A(f"s_add_u32 s{sT0}, s{sT0}, s{sA}")
    order = [9, 8, 0, 1, 2, 3, 4, 5, 6, 7]
    pair_seq = [4, 0, 1, 2, 3]
    raw_base = {k: VB + 32 * (n + 1) for n, k in enumerate(pair_seq)}
    out_base = {k: VB + 32 * n for n, k in enumerate(pair_seq)}

    def v_load(s):
        R = raw_base[s >> 1] + 16 * (s & 1)
        A(f"s_add_u32 s{sB}, s{sT0}, {16384 * s}")
        for j in range(4):
            A(f"buffer_load_dwordx4 {vr(R + 4 * j, 4)}, v{VO}, {sr(S_B, 4)}, s{sB} offen offset:{1024 * j} {kvflags}")

    def v_perm(s, i):
        R = raw_base[s >> 1] + 16 * (s & 1)
        q, sel = i >> 1, sSELHI if i & 1 else sSELLO
        d = out_base[s >> 1] + 4 * i + 2 * (s & 1)
        A(f"v_perm_b32 v{d}, v{R + 4 + q}, v{R + q}, s{sel}")
        A(f"v_perm_b32 v{d + 1}, v{R + 12 + q}, v{R + 8 + q}, s{sel}")

    def p_read(k, buf):
        for rho in range(4):
            A(f"s_mov_b64 exec, {sr(sMASK + 2 * rho, 2)}")
            A(f"ds_read_b128 {vr(PM + 16 * buf + 4 * rho, 4)}, v{vPA} offset:{1024 * k}")
        A("s_mov_b64 exec, -1")

    def pv(k, buf, i, first):
        mfma16(ACC + 4 * (i >> 2), out_base[k] + 4 * i, PM + 16 * buf + 4 * (i & 3), first and (i & 3) == 0)

    for i in range(32):
        A(f"v_mov_b32 v{raw_base[4] + i}, 0")
    set_masks()
    for i in range(32):
        A(f"v_mov_b32 v{PM + i}, 0")
    A(f"v_and_b32 v7, 3, v{vN}")
    A(f"v_lshlrev_b32 v{vPA}, 4, v7")
    A(f"v_lshl_add_u32 v{vPA}, v{vG}, 6, v{vPA}")
    A(f"s_lshl_b32 s{sA}, s{sD}, 8")
    A(f"s_add_u32 s{sA}, s{sA}, {PB}")
    A(f"v_add_u32 v{vPA}, s{sA}, v{vPA}")
    A.c("reduction slot: h*32 + ((16a + 4g + rho) ^ 2h)")
    A(f"v_lshrrev_b32 v{vRA}, 2, v{vL}")
    A(f"v_lshlrev_b32 v{ACC}, 1, v7")
    A(f"v_xor_b32 v{vRA}, v{vRA}, v{ACC}")
    A(f"v_lshl_add_u32 v{vRA}, v7, 5, v{vRA}")
    A(f"v_lshlrev_b32 v{vRA}, 4, v{vRA}")
    A(f"s_lshl_b32 s{sA}, s{sD}, 11")
    A(f"v_add_u32 v{vRA}, s{sA}, v{vRA}")
    if vbar is not None:
        A("s_barrier")
    A(f"s_add_u32 s{sA}, s{sD}, 36")
    A(f"s_cmp_ge_u32 s{sA}, s{sNT}")
    A("s_cbranch_scc1 L_v9_done")
    v_load(9)
    A("L_v9_done:")
    assert vwin >= 5
    done = 0
    for n in range(4, 40):
        s_, j = order[n >> 2], n & 3
        R = raw_base[s_ >> 1] + 16 * (s_ & 1)
        if n == 4:
            A(f"s_add_u32 s{sA}, s{sD}, 32")
            A(f"s_cmp_ge_u32 s{sA}, s{sNT}")
            A("s_cbranch_scc1 L_v8_done")
        if n == 8:
            A("L_v8_done:")
        if j == 0:
            A(f"s_add_u32 s{sB}, s{sT0}, {16384 * s_}")
        if vtile is not None:
            if j == 0 and n >= 8:
                A(f"s_waitcnt vmcnt({vtile})")
        elif n >= vwin:
            A(f"s_waitcnt vmcnt({vwin - 1})")
        A(f"buffer_load_dwordx4 {vr(R + 4 * j, 4)}, v{VO}, {sr(S_B, 4)}, s{sB} offen offset:{1024 * j} {kvflags}")
        landed = ((n - 3 - vtile) // 4 if j == 3 and n >= 8 else 0) if vtile is not None else (n - vwin + 1) // 4
        while done < landed:
            for i in range(8):
                v_perm(order[done], i)
            done += 1
    stamp(2)
    A("s_barrier")
    stamp(4)
    p_read(pair_seq[0], 0)
    for n, k in enumerate(pair_seq):
        if n < 4:
            p_read(pair_seq[n + 1], (n + 1) & 1)
        first_t, second_t = 2 * n, 2 * n + 1
        if n == 4 and hv > 4:
            A(f"s_waitcnt vmcnt({hv})")
            A("s_barrier")
        if first_t >= done:
            A(f"s_waitcnt vmcnt({4 * (9 - first_t)})")
            for i in range(8):
                v_perm(order[first_t], i)
        lg = f"lgkmcnt({4 if n < 4 else 0})"
        if n == 4 and hv <= 4:
            A(f"s_waitcnt vmcnt({hv})")
            A("s_barrier")
        if second_t >= done:
            A(f"s_waitcnt vmcnt({4 * (9 - second_t)}) {lg}")
            if n == 4:
                stamp(5)
            seq = [0, 4, 1, 5, 2, 6, 3, 7]
            v_perm(order[second_t], seq[0])
            for m, i in enumerate(seq):
                if m < 7:
                    v_perm(order[second_t], seq[m + 1])
                pv(k, n & 1, i, n == 0)
        else:
            A(f"s_waitcnt {lg}")
            for i in (0, 4, 1, 5, 2, 6, 3, 7):
                pv(k, n & 1, i, n == 0)
    A(f"ds_write_b128 v{vRA}, {vr(ACC, 4)}")
    A(f"ds_write_b128 v{vRA}, {vr(ACC + 4, 4)} offset:256")
    A("s_waitcnt lgkmcnt(0)")
    A("s_barrier")
    A("s_branch L_fin")

    A("L_tail:")
    A.c("tail workgroup t: head t of wo, 64 FFN channels, 16 columns of h and of the output")
    if 'T' in drop:
        A("s_waitcnt lgkmcnt(0)")
        srd(S_WS, 26, WS_SIZE)
        A("s_branch L_fin")
    t1, t2, t3, t4 = 12, 13, 14, 15
    RING = 131072
    OL, AL, HL, SL = 0, 512, 2048, 6144
    sRING, sU, sTZ = sT0, sXQ, 4
    vIdx = 254
    A(f"s_getreg_b32 s{sFAST}, hwreg(HW_REG_XCC_ID, 0, 3)")
    A(f"s_and_b32 s{sU}, s{sW}, 3")

    def set_idx(bit):
        A(f"v_bfe_u32 v{vIdx}, v{vN}, {bit}, 1")
        A(f"v_mul_u32_u24 v{vIdx}, 0xaaaa, v{vIdx}")
        A(f"v_add_u32 v{vIdx}, 0x4444, v{vIdx}")

    def tail_consts():
        make_tag()
        A(f"s_add_u32 s{sA}, s{sTAG}, {TAGC:#x}")
        for i in range(4):
            A(f"s_bfe_u32 s{sTZ + i}, s{sA}, {0x80000 + 8 * i:#x}")
        A("s_mov_b32 s8, 0x00ff00ff")
        A("s_mov_b32 s9, 0x00ff00ff")
        A("s_not_b64 s[10:11], s[8:9]")

    def checkin_read(R, first):
        xl = f"buffer_load_dwordx2 {vr(R, 2)}, v{R + 2}, {sr(S_WS, 4)}, s{sD} offen sc1"
        if first:
            A(f"v_and_b32 v{R + 2}, 31, v{vL}")
            A(f"v_lshlrev_b32 v{R + 2}, 3, v{R + 2}")
            A(f"s_mov_b32 s{sD}, {XBUF}")
            A(xl)
            return
        ok = A.label("checked")
        A(f"v_cmp_ne_u32 vcc, s{sTAG}, v{R + 1}")
        A(f"s_cbranch_vccz {ok}")
        poll([xl], lambda: A(f"v_cmp_ne_u32 vcc, s{sTAG}, v{R + 1}"), sleep=slp)
        A(f"{ok}:")
        A(f"v_cmp_ne_u32 vcc, s{sFAST}, v{R}")
        A("s_cmp_eq_u64 vcc, 0")
        A(f"s_cselect_b32 s{sFAST}, {0 if force_slow else 1}, 0")

    A(f"s_cmp_ge_u32 s{sW}, 4")
    A("s_cbranch_scc1 L_gwave")

    A.c("O wave u: columns 128u..128u+127 of wo[head t] and of w_down[64t..64t+63], staged through a two-slot ring")
    AO, DO, BWO, BWD = 16, 32, 48, 176
    vTR, vWOo, vAr, vYs, XO, A4 = 4, 14, 240, 241, 242, 246
    A(f"s_lshl_b32 s{sRING}, s{sU}, 13")
    A(f"s_add_u32 s{sRING}, s{sRING}, {RING}")
    A.c("ring chunk n = 16 consecutive rows; row 4g'+r keeps its 64-byte block i at i ^ r, bit 4 flips with g'&1 .. see reads")
    A(f"v_lshlrev_b32 v{t1}, 2, v{vG}")
    A(f"v_xor_b32 v{t1}, v{t1}, v{vN}")
    A(f"v_lshlrev_b32 v{t1}, 4, v{t1}")
    A(f"v_lshl_add_u32 v{vWOo}, v{vG}, 10, v{t1}")
    A(f"s_lshl_b32 s{sA}, s{sU}, 8")
    A(f"v_add_u32 v{vWOo}, s{sA}, v{vWOo}")
    A(f"s_lshl_b32 s{sC}, s{sT}, 17")
    A(f"s_lshl_b32 s{sLB}, s{sT}, 16")
    A(f"s_lshl_b32 s{sPASS}, s{sU}, 14")
    A(f"s_add_u32 s{sPASS}, s{sPASS}, 65536")

    def ring_issue(n):
        for g in range(4):
            A(f"s_add_u32 s{sA}, s{sRING if n < 8 else sPASS}, {4096 * (n & (1 if n < 8 else 3)) + 1024 * g}")
            A(f"s_mov_b32 m0, s{sA}")
            if n < 8:
                A(f"s_add_u32 s{sB}, s{sC}, {(16 * n + 4 * g) * 1024}")
                A(f"buffer_load_dwordx4 v{vWOo}, {sr(S_A, 4)}, s{sB} offen {woflags} lds")
            else:
                A(f"s_add_u32 s{sB}, s{sLB}, {(16 * (n - 8) + 4 * g) * 1024}")
                A(f"buffer_load_dwordx4 v{vWOo}, {sr(S_B, 4)}, s{sB} offen {wdflags} lds")

    def ring_read(n):
        base = BWO + 64 * (n >> 2) + 2 * (n & 3)
        for blk in range(4):
            for sel in range(2):
                A(f"ds_read_b64_tr_b16 {vr(base + 16 * blk + 8 * sel, 2)}, v{vTR + blk} offset:{4096 * (n & (1 if n < 8 else 3)) + 8 * sel}")

    A("s_waitcnt lgkmcnt(0)")
    srd(S_A, 12, 0 if 'o' in drop else 4096 * 1024)
    ring_issue(0)
    ring_issue(1)
    A(f"s_load_dword s{sTAG}, s[26:27], {EPOCH}")
    srd(S_B, 20, 0 if 'd' in drop else 1792 * 1024)
    srd(S_WS, 26, WS_SIZE)
    srd(S_WST, 26, WS_SIZE)
    A(f"v_lshrrev_b32 v{t1}, 2, v{vN}")
    A(f"v_and_b32 v{t2}, 3, v{vN}")
    A(f"v_mul_u32_u24 v{t1}, 320, v{t1}")
    A(f"v_lshl_add_u32 v{t1}, v{t2}, 4, v{t1}")
    A(f"v_lshl_add_u32 v{t1}, v{vG}, 10, v{t1}")
    for blk in range(4):
        A(f"v_xor_b32 v{vTR + blk}, {64 * blk}, v{t1}")
        A(f"v_add_u32 v{vTR + blk}, s{sRING}, v{vTR + blk}")
    A.c("matrix row m = (half, b1, sigma, b0); activation chunk (J, sigma, g) at 1024J + 256 sigma + 128(g>>1) + 32b + 16(g&1)")
    set_idx(1)
    A(f"v_and_b32 v{t1}, 1, v{vN}")
    A(f"v_lshlrev_b32 v{vAr}, 5, v{t1}")
    A(f"v_bfe_u32 v{t1}, v{vN}, 2, 1")
    A(f"v_lshl_add_u32 v{vAr}, v{t1}, 6, v{vAr}")
    A(f"v_and_b32 v{t1}, 1, v{vG}")
    A(f"v_lshl_add_u32 v{vAr}, v{t1}, 4, v{vAr}")
    A(f"v_lshrrev_b32 v{t1}, 1, v{vG}")
    A(f"v_lshl_add_u32 v{vAr}, v{t1}, 7, v{vAr}")
    A(f"v_bfe_u32 v{t1}, v{vN}, 1, 1")
    A(f"v_lshl_add_u32 v{vAr}, v{t1}, 8, v{vAr}")
    A.c("partial-sum slot [consumer 8u + 4q + 2half + (n>>3)][b1][octet][producer t][n&3][sel][b0]")
    A(f"s_lshl_b32 s{sA}, s{sU}, 16")
    A(f"s_lshl_b32 s{sB}, s{sT}, 6")
    A(f"s_add_u32 s{sA}, s{sA}, s{sB}")
    A(f"v_lshlrev_b32 v{vYs}, 4, v{t2}")
    A(f"v_bfe_u32 v{t1}, v{vN}, 2, 1")
    A(f"v_lshl_add_u32 v{vYs}, v{t1}, 11, v{vYs}")
    A(f"v_and_b32 v{t1}, 1, v{vG}")
    A(f"v_lshl_add_u32 v{vYs}, v{t1}, 12, v{vYs}")
    A(f"v_lshrrev_b32 v{t1}, 3, v{vN}")
    A(f"v_lshl_add_u32 v{vYs}, v{t1}, 13, v{vYs}")
    A(f"v_lshrrev_b32 v{t1}, 1, v{vG}")
    A(f"v_lshl_add_u32 v{vYs}, v{t1}, 14, v{vYs}")
    A(f"v_add_u32 v{vYs}, s{sA}, v{vYs}")
    A(f"s_mov_b32 s16, {YBUF}")
    A(f"s_mov_b32 s17, {YBUF + 32768}")
    for i in list(range(AO, BWO)) + list(range(A4, A4 + 8)):
        A(f"v_mov_b32 v{i}, 0")
    tail_consts()
    assert 2 <= r1at <= 7
    younger = 0
    for n in range(8):
        A(f"s_waitcnt vmcnt({(4 if n < 7 else 0) + (younger if n <= r1at else 0)}) lgkmcnt(0)")
        ring_read(n)
        if n < 6:
            A("s_waitcnt lgkmcnt(0)")
            ring_issue(n + 2)
        if n + 2 == r1at:
            A.c("once the G waves hold gate/up in registers, all of w_down goes into the upper half of that image")
            A("s_barrier")
            checkin_read(XO, True)
            A("s_barrier")
            for m in range(8, 12):
                ring_issue(m)
            younger = 16
    A(f"s_sub_u32 s{sA}, s{sPASS}, s{sRING}")
    A("s_waitcnt lgkmcnt(0)")
    for blk in range(4):
        A(f"v_add_u32 v{vTR + blk}, s{sA}, v{vTR + blk}")
    checkin_read(XO, False)
    if oprio:
        A(f"s_setprio {oprio}")
    stamp(2)
    A(f"s_cmp_eq_u32 s{sFAST}, 0")
    A("s_mov_b64 exec, s[8:9]")
    A("s_cbranch_scc1 L_o_far")

    def o_stages(sc):
        def publish(q, tb):
            D = DO + 8 * q
            L = [f"v_pk_add_f32 {vr(D, 2)}, {vr(D, 2)}, {vr(D + 2, 2)}",
                 f"v_pk_add_f32 {vr(D + 2, 2)}, {vr(D + 4, 2)}, {vr(D + 6, 2)}"]
            L += [f"v_bfi_b32 v{D + i}, v{vFF}, s{tb + i}, v{D + i}" for i in range(4)]
            L += [f"buffer_store_dwordx4 {vr(D, 4)}, v{vYs}, {sr(S_WST, 4)}, s{16 + q} offen {sc}"]
            return L

        A.c("y_t = o_t @ wo[head t]")
        A("s_barrier")
        fs(1)
        for J in range(2):
            A(f"ds_read_b128 {vr(AO + 4 * J, 4)}, v{vAr} offset:{OL + 1024 * J}")
        A("s_mov_b64 exec, s[10:11]")
        for J in range(2):
            A(f"ds_read_b128 {vr(AO + 8 + 4 * J, 4)}, v{vAr} offset:{OL + 1024 * J}")
        A("s_mov_b64 exec, -1")
        for q in range(2):
            for n in range(4):
                half, J = n >> 1, n & 1
                if q == 0:
                    A(f"s_waitcnt lgkmcnt({3 - n})")
                for sel in range(2):
                    smf(DO + 8 * q + 4 * sel, AO + 4 * n, BWO + 64 * J + 16 * (2 * q + half) + 8 * sel, vIdx)
                    if early and q == 1:
                        m = 2 * n + sel
                        for l in (["s_nop 0"] if m < 3 else publish(0, sTB)[2 * (m - 3):2 * (m - 3) + 2]):
                            A(l)
        for l in ([] if early else publish(0, sTB)) + publish(1, sTB):
            A(l)
        stamp(4)
        fs(2)
        if ackbar[0] is not None:
            A(f"s_waitcnt vmcnt({ackbar[0]})")
        A("s_barrier")
        A("s_waitcnt vmcnt(0)")
        for m in range(8, 12):
            ring_read(m)
            A("s_waitcnt lgkmcnt(4)")
        for i in range(16):
            A(f"v_mov_b32 v{DO + i}, 0")
        A("s_mov_b64 exec, s[8:9]")
        A("s_waitcnt lgkmcnt(0)")
        A("s_barrier")
        A.c("z_t = act_t @ w_down[64 rows]")
        A("s_barrier")
        fs(8)
        A(f"ds_read_b128 {vr(A4, 4)}, v{vAr} offset:{AL}")
        A("s_mov_b64 exec, s[10:11]")
        A(f"ds_read_b128 {vr(A4 + 4, 4)}, v{vAr} offset:{AL}")
        A("s_mov_b64 exec, -1")
        for q in range(2):
            for hi in range(2):
                if q == 0:
                    A(f"s_waitcnt lgkmcnt({1 - hi})")
                for i in range(2):
                    smf(DO + 8 * q + 4 * i, A4 + 4 * hi, BWD + 16 * (2 * q + hi) + 8 * i, vIdx)
        for l in publish(0, sTZ) + publish(1, sTZ):
            A(l)
        stamp(6)
        fs(9)
        if ackbar[1] is not None:
            A(f"s_waitcnt vmcnt({ackbar[1]})")
        A("s_barrier")
        fine_out()
        A("s_branch L_fin")

    def fine_out():
        if fine:
            A("s_waitcnt lgkmcnt(0)")
            for i in range(13):
                A(f"v_mov_b32 v{64 + i}, s{FS[i]}")
            A(f"s_lshl_b32 s{sA}, s{sT}, 3")
            A(f"s_add_u32 s{sA}, s{sA}, s{sW}")
            A(f"s_lshl_b32 s{sA}, s{sA}, 6")
            A(f"s_add_u32 s{sA}, s{sA}, {STAMPS + 0x20000}")
            A("v_mov_b32 v80, 0")
            A("s_mov_b64 exec, 1")
            for i in range(4):
                A(f"buffer_store_dwordx4 {vr(64 + 4 * i, 4)}, v80, {sr(S_WST, 4)}, s{sA} offen offset:{16 * i}")

    o_stages("")
    A("L_o_far:")
    o_stages("sc1")

    A("L_gwave:")
    A.c("G wave v: 16 FFN channels of w_gate and w_up; batch v in stage 1; four columns in stages 2 and 4")
    AG, DG, PT, BGU, RS = 16, 32, 48, 64, 192
    vLin, vP0, vP1, vOw, vHs, vAw, vOs, vXr = range(4, 12)
    vCg, vCu, vH, vHw, vSw = range(248, 253)
    LS, LA = 224, 240
    assert nsets[0] <= 2 and lsets <= 4
    vGUo, vW0, vW1, XG = RS, RS + 2, RS + 3, RS + 4
    A(f"v_lshlrev_b32 v{vLin}, 4, v{vL}")
    A(f"s_lshl_b32 s{sLB}, s{sU}, 15")
    A.c("gate/up DMA: row 128v + 8i + (l>>3), chunk (l&7) ^ ((l>>5)<<1) ^ ((v&1)<<2)")
    A(f"v_lshrrev_b32 v{t1}, 3, v{vL}")
    A(f"s_lshl_b32 s{sA}, s{sU}, 7")
    A(f"v_add_u32 v{t1}, s{sA}, v{t1}")
    A(f"v_mul_u32_u24 v{t1}, 3584, v{t1}")
    A(f"s_lshl_b32 s{sA}, s{sT}, 7")
    A(f"v_add_u32 v{t1}, s{sA}, v{t1}")
    A(f"v_and_b32 v{t2}, 7, v{vL}")
    A(f"v_and_b32 v{t3}, 2, v{vG}")
    A(f"v_xor_b32 v{t2}, v{t2}, v{t3}")
    A(f"s_and_b32 s{sA}, s{sU}, 1")
    A(f"s_lshl_b32 s{sA}, s{sA}, 2")
    A(f"v_xor_b32 v{t2}, s{sA}, v{t2}")
    A(f"v_lshl_add_u32 v{vGUo}, v{t2}, 4, v{t1}")
    for i in range(4):
        A(f"v_mov_b32 v{AG + i}, -1")
    if gprio:
        A(f"s_setprio {gprio}")
    A("s_waitcnt lgkmcnt(0)")
    srd(S_WG, 16, 512 * 3584)
    srd(S_WU, 18, 512 * 3584)
    srd(S_WST, 26, WS_SIZE)
    A(f"s_load_dword s{sTAG}, s[26:27], {EPOCH}")
    A(f"s_cmp_lt_u32 s{sT}, 28")
    A(f"s_cselect_b32 s{S_WG + 2}, {0 if 'g' in drop else 512 * 3584}, 0")
    A(f"s_cselect_b32 s{S_WU + 2}, {0 if 'g' in drop else 512 * 3584}, 0")
    A(f"s_cmp_lg_u32 s{sU}, 3")
    A("s_cbranch_scc1 L_no_clear")
    A.c("mark 128 B of the h hand-off buffer empty; the check-in word follows once that store is done")
    A(f"s_lshl_b32 s{sA}, s{sT}, 7")
    A(f"s_add_u32 s{sA}, s{sA}, {HBUF}")
    A("s_mov_b64 exec, 0xff")
    A(f"buffer_store_dwordx4 {vr(AG, 4)}, v{vLin}, {sr(S_WST, 4)}, s{sA} offen sc1")
    A("s_mov_b64 exec, -1")
    A("L_no_clear:")
    for n in range(32):
        mat, ii = n & 1, n >> 1
        if n == gwin:
            srd(S_WS, 26, WS_SIZE)
            srd(S_X, 4, 4096)
            srd(S_OUT, 22, 4096)
            tail_consts()
        if n >= gwin:
            A(f"s_waitcnt vmcnt({gwin - 1})")
        if n == gwin:
            A(f"s_cmp_lg_u32 s{sU}, 3")
            A("s_cbranch_scc1 L_no_checkin")
            A(f"v_mov_b32 v{t1}, s{sFAST}")
            A(f"v_mov_b32 v{t2}, s{sTAG}")
            A(f"s_lshl_b32 s{sA}, s{sT}, 3")
            A(f"s_add_u32 s{sA}, s{sA}, {XBUF}")
            A("s_mov_b64 exec, 1")
            A(f"buffer_store_dwordx2 {vr(t1, 2)}, v{vLin}, {sr(S_WST, 4)}, s{sA} offen sc1")
            A("s_mov_b64 exec, -1")
            A("L_no_checkin:")
        A(f"s_add_u32 s{sA}, s{sLB}, {16384 * (ii >> 3) + 8192 * mat + 1024 * (ii & 7)}")
        A(f"s_mov_b32 m0, s{sA}")
        A(f"s_mov_b32 s{sB}, {8 * ii * 3584}")
        A(f"buffer_load_dwordx4 v{vGUo}, {sr(S_WU if mat else S_WG, 4)}, s{sB} offen {guflags} lds")
    if gprio:
        A("s_setprio 0")
    A(f"s_cmp_lt_u32 s{sT}, 28")
    A("s_cbranch_scc1 L_touched")
    A.c("workgroups without FFN weights read the partial-sum inboxes once so that the lines are resident in L2")
    A(f"s_sub_u32 s{sA}, s{sT}, 28")
    A(f"s_lshl_b32 s{sA}, s{sA}, 2")
    A(f"s_add_u32 s{sA}, s{sA}, s{sU}")
    A(f"s_lshl_b32 s{sA}, s{sA}, 14")
    A(f"s_add_u32 s{sA}, s{sA}, {YBUF}")
    for n in range(16):
        A(f"buffer_load_dwordx4 {vr(PT, 4)}, v{vLin}, {sr(S_WS, 4)}, s{sA} offen offset:{1024 * (n & 3)} {touchflags}")
        if n & 3 == 3:
            A(f"s_add_u32 s{sA}, s{sA}, 4096")
    A("L_touched:")
    A.c("stage 1 reads head t&3 of pair (v, t>>2); lane row g takes splits g and 4+g")
    A(f"s_lshl_b32 s{sA}, s{sU}, 3")
    A(f"s_lshr_b32 s{sC}, s{sT}, 2")
    A(f"s_add_u32 s{sA}, s{sA}, s{sC}")
    A(f"s_mul_i32 s{sREC}, s{sA}, {8 * REC}")
    A(f"s_add_u32 s{sREC}, s{sREC}, {OBUF}")
    A(f"s_and_b32 s{sC}, s{sT}, 3")
    A(f"s_lshl_b32 s16, s{sC}, 3")
    A(f"s_add_u32 s16, s16, s{sREC}")
    A(f"s_lshl_b32 s{sA}, s{sC}, 10")
    A(f"s_add_u32 s{sREC}, s{sREC}, s{sA}")
    A(f"v_mul_u32_u24 v{vW0}, {REC}, v{vG}")
    A(f"v_min_u32 v{t1}, 2, v{vG}")
    A(f"v_add_u32 v{t1}, 4, v{t1}")
    A(f"v_mul_u32_u24 v{vW1}, {REC}, v{t1}")
    A(f"v_lshl_add_u32 v{vP0}, v{vN}, 4, v{vW0}")
    A(f"v_lshl_add_u32 v{vP1}, v{vN}, 4, v{vW1}")
    A.c("weight row d sits at position 64(d>>6) + 32((d>>1)&1) + 16((d>>5)&1) + 4((d>>2)&3) + 2((d>>4)&1) + (d&1)")
    A.c("stage 1 lane (c, g), half a holds channel d = 32(c>>2) + 8g + 4a + (c&3); it lands in this wave's own 32-byte units of the image")
    A(f"v_lshrrev_b32 v{t4}, 3, v{vN}")
    A(f"v_lshlrev_b32 v{t1}, 10, v{t4}")
    A(f"v_bfe_u32 v{t2}, v{vN}, 1, 1")
    A(f"v_lshlrev_b32 v{vAw}, 8, v{t2}")
    A(f"v_and_b32 v{t2}, 1, v{vN}")
    A(f"v_lshl_add_u32 v{vAw}, v{t2}, 1, v{vAw}")
    A(f"v_add_u32 v{t1}, v{t1}, v{vAw}")
    A(f"v_bfe_u32 v{t2}, v{vN}, 2, 1")
    A(f"v_lshl_add_u32 v{t1}, v{t2}, 7, v{t1}")
    A(f"v_lshl_add_u32 v{vAw}, v{t2}, 3, v{vAw}")
    A(f"v_lshl_add_u32 v{vAw}, v{t4}, 4, v{vAw}")
    A(f"v_lshl_add_u32 v{vAw}, v{vG}, 5, v{vAw}")
    A(f"v_and_b32 v{t2}, 1, v{vG}")
    A(f"v_lshl_add_u32 v{t1}, v{t2}, 4, v{t1}")
    A(f"v_lshrrev_b32 v{t3}, 1, v{vG}")
    A(f"v_lshl_add_u32 v{t1}, v{t3}, 2, v{t1}")
    A(f"s_lshl_b32 s{sB}, s{sU}, 5")
    A(f"v_add_u32 v{vOw}, s{sB}, v{t1}")
    A(f"s_lshr_b32 s{sB}, s{sU}, 1")
    A(f"s_and_b32 s{sC}, s{sU}, 1")
    A(f"s_lshl_b32 s{sA}, s{sB}, 7")
    A(f"s_lshl_b32 s17, s{sC}, 2")
    A(f"s_add_u32 s{sA}, s{sA}, s17")
    A(f"v_add_u32 v{vAw}, s{sA}, v{vAw}")
    A(f"s_lshl_b32 s17, s{sT}, 13")
    A(f"s_lshl_b32 s{sA}, s{sU}, 11")
    A(f"s_add_u32 s17, s17, s{sA}")
    A(f"s_add_u32 s17, s17, {YBUF}")
    A.c("stages 2/4: wave v = (b1, octet), lane row (sel, b0): column 16t + 8 octet + 4 sel + cc of batch 2 b1 + b0")
    A.c("HBUF byte = (j*64 + g*16 + 4b + rho)*16 + 2e")
    A(f"v_and_b32 v{t1}, 3, v{vN}")
    A(f"v_lshlrev_b32 v{t1}, 1, v{t1}")
    A(f"v_lshl_add_u32 v{t1}, v{t3}, 3, v{t1}")
    A(f"v_lshl_add_u32 v{vHs}, v{t2}, 6, v{t1}")
    A(f"v_lshl_add_u32 v{vOs}, v{t2}, 10, v{t1}")
    A(f"s_and_b32 s{sA}, s{sT}, 7")
    A(f"s_lshl_b32 s{sA}, s{sA}, 9")
    A(f"s_lshr_b32 s18, s{sT}, 3")
    A(f"s_lshl_b32 s18, s18, 4")
    A(f"s_add_u32 s{sA}, s{sA}, s18")
    A(f"s_lshl_b32 s18, s{sC}, 8")
    A(f"s_add_u32 s{sA}, s{sA}, s18")
    A(f"s_lshl_b32 s18, s{sB}, 7")
    A(f"s_add_u32 s{sA}, s{sA}, s18")
    A(f"s_add_u32 s{sA}, s{sA}, {HBUF}")
    A(f"v_add_u32 v{vHs}, s{sA}, v{vHs}")
    A(f"s_lshl_b32 s{sA}, s{sT}, 5")
    A(f"s_lshl_b32 s18, s{sC}, 4")
    A(f"s_add_u32 s{sA}, s{sA}, s18")
    A(f"s_lshl_b32 s18, s{sB}, 11")
    A(f"s_add_u32 s{sA}, s{sA}, s18")
    A(f"v_add_u32 v{vOs}, s{sA}, v{vOs}")
    A(f"s_lshl_b32 s18, s{sU}, 10")
    A(f"v_add_u32 v{vHw}, s18, v{vLin}")
    A(f"s_add_u32 s18, s18, {HBUF}")
    A.c("LayerNorm partial sums: slot [v>>1][b][4g + rho][v&1][8 B]")
    A(f"s_lshl_b32 s{sB}, s{sB}, 10")
    A(f"s_lshl_b32 s{sC}, s{sC}, 3")
    A(f"s_add_u32 s{sB}, s{sB}, s{sC}")
    A(f"v_and_b32 v{t3}, 3, v{vN}")
    A(f"v_lshrrev_b32 v{t2}, 2, v{vN}")
    A(f"v_lshlrev_b32 v{t2}, 8, v{t2}")
    A(f"v_lshl_add_u32 v{t2}, v{vG}, 6, v{t2}")
    A(f"v_lshl_add_u32 v{t2}, v{t3}, 4, v{t2}")
    A(f"v_add_u32 v{vSw}, s{sB}, v{t2}")
    set_idx(0)
    A(f"buffer_load_ushort v{vXr}, v{vOs}, {sr(S_X, 4)}, 0 offen")
    A.c("gate/up fragments: row 128(r>>1) + 4g + (r&1), 32-byte unit v ^ ((g&1) | (r>>1)<<1)")
    A(f"v_and_b32 v{t1}, 1, v{vG}")
    A(f"v_lshl_or_b32 v{t1}, v{t4}, 1, v{t1}")
    A(f"v_xor_b32 v{t1}, s{sU}, v{t1}")
    A(f"v_lshlrev_b32 v{t1}, 5, v{t1}")
    A(f"v_lshl_add_u32 v{t1}, v{t3}, 3, v{t1}")
    A(f"v_bfe_u32 v{t2}, v{vN}, 2, 1")
    A(f"v_lshl_add_u32 v{t1}, v{t2}, 7, v{t1}")
    A(f"v_lshl_add_u32 v{t1}, v{vG}, 9, v{t1}")
    A(f"v_lshl_add_u32 v{t1}, v{t4}, 15, v{t1}")
    A(f"v_add_u32 v{t2}, 65536, v{t1}")
    for i in range(4):
        A(f"v_mov_b32 v{AG + i}, 0x3f803f80")
    for i in range(8):
        A(f"v_mov_b32 v{DG + i}, 0")
    A("s_waitcnt vmcnt(0)")
    A("s_barrier")
    stamp(1)
    checkin_read(XG, True)
    bgu = lambda mat, r1, j: BGU + 64 * mat + 32 * r1 + 8 * j
    for r1 in range(2):
        for j in range(4):
            for mat in range(2):
                for p in range(4):
                    off = mat * 8192 + (j >> 1) * 16384 + ((j & 1) * 32 + 16 * (p >> 1) + 2 * (p & 1)) * 128
                    A(f"ds_read_b64_tr_b16 {vr(bgu(mat, r1, j) + 2 * p, 2)}, v{t1 + r1} offset:{off}")
            A("s_waitcnt lgkmcnt(4)")
    A("s_waitcnt lgkmcnt(0)")
    A("s_barrier")
    A.c("column sums of the weights")
    for r1 in range(2):
        for j in range(4):
            for mat in range(2):
                smf(DG + 4 * mat, AG, bgu(mat, r1, j), vIdx)

    def fold2(D):
        for a in (D, D + 4):
            A(f"v_permlane32_swap_b32 v{a}, v{a + 2}")
            A(f"v_permlane32_swap_b32 v{a + 1}, v{a + 3}")
        for a in (D, D + 4):
            A(f"v_pk_add_f32 {vr(a, 2)}, {vr(a, 2)}, {vr(a + 2, 2)}")
        for a in (D, D + 4):
            A(f"v_permlane16_swap_b32 v{a}, v{a + 1}")
        for a in (D, D + 4):
            A(f"v_add_f32 v{a}, v{a}, v{a + 1}")

    A("s_waitcnt vmcnt(0)")
    checkin_read(XG, False)
    A(f"buffer_load_dwordx4 {vr(RS + 16, 4)}, v{vLin}, {sr(S_WS, 4)}, s18 offen sc1")
    A(f"v_lshlrev_b32 v{vXr}, 16, v{vXr}")
    A(f"buffer_store_short v{vXr}, v{vOs}, {sr(S_OUT, 4)}, 0 offen")
    A(f"v_add_f32 v{vCg}, v{DG}, v{DG + 1}")
    A(f"v_add_f32 v{vCu}, v{DG + 4}, v{DG + 5}")
    for i in range(DG, DG + 16):
        A(f"v_mov_b32 v{i}, 0")
    stamp(2)
    A(f"s_mov_b32 s{sCNT}, 0")
    A(f"s_mov_b32 s{sA}, 0x3f803f80")
    A("s_mov_b32 s20, 0x00050005" if not fine else "s_mov_b32 s26, 0x00050005")
    A("s_mov_b32 s21, 0x00050005" if not fine else "s_mov_b32 s27, 0x00050005")
    hmask = "s[20:21]" if not fine else "s[26:27]"
    A("s_mov_b32 s22, 0x3b000000")
    A("s_mov_b32 s23, 0x3b000000")
    A(f"v_mov_b32 v{LA}, v{vW0}")
    A(f"v_mov_b32 v{LA + 1}, v{vW1}")
    stamp(3)
    A.c("stage 1: wait for the seven log-sum-exp words, then fetch and combine the partial outputs of batch v")

    def lchk(u):
        R = LS + 4 * u
        A(f"v_mov_b32 v{PT}, v{R}")
        A(f"v_mov_b32 v{PT + 2}, v{R + 2}")
        A(f"v_xor_b32 v{t1}, s{sTAG}, v{R + 1}")
        A(f"v_xor_b32 v{t2}, s{sTAG}, v{R + 3}")
        A(f"v_or_b32 v{t1}, v{t1}, v{t2}")
        A(f"v_cmpx_ne_u32 vcc, 0, v{t1}")
    mpoll(lsets, lgap, lambda u: [f"buffer_load_dwordx2 {vr(LS + 4 * u + 2 * i, 2)}, v{LA + i}, {sr(S_WS, 4)}, s16 offen sc1" for i in range(2)], lchk, slp=lslp)
    rec_loads = lambda u: [f"buffer_load_dwordx4 {vr(RS + 16 * u + 8 * i + 4 * hf, 4)}, v{vP0 + i}, {sr(S_WS, 4)}, s{sREC} offen offset:{512 + 256 * hf} sc1"
                           for i in range(2) for hf in range(2)]
    rec_check = lambda u: tag_check(range(PT, PT + 16), TAGS, t2, RS + 16 * u, "x")
    stamp(4)
    if pre[0]:
        A(f"s_sleep {pre[0]}")
    for l in rec_loads(0):
        A(l)
    A(f"v_max_f32 v{t1}, v{PT}, v{PT + 2}")
    allred_rows("v_max_f32", t1, t2)
    A(f"v_sub_f32 v{PT}, v{PT}, v{t1}")
    A(f"v_sub_f32 v{PT + 2}, v{PT + 2}, v{t1}")
    A(f"v_exp_f32 v{PT}, v{PT}")
    A(f"v_exp_f32 v{PT + 2}, v{PT + 2}")
    A(f"v_cmp_eq_u32 vcc, 3, v{vG}")
    A(f"v_cndmask_b32 v{PT + 2}, v{PT + 2}, 0, vcc")
    A(f"v_add_f32 v{t1}, v{PT}, v{PT + 2}")
    allred_rows("v_add_f32", t1, t2)
    A(f"v_rcp_f32 v{t1}, v{t1}")
    A(f"v_mul_f32 v{t3}, v{PT + 2}, v{t1}")
    A(f"v_mul_f32 v{t1}, v{PT}, v{t1}")
    A("s_waitcnt vmcnt(0)")
    stamp(2)
    rec_check(0)
    A("s_cbranch_execnz L_rec_late")
    A("L_rec_ok:")
    A("s_mov_b64 exec, -1")
    stamp(6)
    keep, A.lines = A.lines, []
    A("L_rec_late:")
    mpoll(nsets[0], gap[0], rec_loads, rec_check)
    A("s_branch L_rec_ok")
    cold.extend(A.lines)
    A.lines = keep
    fs(0)
    for p in range(0, 8, 2):
        A(f"v_pk_mul_f32 {vr(PT + p, 2)}, {vr(PT + p, 2)}, {vr(t1, 2)} op_sel_hi:[1,0]")
    for p in range(0, 8, 2):
        A(f"v_pk_fma_f32 {vr(PT + p, 2)}, {vr(PT + 8 + p, 2)}, {vr(t3, 2)}, {vr(PT + p, 2)} op_sel_hi:[1,0,1]")
    fold2(PT)
    A(f"v_cvt_pk_bf16_f32 v{PT}, v{PT}, v{PT + 4}")
    A(f"ds_write_b16 v{vOw}, v{PT} offset:{OL}")
    A(f"ds_write_b16_d16_hi v{vOw}, v{PT} offset:{OL + 8}")
    A("s_waitcnt lgkmcnt(0)")
    A("s_barrier")
    fs(1)
    A("s_barrier")
    fs(2)

    def column_sums(tags, f, k):
        mpoll(nsets[k], gap[k],
              lambda u: [f"buffer_load_dwordx4 {vr(RS + 8 * u + 4 * i, 4)}, v{vLin}, {sr(S_WS, 4)}, s17 offen offset:{1024 * i} sc1" for i in range(2)],
              lambda u: tag_check(range(PT, PT + 8), tags, t2, RS + 8 * u, "x"), pre[k])
        fs(f)
        A(f"v_pk_add_f32 {vr(PT, 2)}, {vr(PT, 2)}, {vr(PT + 4, 2)}")
        A(f"v_pk_add_f32 {vr(PT + 2, 2)}, {vr(PT + 2, 2)}, {vr(PT + 6, 2)}")
        rows_to_batches(PT)
        dpp_red("v_add_f32", [PT], [8, 4])
        rb(PT, PT)

    A.c("stage 2: h = x + sum of the 32 head contributions")
    column_sums(TAGS, 3, 1)
    A(f"v_add_f32 v{PT}, v{PT}, v{vXr}")
    A(f"s_cmp_eq_u32 s{sFAST}, 0")
    A(f"v_mov_b32_dpp v{PT + 1}, v{PT} quad_perm:[1,1,3,3] row_mask:0xf bank_mask:0xf")
    A(f"v_cvt_pk_bf16_f32 v{vH}, v{PT}, v{PT + 1}")
    A(f"v_min_u32 v{t2}, -2, v{vH}")
    A(f"s_mov_b64 exec, {hmask}")
    A("s_cbranch_scc1 L_h_far")
    A(f"buffer_store_dword v{t2}, v{vHs}, {sr(S_WST, 4)}, 0 offen")
    A("L_h_sent:")
    A("s_mov_b64 exec, -1")
    stamp(5)
    fs(4)
    A.c("stage 3: gather h, LayerNorm folded around h @ [w_gate | w_up], act = silu(g) * u")

    def hchk(u):
        R = RS + 4 * u
        A(f"v_pk_mov_b32 {vr(PT, 2)}, {vr(R, 2)}, {vr(R, 2)} op_sel:[0,1]")
        A(f"v_pk_mov_b32 {vr(PT + 2, 2)}, {vr(R + 2, 2)}, {vr(R + 2, 2)} op_sel:[0,1]")
        A(f"v_max_u32 v{t1}, v{R}, v{R + 1}")
        A(f"v_max3_u32 v{t1}, v{t1}, v{R + 2}, v{R + 3}")
        A(f"v_cmpx_eq_u32 vcc, -1, v{t1}")
    mpoll(nsets[2], gap[2], lambda u: [f"buffer_load_dwordx4 {vr(RS + 4 * u, 4)}, v{vLin}, {sr(S_WS, 4)}, s18 offen sc1"], hchk, pre[2])
    fs(5)
    A(f"ds_write_b128 v{vHw}, {vr(PT, 4)} offset:{HL}")
    A(f"v_dot2_f32_bf16 v{t1}, v{PT}, s{sA}, 0")
    A(f"v_dot2_f32_bf16 v{t2}, v{PT}, v{PT}, 0")
    for i in range(1, 4):
        A(f"v_dot2_f32_bf16 v{t1}, v{PT + i}, s{sA}, v{t1}")
        A(f"v_dot2_f32_bf16 v{t2}, v{PT + i}, v{PT + i}, v{t2}")
    A(f"v_lshlrev_b32 v{vH}, 16, v{vH}")
    A(f"ds_write_b64 v{vSw}, {vr(t1, 2)} offset:{SL}")
    A("s_waitcnt lgkmcnt(0)")
    A("s_barrier")
    fs(6)
    hrd = lambda j: f"ds_read_b128 {vr(AG + 4 * j, 4)}, v{vLin} offset:{HL + 1024 * j}"
    A(hrd(0))
    A(f"ds_read_b128 {vr(PT, 4)}, v{vLin} offset:{SL}")
    A(f"ds_read_b128 {vr(PT + 4, 4)}, v{vLin} offset:{SL + 1024}")
    A(hrd(1))
    dp = lambda v, r: f"v_add_f32_dpp v{v}, v{v}, v{v} row_ror:{r} row_mask:0xf bank_mask:0xf"
    chain = [[hrd(2)], [hrd(3), "s_waitcnt lgkmcnt(3)", f"v_pk_add_f32 {vr(PT, 2)}, {vr(PT, 2)}, {vr(PT + 2, 2)}"],
             [f"v_pk_add_f32 {vr(PT + 4, 2)}, {vr(PT + 4, 2)}, {vr(PT + 6, 2)}"],
             [f"v_pk_add_f32 {vr(PT, 2)}, {vr(PT, 2)}, {vr(PT + 4, 2)}"]]
    for r in (8, 4, 2, 1):
        chain += [[dp(PT, r)], [dp(PT + 1, r)]]
    if mimic2:
        chain += [[f"v_pk_mul_f32 {vr(t1, 2)}, {vr(PT, 2)}, s[22:23]"],
                  [f"v_fma_f32 v{t2}, -v{t1}, v{t1}, v{t2}", f"v_max_f32 v{t2}, 0, v{t2}"],
                  [f"v_cvt_pk_bf16_f32 v{t2}, v{t1}, v{t2}", f"v_lshlrev_b32 v{t1}, 16, v{t2}"],
                  [f"v_and_b32 v{t2}, 0xffff0000, v{t2}", f"v_add_f32 v{t2}, 0x3727c5ac, v{t2}",
                   f"v_cvt_pk_bf16_f32 v{t2}, v{t2}, v{t2}", f"v_lshlrev_b32 v{t2}, 16, v{t2}",
                   f"v_sqrt_f32 v{t2}, v{t2}", f"v_pk_mul_f32 {vr(vCg, 2)}, {vr(vCg, 2)}, {vr(t1, 2)} op_sel_hi:[1,0]",
                   f"v_cvt_pk_bf16_f32 v{t2}, v{t2}, v{t2}", f"v_lshlrev_b32 v{t2}, 16, v{t2}", f"v_rcp_f32 v{t2}, v{t2}"]]
    else:
        chain += [[f"v_pk_mul_f32 {vr(t1, 2)}, {vr(PT, 2)}, s[22:23]"],
                  [f"v_fma_f32 v{t2}, -v{t1}, v{t1}, v{t2}"],
                  [f"v_max_f32 v{t2}, 0, v{t2}"],
                  [f"v_add_f32 v{t2}, 0x3727c5ac, v{t2}", f"v_rsq_f32 v{t2}, v{t2}",
                   f"v_pk_mul_f32 {vr(vCg, 2)}, {vr(vCg, 2)}, {vr(t1, 2)} op_sel_hi:[1,0]"]]
    for n in range(16):
        j, r1, mat = n >> 2, (n >> 1) & 1, n & 1
        if n & 3 == 0:
            A(f"s_waitcnt lgkmcnt({3 - j})")
        smf(DG + 8 * mat + 4 * r1, AG + 4 * j, bgu(mat, r1, j), vIdx)
        for c in chain.pop(0):
            A(c)
    assert not chain
    fs(7)
    A(f"v_pk_add_f32 {vr(DG, 2)}, {vr(DG, 2)}, {vr(DG + 6, 2)}")
    A(f"v_mul_f32 v{t3}, 0xbfb8aa3b, v{t2}")
    A(f"v_add_f32 v{DG}, v{DG}, v{DG + 1}")
    A(f"v_sub_f32 v{DG}, v{DG}, v{vCg}")
    A(f"v_mul_f32 v{t1}, v{DG}, v{t3}")
    A(f"v_exp_f32 v{t1}, v{t1}")
    A(f"v_pk_add_f32 {vr(DG + 8, 2)}, {vr(DG + 8, 2)}, {vr(DG + 14, 2)}")
    A(f"v_add_f32 v{t1}, 1.0, v{t1}")
    A(f"v_rcp_f32 v{t1}, v{t1}")
    A(f"v_add_f32 v{DG + 1}, v{DG + 8}, v{DG + 9}")
    A(f"v_sub_f32 v{DG + 1}, v{DG + 1}, v{vCu}")
    A(f"v_pk_mul_f32 {vr(DG, 2)}, {vr(DG, 2)}, {vr(t1, 2)} op_sel:[0,1] op_sel_hi:[1,1]")
    A(f"v_mul_f32 v{DG}, v{DG}, v{t1}")
    A(f"v_mul_f32 v{DG}, v{DG}, v{DG + 1}")
    A(f"v_cvt_pk_bf16_f32 v{DG}, v{DG}, v{DG}")
    A(f"ds_write_b16 v{vAw}, v{DG} offset:{AL}")
    A("s_waitcnt lgkmcnt(0)")
    A("s_barrier")
    fs(8)
    A("s_barrier")
    fs(9)
    A.c("stage 4: out = h + sum of the down-projection contributions")
    column_sums([f"s{sTZ + i}" for i in range(4)], 10, 3)
    A(f"v_add_f32 v{PT}, v{PT}, v{vH}")
    A("s_mov_b32 exec_lo, 0x000f000f")
    A("s_mov_b32 exec_hi, 0x000f000f")
    A(f"v_cvt_pk_bf16_f32 v{PT}, v{PT}, v{PT}")
    A(f"buffer_store_short v{PT}, v{vOs}, {sr(S_OUT, 4)}, 0 offen")
    fs(11)
    if fine:
        A("s_waitcnt vmcnt(0)")
        fs(12)
        fine_out()
    A(f"s_or_b32 s{sA}, s{sT}, s{sU}")
    A("s_cbranch_scc1 L_fin")
    A.c("advance the epoch so that the next launch rejects this launch's hand-offs")
    A(f"s_add_u32 s{sA}, s{sTAG}, {TAGC:#x}")
    A(f"v_mov_b32 v{t1}, s{sA}")
    A(f"v_mov_b32 v{t2}, {EPOCH}")
    A("s_mov_b64 exec, 1")
    A(f"buffer_store_dword v{t1}, v{t2}, {sr(S_WST, 4)}, 0 offen")
    A("s_branch L_fin")
    A("L_h_far:")
    A(f"buffer_store_dword v{t2}, v{vHs}, {sr(S_WST, 4)}, 0 offen sc1")
    A("s_branch L_h_sent")
    for l in cold:
        A(l)

    A("L_fin:")
    if amp:
        idx, role, wave = amp
        A("s_waitcnt vmcnt(0)")
        stamp(7)
        A(f"s_cmp_lg_u32 s{sW}, {wave}")
        A("s_cbranch_scc1 L_end")
        A(f"s_cmp_eq_u32 s{sXI}, {tailx}")
        A("s_cbranch_scc0 L_end" if role == "tail" else "s_cbranch_scc1 L_end")
        A("s_waitcnt lgkmcnt(0)")
        A(f"s_sub_u32 s{sA}, s{sST + 2 * idx}, s{sST}")
        if ampx is not None:
            A(f"s_getreg_b32 s{sA}, hwreg(HW_REG_XCC_ID, 0, 3)")
            A(f"s_add_u32 s{sA}, s{sA}, {ampx}")
            A(f"s_and_b32 s{sA}, s{sA}, 7")
            A(f"s_mul_i32 s{sA}, s{sA}, 125")
        A(f"s_min_u32 s{sA}, s{sA}, 20000")
        A(f"s_lshl_b32 s{sA}, s{sA}, 3")
        A(f"s_add_u32 s{sA}, s{sA}, 6000")
        A("L_amp:")
        A(f"s_memrealtime {sr(sC, 2)}")
        A("s_waitcnt lgkmcnt(0)")
        A(f"s_sub_u32 s{sB}, s{sC}, s{sST}")
        A(f"s_cmp_lt_u32 s{sB}, s{sA}")
        A("s_cbranch_scc1 L_amp")
    if stamps:
        A("s_waitcnt vmcnt(0)")
        stamp(7)
        A("s_waitcnt lgkmcnt(0)")
        for i in range(8):
            A(f"v_mov_b32 v{16 + i}, s{sST + 2 * i}")
        A(f"s_lshl_b32 s{sA}, s2, 3")
        A(f"s_add_u32 s{sA}, s{sA}, s{sW}")
        A(f"s_lshl_b32 s{sA}, s{sA}, 5")
        A(f"s_add_u32 s{sA}, s{sA}, {STAMPS}")
        A("v_mov_b32 v4, 0")
        A("s_mov_b64 exec, 1")
        A(f"buffer_store_dwordx4 v[16:19], v4, {sr(S_WS, 4)}, s{sA} offen")
        A(f"buffer_store_dwordx4 v[20:23], v4, {sr(S_WS, 4)}, s{sA} offen offset:16")
    A("L_end:")
    A("s_endpgm")
    A("L_code_end:")

    body, n = insert_waits(A.lines)
    out = HEADER
    out += "; @launch grid=(256,1,1) block=(512,1,1) lds=163840\n"
    out += '.amdgcn_target "amdgcn-amd-amdhsa--gfx950"\n.text\n'
    out += f".globl {NAME}\n.p2align 8\n.type {NAME},@function\n"
    out += "\n".join(("" if t.endswith(":") else "    ") + t for t in body) + "\n"
    out += f""".section .rodata,"a"
.p2align 6
.amdhsa_kernel {NAME}
  .amdhsa_next_free_vgpr 256
  .amdhsa_next_free_sgpr 102
  .amdhsa_accum_offset 256
  .amdhsa_group_segment_fixed_size 0
  .amdhsa_kernarg_size 96
  .amdhsa_user_sgpr_count 2
  .amdhsa_user_sgpr_kernarg_segment_ptr 1
  .amdhsa_system_sgpr_workgroup_id_x 1
  .amdhsa_float_denorm_mode_32 3
.end_amdhsa_kernel
"""
    return out


if __name__ == "__main__":
    kw = {}
    for a in sys.argv[2:]:
        k, v = a.split("=")
        kw[k] = eval(v)
    open(sys.argv[1], "w").write(gen(**kw))
```

```python
import sys
sys.path.insert(0, "exp")
from asmlib import Asm, vr, sr, insert_waits

NAME = "sequential_preLN__sliding_block_cached__swiglu_ffn__decode_kernel"
HEADER = open("sequential_preLN__sliding_block_cached__swiglu_ffn__decode.s.ref").read().split("; Override launch")[0]

QP, YBUF, HBUF, EPOCH, XBUF, OBUF, STAMPS = 0x0, 0x40000, 0x80000, 0x82000, 0x83000, 0x84000, 0x1c0000
TAGC = 0x9e3779b1
VERSION = 18
REC = 4096
WS_SIZE = 0x200000
FLAG_OFF = 0

S_X, S_WQ, S_WS, S_WST, S_A, S_B, S_WG, S_WU, S_OUT, S_DBG = 28, 32, 36, 40, 44, 48, 52, 56, 60, 64
sW, sXI, sT, sLIM, sCNT, sPASS, sFAST, sLB, sT0, sNT = 68, 69, 70, 71, 72, 73, 74, 75, 76, 77
sA, sB, sC, sD = 78, 79, 80, 81
sSELLO, sSELHI, sREC, sTAG = 82, 83, 84, 85
sXQ = 3
sHQ, sKQ = 64, 65
sMASK = 4
sTB = 12
sST = 86
vL, vN, vG = 1, 2, 3
vFF = 255
QL, ML, LL, PB = 155648, 156672, 156736, 157696


def gen(tailx=0, kvflags="nt", wqflags="nt", woflags="nt", guflags="nt", wdflags="nt", stamps=False, force_slow=False,
        dry=False, limit=0x40000, vwin=6, kwin=0, vbar=9, gsched=(4, 3, 3, 3, 3), kprio=0, amp=None, kbar=0, qprio=3, gather_before=0, qmap=1, drop='', codepf=False, tprio=True, slp=8, slp2=0, qstflags='sc1', touchflags='sc1', qwarm=None, qwb=False, fine=False, gyoung=True, nsets=(2, 2, 2, 2), gap=(2, 2, 2, 1), gwin=12, r1at=7, oprio=1, gprio=1, mimic2=True, vtile=4, ktile=None, ampx=None, vtouch=False, shift=None, pmap=1, ackbar=(None, None), pre=(0, 2, 3, 4), early=False, hv=4, lsets=2, lgap=2, owarm=False, lslp=0, nearflags=''):
    A = Asm()

    def stamp(i):
        if stamps or (amp and i in (0, amp[0])):
            A(f"s_memrealtime {sr(sST + 2 * i, 2)}")

    FS = [44, 46, 48, 50, 52, 54, 56, 58, 20, 32, 24, 28, 30]

    def fs(i):
        if fine:
            A(f"s_memtime {sr(FS[i], 2)}")

    def srd(base, ptr, size):
        A(f"s_mov_b32 s{base}, s{ptr}")
        A(f"s_mov_b32 s{base + 1}, s{ptr + 1}")
        A(f"s_mov_b32 s{base + 2}, {size:#x}")
        A(f"s_mov_b32 s{base + 3}, 0x20000")

    def rb(dst, src):
        A(f"v_cvt_pk_bf16_f32 v{dst}, v{src}, v{src}")
        A(f"v_lshlrev_b32 v{dst}, 16, v{dst}")

    def allred_rows(op, v, t):
        A(f"v_mov_b32 v{t}, v{v}")
        A(f"v_permlane32_swap_b32 v{v}, v{t}")
        A(f"{op} v{v}, v{v}, v{t}")
        A(f"v_mov_b32 v{t}, v{v}")
        A(f"v_permlane16_swap_b32 v{v}, v{t}")
        A(f"{op} v{v}, v{v}, v{t}")

    def dpp_red(op, regs, rots):
        for r in rots:
            for v in regs:
                A(f"{op}_dpp v{v}, v{v}, v{v} row_ror:{r} row_mask:0xf bank_mask:0xf")

    def quad_red(v):
        for p in ("[1,0,3,2]", "[2,3,0,1]"):
            A(f"v_add_f32_dpp v{v}, v{v}, v{v} quad_perm:{p} row_mask:0xf bank_mask:0xf")

    def rows_to_batches(D):
        A(f"v_permlane32_swap_b32 v{D}, v{D + 2}")
        A(f"v_permlane32_swap_b32 v{D + 1}, v{D + 3}")
        A(f"v_add_f32 v{D}, v{D}, v{D + 2}")
        A(f"v_add_f32 v{D + 1}, v{D + 1}, v{D + 3}")
        A(f"v_permlane16_swap_b32 v{D}, v{D + 1}")
        A(f"v_add_f32 v{D}, v{D}, v{D + 1}")

    def fold_d(D):
        for rho in (1, 2, 3):
            for r in range(4):
                A(f"v_mov_b32_dpp v{D + r}, v{D + 4 * rho + r} quad_perm:[0,1,2,3] row_mask:{1 << rho:#x} bank_mask:0xf")
        rows_to_batches(D)

    def mfma16(D, Areg, Breg, first):
        c = "0" if first else vr(D, 4)
        A(f"v_mfma_f32_16x16x32_bf16 {vr(D, 4)}, {vr(Areg, 4)}, {vr(Breg, 4)}, {c}")

    def sentinel_check(regs, t):
        regs = list(regs)
        if len(regs) % 2 == 0:
            A(f"v_max_u32 v{t}, v{regs[0]}, v{regs[1]}")
            rest = regs[2:]
        else:
            A(f"v_max3_u32 v{t}, v{regs[0]}, v{regs[1]}, v{regs[2]}")
            rest = regs[3:]
        for i in range(0, len(rest), 2):
            A(f"v_max3_u32 v{t}, v{t}, v{rest[i]}, v{rest[i + 1]}")
        A(f"v_cmp_eq_u32 vcc, -1, v{t}")

    def tag_check(regs, tags, t, src=None, x=""):
        regs = list(regs)
        for i, r in enumerate(regs):
            A(f"v_xor_b32 v{r}, {tags[i % len(tags)]}, v{r if src is None else src + i}")
        A(f"v_or_b32 v{t}, v{regs[0]}, v{regs[1]}")
        for i in range(2, len(regs), 2):
            A(f"v_or3_b32 v{t}, v{t}, v{regs[i]}, v{regs[i + 1]}")
        A(f"v_cmp{x}_ne_u32_sdwa vcc, v{t}, 0 src0_sel:BYTE_0 src1_sel:DWORD")

    TAGS = [f"s{sTB + i}" for i in range(4)]

    def tag_put(D, tb=sTB):
        for i in range(4):
            A(f"v_bfi_b32 v{D + i}, v{vFF}, s{tb + i}, v{D + i}")

    def poll(loads, check, wait="s_waitcnt vmcnt(0)", sleep=0):
        top, out = A.label("poll"), A.label("polled")
        A(f"s_mov_b32 s{sCNT}, 0")
        A(f"{top}:")
        for l in loads:
            A(l)
        A(f"s_add_u32 s{sCNT}, s{sCNT}, 1")
        A(f"s_cmp_ge_u32 s{sCNT}, s{sLIM}")
        A(wait)
        check()
        A(f"s_cbranch_scc1 {out}")
        if sleep:
            A(f"s_cbranch_vccz {out}")
            A(f"s_sleep {sleep}")
            A(f"s_branch {top}")
        else:
            A(f"s_cbranch_vccnz {top}")
        A(f"{out}:")

    cold = []

    def mpoll(n, g, mk_loads, mk_check, p=0, slp=0):
        top, more, out = A.label("poll"), A.label("more"), A.label("polled")
        nl = len(mk_loads(0))
        if p == "ack":
            A("s_waitcnt vmcnt(0)")
        elif p:
            A(f"s_sleep {p}")
        for u in range(n - 1):
            for l in mk_loads(u):
                A(l)
            if g:
                A(f"s_sleep {g}")
        A(f"{top}:")
        for l in mk_loads(n - 1):
            A(l)
        A(f"s_waitcnt vmcnt({(n - 1) * nl})")
        mk_check(0)
        A(f"s_cbranch_execnz {more}")
        A(f"{out}:")
        A("s_mov_b64 exec, -1")
        keep, A.lines = A.lines, []
        A(f"{more}:")
        for u in range(1, n):
            for l in mk_loads(u - 1):
                A(l)
            A(f"s_waitcnt vmcnt({(n - 1) * nl})")
            mk_check(u)
            A(f"s_cbranch_execz {out}")
        A(f"s_add_u32 s{sCNT}, s{sCNT}, 1")
        A(f"s_cmp_lt_u32 s{sCNT}, s{sLIM}")
        if slp:
            A(f"s_sleep {slp}")
        A(f"s_cbranch_scc1 {top}")
        A(f"s_branch {out}")
        cold.extend(A.lines)
        A.lines = keep

    def smf(D, Areg, Breg, idx):
        A(f"v_smfmac_f32_16x16x64_bf16 {vr(D, 4)}, {vr(Areg, 4)}, {vr(Breg, 8)}, v{idx}")

    def make_tag():
        A("s_waitcnt lgkmcnt(0)")
        A(f"s_add_u32 s{sTAG}, s{sTAG}, {TAGC:#x}")
        for i in range(4):
            A(f"s_bfe_u32 s{sTB + i}, s{sTAG}, {0x80000 + 8 * i:#x}")

    def set_masks():
        for i in range(4):
            A(f"s_mov_b32 s{sMASK + 2 * i}, {0x000f000f << (4 * i):#x}")
            A(f"s_mov_b32 s{sMASK + 2 * i + 1}, {0x000f000f << (4 * i):#x}")

    def store_mode(texts):
        slow, done = A.label("slow"), A.label("stored")
        A(f"s_cmp_eq_u32 s{sFAST}, 0")
        A(f"s_cbranch_scc1 {slow}")
        for t in texts:
            A(t)
        A(f"s_branch {done}")
        A(f"{slow}:")
        for t in texts:
            A(t + " sc1" if t.startswith("buffer_") else t)
        A(f"{done}:")

    def line_tile_addr(dst, base_s, t1, t2):
        A(f"v_bfe_u32 v{t1}, v{vN}, 3, 1")
        A(f"v_and_b32 v{t2}, 1, v{vG}")
        A(f"v_lshl_or_b32 v{t1}, v{t2}, 1, v{t1}")
        A(f"v_lshlrev_b32 v{t1}, 5, v{t1}")
        A(f"v_and_b32 v{t2}, 3, v{vN}")
        A(f"v_lshl_add_u32 v{t1}, v{t2}, 3, v{t1}")
        A(f"v_lshrrev_b32 v{t2}, 2, v{vN}")
        A(f"v_lshl_add_u32 v{t1}, v{t2}, 7, v{t1}")
        A(f"v_lshl_add_u32 v{t1}, v{vG}, 10, v{t1}")
        for i in range(4):
            A(f"v_xor_b32 v{dst + i}, {32 * i}, v{t1}")
            if base_s is not None:
                A(f"v_add_u32 v{dst + i}, s{base_s}, v{dst + i}")

    def line_tile_read(dst, addr, off):
        for i in range(4):
            A(f"ds_read_b64_tr_b16 {vr(dst(i), 2)}, v{addr + i} offset:{off}")
            A(f"ds_read_b64_tr_b16 {vr(dst(i) + 2, 2)}, v{addr + i} offset:{off + 512}")

    def swz_chunk(dst, t):
        A(f"v_and_b32 v{t}, 1, v{vG}")
        A(f"v_lshlrev_b32 v{t}, 1, v{t}")
        A(f"v_and_b32 v{dst}, 7, v{vL}")
        A(f"v_xor_b32 v{dst}, v{dst}, v{t}")
        A(f"v_lshlrev_b32 v{dst}, 4, v{dst}")

    A(f"{NAME}:")
    stamp(0)
    A("s_cmp_ge_u32 s2, 256")
    A("s_cbranch_scc1 L_end")
    A("s_load_dwordx16 s[4:19], s[0:1], 0")
    A("s_load_dwordx8 s[20:27], s[0:1], 64")
    A("v_lshrrev_b32 v4, 6, v0")
    A(f"v_and_b32 v{vL}, 63, v0")
    A(f"v_readfirstlane_b32 s{sW}, v4")
    A(f"v_and_b32 v{vN}, 15, v0")
    A(f"v_bfe_u32 v{vG}, v0, 4, 2")
    if codepf:
        A.c("pull the kernel's code into this XCD's L2 before the streams saturate memory")
        A(f"s_getpc_b64 {sr(sC, 2)}")
        A(f"s_and_b32 s{sC}, s{sC}, 0xffffff00")
        if codepf == 1:
            A("v_lshlrev_b32 v250, 6, v0")
            A(f"v_min_u32 v250, L_code_end - {NAME} - 4, v250")
            A(f"global_load_dword v253, v250, {sr(sC, 2)}")
        else:
            A("s_lshr_b32 s3, s2, 3")
            A("s_and_b32 s3, s3, 3")
            A("s_lshl_b32 s3, s3, 13")
            A("v_lshl_add_u32 v250, v1, 7, s3")
            A(f"v_min_u32 v250, L_code_end - {NAME} - 4, v250")
            A(f"s_cmp_lg_u32 s{sW}, 7")
            A("s_cbranch_scc1 L_no_pf")
            A(f"global_load_dword v253, v250, {sr(sC, 2)}")
            A("L_no_pf:")
    A(f"v_mov_b32 v{vFF}, 0xff")
    A(f"s_and_b32 s{sXI}, s2, 7")
    A(f"s_lshr_b32 s{sT}, s2, 3")
    A(f"s_mov_b32 s{sLIM}, {limit}")
    A(f"s_mov_b32 s{sSELLO}, 0x05040100")
    A(f"s_mov_b32 s{sSELHI}, 0x07060302")
    A(f"s_cmp_eq_u32 s{sXI}, {tailx}")
    A("s_cbranch_scc1 L_tail")
    A.c("split = (x - tailx - 1) & 7 and the record offset of this attention workgroup")
    A(f"s_sub_u32 s{sB}, s{sXI}, {tailx + 1}")
    A(f"s_and_b32 s{sB}, s{sB}, 7")
    if pmap:
        A.c("index 32*split + t -> (pair, role) keeps the splits of one pair on neighbouring workgroups of one die")
        A(f"s_lshl_b32 s{sB}, s{sB}, 5")
        A(f"s_add_u32 s{sB}, s{sB}, s{sT}")
        A(f"s_mul_i32 s{sT}, s{sB}, 9363")
        A(f"s_lshr_b32 s{sT}, s{sT}, 16")
        A(f"s_mul_i32 s{sA}, s{sT}, 7")
        A(f"s_sub_u32 s{sB}, s{sB}, s{sA}")
    A(f"s_lshl_b32 s{sREC}, s{sT}, 3")
    A(f"s_add_u32 s{sREC}, s{sREC}, s{sB}")
    A(f"s_mul_i32 s{sREC}, s{sREC}, {REC}")
    A(f"s_add_u32 s{sREC}, s{sREC}, {OBUF}")
    counts = list(shift or (37, 37, 37, 37, 37, 36, 35))
    assert sum(counts) == 256 and max(counts) <= 38 and min(counts) > 32
    starts = [sum(counts[:i]) for i in range(7)]
    if pmap:
        pass
    elif shift:
        A.c("role: even x take roles 0..2, odd x rotate through roles 3..6")
        A(f"s_lshr_b32 s{sB}, s{sXI}, 1")
        A(f"s_add_u32 s{sA}, s{sB}, s{sT}")
        A(f"s_and_b32 s{sA}, s{sA}, 3")
        A(f"s_add_u32 s{sA}, s{sA}, 3")
        A(f"s_sub_u32 s{sB}, s{sB}, 1")
        A(f"s_bitcmp1_b32 s{sXI}, 0")
        A(f"s_cselect_b32 s{sB}, s{sA}, s{sB}")
    else:
        A.c("role = (split + pair) mod 7")
        A(f"s_add_u32 s{sB}, s{sB}, s{sT}")
        A(f"s_mul_i32 s{sA}, s{sB}, 37")
        A(f"s_lshr_b32 s{sA}, s{sA}, 8")
        A(f"s_mul_i32 s{sA}, s{sA}, 7")
        A(f"s_sub_u32 s{sB}, s{sB}, s{sA}")
    A.c("first tile and tile count of the role")
    pk = lambda v: sum(x << (8 * i) for i, x in enumerate(v))
    A(f"s_mov_b32 s{sC}, {pk(starts[:4]):#x}")
    A(f"s_mov_b32 s{sD}, {pk(starts[4:]):#x}")
    A(f"s_lshl_b32 s{sA}, s{sB}, 3")
    A(f"s_lshr_b64 {sr(sC, 2)}, {sr(sC, 2)}, s{sA}")
    A(f"s_and_b32 s{sT0}, s{sC}, 0xff")
    A(f"s_lshl_b32 s{sA}, s{sB}, 2")
    A(f"s_lshr_b32 s{sNT}, {sum((c - 32) << (4 * i) for i, c in enumerate(counts)):#x}, s{sA}")
    A(f"s_and_b32 s{sNT}, s{sNT}, 15")
    A(f"s_add_u32 s{sNT}, s{sNT}, 32")
    A(f"s_cmp_eq_u32 s{sB}, 6")
    A(f"s_cselect_b32 s{sPASS}, 5, 4")
    A(f"s_lshl_b32 s{sT0}, s{sT0}, 12")
    A(f"s_lshl_b32 s{sA}, s{sT}, 22")
    A(f"s_add_u32 s{sT0}, s{sT0}, s{sA}")
    A(f"s_add_u32 s{sT0}, s{sT0}, 0x300000")
    A(f"s_cmp_lt_u32 s{sW}, 4")
    A("s_cbranch_scc1 L_kwave")
    if 'j' in drop:
        A(f"s_mov_b32 s{sPASS}, 0")
    A(f"s_cmp_gt_u32 s{sW}, s{sPASS}")
    A("s_cbranch_scc1 L_v_init")

    A("L_qjob:")
    A.c("q job: LayerNorm(x)[:, 128 kq : 128 kq + 128] @ wq[those rows, column block xq of kv head hq]")
    if qprio:
        A(f"s_setprio {qprio}")
    A.c("column block by split: 2,4,5,6,7 for the long splits, 3 for the 36-tile split, 0 and 1 for the 35-tile split")
    A(f"s_add_u32 s{sA}, s{sB}, s{sW}")
    A(f"s_sub_u32 s{sA}, s{sA}, 4")
    A(f"s_lshl_b32 s{sA}, s{sA}, 2")
    A(f"s_lshr_b32 s{sXQ}, 0x10376542, s{sA}")
    A(f"s_and_b32 s{sXQ}, s{sXQ}, 7")
    A(f"s_and_b32 s{sKQ}, s{sT}, 3")
    A(f"s_lshr_b32 s{sHQ}, s{sT}, 2")
    XR, XF, QR, QB, QD = 16, 32, 64, 128, 160
    A.c("matrix row (b, rho), lane group g: x[b][128 j' + 32g + 8 rho ..], block j' = kq comes first")
    A(f"v_lshrrev_b32 v4, 2, v{vN}")
    A("v_lshlrev_b32 v4, 10, v4")
    A(f"v_and_b32 v5, 3, v{vN}")
    A("v_lshl_add_u32 v4, v5, 4, v4")
    A(f"v_lshl_add_u32 v4, v{vG}, 6, v4")
    for j in range(4):
        A(f"s_add_u32 s{56 + j}, s{sKQ}, {j}")
        A(f"s_and_b32 s{56 + j}, s{56 + j}, 3")
        A(f"s_lshl_b32 s{56 + j}, s{56 + j}, 8")
    A.c("matrix column (kappa, c): wq row 128kq + 32g + 16 r1 + 8 kappa + e, columns 8c..8c+7")
    A(f"v_lshlrev_b32 v5, 18, v{vG}")
    A(f"v_lshrrev_b32 v7, 3, v{vN}")
    A("v_lshl_add_u32 v5, v7, 16, v5")
    A(f"v_and_b32 v6, 7, v{vN}")
    A("v_lshl_add_u32 v5, v6, 4, v5")
    A(f"s_lshl_b32 s{sA}, s{sXQ}, 7")
    A(f"s_lshl_b32 s{sB}, s{sHQ}, 10")
    A(f"s_add_u32 s{sA}, s{sA}, s{sB}")
    A(f"s_lshl_b32 s{sB}, s{sKQ}, 20")
    A(f"s_add_u32 s44, s{sA}, s{sB}")
    for e in range(1, 8):
        A(f"s_add_u32 s{44 + e}, s44, {8192 * e}")
    A("v_add_u32 v10, 0x20000, v5")
    A.c("QP byte = (b*8 + hq)*8192 + kq*2048 + (64xq + 8c + 4 kappa)*4")
    A(f"s_lshl_b32 s60, s{sHQ}, 13")
    A(f"s_lshl_b32 s{sC}, s{sKQ}, 11")
    A(f"s_add_u32 s60, s60, s{sC}")
    A(f"s_lshl_b32 s{sC}, s{sXQ}, 8")
    A(f"s_add_u32 s60, s60, s{sC}")
    A(f"v_lshlrev_b32 v6, 5, v6")
    A(f"v_lshl_add_u32 v6, v7, 4, v6")
    A(f"v_lshl_add_u32 v6, v{vG}, 16, v6")
    A("s_waitcnt lgkmcnt(0)")
    srd(S_X, 4, 4096)
    srd(S_WQ, 10, 0 if 'q' in drop else 512 * 8192)
    for j in range(4):
        A(f"buffer_load_dwordx4 {vr(XR + 4 * j, 4)}, v4, {sr(S_X, 4)}, s{56 + j} offen")
    for r1 in range(2):
        for e in range(8):
            A(f"buffer_load_dwordx4 {vr(QR + 32 * r1 + 4 * e, 4)}, v{10 if r1 else 5}, {sr(S_WQ, 4)}, s{44 + e} offen {wqflags}")
    A("s_barrier")
    A(f"s_load_dword s{sTAG}, s[26:27], {EPOCH}")
    srd(S_WST, 26, WS_SIZE)
    A("s_mov_b32 s62, 0xff00ff00")
    A("s_mov_b32 s63, 0xff00ff00")
    A("s_waitcnt vmcnt(16)")
    for i in range(16):
        A(f"v_lshlrev_b32 v{XF + 2 * i}, 16, v{XR + i}")
        A(f"v_and_b32 v{XF + 2 * i + 1}, 0xffff0000, v{XR + i}")
    A(f"v_pk_add_f32 v[12:13], {vr(XF, 2)}, {vr(XF + 2, 2)}")
    A(f"v_pk_add_f32 v[14:15], {vr(XF + 4, 2)}, {vr(XF + 6, 2)}")
    for i in range(4, 16, 2):
        A(f"v_pk_add_f32 v[12:13], v[12:13], {vr(XF + 2 * i, 2)}")
        A(f"v_pk_add_f32 v[14:15], v[14:15], {vr(XF + 2 * i + 2, 2)}")
    A("v_pk_add_f32 v[12:13], v[12:13], v[14:15]")
    A("v_add_f32 v12, v12, v13")
    quad_red(12)
    allred_rows("v_add_f32", 12, 13)
    A("v_mul_f32 v12, 0x3b000000, v12")
    A("v_mov_b32 v14, 0")
    A("v_mov_b32 v15, 0")
    for i in range(16):
        A(f"v_pk_add_f32 v[8:9], {vr(XF + 2 * i, 2)}, v[12:13] op_sel_hi:[1,0] neg_lo:[0,1] neg_hi:[0,1]")
        A("v_pk_fma_f32 v[14:15], v[8:9], v[8:9], v[14:15]")
    A("v_add_f32 v14, v14, v15")
    quad_red(14)
    allred_rows("v_add_f32", 14, 15)
    A("v_mul_f32 v14, 0x3b000000, v14")
    rb(12, 12)
    rb(14, 14)
    A("v_add_f32 v14, 0x3727c5ac, v14")
    rb(14, 14)
    A("v_sqrt_f32 v14, v14")
    rb(14, 14)
    A("v_rcp_f32 v14, v14")
    for i in range(4):
        p = XF + 2 * i
        A(f"v_pk_add_f32 {vr(p, 2)}, {vr(p, 2)}, v[12:13] op_sel_hi:[1,0] neg_lo:[0,1] neg_hi:[0,1]")
        A(f"v_cvt_pk_bf16_f32 v{p + 1}, v{p}, v{p + 1}")
        A(f"v_lshlrev_b32 v{p}, 16, v{p + 1}")
        A(f"v_and_b32 v{p + 1}, 0xffff0000, v{p + 1}")
        A(f"v_pk_mul_f32 {vr(p, 2)}, {vr(p, 2)}, v[14:15] op_sel_hi:[1,0]")
        A(f"v_cvt_pk_bf16_f32 v{XR + i}, v{p}, v{p + 1}")
    for r1 in range(2):
        A(f"s_waitcnt vmcnt({8 - 8 * r1})")
        for i in range(8):
            for e2 in range(4):
                R = QR + 32 * r1 + 8 * e2 + (i >> 1)
                A(f"v_perm_b32 v{QB + 4 * i + e2}, v{R + 4}, v{R}, s{sSELHI if i & 1 else sSELLO}")
            if i:
                mfma16(QD + 32 * r1 + 4 * (i - 1), XR, QB + 4 * (i - 1), True)
        mfma16(QD + 32 * r1 + 28, XR, QB + 28, True)
    make_tag()
    A.c("valid sums sit in register 2 r1 + kappa; add the two kappa halves, lane kappa keeps columns 4 kappa .. 4 kappa + 3")
    for i in range(8):
        A(f"v_pk_add_f32 {vr(QD + 4 * i, 2)}, {vr(QD + 4 * i, 2)}, {vr(QD + 32 + 4 * i + 2, 2)}")
    for i in range(8):
        A(f"v_cndmask_b32 v{QD + 4 * i}, v{QD + 4 * i}, v{QD + 4 * i + 1}, s[62:63]")
    for i in range(8):
        A(f"v_add_f32_dpp v{QD + 4 * i}, v{QD + 4 * i}, v{QD + 4 * i} row_ror:8 row_mask:0xf bank_mask:0xf")
    for i in range(4):
        A(f"v_cndmask_b32 v{XF + i}, v{QD + 4 * i}, v{QD + 16 + 4 * i}, s[62:63]")
        A(f"v_add_u32 v{XF + i}, 0x80, v{XF + i}")
    tag_put(XF)
    if 'S' not in drop:
        A(f"buffer_store_dwordx4 {vr(XF, 4)}, v6, {sr(S_WST, 4)}, s60 offen {qstflags}")
    if qprio:
        A("s_setprio 0")
    stamp(1)
    A("s_branch L_vwave")

    A("L_kwave:")
    A.c("K wave k: stage its key tiles k, k+4, .. in LDS, scores, workgroup max, probabilities")
    KO, KA, QO = 4, 8, 12
    vM, vLs, vT1, vT2, vGA = 14, 15, 62, 63, 61
    Q, S, PA, QM, KF, QG = 16, 32, 44, 64, 128, 160
    if kprio:
        A(f"s_setprio {kprio}")
    A(f"v_lshlrev_b32 v{vT1}, 2, v{vG}")
    A(f"v_xor_b32 v{vT1}, v{vT1}, v{vN}")
    A(f"v_lshlrev_b32 v{vT1}, 4, v{vT1}")
    A(f"v_lshl_add_u32 v{KO}, v{vG}, 8, v{vT1}")
    for i in (1, 2, 3):
        A(f"v_xor_b32 v{KO + i}, {16 * i}, v{KO}")
    A(f"s_mul_i32 s{sLB}, s{sW}, 36864")
    A(f"s_min_u32 s{sA}, s{sW}, 2")
    A(f"s_lshl_b32 s{sA}, s{sA}, 12")
    A(f"s_add_u32 s{sLB}, s{sLB}, s{sA}")
    A(f"s_sub_u32 s{sNT}, s{sNT}, s{sW}")
    A(f"s_add_u32 s{sNT}, s{sNT}, 3")
    A(f"s_lshr_b32 s{sNT}, s{sNT}, 2")
    A(f"s_lshl_b32 s{sA}, s{sW}, 12")
    A(f"s_add_u32 s{sD}, s{sT0}, s{sA}")
    A.c("q partials of head k: lane half picks the k quarter")
    A(f"v_and_b32 v{vGA}, 31, v{vL}")
    A(f"v_lshlrev_b32 v{vGA}, 4, v{vGA}")
    A(f"v_lshrrev_b32 v{vT1}, 5, v{vL}")
    A(f"v_lshl_add_u32 v{vGA}, v{vT1}, 11, v{vGA}")
    A(f"s_lshl_b32 s{sA}, s{sT}, 13")
    A(f"s_lshl_b32 s{sB}, s{sW}, 9")
    A(f"s_add_u32 s{sA}, s{sA}, s{sB}")
    A(f"s_add_u32 s{sB}, s{sA}, 4096")
    gloads = [f"buffer_load_dwordx4 {vr(QG + 4 * i, 4)}, v{vGA}, {sr(S_WS, 4)}, s{sB if i else sA} offen sc1" for i in range(2)]
    if 'G' in drop:
        gloads = []
    A("s_waitcnt lgkmcnt(0)")
    srd(S_A, 6, 0 if 'k' in drop else 0x8000000)
    if kbar < 0:
        A("s_barrier")
    def k_tile(slot, n0):
        A(f"s_add_u32 s{sC}, s{sLB}, {4096 * slot}")
        A(f"s_mov_b32 m0, s{sC}")
        A(f"s_add_u32 s{sC}, s{sD}, {16384 * slot}")
        if ktile is not None and n0 >= 8:
            A(f"s_waitcnt vmcnt({ktile})")
        for i in range(4):
            if kwin and n0 + i >= kwin:
                A(f"s_waitcnt vmcnt({kwin - 1})")
            A(f"buffer_load_dwordx4 v{KO + i}, {sr(S_A, 4)}, s{sC} offen offset:{1024 * i} {kvflags} lds")

    for n, slot in enumerate([0, 1, 9, 8, 2, 3, 4, 5, 6, 7]):
        if n == 10 - gather_before:
            for l in gloads:
                A(l)
        if slot >= 8:
            A(f"s_cmp_le_u32 s{sNT}, {slot}")
            A(f"s_cbranch_scc1 L_k_skip{slot}")
        k_tile(slot, 4 * n)
        if slot >= 8:
            A(f"L_k_skip{slot}:")
        if n == 0:
            A(f"s_load_dword s{sTAG}, s[26:27], {EPOCH}")
            srd(S_WS, 26, WS_SIZE)
            srd(S_WST, 26, WS_SIZE)
        if n == kbar:
            A("s_barrier")
        if n == 9 and not gather_before:
            for l in gloads:
                A(l)
        if n == vbar:
            A("s_barrier")
    if owarm:
        A(f"s_cmp_lg_u32 s{sW}, 0")
        A("s_cbranch_scc1 L_no_owarm")
        A(f"v_lshlrev_b32 v{vT1}, 6, v{vL}")
        A("s_mov_b32 exec_lo, 0xff00ff00")
        A("s_mov_b32 exec_hi, 0xff00ff00")
        A(f"buffer_load_dword v{QG + 8}, v{vT1}, {sr(S_WS, 4)}, s{sREC} offen")
        A("s_mov_b64 exec, -1")
        A("L_no_owarm:")
    stamp(2)
    make_tag()
    A.c("K fragment LDS addresses: key(mu)*256 + ((4j + g) ^ mu)*16, key(mu) = 4*(mu&3) + (mu>>2)")
    A(f"v_and_b32 v{vT1}, 3, v{vN}")
    A(f"v_lshlrev_b32 v{QO}, 4, v{vT1}")
    A(f"v_lshlrev_b32 v{vT1}, 10, v{vT1}")
    A(f"v_lshrrev_b32 v{vT2}, 2, v{vN}")
    A(f"v_lshl_add_u32 v{vT1}, v{vT2}, 8, v{vT1}")
    A(f"v_xor_b32 v{vM}, v{vG}, v{vN}")
    A(f"v_lshl_add_u32 v{vT1}, v{vM}, 4, v{vT1}")
    for j in range(4):
        A(f"v_xor_b32 v{KA + j}, {64 * j}, v{vT1}")
        A(f"v_add_u32 v{KA + j}, s{sLB}, v{KA + j}")
    A(f"v_add_u32 v{QO + 1}, {ML}, v{QO}")
    A(f"v_lshl_add_u32 v{QO}, v{vG}, 6, v{QO}")
    A.c("probability slot of slot s = 4a + rho: PB + (s>>1)*1024 + k*256 + g*64 + h*16 + (s&1)*8")
    A(f"v_lshrrev_b32 v{vM}, 1, v{vT2}")
    A(f"v_lshl_add_u32 v{PA}, v{vM}, 10, v{QO}")
    A(f"v_and_b32 v{vM}, 1, v{vT2}")
    A(f"v_lshl_add_u32 v{PA}, v{vM}, 3, v{PA}")
    A(f"s_lshl_b32 s{sC}, s{sW}, 8")
    A(f"s_add_u32 s{sC}, s{sC}, {PB}")
    A(f"v_add_u32 v{PA}, s{sC}, v{PA}")
    A(f"v_add_u32 v{QO}, {QL}, v{QO}")
    A.c("s[18:19]: lanes of accumulator 2 whose tile exists")
    A(f"v_add_u32 v{vT1}, 8, v{vT2}")
    A(f"v_cmp_gt_u32 s[18:19], s{sNT}, v{vT1}")
    set_masks()
    for i in range(64):
        A(f"v_mov_b32 v{QM + i}, 0")
    A.c("sum the four q partials of head k into LDS (operand order)")
    A(f"v_bfe_u32 v{Q}, v{vL}, 1, 4")
    A(f"v_lshlrev_b32 v{Q}, 6, v{Q}")
    A(f"v_and_b32 v{vT1}, 1, v{vL}")
    A(f"v_lshl_add_u32 v{Q}, v{vT1}, 3, v{Q}")
    A(f"s_lshl_b32 s{sC}, s{sW}, 4")
    A(f"s_add_u32 s{sC}, s{sC}, {QL}")
    A(f"v_add_u32 v{Q}, s{sC}, v{Q}")
    A(f"s_waitcnt vmcnt({4 * gather_before})")
    tag_check(range(QG, QG + 8), TAGS, vT1)
    A("s_cbranch_vccz L_k_gathered")
    poll(gloads, lambda: tag_check(range(QG, QG + 8), TAGS, vT1))
    A("L_k_gathered:")
    for i in range(4):
        A(f"v_permlane32_swap_b32 v{QG + i}, v{QG + 4 + i}")
    A(f"v_pk_add_f32 {vr(QG, 2)}, {vr(QG, 2)}, {vr(QG + 4, 2)}")
    A(f"v_pk_add_f32 {vr(QG + 2, 2)}, {vr(QG + 2, 2)}, {vr(QG + 6, 2)}")
    for i in range(4):
        A(f"v_mov_b32 v{QG + 4 + i}, v{QG + i}")
    for i in range(4):
        A(f"v_permlane32_swap_b32 v{QG + i}, v{QG + 4 + i}")
    A(f"v_pk_add_f32 {vr(QG, 2)}, {vr(QG, 2)}, {vr(QG + 4, 2)}")
    A(f"v_pk_add_f32 {vr(QG + 2, 2)}, {vr(QG + 2, 2)}, {vr(QG + 6, 2)}")
    for i in range(2):
        A(f"v_cvt_pk_bf16_f32 v{QG + i}, v{QG + 2 * i}, v{QG + 2 * i + 1}")
        A(f"v_min_u32 v{QG + i}, -2, v{QG + i}")
    A(f"ds_write_b64 v{Q}, {vr(QG, 2)}")
    poll([f"ds_read_b128 {vr(Q + 4 * j, 4)}, v{QO} offset:{256 * j}" for j in range(4)],
         lambda: sentinel_check(range(Q, Q + 16), vT1), wait="s_waitcnt lgkmcnt(0)", sleep=2)
    for rho in range(4):
        A(f"s_mov_b64 exec, {sr(sMASK + 2 * rho, 2)}")
        for j in range(4):
            A(f"ds_read_b128 {vr(QM + 16 * rho + 4 * j, 4)}, v{QO} offset:{256 * j}")
        if rho & 1:
            A("s_waitcnt lgkmcnt(0)")
    A("s_mov_b64 exec, -1")
    A("s_waitcnt vmcnt(0)")
    stamp(3)

    def qk_reads(slot):
        for j in range(4):
            A(f"ds_read_b128 {vr(KF + 16 * (slot & 1) + 4 * j, 4)}, v{KA + j} offset:{4096 * slot}")

    qk_reads(0)
    for slot in range(10):
        if slot >= 8:
            A(f"s_cmp_le_u32 s{sNT}, {slot}")
            A("s_cbranch_scc1 L_qk_done")
        if slot < 9:
            qk_reads(slot + 1)
            A("s_waitcnt lgkmcnt(4)")
        else:
            A("s_waitcnt lgkmcnt(0)")
        for j in range(4):
            mfma16(S + 4 * (slot >> 2), KF + 16 * (slot & 1) + 4 * j, QM + 16 * (slot & 3) + 4 * j, j == 0 and (slot & 3) == 0)
    A("L_qk_done:")
    A.c("scores: bf16(bf16(q.k) * Dh^-0.5); absent tiles get -inf")
    A(f"s_mov_b32 s{sA}, 0x3db504f3")
    A(f"s_mov_b32 s{sB}, 0x3fb8aa3b")
    A(f"v_mov_b32 v{vT1}, 0xff800000")
    for i in range(0, 12, 2):
        p = S + i
        A(f"v_cvt_pk_bf16_f32 v{p + 1}, v{p}, v{p + 1}")
        A(f"v_lshlrev_b32 v{p}, 16, v{p + 1}")
        A(f"v_and_b32 v{p + 1}, 0xffff0000, v{p + 1}")
        A(f"v_mul_f32 v{p}, s{sA}, v{p}")
        A(f"v_mul_f32 v{p + 1}, s{sA}, v{p + 1}")
        A(f"v_cvt_pk_bf16_f32 v{p + 1}, v{p}, v{p + 1}")
        A(f"v_lshlrev_b32 v{p}, 16, v{p + 1}")
        A(f"v_and_b32 v{p + 1}, 0xffff0000, v{p + 1}")
        if i >= 8:
            m = "s[18:19]"
            A(f"v_cndmask_b32 v{p}, v{vT1}, v{p}, {m}")
            A(f"v_cndmask_b32 v{p + 1}, v{vT1}, v{p + 1}, {m}")
    A(f"v_max_f32 v{vM}, v{S}, v{S + 1}")
    for i in range(2, 12, 2):
        A(f"v_max3_f32 v{vM}, v{vM}, v{S + i}, v{S + i + 1}")
    dpp_red("v_max_f32", [vM], [8, 4])
    allred_rows("v_max_f32", vM, vT1)
    A(f"v_min_u32 v{vM}, -2, v{vM}")
    A(f"s_lshl_b32 s{sA}, s{sW}, 2")
    A(f"v_add_u32 v{vT2}, s{sA}, v{QO + 1}")
    A("s_mov_b64 exec, 15")
    A(f"ds_write_b32 v{vT2}, v{vM}")
    A("s_mov_b64 exec, -1")
    poll([f"ds_read_b128 {vr(Q, 4)}, v{QO + 1}"], lambda: sentinel_check(range(Q, Q + 4), vT1),
         wait="s_waitcnt lgkmcnt(0)", sleep=1)
    A(f"v_max_f32 v{vM}, v{Q}, v{Q + 1}")
    A(f"v_max3_f32 v{vM}, v{vM}, v{Q + 2}, v{Q + 3}")
    for i in range(12):
        A(f"v_sub_f32 v{S + i}, v{S + i}, v{vM}")
        A(f"v_mul_f32 v{S + i}, s{sB}, v{S + i}")
        A(f"v_exp_f32 v{S + i}, v{S + i}")
    A(f"v_mul_f32 v{vM}, s{sB}, v{vM}")
    for i in range(6):
        A(f"v_cvt_pk_bf16_f32 v{Q + i}, v{S + 2 * i}, v{S + 2 * i + 1}")
    A(f"ds_write_b64 v{PA}, {vr(Q, 2)}")
    A(f"ds_write_b64 v{PA}, {vr(Q + 2, 2)} offset:2048")
    A("s_mov_b32 exec_lo, 0x00ff00ff")
    A("s_mov_b32 exec_hi, 0x00ff00ff")
    A(f"ds_write_b64 v{PA}, {vr(Q + 4, 2)} offset:4096")
    A("s_mov_b64 exec, -1")
    A(f"v_add_f32 v{vLs}, v{S}, v{S + 1}")
    for i in range(2, 12):
        A(f"v_add_f32 v{vLs}, v{vLs}, v{S + i}")
    dpp_red("v_add_f32", [vLs], [8, 4])
    allred_rows("v_add_f32", vLs, vT1)
    A("s_mov_b64 exec, 15")
    A(f"ds_write_b32 v{vT2}, v{vLs} offset:{LL - ML}")
    A("s_mov_b64 exec, -1")
    A("s_waitcnt lgkmcnt(0)")
    stamp(4)
    A("s_barrier")
    A(f"s_cmp_ge_u32 s{sW}, 2")
    A("s_cbranch_scc1 L_k_lse")
    A.c("waves 0,1: thread G owns 16 bytes of the record, head G>>5, scaled by 1/L")
    A(f"v_and_b32 v{KA + 2}, 127, v0")
    A(f"v_lshrrev_b32 v{KA}, 5, v{KA + 2}")
    A(f"v_lshlrev_b32 v{KA + 3}, 1, v{KA}")
    A(f"v_lshlrev_b32 v{KA}, 4, v{KA}")
    A(f"v_add_u32 v{KA}, {LL}, v{KA}")
    A(f"ds_read_b128 {vr(Q, 4)}, v{KA}")
    A(f"v_xor_b32 v{KA + 3}, v{KA + 3}, v{KA + 2}")
    A(f"v_lshlrev_b32 v{KA + 3}, 4, v{KA + 3}")
    A(f"v_and_b32 v{KA + 1}, 0x60, v{KA + 2}")
    A(f"v_add_u32 v{KA + 2}, v{KA + 2}, v{KA + 1}")
    A(f"v_lshlrev_b32 v{KA + 2}, 4, v{KA + 2}")
    A("s_waitcnt lgkmcnt(0)")
    A(f"v_add_f32 v{Q}, v{Q}, v{Q + 1}")
    A(f"v_add_f32 v{Q + 2}, v{Q + 2}, v{Q + 3}")
    A(f"v_add_f32 v{Q}, v{Q}, v{Q + 2}")
    A(f"v_rcp_f32 v{vM}, v{Q}")
    A("s_barrier")
    A("s_barrier")
    for w in range(4):
        A(f"ds_read_b128 {vr(Q + 4 * w, 4)}, v{KA + 3} offset:{2048 * w}")
    A("s_waitcnt lgkmcnt(2)")
    A(f"v_pk_add_f32 {vr(Q, 2)}, {vr(Q, 2)}, {vr(Q + 4, 2)}")
    A(f"v_pk_add_f32 {vr(Q + 2, 2)}, {vr(Q + 2, 2)}, {vr(Q + 6, 2)}")
    A("s_waitcnt lgkmcnt(0)")
    A(f"v_pk_add_f32 {vr(Q + 8, 2)}, {vr(Q + 8, 2)}, {vr(Q + 12, 2)}")
    A(f"v_pk_add_f32 {vr(Q + 10, 2)}, {vr(Q + 10, 2)}, {vr(Q + 14, 2)}")
    A(f"v_pk_add_f32 {vr(Q, 2)}, {vr(Q, 2)}, {vr(Q + 8, 2)}")
    A(f"v_pk_add_f32 {vr(Q + 2, 2)}, {vr(Q + 2, 2)}, {vr(Q + 10, 2)}")
    A(f"v_pk_mul_f32 {vr(Q, 2)}, {vr(Q, 2)}, {vr(vM, 2)} op_sel_hi:[1,0]")
    A(f"v_pk_mul_f32 {vr(Q + 2, 2)}, {vr(Q + 2, 2)}, {vr(vM, 2)} op_sel_hi:[1,0]")
    tag_put(Q)
    A(f"buffer_store_dwordx4 {vr(Q, 4)}, v{KA + 2}, {sr(S_WST, 4)}, s{sREC} offen offset:512 sc1")
    stamp(6)
    A("s_branch L_fin")
    A("L_k_lse:")
    A.c("wave 2 sends log2-sum-exp once the last value tiles are landing; it tells the tail when to fetch the record")
    A(f"ds_read_b128 {vr(Q, 4)}, v{QO + 1} offset:{LL - ML}")
    A(f"v_lshlrev_b32 v{vT1}, 3, v{vL}")
    A(f"v_mov_b32 v{vLs}, s{sTAG}")
    A("s_waitcnt lgkmcnt(0)")
    A(f"v_add_f32 v{Q}, v{Q}, v{Q + 1}")
    A(f"v_add_f32 v{Q + 2}, v{Q + 2}, v{Q + 3}")
    A(f"v_add_f32 v{Q}, v{Q}, v{Q + 2}")
    A(f"v_log_f32 v{Q}, v{Q}")
    A(f"v_add_f32 v{vM}, v{vM}, v{Q}")
    A("s_mov_b64 exec, 15")
    A(f"s_cmp_lg_u32 s{sW}, 2")
    A("s_barrier")
    A("s_cbranch_scc1 L_k_idle")
    A(f"buffer_store_dwordx2 {vr(vM, 2)}, v{vT1}, {sr(S_WST, 4)}, s{sREC} offen sc1")
    A("L_k_idle:")
    stamp(6)
    A("s_mov_b64 exec, -1")
    A("s_barrier")
    A("s_branch L_fin")

    A("L_v_init:")
    A.c("LDS: the q copy and the max slots start empty")
    for i in range(4):
        A(f"v_mov_b32 v{8 + i}, -1")
    A(f"v_lshlrev_b32 v6, 4, v{vL}")
    A(f"v_add_u32 v7, {QL}, v6")
    A("ds_write_b128 v7, v[8:11]")
    A("ds_write_b128 v7, v[8:11] offset:1024")
    A("s_waitcnt lgkmcnt(0)")
    A("s_barrier")
    A("L_vwave:")
    srd(S_B, 8, 0 if 'v' in drop else 0x8000000)
    if stamps:
        srd(S_WS, 26, WS_SIZE)
    if vtouch:
        A.c("first touch of the V window ahead of its stream")
        A(f"s_cmp_lg_u32 s{sW}, 7")
        A("s_cbranch_scc1 L_no_vtouch")
        A("v_mov_b32 v250, 0")
        A("s_mov_b64 exec, 1")
        A("s_setprio 3")
        A(f"buffer_load_dword v251, v250, {sr(S_B, 4)}, s{sT0} offen {kvflags}")
        A("s_setprio 0")
        A("s_mov_b64 exec, -1")
        A("L_no_vtouch:")
    A.c("V wave v: value tiles v, v+4, .. in registers, transposed in-lane, P.V on the matrix core")
    VO, vPA, vRA = 4, 5, 6
    ACC, PM, VB = 8, 16, 48
    A(f"v_lshlrev_b32 v{VO}, 4, v{vL}")
    A(f"s_sub_u32 s{sD}, s{sW}, 4")
    A(f"s_lshl_b32 s{sA}, s{sD}, 12")
    A(f"s_add_u32 s{sT0}, s{sT0}, s{sA}")
    order = [9, 8, 0, 1, 2, 3, 4, 5, 6, 7]
    pair_seq = [4, 0, 1, 2, 3]
    raw_base = {k: VB + 32 * (n + 1) for n, k in enumerate(pair_seq)}
    out_base = {k: VB + 32 * n for n, k in enumerate(pair_seq)}

    def v_load(s):
        R = raw_base[s >> 1] + 16 * (s & 1)
        A(f"s_add_u32 s{sB}, s{sT0}, {16384 * s}")
        for j in range(4):
            A(f"buffer_load_dwordx4 {vr(R + 4 * j, 4)}, v{VO}, {sr(S_B, 4)}, s{sB} offen offset:{1024 * j} {kvflags}")

    def v_perm(s, i):
        R = raw_base[s >> 1] + 16 * (s & 1)
        q, sel = i >> 1, sSELHI if i & 1 else sSELLO
        d = out_base[s >> 1] + 4 * i + 2 * (s & 1)
        A(f"v_perm_b32 v{d}, v{R + 4 + q}, v{R + q}, s{sel}")
        A(f"v_perm_b32 v{d + 1}, v{R + 12 + q}, v{R + 8 + q}, s{sel}")

    def p_read(k, buf):
        for rho in range(4):
            A(f"s_mov_b64 exec, {sr(sMASK + 2 * rho, 2)}")
            A(f"ds_read_b128 {vr(PM + 16 * buf + 4 * rho, 4)}, v{vPA} offset:{1024 * k}")
        A("s_mov_b64 exec, -1")

    def pv(k, buf, i, first):
        mfma16(ACC + 4 * (i >> 2), out_base[k] + 4 * i, PM + 16 * buf + 4 * (i & 3), first and (i & 3) == 0)

    for i in range(32):
        A(f"v_mov_b32 v{raw_base[4] + i}, 0")
    set_masks()
    for i in range(32):
        A(f"v_mov_b32 v{PM + i}, 0")
    A(f"v_and_b32 v7, 3, v{vN}")
    A(f"v_lshlrev_b32 v{vPA}, 4, v7")
    A(f"v_lshl_add_u32 v{vPA}, v{vG}, 6, v{vPA}")
    A(f"s_lshl_b32 s{sA}, s{sD}, 8")
    A(f"s_add_u32 s{sA}, s{sA}, {PB}")
    A(f"v_add_u32 v{vPA}, s{sA}, v{vPA}")
    A.c("reduction slot: h*32 + ((16a + 4g + rho) ^ 2h)")
    A(f"v_lshrrev_b32 v{vRA}, 2, v{vL}")
    A(f"v_lshlrev_b32 v{ACC}, 1, v7")
    A(f"v_xor_b32 v{vRA}, v{vRA}, v{ACC}")
    A(f"v_lshl_add_u32 v{vRA}, v7, 5, v{vRA}")
    A(f"v_lshlrev_b32 v{vRA}, 4, v{vRA}")
    A(f"s_lshl_b32 s{sA}, s{sD}, 11")
    A(f"v_add_u32 v{vRA}, s{sA}, v{vRA}")
    if vbar is not None:
        A("s_barrier")
    A(f"s_add_u32 s{sA}, s{sD}, 36")
    A(f"s_cmp_ge_u32 s{sA}, s{sNT}")
    A("s_cbranch_scc1 L_v9_done")
    v_load(9)
    A("L_v9_done:")
    assert vwin >= 5
    done = 0
    for n in range(4, 40):
        s_, j = order[n >> 2], n & 3
        R = raw_base[s_ >> 1] + 16 * (s_ & 1)
        if n == 4:
            A(f"s_add_u32 s{sA}, s{sD}, 32")
            A(f"s_cmp_ge_u32 s{sA}, s{sNT}")
            A("s_cbranch_scc1 L_v8_done")
        if n == 8:
            A("L_v8_done:")
        if j == 0:
            A(f"s_add_u32 s{sB}, s{sT0}, {16384 * s_}")
        if vtile is not None:
            if j == 0 and n >= 8:
                A(f"s_waitcnt vmcnt({vtile})")
        elif n >= vwin:
            A(f"s_waitcnt vmcnt({vwin - 1})")
        A(f"buffer_load_dwordx4 {vr(R + 4 * j, 4)}, v{VO}, {sr(S_B, 4)}, s{sB} offen offset:{1024 * j} {kvflags}")
        landed = ((n - 3 - vtile) // 4 if j == 3 and n >= 8 else 0) if vtile is not None else (n - vwin + 1) // 4
        while done < landed:
            for i in range(8):
                v_perm(order[done], i)
            done += 1
    stamp(2)
    A("s_barrier")
    stamp(4)
    p_read(pair_seq[0], 0)
    for n, k in enumerate(pair_seq):
        if n < 4:
            p_read(pair_seq[n + 1], (n + 1) & 1)
        first_t, second_t = 2 * n, 2 * n + 1
        if n == 4 and hv > 4:
            A(f"s_waitcnt vmcnt({hv})")
            A("s_barrier")
        if first_t >= done:
            A(f"s_waitcnt vmcnt({4 * (9 - first_t)})")
            for i in range(8):
                v_perm(order[first_t], i)
        lg = f"lgkmcnt({4 if n < 4 else 0})"
        if n == 4 and hv <= 4:
            A(f"s_waitcnt vmcnt({hv})")
            A("s_barrier")
        if second_t >= done:
            A(f"s_waitcnt vmcnt({4 * (9 - second_t)}) {lg}")
            if n == 4:
                stamp(5)
            seq = [0, 4, 1, 5, 2, 6, 3, 7]
            v_perm(order[second_t], seq[0])
            for m, i in enumerate(seq):
                if m < 7:
                    v_perm(order[second_t], seq[m + 1])
                pv(k, n & 1, i, n == 0)
        else:
            A(f"s_waitcnt {lg}")
            for i in (0, 4, 1, 5, 2, 6, 3, 7):
                pv(k, n & 1, i, n == 0)
    A(f"ds_write_b128 v{vRA}, {vr(ACC, 4)}")
    A(f"ds_write_b128 v{vRA}, {vr(ACC + 4, 4)} offset:256")
    A("s_waitcnt lgkmcnt(0)")
    A("s_barrier")
    A("s_branch L_fin")

    A("L_tail:")
    A.c("tail workgroup t: head t of wo, 64 FFN channels, 16 columns of h and of the output")
    if 'T' in drop:
        A("s_waitcnt lgkmcnt(0)")
        srd(S_WS, 26, WS_SIZE)
        A("s_branch L_fin")
    t1, t2, t3, t4 = 12, 13, 14, 15
    RING = 131072
    OL, AL, HL, SL = 0, 512, 2048, 6144
    sRING, sU, sTZ = sT0, sXQ, 4
    vIdx = 254
    A(f"s_getreg_b32 s{sFAST}, hwreg(HW_REG_XCC_ID, 0, 3)")
    A(f"s_and_b32 s{sU}, s{sW}, 3")

    def set_idx(bit):
        A(f"v_bfe_u32 v{vIdx}, v{vN}, {bit}, 1")
        A(f"v_mul_u32_u24 v{vIdx}, 0xaaaa, v{vIdx}")
        A(f"v_add_u32 v{vIdx}, 0x4444, v{vIdx}")

    def tail_consts():
        make_tag()
        A(f"s_add_u32 s{sA}, s{sTAG}, {TAGC:#x}")
        for i in range(4):
            A(f"s_bfe_u32 s{sTZ + i}, s{sA}, {0x80000 + 8 * i:#x}")
        A("s_mov_b32 s8, 0x00ff00ff")
        A("s_mov_b32 s9, 0x00ff00ff")
        A("s_not_b64 s[10:11], s[8:9]")

    def checkin_read(R, first):
        xl = f"buffer_load_dwordx2 {vr(R, 2)}, v{R + 2}, {sr(S_WS, 4)}, s{sD} offen sc1"
        if first:
            A(f"v_and_b32 v{R + 2}, 31, v{vL}")
            A(f"v_lshlrev_b32 v{R + 2}, 3, v{R + 2}")
            A(f"s_mov_b32 s{sD}, {XBUF}")
            A(xl)
            return
        ok = A.label("checked")
        A(f"v_cmp_ne_u32 vcc, s{sTAG}, v{R + 1}")
        A(f"s_cbranch_vccz {ok}")
        poll([xl], lambda: A(f"v_cmp_ne_u32 vcc, s{sTAG}, v{R + 1}"), sleep=slp)
        A(f"{ok}:")
        A(f"v_cmp_ne_u32 vcc, s{sFAST}, v{R}")
        A("s_cmp_eq_u64 vcc, 0")
        A(f"s_cselect_b32 s{sFAST}, {0 if force_slow else 1}, 0")

    A(f"s_cmp_ge_u32 s{sW}, 4")
    A("s_cbranch_scc1 L_gwave")

    A.c("O wave u: columns 128u..128u+127 of wo[head t] and of w_down[64t..64t+63], staged through a two-slot ring")
    AO, DO, BWO, BWD = 16, 32, 48, 176
    vTR, vWOo, vAr, vYs, XO, A4 = 4, 14, 240, 241, 242, 246
    A(f"s_lshl_b32 s{sRING}, s{sU}, 13")
    A(f"s_add_u32 s{sRING}, s{sRING}, {RING}")
    A.c("ring chunk n = 16 consecutive rows; row 4g'+r keeps its 64-byte block i at i ^ r, bit 4 flips with g'&1 .. see reads")
    A(f"v_lshlrev_b32 v{t1}, 2, v{vG}")
    A(f"v_xor_b32 v{t1}, v{t1}, v{vN}")
    A(f"v_lshlrev_b32 v{t1}, 4, v{t1}")
    A(f"v_lshl_add_u32 v{vWOo}, v{vG}, 10, v{t1}")
    A(f"s_lshl_b32 s{sA}, s{sU}, 8")
    A(f"v_add_u32 v{vWOo}, s{sA}, v{vWOo}")
    A(f"s_lshl_b32 s{sC}, s{sT}, 17")
    A(f"s_lshl_b32 s{sLB}, s{sT}, 16")
    A(f"s_lshl_b32 s{sPASS}, s{sU}, 14")
    A(f"s_add_u32 s{sPASS}, s{sPASS}, 65536")

    def ring_issue(n):
        for g in range(4):
            A(f"s_add_u32 s{sA}, s{sRING if n < 8 else sPASS}, {4096 * (n & (1 if n < 8 else 3)) + 1024 * g}")
            A(f"s_mov_b32 m0, s{sA}")
            if n < 8:
                A(f"s_add_u32 s{sB}, s{sC}, {(16 * n + 4 * g) * 1024}")
                A(f"buffer_load_dwordx4 v{vWOo}, {sr(S_A, 4)}, s{sB} offen {woflags} lds")
            else:
                A(f"s_add_u32 s{sB}, s{sLB}, {(16 * (n - 8) + 4 * g) * 1024}")
                A(f"buffer_load_dwordx4 v{vWOo}, {sr(S_B, 4)}, s{sB} offen {wdflags} lds")

    def ring_read(n):
        base = BWO + 64 * (n >> 2) + 2 * (n & 3)
        for blk in range(4):
            for sel in range(2):
                A(f"ds_read_b64_tr_b16 {vr(base + 16 * blk + 8 * sel, 2)}, v{vTR + blk} offset:{4096 * (n & (1 if n < 8 else 3)) + 8 * sel}")

    A("s_waitcnt lgkmcnt(0)")
    srd(S_A, 12, 0 if 'o' in drop else 4096 * 1024)
    ring_issue(0)
    ring_issue(1)
    A(f"s_load_dword s{sTAG}, s[26:27], {EPOCH}")
    srd(S_B, 20, 0 if 'd' in drop else 1792 * 1024)
    srd(S_WS, 26, WS_SIZE)
    srd(S_WST, 26, WS_SIZE)
    A(f"v_lshrrev_b32 v{t1}, 2, v{vN}")
    A(f"v_and_b32 v{t2}, 3, v{vN}")
    A(f"v_mul_u32_u24 v{t1}, 320, v{t1}")
    A(f"v_lshl_add_u32 v{t1}, v{t2}, 4, v{t1}")
    A(f"v_lshl_add_u32 v{t1}, v{vG}, 10, v{t1}")
    for blk in range(4):
        A(f"v_xor_b32 v{vTR + blk}, {64 * blk}, v{t1}")
        A(f"v_add_u32 v{vTR + blk}, s{sRING}, v{vTR + blk}")
    A.c("matrix row m = (half, b1, sigma, b0); activation chunk (J, sigma, g) at 1024J + 256 sigma + 128(g>>1) + 32b + 16(g&1)")
    set_idx(1)
    A(f"v_and_b32 v{t1}, 1, v{vN}")
    A(f"v_lshlrev_b32 v{vAr}, 5, v{t1}")
    A(f"v_bfe_u32 v{t1}, v{vN}, 2, 1")
    A(f"v_lshl_add_u32 v{vAr}, v{t1}, 6, v{vAr}")
    A(f"v_and_b32 v{t1}, 1, v{vG}")
    A(f"v_lshl_add_u32 v{vAr}, v{t1}, 4, v{vAr}")
    A(f"v_lshrrev_b32 v{t1}, 1, v{vG}")
    A(f"v_lshl_add_u32 v{vAr}, v{t1}, 7, v{vAr}")
    A(f"v_bfe_u32 v{t1}, v{vN}, 1, 1")
    A(f"v_lshl_add_u32 v{vAr}, v{t1}, 8, v{vAr}")
    A.c("partial-sum slot [consumer 8u + 4q + 2half + (n>>3)][b1][octet][producer t][n&3][sel][b0]")
    A(f"s_lshl_b32 s{sA}, s{sU}, 16")
    A(f"s_lshl_b32 s{sB}, s{sT}, 6")
    A(f"s_add_u32 s{sA}, s{sA}, s{sB}")
    A(f"v_lshlrev_b32 v{vYs}, 4, v{t2}")
    A(f"v_bfe_u32 v{t1}, v{vN}, 2, 1")
    A(f"v_lshl_add_u32 v{vYs}, v{t1}, 11, v{vYs}")
    A(f"v_and_b32 v{t1}, 1, v{vG}")
    A(f"v_lshl_add_u32 v{vYs}, v{t1}, 12, v{vYs}")
    A(f"v_lshrrev_b32 v{t1}, 3, v{vN}")
    A(f"v_lshl_add_u32 v{vYs}, v{t1}, 13, v{vYs}")
    A(f"v_lshrrev_b32 v{t1}, 1, v{vG}")
    A(f"v_lshl_add_u32 v{vYs}, v{t1}, 14, v{vYs}")
    A(f"v_add_u32 v{vYs}, s{sA}, v{vYs}")
    A(f"s_mov_b32 s16, {YBUF}")
    A(f"s_mov_b32 s17, {YBUF + 32768}")
    for i in list(range(AO, BWO)) + list(range(A4, A4 + 8)):
        A(f"v_mov_b32 v{i}, 0")
    tail_consts()
    assert 2 <= r1at <= 7
    younger = 0
    for n in range(8):
        A(f"s_waitcnt vmcnt({(4 if n < 7 else 0) + (younger if n <= r1at else 0)}) lgkmcnt(0)")
        ring_read(n)
        if n < 6:
            A("s_waitcnt lgkmcnt(0)")
            ring_issue(n + 2)
        if n + 2 == r1at:
            A.c("once the G waves hold gate/up in registers, all of w_down goes into the upper half of that image")
            A("s_barrier")
            checkin_read(XO, True)
            A("s_barrier")
            for m in range(8, 12):
                ring_issue(m)
            younger = 16
    A(f"s_sub_u32 s{sA}, s{sPASS}, s{sRING}")
    A("s_waitcnt lgkmcnt(0)")
    for blk in range(4):
        A(f"v_add_u32 v{vTR + blk}, s{sA}, v{vTR + blk}")
    checkin_read(XO, False)
    if 'W' in drop:
        A(f"s_mov_b32 s{S_WST + 2}, 0")
    if oprio:
        A(f"s_setprio {oprio}")
    stamp(2)
    A(f"s_cmp_eq_u32 s{sFAST}, 0")
    A("s_mov_b64 exec, s[8:9]")
    A("s_cbranch_scc1 L_o_far")

    def o_stages(sc):
        def publish(q, tb):
            D = DO + 8 * q
            L = [f"v_pk_add_f32 {vr(D, 2)}, {vr(D, 2)}, {vr(D + 2, 2)}",
                 f"v_pk_add_f32 {vr(D + 2, 2)}, {vr(D + 4, 2)}, {vr(D + 6, 2)}"]
            L += [f"v_bfi_b32 v{D + i}, v{vFF}, s{tb + i}, v{D + i}" for i in range(4)]
            L += [f"buffer_store_dwordx4 {vr(D, 4)}, v{vYs}, {sr(S_WST, 4)}, s{16 + q} offen {sc}"]
            return L

        A.c("y_t = o_t @ wo[head t]")
        A("s_barrier")
        fs(1)
        for J in range(2):
            A(f"ds_read_b128 {vr(AO + 4 * J, 4)}, v{vAr} offset:{OL + 1024 * J}")
        A("s_mov_b64 exec, s[10:11]")
        for J in range(2):
            A(f"ds_read_b128 {vr(AO + 8 + 4 * J, 4)}, v{vAr} offset:{OL + 1024 * J}")
        A("s_mov_b64 exec, -1")
        for q in range(2):
            for n in range(4):
                half, J = n >> 1, n & 1
                if q == 0:
                    A(f"s_waitcnt lgkmcnt({3 - n})")
                for sel in range(2):
                    smf(DO + 8 * q + 4 * sel, AO + 4 * n, BWO + 64 * J + 16 * (2 * q + half) + 8 * sel, vIdx)
                    if early and q == 1:
                        m = 2 * n + sel
                        for l in (["s_nop 0"] if m < 3 else publish(0, sTB)[2 * (m - 3):2 * (m - 3) + 2]):
                            A(l)
        for l in ([] if early else publish(0, sTB)) + publish(1, sTB):
            A(l)
        stamp(4)
        fs(2)
        if ackbar[0] is not None:
            A(f"s_waitcnt vmcnt({ackbar[0]})")
        A("s_barrier")
        A("s_waitcnt vmcnt(0)")
        for m in range(8, 12):
            ring_read(m)
            A("s_waitcnt lgkmcnt(4)")
        for i in range(16):
            A(f"v_mov_b32 v{DO + i}, 0")
        A("s_mov_b64 exec, s[8:9]")
        A("s_waitcnt lgkmcnt(0)")
        A("s_barrier")
        A.c("z_t = act_t @ w_down[64 rows]")
        A("s_barrier")
        fs(8)
        A(f"ds_read_b128 {vr(A4, 4)}, v{vAr} offset:{AL}")
        A("s_mov_b64 exec, s[10:11]")
        A(f"ds_read_b128 {vr(A4 + 4, 4)}, v{vAr} offset:{AL}")
        A("s_mov_b64 exec, -1")
        for q in range(2):
            for hi in range(2):
                if q == 0:
                    A(f"s_waitcnt lgkmcnt({1 - hi})")
                for i in range(2):
                    smf(DO + 8 * q + 4 * i, A4 + 4 * hi, BWD + 16 * (2 * q + hi) + 8 * i, vIdx)
        for l in publish(0, sTZ) + publish(1, sTZ):
            A(l)
        stamp(6)
        fs(9)
        if ackbar[1] is not None:
            A(f"s_waitcnt vmcnt({ackbar[1]})")
        A("s_barrier")
        fine_out()
        A("s_branch L_fin")

    def fine_out():
        if fine:
            A("s_waitcnt lgkmcnt(0)")
            for i in range(13):
                A(f"v_mov_b32 v{64 + i}, s{FS[i]}")
            A(f"s_lshl_b32 s{sA}, s{sT}, 3")
            A(f"s_add_u32 s{sA}, s{sA}, s{sW}")
            A(f"s_lshl_b32 s{sA}, s{sA}, 6")
            A(f"s_add_u32 s{sA}, s{sA}, {STAMPS + 0x20000}")
            A("v_mov_b32 v80, 0")
            A("s_mov_b64 exec, 1")
            for i in range(4):
                A(f"buffer_store_dwordx4 {vr(64 + 4 * i, 4)}, v80, {sr(S_WST, 4)}, s{sA} offen offset:{16 * i}")

    o_stages(nearflags)
    A("L_o_far:")
    o_stages("sc1")

    A("L_gwave:")
    A.c("G wave v: 16 FFN channels of w_gate and w_up; batch v in stage 1; four columns in stages 2 and 4")
    AG, DG, PT, BGU, RS = 16, 32, 48, 64, 192
    vLin, vP0, vP1, vOw, vHs, vAw, vOs, vXr = range(4, 12)
    vCg, vCu, vH, vHw, vSw = range(248, 253)
    LS, LA = 224, 240
    assert nsets[0] <= 2 and lsets <= 4
    vGUo, vW0, vW1, XG = RS, RS + 2, RS + 3, RS + 4
    A(f"v_lshlrev_b32 v{vLin}, 4, v{vL}")
    A(f"s_lshl_b32 s{sLB}, s{sU}, 15")
    A.c("gate/up DMA: row 128v + 8i + (l>>3), chunk (l&7) ^ ((l>>5)<<1) ^ ((v&1)<<2)")
    A(f"v_lshrrev_b32 v{t1}, 3, v{vL}")
    A(f"s_lshl_b32 s{sA}, s{sU}, 7")
    A(f"v_add_u32 v{t1}, s{sA}, v{t1}")
    A(f"v_mul_u32_u24 v{t1}, 3584, v{t1}")
    A(f"s_lshl_b32 s{sA}, s{sT}, 7")
    A(f"v_add_u32 v{t1}, s{sA}, v{t1}")
    A(f"v_and_b32 v{t2}, 7, v{vL}")
    A(f"v_and_b32 v{t3}, 2, v{vG}")
    A(f"v_xor_b32 v{t2}, v{t2}, v{t3}")
    A(f"s_and_b32 s{sA}, s{sU}, 1")
    A(f"s_lshl_b32 s{sA}, s{sA}, 2")
    A(f"v_xor_b32 v{t2}, s{sA}, v{t2}")
    A(f"v_lshl_add_u32 v{vGUo}, v{t2}, 4, v{t1}")
    for i in range(4):
        A(f"v_mov_b32 v{AG + i}, -1")
    if gprio:
        A(f"s_setprio {gprio}")
    A("s_waitcnt lgkmcnt(0)")
    srd(S_WG, 16, 512 * 3584)
    srd(S_WU, 18, 512 * 3584)
    srd(S_WST, 26, WS_SIZE)
    A(f"s_load_dword s{sTAG}, s[26:27], {EPOCH}")
    A(f"s_cmp_lt_u32 s{sT}, 28")
    A(f"s_cselect_b32 s{S_WG + 2}, {0 if 'g' in drop else 512 * 3584}, 0")
    A(f"s_cselect_b32 s{S_WU + 2}, {0 if 'g' in drop else 512 * 3584}, 0")
    A(f"s_cmp_lg_u32 s{sU}, 3")
    A("s_cbranch_scc1 L_no_clear")
    A.c("mark 128 B of the h hand-off buffer empty; the check-in word follows once that store is done")
    A(f"s_lshl_b32 s{sA}, s{sT}, 7")
    A(f"s_add_u32 s{sA}, s{sA}, {HBUF}")
    A("s_mov_b64 exec, 0xff")
    A(f"buffer_store_dwordx4 {vr(AG, 4)}, v{vLin}, {sr(S_WST, 4)}, s{sA} offen sc1")
    A("s_mov_b64 exec, -1")
    A("L_no_clear:")
    for n in range(32):
        mat, ii = n & 1, n >> 1
        if n == gwin:
            srd(S_WS, 26, WS_SIZE)
            srd(S_X, 4, 4096)
            srd(S_OUT, 22, 4096)
            tail_consts()
        if n >= gwin:
            A(f"s_waitcnt vmcnt({gwin - 1})")
        if n == gwin:
            A(f"s_cmp_lg_u32 s{sU}, 3")
            A("s_cbranch_scc1 L_no_checkin")
            A(f"v_mov_b32 v{t1}, s{sFAST}")
            A(f"v_mov_b32 v{t2}, s{sTAG}")
            A(f"s_lshl_b32 s{sA}, s{sT}, 3")
            A(f"s_add_u32 s{sA}, s{sA}, {XBUF}")
            A("s_mov_b64 exec, 1")
            A(f"buffer_store_dwordx2 {vr(t1, 2)}, v{vLin}, {sr(S_WST, 4)}, s{sA} offen sc1")
            A("s_mov_b64 exec, -1")
            A("L_no_checkin:")
        A(f"s_add_u32 s{sA}, s{sLB}, {16384 * (ii >> 3) + 8192 * mat + 1024 * (ii & 7)}")
        A(f"s_mov_b32 m0, s{sA}")
        A(f"s_mov_b32 s{sB}, {8 * ii * 3584}")
        A(f"buffer_load_dwordx4 v{vGUo}, {sr(S_WU if mat else S_WG, 4)}, s{sB} offen {guflags} lds")
    if gprio:
        A("s_setprio 0")
    A(f"s_cmp_lt_u32 s{sT}, 28")
    A("s_cbranch_scc1 L_touched")
    A.c("workgroups without FFN weights read the partial-sum inboxes once so that the lines are resident in L2")
    A(f"s_sub_u32 s{sA}, s{sT}, 28")
    A(f"s_lshl_b32 s{sA}, s{sA}, 2")
    A(f"s_add_u32 s{sA}, s{sA}, s{sU}")
    A(f"s_lshl_b32 s{sA}, s{sA}, 14")
    A(f"s_add_u32 s{sA}, s{sA}, {YBUF}")
    for n in range(16):
        A(f"buffer_load_dwordx4 {vr(PT, 4)}, v{vLin}, {sr(S_WS, 4)}, s{sA} offen offset:{1024 * (n & 3)} {touchflags}")
        if n & 3 == 3:
            A(f"s_add_u32 s{sA}, s{sA}, 4096")
    A("L_touched:")
    A.c("stage 1 reads head t&3 of pair (v, t>>2); lane row g takes splits g and 4+g")
    A(f"s_lshl_b32 s{sA}, s{sU}, 3")
    A(f"s_lshr_b32 s{sC}, s{sT}, 2")
    A(f"s_add_u32 s{sA}, s{sA}, s{sC}")
    A(f"s_mul_i32 s{sREC}, s{sA}, {8 * REC}")
    A(f"s_add_u32 s{sREC}, s{sREC}, {OBUF}")
    A(f"s_and_b32 s{sC}, s{sT}, 3")
    A(f"s_lshl_b32 s16, s{sC}, 3")
    A(f"s_add_u32 s16, s16, s{sREC}")
    A(f"s_lshl_b32 s{sA}, s{sC}, 10")
    A(f"s_add_u32 s{sREC}, s{sREC}, s{sA}")
    A(f"v_mul_u32_u24 v{vW0}, {REC}, v{vG}")
    A(f"v_min_u32 v{t1}, 2, v{vG}")
    A(f"v_add_u32 v{t1}, 4, v{t1}")
    A(f"v_mul_u32_u24 v{vW1}, {REC}, v{t1}")
    A(f"v_lshl_add_u32 v{vP0}, v{vN}, 4, v{vW0}")
    A(f"v_lshl_add_u32 v{vP1}, v{vN}, 4, v{vW1}")
    A.c("weight row d sits at position 64(d>>6) + 32((d>>1)&1) + 16((d>>5)&1) + 4((d>>2)&3) + 2((d>>4)&1) + (d&1)")
    A.c("stage 1 lane (c, g), half a holds channel d = 32(c>>2) + 8g + 4a + (c&3); it lands in this wave's own 32-byte units of the image")
    A(f"v_lshrrev_b32 v{t4}, 3, v{vN}")
    A(f"v_lshlrev_b32 v{t1}, 10, v{t4}")
    A(f"v_bfe_u32 v{t2}, v{vN}, 1, 1")
    A(f"v_lshlrev_b32 v{vAw}, 8, v{t2}")
    A(f"v_and_b32 v{t2}, 1, v{vN}")
    A(f"v_lshl_add_u32 v{vAw}, v{t2}, 1, v{vAw}")
    A(f"v_add_u32 v{t1}, v{t1}, v{vAw}")
    A(f"v_bfe_u32 v{t2}, v{vN}, 2, 1")
    A(f"v_lshl_add_u32 v{t1}, v{t2}, 7, v{t1}")
    A(f"v_lshl_add_u32 v{vAw}, v{t2}, 3, v{vAw}")
    A(f"v_lshl_add_u32 v{vAw}, v{t4}, 4, v{vAw}")
    A(f"v_lshl_add_u32 v{vAw}, v{vG}, 5, v{vAw}")
    A(f"v_and_b32 v{t2}, 1, v{vG}")
    A(f"v_lshl_add_u32 v{t1}, v{t2}, 4, v{t1}")
    A(f"v_lshrrev_b32 v{t3}, 1, v{vG}")
    A(f"v_lshl_add_u32 v{t1}, v{t3}, 2, v{t1}")
    A(f"s_lshl_b32 s{sB}, s{sU}, 5")
    A(f"v_add_u32 v{vOw}, s{sB}, v{t1}")
    A(f"s_lshr_b32 s{sB}, s{sU}, 1")
    A(f"s_and_b32 s{sC}, s{sU}, 1")
    A(f"s_lshl_b32 s{sA}, s{sB}, 7")
    A(f"s_lshl_b32 s17, s{sC}, 2")
    A(f"s_add_u32 s{sA}, s{sA}, s17")
    A(f"v_add_u32 v{vAw}, s{sA}, v{vAw}")
    A(f"s_lshl_b32 s17, s{sT}, 13")
    A(f"s_lshl_b32 s{sA}, s{sU}, 11")
    A(f"s_add_u32 s17, s17, s{sA}")
    A(f"s_add_u32 s17, s17, {YBUF}")
    A.c("stages 2/4: wave v = (b1, octet), lane row (sel, b0): column 16t + 8 octet + 4 sel + cc of batch 2 b1 + b0")
    A.c("HBUF byte = (j*64 + g*16 + 4b + rho)*16 + 2e")
    A(f"v_and_b32 v{t1}, 3, v{vN}")
    A(f"v_lshlrev_b32 v{t1}, 1, v{t1}")
    A(f"v_lshl_add_u32 v{t1}, v{t3}, 3, v{t1}")
    A(f"v_lshl_add_u32 v{vHs}, v{t2}, 6, v{t1}")
    A(f"v_lshl_add_u32 v{vOs}, v{t2}, 10, v{t1}")
    A(f"s_and_b32 s{sA}, s{sT}, 7")
    A(f"s_lshl_b32 s{sA}, s{sA}, 9")
    A(f"s_lshr_b32 s18, s{sT}, 3")
    A(f"s_lshl_b32 s18, s18, 4")
    A(f"s_add_u32 s{sA}, s{sA}, s18")
    A(f"s_lshl_b32 s18, s{sC}, 8")
    A(f"s_add_u32 s{sA}, s{sA}, s18")
    A(f"s_lshl_b32 s18, s{sB}, 7")
    A(f"s_add_u32 s{sA}, s{sA}, s18")
    A(f"s_add_u32 s{sA}, s{sA}, {HBUF}")
    A(f"v_add_u32 v{vHs}, s{sA}, v{vHs}")
    A(f"s_lshl_b32 s{sA}, s{sT}, 5")
    A(f"s_lshl_b32 s18, s{sC}, 4")
    A(f"s_add_u32 s{sA}, s{sA}, s18")
    A(f"s_lshl_b32 s18, s{sB}, 11")
    A(f"s_add_u32 s{sA}, s{sA}, s18")
    A(f"v_add_u32 v{vOs}, s{sA}, v{vOs}")
    A(f"s_lshl_b32 s18, s{sU}, 10")
    A(f"v_add_u32 v{vHw}, s18, v{vLin}")
    A(f"s_add_u32 s18, s18, {HBUF}")
    A.c("LayerNorm partial sums: slot [v>>1][b][4g + rho][v&1][8 B]")
    A(f"s_lshl_b32 s{sB}, s{sB}, 10")
    A(f"s_lshl_b32 s{sC}, s{sC}, 3")
    A(f"s_add_u32 s{sB}, s{sB}, s{sC}")
    A(f"v_and_b32 v{t3}, 3, v{vN}")
    A(f"v_lshrrev_b32 v{t2}, 2, v{vN}")
    A(f"v_lshlrev_b32 v{t2}, 8, v{t2}")
    A(f"v_lshl_add_u32 v{t2}, v{vG}, 6, v{t2}")
    A(f"v_lshl_add_u32 v{t2}, v{t3}, 4, v{t2}")
    A(f"v_add_u32 v{vSw}, s{sB}, v{t2}")
    set_idx(0)
    A(f"buffer_load_ushort v{vXr}, v{vOs}, {sr(S_X, 4)}, 0 offen")
    A.c("gate/up fragments: row 128(r>>1) + 4g + (r&1), 32-byte unit v ^ ((g&1) | (r>>1)<<1)")
    A(f"v_and_b32 v{t1}, 1, v{vG}")
    A(f"v_lshl_or_b32 v{t1}, v{t4}, 1, v{t1}")
    A(f"v_xor_b32 v{t1}, s{sU}, v{t1}")
    A(f"v_lshlrev_b32 v{t1}, 5, v{t1}")
    A(f"v_lshl_add_u32 v{t1}, v{t3}, 3, v{t1}")
    A(f"v_bfe_u32 v{t2}, v{vN}, 2, 1")
    A(f"v_lshl_add_u32 v{t1}, v{t2}, 7, v{t1}")
    A(f"v_lshl_add_u32 v{t1}, v{vG}, 9, v{t1}")
    A(f"v_lshl_add_u32 v{t1}, v{t4}, 15, v{t1}")
    A(f"v_add_u32 v{t2}, 65536, v{t1}")
    for i in range(4):
        A(f"v_mov_b32 v{AG + i}, 0x3f803f80")
    for i in range(8):
        A(f"v_mov_b32 v{DG + i}, 0")
    A("s_waitcnt vmcnt(0)")
    A("s_barrier")
    stamp(1)
    checkin_read(XG, True)
    bgu = lambda mat, r1, j: BGU + 64 * mat + 32 * r1 + 8 * j
    for r1 in range(2):
        for j in range(4):
            for mat in range(2):
                for p in range(4):
                    off = mat * 8192 + (j >> 1) * 16384 + ((j & 1) * 32 + 16 * (p >> 1) + 2 * (p & 1)) * 128
                    A(f"ds_read_b64_tr_b16 {vr(bgu(mat, r1, j) + 2 * p, 2)}, v{t1 + r1} offset:{off}")
            A("s_waitcnt lgkmcnt(4)")
    A("s_waitcnt lgkmcnt(0)")
    A("s_barrier")
    A.c("column sums of the weights")
    for r1 in range(2):
        for j in range(4):
            for mat in range(2):
                smf(DG + 4 * mat, AG, bgu(mat, r1, j), vIdx)

    def fold2(D):
        for a in (D, D + 4):
            A(f"v_permlane32_swap_b32 v{a}, v{a + 2}")
            A(f"v_permlane32_swap_b32 v{a + 1}, v{a + 3}")
        for a in (D, D + 4):
            A(f"v_pk_add_f32 {vr(a, 2)}, {vr(a, 2)}, {vr(a + 2, 2)}")
        for a in (D, D + 4):
            A(f"v_permlane16_swap_b32 v{a}, v{a + 1}")
        for a in (D, D + 4):
            A(f"v_add_f32 v{a}, v{a}, v{a + 1}")

    A("s_waitcnt vmcnt(0)")
    checkin_read(XG, False)
    A(f"buffer_load_dwordx4 {vr(RS + 16, 4)}, v{vLin}, {sr(S_WS, 4)}, s18 offen sc1")
    A(f"v_lshlrev_b32 v{vXr}, 16, v{vXr}")
    A(f"buffer_store_short v{vXr}, v{vOs}, {sr(S_OUT, 4)}, 0 offen")
    A(f"v_add_f32 v{vCg}, v{DG}, v{DG + 1}")
    A(f"v_add_f32 v{vCu}, v{DG + 4}, v{DG + 5}")
    for i in range(DG, DG + 16):
        A(f"v_mov_b32 v{i}, 0")
    stamp(2)
    A(f"s_mov_b32 s{sCNT}, 0")
    A(f"s_mov_b32 s{sA}, 0x3f803f80")
    A("s_mov_b32 s20, 0x00050005" if not fine else "s_mov_b32 s26, 0x00050005")
    A("s_mov_b32 s21, 0x00050005" if not fine else "s_mov_b32 s27, 0x00050005")
    hmask = "s[20:21]" if not fine else "s[26:27]"
    A("s_mov_b32 s22, 0x3b000000")
    A("s_mov_b32 s23, 0x3b000000")
    A(f"v_mov_b32 v{LA}, v{vW0}")
    A(f"v_mov_b32 v{LA + 1}, v{vW1}")
    stamp(3)
    A.c("stage 1: wait for the seven log-sum-exp words, then fetch and combine the partial outputs of batch v")

    def lchk(u):
        R = LS + 4 * u
        A(f"v_mov_b32 v{PT}, v{R}")
        A(f"v_mov_b32 v{PT + 2}, v{R + 2}")
        A(f"v_xor_b32 v{t1}, s{sTAG}, v{R + 1}")
        A(f"v_xor_b32 v{t2}, s{sTAG}, v{R + 3}")
        A(f"v_or_b32 v{t1}, v{t1}, v{t2}")
        A(f"v_cmpx_ne_u32 vcc, 0, v{t1}")
    mpoll(lsets, lgap, lambda u: [f"buffer_load_dwordx2 {vr(LS + 4 * u + 2 * i, 2)}, v{LA + i}, {sr(S_WS, 4)}, s16 offen sc1" for i in range(2)], lchk, slp=lslp)
    rec_loads = lambda u: [f"buffer_load_dwordx4 {vr(RS + 16 * u + 8 * i + 4 * hf, 4)}, v{vP0 + i}, {sr(S_WS, 4)}, s{sREC} offen offset:{512 + 256 * hf} sc1"
                           for i in range(2) for hf in range(2)]
    rec_check = lambda u: tag_check(range(PT, PT + 16), TAGS, t2, RS + 16 * u, "x")
    stamp(4)
    if pre[0]:
        A(f"s_sleep {pre[0]}")
    for l in rec_loads(0):
        A(l)
    A(f"v_max_f32 v{t1}, v{PT}, v{PT + 2}")
    allred_rows("v_max_f32", t1, t2)
    A(f"v_sub_f32 v{PT}, v{PT}, v{t1}")
    A(f"v_sub_f32 v{PT + 2}, v{PT + 2}, v{t1}")
    A(f"v_exp_f32 v{PT}, v{PT}")
    A(f"v_exp_f32 v{PT + 2}, v{PT + 2}")
    A(f"v_cmp_eq_u32 vcc, 3, v{vG}")
    A(f"v_cndmask_b32 v{PT + 2}, v{PT + 2}, 0, vcc")
    A(f"v_add_f32 v{t1}, v{PT}, v{PT + 2}")
    allred_rows("v_add_f32", t1, t2)
    A(f"v_rcp_f32 v{t1}, v{t1}")
    A(f"v_mul_f32 v{t3}, v{PT + 2}, v{t1}")
    A(f"v_mul_f32 v{t1}, v{PT}, v{t1}")
    A("s_waitcnt vmcnt(0)")
    stamp(2)
    rec_check(0)
    A("s_cbranch_execnz L_rec_late")
    A("L_rec_ok:")
    A("s_mov_b64 exec, -1")
    stamp(6)
    keep, A.lines = A.lines, []
    A("L_rec_late:")
    mpoll(nsets[0], gap[0], rec_loads, rec_check)
    A("s_branch L_rec_ok")
    cold.extend(A.lines)
    A.lines = keep
    fs(0)
    for p in range(0, 8, 2):
        A(f"v_pk_mul_f32 {vr(PT + p, 2)}, {vr(PT + p, 2)}, {vr(t1, 2)} op_sel_hi:[1,0]")
    for p in range(0, 8, 2):
        A(f"v_pk_fma_f32 {vr(PT + p, 2)}, {vr(PT + 8 + p, 2)}, {vr(t3, 2)}, {vr(PT + p, 2)} op_sel_hi:[1,0,1]")
    fold2(PT)
    A(f"v_cvt_pk_bf16_f32 v{PT}, v{PT}, v{PT + 4}")
    A(f"ds_write_b16 v{vOw}, v{PT} offset:{OL}")
    A(f"ds_write_b16_d16_hi v{vOw}, v{PT} offset:{OL + 8}")
    A("s_waitcnt lgkmcnt(0)")
    A("s_barrier")
    fs(1)
    A("s_barrier")
    fs(2)

    def column_sums(tags, f, k):
        mpoll(nsets[k], gap[k],
              lambda u: [f"buffer_load_dwordx4 {vr(RS + 8 * u + 4 * i, 4)}, v{vLin}, {sr(S_WS, 4)}, s17 offen offset:{1024 * i} sc1" for i in range(2)],
              lambda u: tag_check(range(PT, PT + 8), tags, t2, RS + 8 * u, "x"), pre[k])
        fs(f)
        A(f"v_pk_add_f32 {vr(PT, 2)}, {vr(PT, 2)}, {vr(PT + 4, 2)}")
        A(f"v_pk_add_f32 {vr(PT + 2, 2)}, {vr(PT + 2, 2)}, {vr(PT + 6, 2)}")
        rows_to_batches(PT)
        dpp_red("v_add_f32", [PT], [8, 4])
        rb(PT, PT)

    A.c("stage 2: h = x + sum of the 32 head contributions")
    column_sums(TAGS, 3, 1)
    A(f"v_add_f32 v{PT}, v{PT}, v{vXr}")
    A(f"s_cmp_eq_u32 s{sFAST}, 0")
    A(f"v_mov_b32_dpp v{PT + 1}, v{PT} quad_perm:[1,1,3,3] row_mask:0xf bank_mask:0xf")
    A(f"v_cvt_pk_bf16_f32 v{vH}, v{PT}, v{PT + 1}")
    A(f"v_min_u32 v{t2}, -2, v{vH}")
    A(f"s_mov_b64 exec, {hmask}")
    A("s_cbranch_scc1 L_h_far")
    A(f"buffer_store_dword v{t2}, v{vHs}, {sr(S_WST, 4)}, 0 offen")
    A("L_h_sent:")
    A("s_mov_b64 exec, -1")
    stamp(5)
    fs(4)
    A.c("stage 3: gather h, LayerNorm folded around h @ [w_gate | w_up], act = silu(g) * u")

    def hchk(u):
        R = RS + 4 * u
        A(f"v_pk_mov_b32 {vr(PT, 2)}, {vr(R, 2)}, {vr(R, 2)} op_sel:[0,1]")
        A(f"v_pk_mov_b32 {vr(PT + 2, 2)}, {vr(R + 2, 2)}, {vr(R + 2, 2)} op_sel:[0,1]")
        A(f"v_max_u32 v{t1}, v{R}, v{R + 1}")
        A(f"v_max3_u32 v{t1}, v{t1}, v{R + 2}, v{R + 3}")
        A(f"v_cmpx_eq_u32 vcc, -1, v{t1}")
    mpoll(nsets[2], gap[2], lambda u: [f"buffer_load_dwordx4 {vr(RS + 4 * u, 4)}, v{vLin}, {sr(S_WS, 4)}, s18 offen sc1"], hchk, pre[2])
    fs(5)
    A(f"ds_write_b128 v{vHw}, {vr(PT, 4)} offset:{HL}")
    A(f"v_dot2_f32_bf16 v{t1}, v{PT}, s{sA}, 0")
    A(f"v_dot2_f32_bf16 v{t2}, v{PT}, v{PT}, 0")
    for i in range(1, 4):
        A(f"v_dot2_f32_bf16 v{t1}, v{PT + i}, s{sA}, v{t1}")
        A(f"v_dot2_f32_bf16 v{t2}, v{PT + i}, v{PT + i}, v{t2}")
    A(f"v_lshlrev_b32 v{vH}, 16, v{vH}")
    A(f"ds_write_b64 v{vSw}, {vr(t1, 2)} offset:{SL}")
    A("s_waitcnt lgkmcnt(0)")
    A("s_barrier")
    fs(6)
    hrd = lambda j: f"ds_read_b128 {vr(AG + 4 * j, 4)}, v{vLin} offset:{HL + 1024 * j}"
    A(hrd(0))
    A(f"ds_read_b128 {vr(PT, 4)}, v{vLin} offset:{SL}")
    A(f"ds_read_b128 {vr(PT + 4, 4)}, v{vLin} offset:{SL + 1024}")
    A(hrd(1))
    dp = lambda v, r: f"v_add_f32_dpp v{v}, v{v}, v{v} row_ror:{r} row_mask:0xf bank_mask:0xf"
    chain = [[hrd(2)], [hrd(3), "s_waitcnt lgkmcnt(3)", f"v_pk_add_f32 {vr(PT, 2)}, {vr(PT, 2)}, {vr(PT + 2, 2)}"],
             [f"v_pk_add_f32 {vr(PT + 4, 2)}, {vr(PT + 4, 2)}, {vr(PT + 6, 2)}"],
             [f"v_pk_add_f32 {vr(PT, 2)}, {vr(PT, 2)}, {vr(PT + 4, 2)}"]]
    for r in (8, 4, 2, 1):
        chain += [[dp(PT, r)], [dp(PT + 1, r)]]
    if mimic2:
        chain += [[f"v_pk_mul_f32 {vr(t1, 2)}, {vr(PT, 2)}, s[22:23]"],
                  [f"v_fma_f32 v{t2}, -v{t1}, v{t1}, v{t2}", f"v_max_f32 v{t2}, 0, v{t2}"],
                  [f"v_cvt_pk_bf16_f32 v{t2}, v{t1}, v{t2}", f"v_lshlrev_b32 v{t1}, 16, v{t2}"],
                  [f"v_and_b32 v{t2}, 0xffff0000, v{t2}", f"v_add_f32 v{t2}, 0x3727c5ac, v{t2}",
                   f"v_cvt_pk_bf16_f32 v{t2}, v{t2}, v{t2}", f"v_lshlrev_b32 v{t2}, 16, v{t2}",
                   f"v_sqrt_f32 v{t2}, v{t2}", f"v_pk_mul_f32 {vr(vCg, 2)}, {vr(vCg, 2)}, {vr(t1, 2)} op_sel_hi:[1,0]",
                   f"v_cvt_pk_bf16_f32 v{t2}, v{t2}, v{t2}", f"v_lshlrev_b32 v{t2}, 16, v{t2}", f"v_rcp_f32 v{t2}, v{t2}"]]
    else:
        chain += [[f"v_pk_mul_f32 {vr(t1, 2)}, {vr(PT, 2)}, s[22:23]"],
                  [f"v_fma_f32 v{t2}, -v{t1}, v{t1}, v{t2}"],
                  [f"v_max_f32 v{t2}, 0, v{t2}"],
                  [f"v_add_f32 v{t2}, 0x3727c5ac, v{t2}", f"v_rsq_f32 v{t2}, v{t2}",
                   f"v_pk_mul_f32 {vr(vCg, 2)}, {vr(vCg, 2)}, {vr(t1, 2)} op_sel_hi:[1,0]"]]
    for n in range(16):
        j, r1, mat = n >> 2, (n >> 1) & 1, n & 1
        if n & 3 == 0:
            A(f"s_waitcnt lgkmcnt({3 - j})")
        smf(DG + 8 * mat + 4 * r1, AG + 4 * j, bgu(mat, r1, j), vIdx)
        for c in chain.pop(0):
            A(c)
    assert not chain
    fs(7)
    A(f"v_pk_add_f32 {vr(DG, 2)}, {vr(DG, 2)}, {vr(DG + 6, 2)}")
    A(f"v_mul_f32 v{t3}, 0xbfb8aa3b, v{t2}")
    A(f"v_add_f32 v{DG}, v{DG}, v{DG + 1}")
    A(f"v_sub_f32 v{DG}, v{DG}, v{vCg}")
    A(f"v_mul_f32 v{t1}, v{DG}, v{t3}")
    A(f"v_exp_f32 v{t1}, v{t1}")
    A(f"v_pk_add_f32 {vr(DG + 8, 2)}, {vr(DG + 8, 2)}, {vr(DG + 14, 2)}")
    A(f"v_add_f32 v{t1}, 1.0, v{t1}")
    A(f"v_rcp_f32 v{t1}, v{t1}")
    A(f"v_add_f32 v{DG + 1}, v{DG + 8}, v{DG + 9}")
    A(f"v_sub_f32 v{DG + 1}, v{DG + 1}, v{vCu}")
    A(f"v_pk_mul_f32 {vr(DG, 2)}, {vr(DG, 2)}, {vr(t1, 2)} op_sel:[0,1] op_sel_hi:[1,1]")
    A(f"v_mul_f32 v{DG}, v{DG}, v{t1}")
    A(f"v_mul_f32 v{DG}, v{DG}, v{DG + 1}")
    A(f"v_cvt_pk_bf16_f32 v{DG}, v{DG}, v{DG}")
    A(f"ds_write_b16 v{vAw}, v{DG} offset:{AL}")
    A("s_waitcnt lgkmcnt(0)")
    A("s_barrier")
    fs(8)
    A("s_barrier")
    fs(9)
    A.c("stage 4: out = h + sum of the down-projection contributions")
    column_sums([f"s{sTZ + i}" for i in range(4)], 10, 3)
    A(f"v_add_f32 v{PT}, v{PT}, v{vH}")
    A("s_mov_b32 exec_lo, 0x000f000f")
    A("s_mov_b32 exec_hi, 0x000f000f")
    A(f"v_cvt_pk_bf16_f32 v{PT}, v{PT}, v{PT}")
    A(f"buffer_store_short v{PT}, v{vOs}, {sr(S_OUT, 4)}, 0 offen")
    fs(11)
    if fine:
        A("s_waitcnt vmcnt(0)")
        fs(12)
        fine_out()
    A(f"s_or_b32 s{sA}, s{sT}, s{sU}")
    A("s_cbranch_scc1 L_fin")
    A.c("advance the epoch so that the next launch rejects this launch's hand-offs")
    A(f"s_add_u32 s{sA}, s{sTAG}, {TAGC:#x}")
    A(f"v_mov_b32 v{t1}, s{sA}")
    A(f"v_mov_b32 v{t2}, {EPOCH}")
    A("s_mov_b64 exec, 1")
    A(f"buffer_store_dword v{t1}, v{t2}, {sr(S_WST, 4)}, 0 offen")
    A("s_branch L_fin")
    A("L_h_far:")
    A(f"buffer_store_dword v{t2}, v{vHs}, {sr(S_WST, 4)}, 0 offen sc1")
    A("s_branch L_h_sent")
    for l in cold:
        A(l)

    A("L_fin:")
    if amp:
        idx, role, wave = amp
        A("s_waitcnt vmcnt(0)")
        stamp(7)
        A(f"s_cmp_lg_u32 s{sW}, {wave}")
        A("s_cbranch_scc1 L_end")
        A(f"s_cmp_eq_u32 s{sXI}, {tailx}")
        A("s_cbranch_scc0 L_end" if role == "tail" else "s_cbranch_scc1 L_end")
        A("s_waitcnt lgkmcnt(0)")
        A(f"s_sub_u32 s{sA}, s{sST + 2 * idx}, s{sST}")
        if ampx is not None:
            A(f"s_getreg_b32 s{sA}, hwreg(HW_REG_XCC_ID, 0, 3)")
            A(f"s_add_u32 s{sA}, s{sA}, {ampx}")
            A(f"s_and_b32 s{sA}, s{sA}, 7")
            A(f"s_mul_i32 s{sA}, s{sA}, 125")
        A(f"s_min_u32 s{sA}, s{sA}, 20000")
        A(f"s_lshl_b32 s{sA}, s{sA}, 3")
        A(f"s_add_u32 s{sA}, s{sA}, 6000")
        A("L_amp:")
        A(f"s_memrealtime {sr(sC, 2)}")
        A("s_waitcnt lgkmcnt(0)")
        A(f"s_sub_u32 s{sB}, s{sC}, s{sST}")
        A(f"s_cmp_lt_u32 s{sB}, s{sA}")
        A("s_cbranch_scc1 L_amp")
    if stamps:
        A("s_waitcnt vmcnt(0)")
        stamp(7)
        A("s_waitcnt lgkmcnt(0)")
        for i in range(8):
            A(f"v_mov_b32 v{16 + i}, s{sST + 2 * i}")
        A(f"s_lshl_b32 s{sA}, s2, 3")
        A(f"s_add_u32 s{sA}, s{sA}, s{sW}")
        A(f"s_lshl_b32 s{sA}, s{sA}, 5")
        A(f"s_add_u32 s{sA}, s{sA}, {STAMPS}")
        A("v_mov_b32 v4, 0")
        A("s_mov_b64 exec, 1")
        A(f"buffer_store_dwordx4 v[16:19], v4, {sr(S_WS, 4)}, s{sA} offen")
        A(f"buffer_store_dwordx4 v[20:23], v4, {sr(S_WS, 4)}, s{sA} offen offset:16")
    A("L_end:")
    A("s_endpgm")
    A("L_code_end:")

    body, n = insert_waits(A.lines)
    out = HEADER
    out += "; @launch grid=(256,1,1) block=(512,1,1) lds=163840\n"
    out += '.amdgcn_target "amdgcn-amd-amdhsa--gfx950"\n.text\n'
    out += f".globl {NAME}\n.p2align 8\n.type {NAME},@function\n"
    out += "\n".join(("" if t.endswith(":") else "    ") + t for t in body) + "\n"
    out += f""".section .rodata,"a"
.p2align 6
.amdhsa_kernel {NAME}
  .amdhsa_next_free_vgpr 256
  .amdhsa_next_free_sgpr 102
  .amdhsa_accum_offset 256
  .amdhsa_group_segment_fixed_size 0
  .amdhsa_kernarg_size 96
  .amdhsa_user_sgpr_count 2
  .amdhsa_user_sgpr_kernarg_segment_ptr 1
  .amdhsa_system_sgpr_workgroup_id_x 1
  .amdhsa_float_denorm_mode_32 3
.end_amdhsa_kernel
"""
    return out


if __name__ == "__main__":
    kw = {}
    for a in sys.argv[2:]:
        k, v = a.split("=")
        kw[k] = eval(v)
    open(sys.argv[1], "w").write(gen(**kw))
```

```python
import sys
sys.path.insert(0, "exp")
from asmlib import Asm, vr, sr, insert_waits

NAME = "sequential_preLN__sliding_block_cached__swiglu_ffn__decode_kernel"
HEADER = open("sequential_preLN__sliding_block_cached__swiglu_ffn__decode.s.ref").read().split("; Override launch")[0]

QP, YBUF, HBUF, EPOCH, XBUF, OBUF, STAMPS = 0x0, 0x40000, 0x80000, 0x82000, 0x83000, 0x84000, 0x1c0000
TAGC = 0x9e3779b1
PBUF = 0x188000
VERSION = 28
REC = 4096
WS_SIZE = 0x200000
FLAG_OFF = 0

S_X, S_WQ, S_WS, S_WST, S_A, S_B, S_WG, S_WU, S_OUT, S_DBG = 28, 32, 36, 40, 44, 48, 52, 56, 60, 64
sW, sXI, sT, sLIM, sCNT, sPASS, sFAST, sLB, sT0, sNT = 68, 69, 70, 71, 72, 73, 74, 75, 76, 77
sA, sB, sC, sD = 78, 79, 80, 81
sSELLO, sSELHI, sREC, sTAG = 82, 83, 84, 85
sXQ = 3
sHQ, sKQ, sROT = 64, 65, 66
sMASK = 4
sTB = 12
sST = 86
vL, vN, vG = 1, 2, 3
vFF = 255
QL, ML, LL, PB = 151552, 152576, 152640, 153600


def gen(tailx=0, kvflags="nt", wqflags="nt", woflags="nt", guflags="nt", wdflags="nt", stamps=False, force_slow=False,
        dry=False, limit=0x40000, vwin=6, kwin=0, vbar=9, gsched=(4, 3, 3, 3, 3), kprio=0, amp=None, kbar=1, qprio=3, gather_before=0, qmap=1, drop='', codepf=False, tprio=True, slp=8, slp2=0, qstflags='sc1', touchflags='sc1', qwarm=None, qwb=False, fine=False, gyoung=True, nsets=(2, 2, 2, 2), gap=(2, 2, 2, 1), gwin=12, r1at=7, oprio=1, gprio=1, mimic2=True, vtile=4, ktile=None, ampx=None, vtouch=False, shift=None, pmap=1, ackbar=(None, None), pre=(0, 2, 3, 4), early=False, hv=5, lsets=2, lgap=2, owarm=False, lslp=0, nearflags='', rots=1, rotr=0, orot=True, gw=8, tailpf=True, warm_t=True, warm_a=True, warm_at=5, paced=0, dense=False, vearly=0, vew=0, veprio=1, adapt=None, peer=None, qpre=None, qlay=1, near_tries=6, trim=True, hheavy=0, hearly=2, vpost=None, pfirst=2, korder=(0, 1, 9, 8, 2, 3, 4, 5, 6, 7)):
    A = Asm()

    def stamp(i):
        if stamps or (amp and i in (0, amp[0])) or (adapt and i == 0):
            A(f"s_memrealtime {sr(sST + 2 * i, 2)}")

    FS = [44, 46, 48, 50, 52, 54, 56, 58, 20, 32, 24, 28, 30]

    def fs(i):
        if fine:
            A(f"s_memtime {sr(FS[i], 2)}")

    def slot_off(dst, base, slot):
        if rots and slot < 8:
            A(f"s_add_u32 s{dst}, s{sROT}, {16384 * slot}")
            A(f"s_and_b32 s{dst}, s{dst}, 0x1ffff")
            A(f"s_add_u32 s{dst}, s{dst}, s{base}")
        else:
            A(f"s_add_u32 s{dst}, s{base}, {16384 * slot}")

    def stub(name, on):
        if on:
            A(f"L_warm_{name}:")
            A(f"s_cbranch_execz L_back_{name}")

    def touch(names):
        A.c("fetch later code into the instruction cache: jump to each landing point with no lanes active and come back")
        A("s_mov_b64 exec, 0")
        for n in names:
            A(f"s_branch L_warm_{n}")
            A(f"L_back_{n}:")
        A("s_mov_b64 exec, -1")

    def sec(name):
        A(f".sec {name}")

    def srd(base, ptr, size):
        A(f"s_mov_b32 s{base}, s{ptr}")
        A(f"s_mov_b32 s{base + 1}, s{ptr + 1}")
        A(f"s_mov_b32 s{base + 2}, {size:#x}")
        A(f"s_mov_b32 s{base + 3}, 0x20000")

    def rb(dst, src):
        A(f"v_cvt_pk_bf16_f32 v{dst}, v{src}, v{src}")
        A(f"v_lshlrev_b32 v{dst}, 16, v{dst}")

    def allred_rows(op, v, t):
        A(f"v_mov_b32 v{t}, v{v}")
        A(f"v_permlane32_swap_b32 v{v}, v{t}")
        A(f"{op} v{v}, v{v}, v{t}")
        A(f"v_mov_b32 v{t}, v{v}")
        A(f"v_permlane16_swap_b32 v{v}, v{t}")
        A(f"{op} v{v}, v{v}, v{t}")

    def dpp_red(op, regs, rots):
        for r in rots:
            for v in regs:
                A(f"{op}_dpp v{v}, v{v}, v{v} row_ror:{r} row_mask:0xf bank_mask:0xf")

    def quad_red(v):
        for p in ("[1,0,3,2]", "[2,3,0,1]"):
            A(f"v_add_f32_dpp v{v}, v{v}, v{v} quad_perm:{p} row_mask:0xf bank_mask:0xf")

    def rows_to_batches(D):
        A(f"v_permlane32_swap_b32 v{D}, v{D + 2}")
        A(f"v_permlane32_swap_b32 v{D + 1}, v{D + 3}")
        A(f"v_add_f32 v{D}, v{D}, v{D + 2}")
        A(f"v_add_f32 v{D + 1}, v{D + 1}, v{D + 3}")
        A(f"v_permlane16_swap_b32 v{D}, v{D + 1}")
        A(f"v_add_f32 v{D}, v{D}, v{D + 1}")

    def fold_d(D):
        for rho in (1, 2, 3):
            for r in range(4):
                A(f"v_mov_b32_dpp v{D + r}, v{D + 4 * rho + r} quad_perm:[0,1,2,3] row_mask:{1 << rho:#x} bank_mask:0xf")
        rows_to_batches(D)

    def mfma16(D, Areg, Breg, first):
        c = "0" if first else vr(D, 4)
        A(f"v_mfma_f32_16x16x32_bf16 {vr(D, 4)}, {vr(Areg, 4)}, {vr(Breg, 4)}, {c}")

    def sentinel_check(regs, t):
        regs = list(regs)
        if len(regs) % 2 == 0:
            A(f"v_max_u32 v{t}, v{regs[0]}, v{regs[1]}")
            rest = regs[2:]
        else:
            A(f"v_max3_u32 v{t}, v{regs[0]}, v{regs[1]}, v{regs[2]}")
            rest = regs[3:]
        for i in range(0, len(rest), 2):
            A(f"v_max3_u32 v{t}, v{t}, v{rest[i]}, v{rest[i + 1]}")
        A(f"v_cmp_eq_u32 vcc, -1, v{t}")

    def tag_check(regs, tags, t, src=None, x="", extra=()):
        regs = list(regs)
        for i, r in enumerate(regs):
            A(f"v_xor_b32 v{r}, {tags[i % len(tags)]}, v{r if src is None else src + i}")
        A(f"v_or_b32 v{t}, v{regs[0]}, v{regs[1]}")
        for i in range(2, len(regs), 2):
            A(f"v_or3_b32 v{t}, v{t}, v{regs[i]}, v{regs[i + 1]}")
        for l in extra:
            A(l)
        A(f"v_cmp{x}_ne_u32_sdwa vcc, v{t}, 0 src0_sel:BYTE_0 src1_sel:DWORD")

    TAGS = [f"s{sTB + i}" for i in range(4)]

    def tag_put(D, tb=sTB):
        for i in range(4):
            A(f"v_bfi_b32 v{D + i}, v{vFF}, s{tb + i}, v{D + i}")

    def poll(loads, check, wait="s_waitcnt vmcnt(0)", sleep=0):
        top, out = A.label("poll"), A.label("polled")
        A(f"s_mov_b32 s{sCNT}, 0")
        A(f"{top}:")
        for l in loads:
            A(l)
        A(f"s_add_u32 s{sCNT}, s{sCNT}, 1")
        A(f"s_cmp_ge_u32 s{sCNT}, s{sLIM}")
        A(wait)
        check()
        A(f"s_cbranch_scc1 {out}")
        if sleep:
            A(f"s_cbranch_vccz {out}")
            A(f"s_sleep {sleep}")
            A(f"s_branch {top}")
        else:
            A(f"s_cbranch_vccnz {top}")
        A(f"{out}:")

    cold = []

    def mpoll(n, g, mk_loads, mk_check, p=0, slp=0):
        top, more, out = A.label("poll"), A.label("more"), A.label("polled")
        nl = len(mk_loads(0))
        if p == "ack":
            A("s_waitcnt vmcnt(0)")
        elif p:
            A(f"s_sleep {p}")
        for u in range(n - 1):
            for l in mk_loads(u):
                A(l)
            if g:
                A(f"s_sleep {g}")
        A(f"{top}:")
        for l in mk_loads(n - 1):
            A(l)
        A(f"s_waitcnt vmcnt({(n - 1) * nl})")
        mk_check(0)
        A(f"s_cbranch_execnz {more}")
        A(f"{out}:")
        A("s_mov_b64 exec, -1")
        keep, A.lines = A.lines, []
        A(f"{more}:")
        for u in range(1, n):
            for l in mk_loads(u - 1):
                A(l)
            A(f"s_waitcnt vmcnt({(n - 1) * nl})")
            mk_check(u)
            A(f"s_cbranch_execz {out}")
        A(f"s_add_u32 s{sCNT}, s{sCNT}, 1")
        A(f"s_cmp_lt_u32 s{sCNT}, s{sLIM}")
        if slp:
            A(f"s_sleep {slp}")
        A(f"s_cbranch_scc1 {top}")
        A(f"s_branch {out}")
        cold.extend(A.lines)
        A.lines = keep

    def smf(D, Areg, Breg, idx):
        A(f"v_smfmac_f32_16x16x64_bf16 {vr(D, 4)}, {vr(Areg, 4)}, {vr(Breg, 8)}, v{idx}")

    def make_tag():
        A("s_waitcnt lgkmcnt(0)")
        A(f"s_add_u32 s{sTAG}, s{sTAG}, {TAGC:#x}")
        for i in range(4):
            A(f"s_bfe_u32 s{sTB + i}, s{sTAG}, {0x80000 + 8 * i:#x}")

    def set_masks():
        for i in range(4):
            A(f"s_mov_b32 s{sMASK + 2 * i}, {0x000f000f << (4 * i):#x}")
            A(f"s_mov_b32 s{sMASK + 2 * i + 1}, {0x000f000f << (4 * i):#x}")

    def store_mode(texts):
        slow, done = A.label("slow"), A.label("stored")
        A(f"s_cmp_eq_u32 s{sFAST}, 0")
        A(f"s_cbranch_scc1 {slow}")
        for t in texts:
            A(t)
        A(f"s_branch {done}")
        A(f"{slow}:")
        for t in texts:
            A(t + " sc1" if t.startswith("buffer_") else t)
        A(f"{done}:")

    def line_tile_addr(dst, base_s, t1, t2):
        A(f"v_bfe_u32 v{t1}, v{vN}, 3, 1")
        A(f"v_and_b32 v{t2}, 1, v{vG}")
        A(f"v_lshl_or_b32 v{t1}, v{t2}, 1, v{t1}")
        A(f"v_lshlrev_b32 v{t1}, 5, v{t1}")
        A(f"v_and_b32 v{t2}, 3, v{vN}")
        A(f"v_lshl_add_u32 v{t1}, v{t2}, 3, v{t1}")
        A(f"v_lshrrev_b32 v{t2}, 2, v{vN}")
        A(f"v_lshl_add_u32 v{t1}, v{t2}, 7, v{t1}")
        A(f"v_lshl_add_u32 v{t1}, v{vG}, 10, v{t1}")
        for i in range(4):
            A(f"v_xor_b32 v{dst + i}, {32 * i}, v{t1}")
            if base_s is not None:
                A(f"v_add_u32 v{dst + i}, s{base_s}, v{dst + i}")

    def line_tile_read(dst, addr, off):
        for i in range(4):
            A(f"ds_read_b64_tr_b16 {vr(dst(i), 2)}, v{addr + i} offset:{off}")
            A(f"ds_read_b64_tr_b16 {vr(dst(i) + 2, 2)}, v{addr + i} offset:{off + 512}")

    def swz_chunk(dst, t):
        A(f"v_and_b32 v{t}, 1, v{vG}")
        A(f"v_lshlrev_b32 v{t}, 1, v{t}")
        A(f"v_and_b32 v{dst}, 7, v{vL}")
        A(f"v_xor_b32 v{dst}, v{dst}, v{t}")
        A(f"v_lshlrev_b32 v{dst}, 4, v{dst}")

    def consts():
        A(f"v_mov_b32 v{vFF}, 0xff")
        A(f"s_mov_b32 s{sLIM}, {limit}")

    def sel_consts():
        A(f"s_mov_b32 s{sSELLO}, 0x05040100")
        A(f"s_mov_b32 s{sSELHI}, 0x07060302")

    assert tailx == 0
    KO, KA, QO = 4, 8, 12
    vM, vLs, vT1, vT2, vGA = 14, 15, 62, 63, 61
    Q, S, PA, QM, KF, QG = 16, 32, 44, 64, 128, 160

    def role_calc():
        A.c("index 32(x-1) + t -> (pair, role): the splits of one pair sit on neighbouring workgroups of one die")
        A(f"s_lshl_b32 s{sB}, s{sXI}, 5")
        A(f"s_add_u32 s{sB}, s{sB}, s{sT}")
        A(f"s_sub_u32 s{sB}, s{sB}, 32")
        A(f"s_mul_i32 s{sT}, s{sB}, 9363")
        A(f"s_lshr_b32 s{sT}, s{sT}, 16")
        A(f"s_mul_i32 s{sA}, s{sT}, 7")
        A(f"s_sub_u32 s{sB}, s{sB}, s{sA}")
        A.c("roles own 37,37,37,37,37,36,35 tiles; byte offset of this wave's first tile")
        A(f"s_mul_i32 s{sT0}, s{sB}, 37")
        A(f"s_min_u32 s{sT0}, s{sT0}, 221")
        A(f"s_lshl_b32 s{sA}, s{sT}, 10")
        A(f"s_add_u32 s{sT0}, s{sT0}, s{sA}")
        A(f"s_and_b32 s{sD}, s{sW}, 3")
        A(f"s_add_u32 s{sT0}, s{sT0}, s{sD}")
        A(f"s_addk_i32 s{sT0}, 768")
        A(f"s_lshl_b32 s{sT0}, s{sT0}, 12")
        A(f"s_lshl_b32 s{sROT}, s{sT}, 14")

    def tile_count():
        A(f"s_max_u32 s{sA}, s{sB}, 4")
        A(f"s_sub_u32 s{sNT}, 41, s{sA}")

    sec("entry")
    A(f"{NAME}:")
    stamp(0)
    A("s_load_dwordx16 s[4:19], s[0:1], 0")
    A("s_load_dwordx8 s[20:27], s[0:1], 64")
    A("v_lshrrev_b32 v4, 6, v0")
    A(f"v_and_b32 v{vL}, 63, v0")
    A(f"v_readfirstlane_b32 s{sW}, v4")
    A(f"s_lshr_b32 s{sT}, s2, 3")
    A(f"s_cmp_ge_u32 s{sT}, 32")
    A("s_cbranch_scc1 L_end")
    A(f"v_lshrrev_b32 v{vG}, 4, v{vL}")
    A(f"s_and_b32 s{sXI}, s2, 7")
    A("s_cbranch_scc0 L_tail")
    A(f"s_cmp_eq_u32 s{sW}, 7")
    A("s_cbranch_scc1 L_v_init")
    A(f"s_cmp_eq_u32 s{sW}, 6")
    A("s_cbranch_scc1 L_v6")
    role_calc()
    A(f"s_cmp_ge_u32 s{sW}, 4")
    A("s_cbranch_scc1 L_qside")
    A.c("K wave k: key tiles k, k+4, .. go to LDS; source chunk (l&15) ^ (4(l>>4) + i) keeps the fragment reads conflict-free")
    A(f"v_lshlrev_b32 v{KO}, 2, v{vG}")
    A(f"v_xor_b32 v{KO}, v{KO}, v{vL}")
    A(f"v_lshlrev_b32 v{KO}, 4, v{KO}")
    for i in (1, 2, 3):
        A(f"v_xor_b32 v{KO + i}, {16 * i}, v{KO}")
    A(f"s_sub_u32 s{sA}, 3, s{sW}")
    A(f"s_mul_i32 m0, s{sA}, 0x9000")
    A(f"s_and_b32 s{sC}, s{sROT}, 0x1ffff")
    A(f"s_add_u32 s{sC}, s{sC}, s{sT0}")
    A(f"s_lshl_b32 s{S_A + 2}, {0 if 'k' in drop else 1}, 27")
    A(f"s_mov_b32 s{S_A + 3}, 0x20000")
    A("s_waitcnt lgkmcnt(0)")
    A(f"s_mov_b64 {sr(S_A, 2)}, s[6:7]")
    kloads = [f"buffer_load_dwordx4 v{KO + i}, {sr(S_A, 4)}, s{sC} offen offset:{1024 * i} {kvflags} lds" for i in range(4)]
    for l in kloads:
        A(l)
    stamp(1)
    A("s_branch L_k_more")

    sec("vinit")
    A("L_v_init:")
    A.c("LDS: the q copy and the max slots start empty")
    for i in range(4):
        A(f"v_mov_b32 v{8 + i}, -1")
    A(f"v_lshlrev_b32 v6, 4, v{vL}")
    A(f"v_add_u32 v7, {QL}, v6")
    A("ds_write_b128 v7, v[8:11]")
    A("ds_write_b128 v7, v[8:11] offset:1024")
    A("s_waitcnt lgkmcnt(0)")
    A("s_barrier")
    A("s_branch L_v_late")
    sec("qhead")
    A("L_qside:")
    A(f"v_and_b32 v{vN}, 15, v0")
    tile_count()
    A(f"s_cmp_eq_u32 s{sB}, 6")
    A(f"s_cselect_b32 s{sA}, {0 if 'j' in drop else 5}, {0 if 'j' in drop else 4}")
    A(f"s_cmp_le_u32 s{sW}, s{sA}")
    A("s_cbranch_scc1 L_qjob")
    A("s_waitcnt lgkmcnt(0)")
    A("s_barrier")
    A("s_branch L_v_warm")
    A("L_qjob:")
    A.c("q job: LayerNorm(x)[:, 128 kq : 128 kq + 128] @ wq[those rows, column block xq of kv head hq]")
    if qprio:
        A(f"s_setprio {qprio}")
    A.c("column block by split: 2,4,5,6,7 for the long splits, 3 for the 36-tile split, 0 and 1 for the 35-tile split")
    A(f"s_add_u32 s{sA}, s{sB}, s{sW}")
    A(f"s_sub_u32 s{sA}, s{sA}, 4")
    A(f"s_lshl_b32 s{sA}, s{sA}, 2")
    A(f"s_lshr_b32 s{sXQ}, 0x10376542, s{sA}")
    A(f"s_and_b32 s{sXQ}, s{sXQ}, 7")
    if qmap == 1:
        A(f"s_and_b32 s{sKQ}, s{sT}, 3")
        A(f"s_lshr_b32 s{sHQ}, s{sT}, 2")
    elif qmap == 2:
        A(f"s_lshr_b32 s{sKQ}, s{sT}, 3")
        A(f"s_and_b32 s{sHQ}, s{sT}, 7")
    elif qmap == 3:
        A(f"s_lshr_b32 s{sKQ}, s{sT}, 3")
        A(f"s_and_b32 s{sHQ}, s{sT}, 1")
        A(f"s_lshl_b32 s{sHQ}, s{sHQ}, 2")
        A(f"s_bfe_u32 s{sA}, s{sT}, 0x20001")
        A(f"s_add_u32 s{sHQ}, s{sHQ}, s{sA}")
    else:
        A(f"s_bfe_u32 s{sKQ}, s{sT}, 0x20001")
        A(f"s_and_b32 s{sHQ}, s{sT}, 1")
        A(f"s_lshl_b32 s{sHQ}, s{sHQ}, 2")
        A(f"s_lshr_b32 s{sA}, s{sT}, 3")
        A(f"s_add_u32 s{sHQ}, s{sHQ}, s{sA}")
    XR, XF, QR, QB, QD = 16, 32, 64, 128, 160
    A.c("matrix row (b, rho), lane group g: x[b][128 j' + 32g + 8 rho ..], block j' = kq comes first")
    A(f"v_lshrrev_b32 v4, 2, v{vN}")
    A("v_lshlrev_b32 v4, 10, v4")
    A(f"v_and_b32 v5, 3, v{vN}")
    A("v_lshl_add_u32 v4, v5, 4, v4")
    A(f"v_lshl_add_u32 v4, v{vG}, 6, v4")
    for j in range(4):
        A(f"s_add_u32 s{56 + j}, s{sKQ}, {j}")
        A(f"s_and_b32 s{56 + j}, s{56 + j}, 3")
        A(f"s_lshl_b32 s{56 + j}, s{56 + j}, 8")
    A.c("matrix column (kappa, c): wq row 128kq + 32g + 16 r1 + 8 kappa + e, columns 8c..8c+7")
    A(f"v_lshlrev_b32 v5, 18, v{vG}")
    A(f"v_lshrrev_b32 v7, 3, v{vN}")
    A("v_lshl_add_u32 v5, v7, 16, v5")
    A(f"v_and_b32 v6, 7, v{vN}")
    A("v_lshl_add_u32 v5, v6, 4, v5")
    A(f"s_lshl_b32 s{sA}, s{sXQ}, 7")
    A(f"s_lshl_b32 s{sB}, s{sHQ}, 10")
    A(f"s_add_u32 s{sA}, s{sA}, s{sB}")
    A(f"s_lshl_b32 s{sB}, s{sKQ}, 20")
    A(f"s_add_u32 s44, s{sA}, s{sB}")
    for e in range(1, 8):
        A(f"s_add_u32 s{44 + e}, s44, {8192 * e}")
    A("v_add_u32 v10, 0x20000, v5")
    A.c("QP byte = (b*8 + hq)*8192 + kq*2048 + xq*256 + lane column * 16; piece (kappa, c) holds columns 8c + 4 kappa ..")
    A(f"s_lshl_b32 s60, s{sHQ}, {15 if qlay else 13}")
    A(f"s_lshl_b32 s{sC}, s{sKQ}, {13 if qlay else 11}")
    A(f"s_add_u32 s60, s60, s{sC}")
    A(f"s_lshl_b32 s{sC}, s{sXQ}, {10 if qlay else 8}")
    A(f"s_add_u32 s60, s60, s{sC}")
    A(f"v_lshlrev_b32 v6, 4, v{vN}")
    A(f"v_lshl_add_u32 v6, v{vG}, {8 if qlay else 16}, v6")
    A("s_waitcnt lgkmcnt(0)")
    srd(S_X, 4, 4096)
    srd(S_WQ, 10, 0 if 'q' in drop else 512 * 8192)
    stamp(3)
    if qpre:
        srd(S_WST, 26, WS_SIZE)
        if qpre == "w":
            A(f"buffer_store_dwordx4 v[0:3], v6, {sr(S_WST, 4)}, s60 offen sc1")
        else:
            A(f"buffer_load_dwordx4 v[224:227], v6, {sr(S_WST, 4)}, s60 offen")
    for j in range(4):
        A(f"buffer_load_dwordx4 {vr(XR + 4 * j, 4)}, v4, {sr(S_X, 4)}, s{56 + j} offen")
    for r1 in range(2):
        for e in range(8):
            A(f"buffer_load_dwordx4 {vr(QR + 32 * r1 + 4 * e, 4)}, v{10 if r1 else 5}, {sr(S_WQ, 4)}, s{44 + e} offen {wqflags}")
    A("s_barrier")
    A("s_branch L_q_body")

    sec("k1")
    if peer:
        A("L_k_post:")
        A.c("progress flag of this workgroup, one line per workgroup id")
        srd(S_WST, 26, WS_SIZE)
        A(f"s_lshl_b32 s{sA}, s2, 7")
        A(f"s_add_u32 s{sA}, s{sA}, {PBUF}")
        A("s_waitcnt lgkmcnt(0)")
        A(f"s_add_u32 s{sC}, s{sTAG}, {TAGC:#x}")
        A(f"v_mov_b32 v{vT1}, s{sC}")
        A(f"v_mov_b32 v{vT2}, 0")
        A("s_mov_b64 exec, 1")
        A(f"buffer_store_dword v{vT1}, v{vT2}, {sr(S_WST, 4)}, s{sA} offen sc1")
        A("s_mov_b64 exec, -1")
        A("s_branch L_k_posted")
    A("L_k_more:")
    A(f"s_mov_b32 s{sLB}, m0")
    tile_count()
    A(f"s_sub_u32 s{sNT}, s{sNT}, s{sW}")
    A(f"s_add_u32 s{sNT}, s{sNT}, 3")
    A(f"s_lshr_b32 s{sNT}, s{sNT}, 2")
    A(f"s_lshl_b32 s{sPASS}, s{sNT}, 14")
    A(f"s_movk_i32 s{sCNT}, 0x4000")
    if peer:
        A(f"s_cmp_eq_u32 s{sW}, 0")
        A(f"s_cselect_b32 s{sFAST}, {0x4000 * peer[0]}, 0")
    A(f"s_load_dword s{sTAG}, s[26:27], {EPOCH}")
    if kbar == 0:
        A("s_barrier")
        stamp(5)
    A("L_k_loop:")
    A(f"s_add_u32 m0, m0, 4096")
    A(f"s_add_u32 s{sC}, s{sROT}, s{sCNT}")
    A(f"s_and_b32 s{sC}, s{sC}, 0x1ffff")
    A(f"s_bitcmp1_b32 s{sCNT}, 17")
    A(f"s_cselect_b32 s{sC}, s{sCNT}, s{sC}")
    A(f"s_add_u32 s{sC}, s{sC}, s{sT0}")
    for l in kloads:
        A(l)
    if kbar:
        A(f"s_cmp_lg_u32 s{sCNT}, {0x4000 * kbar}")
        A("s_cbranch_scc1 L_k_nobar")
        A("s_barrier")
        stamp(5)
        A("L_k_nobar:")
    if peer:
        A(f"s_cmp_eq_u32 s{sCNT}, s{sFAST}")
        A("s_cbranch_scc1 L_k_post")
        A("L_k_posted:")
    A(f"s_addk_i32 s{sCNT}, 0x4000")
    A(f"s_cmp_lt_u32 s{sCNT}, s{sPASS}")
    A("s_cbranch_scc1 L_k_loop")
    A.c("q partials of head k: [kv head][k quarter][column block][batch][256 B]; the lane half picks the quarter")
    assert qlay == 1
    srd(S_WS, 26, WS_SIZE)
    A(f"v_and_b32 v{vN}, 15, v0")
    A(f"v_lshlrev_b32 v{vGA}, 4, v{vN}")
    A(f"v_lshrrev_b32 v{vT1}, 5, v{vL}")
    A(f"v_lshl_add_u32 v{vGA}, v{vT1}, 13, v{vGA}")
    A(f"v_and_b32 v{vT1}, 1, v{vG}")
    A(f"v_lshl_add_u32 v{vGA}, v{vT1}, 10, v{vGA}")
    A(f"s_lshl_b32 s{sREC}, s{sT}, 3")
    A(f"s_add_u32 s{sREC}, s{sREC}, s{sB}")
    A(f"s_and_b32 s{sA}, s{sT}, 7")
    A(f"s_lshl_b32 s{sA}, s{sA}, 15")
    A(f"s_lshr_b32 s{sB}, s{sT}, 3")
    A(f"s_lshl_b32 s{sB}, s{sB}, 8")
    A(f"s_add_u32 s{sA}, s{sA}, s{sB}")
    A(f"s_lshl_b32 s{sB}, s{sW}, 11")
    A(f"s_add_u32 s{sA}, s{sA}, s{sB}")
    A(f"s_add_u32 s{sB}, s{sA}, 16384")
    gloads = [f"buffer_load_dwordx4 {vr(QG + 4 * i, 4)}, v{vGA}, {sr(S_WS, 4)}, s{sB if i else sA} offen sc1" for i in range(2)]
    if 'G' in drop:
        gloads = []
    for l in gloads:
        A(l)
    A("s_barrier")
    consts()
    srd(S_WST, 26, WS_SIZE)
    A(f"s_mul_i32 s{sREC}, s{sREC}, {REC}")
    A(f"s_add_u32 s{sREC}, s{sREC}, {OBUF}")
    stamp(2)
    make_tag()
    A.c("K fragment LDS addresses: key(mu)*256 + ((4j + g) ^ mu)*16, key(mu) = 4*(mu&3) + (mu>>2)")
    A(f"v_and_b32 v{vT1}, 3, v{vN}")
    A(f"v_lshlrev_b32 v{QO}, 4, v{vT1}")
    A(f"v_lshlrev_b32 v{vT1}, 10, v{vT1}")
    A(f"v_lshrrev_b32 v{vT2}, 2, v{vN}")
    A(f"v_lshl_add_u32 v{vT1}, v{vT2}, 8, v{vT1}")
    A(f"v_xor_b32 v{vM}, v{vG}, v{vN}")
    A(f"v_lshl_add_u32 v{vT1}, v{vM}, 4, v{vT1}")
    for j in range(4):
        A(f"v_xor_b32 v{KA + j}, {64 * j}, v{vT1}")
        A(f"v_add_u32 v{KA + j}, s{sLB}, v{KA + j}")
    A(f"v_add_u32 v{QO + 1}, {ML}, v{QO}")
    A(f"v_lshl_add_u32 v{QO}, v{vG}, 6, v{QO}")
    A.c("probability slot of slot s = 4a + rho: PB + (s>>1)*1024 + k*256 + g*64 + h*16 + (s&1)*8")
    A(f"v_lshrrev_b32 v{vM}, 1, v{vT2}")
    A(f"v_lshl_add_u32 v{PA}, v{vM}, 10, v{QO}")
    A(f"v_and_b32 v{vM}, 1, v{vT2}")
    A(f"v_lshl_add_u32 v{PA}, v{vM}, 3, v{PA}")
    A(f"s_lshl_b32 s{sC}, s{sW}, 8")
    A(f"s_add_u32 s{sC}, s{sC}, {PB}")
    A(f"v_add_u32 v{PA}, s{sC}, v{PA}")
    A(f"v_add_u32 v{QO}, {QL}, v{QO}")
    A.c("s[18:19]: lanes of accumulator 2 whose tile exists")
    A(f"v_add_u32 v{vT1}, 8, v{vT2}")
    A(f"v_cmp_gt_u32 s[18:19], s{sNT}, v{vT1}")
    set_masks()
    for i in range(0, 64, 2):
        A(f"v_mov_b64 {vr(QM + i, 2)}, 0")
    A.c("sum the four q partials of head k into LDS (operand order)")
    A(f"v_and_b32 v{Q}, 7, v{vL}")
    A(f"v_lshlrev_b32 v{Q}, 6, v{Q}")
    A(f"v_bfe_u32 v{vT1}, v{vL}, 4, 1")
    A(f"v_lshl_add_u32 v{Q}, v{vT1}, 9, v{Q}")
    A(f"v_and_b32 v{vT1}, 8, v{vL}")
    A(f"v_add_u32 v{Q}, v{Q}, v{vT1}")
    A(f"s_lshl_b32 s{sC}, s{sW}, 4")
    A(f"s_add_u32 s{sC}, s{sC}, {QL}")
    A(f"v_add_u32 v{Q}, s{sC}, v{Q}")
    A("s_waitcnt vmcnt(0)")
    tag_check(range(QG, QG + 8), TAGS, vT1)
    A("s_cbranch_vccz L_k_gathered")
    poll(gloads, lambda: tag_check(range(QG, QG + 8), TAGS, vT1))
    A("L_k_gathered:")
    for i in range(4):
        A(f"v_permlane32_swap_b32 v{QG + i}, v{QG + 4 + i}")
    A(f"v_pk_add_f32 {vr(QG, 2)}, {vr(QG, 2)}, {vr(QG + 4, 2)}")
    A(f"v_pk_add_f32 {vr(QG + 2, 2)}, {vr(QG + 2, 2)}, {vr(QG + 6, 2)}")
    for i in range(4):
        A(f"v_mov_b32 v{QG + 4 + i}, v{QG + i}")
    for i in range(4):
        A(f"v_permlane32_swap_b32 v{QG + i}, v{QG + 4 + i}")
    A(f"v_pk_add_f32 {vr(QG, 2)}, {vr(QG, 2)}, {vr(QG + 4, 2)}")
    A(f"v_pk_add_f32 {vr(QG + 2, 2)}, {vr(QG + 2, 2)}, {vr(QG + 6, 2)}")
    for i in range(2):
        A(f"v_cvt_pk_bf16_f32 v{QG + i}, v{QG + 2 * i}, v{QG + 2 * i + 1}")
        A(f"v_min_u32 v{QG + i}, -2, v{QG + i}")
    A(f"ds_write_b64 v{Q}, {vr(QG, 2)}")
    poll([f"ds_read_b128 {vr(Q + 4 * j, 4)}, v{QO} offset:{256 * j}" for j in range(4)],
         lambda: sentinel_check(range(Q, Q + 16), vT1), wait="s_waitcnt lgkmcnt(0)", sleep=2)
    for rho in range(4):
        A(f"s_mov_b64 exec, {sr(sMASK + 2 * rho, 2)}")
        for j in range(4):
            A(f"ds_read_b128 {vr(QM + 16 * rho + 4 * j, 4)}, v{QO} offset:{256 * j}")
        if rho & 1:
            A("s_waitcnt lgkmcnt(0)")
    A("s_mov_b64 exec, -1")
    A("s_waitcnt vmcnt(0)")
    stamp(3)

    def qk_reads(slot):
        for j in range(4):
            A(f"ds_read_b128 {vr(KF + 16 * (slot & 1) + 4 * j, 4)}, v{KA + j} offset:{4096 * slot}")

    qk_reads(0)
    for slot in range(10):
        if slot >= 8:
            A(f"s_cmp_le_u32 s{sNT}, {slot}")
            A("s_cbranch_scc1 L_qk_done")
        if slot < 9:
            qk_reads(slot + 1)
            A("s_waitcnt lgkmcnt(4)")
        else:
            A("s_waitcnt lgkmcnt(0)")
        for j in range(4):
            mfma16(S + 4 * (slot >> 2), KF + 16 * (slot & 1) + 4 * j, QM + 16 * (slot & 3) + 4 * j, j == 0 and (slot & 3) == 0)
    A("s_branch L_qk_done")
    sec("k2")
    A("L_qk_done:")
    stub("k3", warm_a)
    A.c("scores: bf16(bf16(q.k) * Dh^-0.5); absent tiles get -inf")
    A(f"s_mov_b32 s{sA}, 0x3db504f3")
    A(f"s_mov_b32 s{sB}, 0x3fb8aa3b")
    A(f"v_mov_b32 v{vT1}, 0xff800000")
    for i in range(0, 12, 2):
        p = S + i
        A(f"v_cvt_pk_bf16_f32 v{p + 1}, v{p}, v{p + 1}")
        A(f"v_lshlrev_b32 v{p}, 16, v{p + 1}")
        A(f"v_and_b32 v{p + 1}, 0xffff0000, v{p + 1}")
        A(f"v_mul_f32 v{p}, s{sA}, v{p}")
        A(f"v_mul_f32 v{p + 1}, s{sA}, v{p + 1}")
        A(f"v_cvt_pk_bf16_f32 v{p + 1}, v{p}, v{p + 1}")
        A(f"v_lshlrev_b32 v{p}, 16, v{p + 1}")
        A(f"v_and_b32 v{p + 1}, 0xffff0000, v{p + 1}")
        if i >= 8:
            m = "s[18:19]"
            A(f"v_cndmask_b32 v{p}, v{vT1}, v{p}, {m}")
            A(f"v_cndmask_b32 v{p + 1}, v{vT1}, v{p + 1}, {m}")
    A(f"v_max_f32 v{vM}, v{S}, v{S + 1}")
    for i in range(2, 12, 2):
        A(f"v_max3_f32 v{vM}, v{vM}, v{S + i}, v{S + i + 1}")
    dpp_red("v_max_f32", [vM], [8, 4])
    allred_rows("v_max_f32", vM, vT1)
    A(f"v_min_u32 v{vM}, -2, v{vM}")
    A(f"s_lshl_b32 s{sA}, s{sW}, 2")
    A(f"v_add_u32 v{vT2}, s{sA}, v{QO + 1}")
    A("s_mov_b64 exec, 15")
    A(f"ds_write_b32 v{vT2}, v{vM}")
    A("s_mov_b64 exec, -1")
    poll([f"ds_read_b128 {vr(Q, 4)}, v{QO + 1}"], lambda: sentinel_check(range(Q, Q + 4), vT1),
         wait="s_waitcnt lgkmcnt(0)", sleep=1)
    stub("k4", warm_a)
    A(f"v_max_f32 v{vM}, v{Q}, v{Q + 1}")
    A(f"v_max3_f32 v{vM}, v{vM}, v{Q + 2}, v{Q + 3}")
    for i in range(12):
        A(f"v_sub_f32 v{S + i}, v{S + i}, v{vM}")
        A(f"v_mul_f32 v{S + i}, s{sB}, v{S + i}")
        A(f"v_exp_f32 v{S + i}, v{S + i}")
    A(f"v_mul_f32 v{vM}, s{sB}, v{vM}")
    for i in range(6):
        A(f"v_cvt_pk_bf16_f32 v{Q + i}, v{S + 2 * i}, v{S + 2 * i + 1}")
    A(f"ds_write_b64 v{PA}, {vr(Q, 2)}")
    A(f"ds_write_b64 v{PA}, {vr(Q + 2, 2)} offset:2048")
    A("s_mov_b32 exec_lo, 0x00ff00ff")
    A("s_mov_b32 exec_hi, 0x00ff00ff")
    A(f"ds_write_b64 v{PA}, {vr(Q + 4, 2)} offset:4096")
    A("s_mov_b64 exec, -1")
    A(f"v_add_f32 v{vLs}, v{S}, v{S + 1}")
    for i in range(2, 12):
        A(f"v_add_f32 v{vLs}, v{vLs}, v{S + i}")
    dpp_red("v_add_f32", [vLs], [8, 4])
    allred_rows("v_add_f32", vLs, vT1)
    A("s_mov_b64 exec, 15")
    A(f"ds_write_b32 v{vT2}, v{vLs} offset:{LL - ML}")
    A("s_mov_b64 exec, -1")
    A("s_waitcnt lgkmcnt(0)")
    stamp(4)
    A("s_barrier")
    A(f"s_cmp_ge_u32 s{sW}, 2")
    A("s_cbranch_scc1 L_k_lse")
    A.c("waves 0,1: thread G owns 16 bytes of the record, head G>>5, scaled by 1/L")
    A(f"v_and_b32 v{KA + 2}, 127, v0")
    A(f"v_lshrrev_b32 v{KA}, 5, v{KA + 2}")
    A(f"v_lshlrev_b32 v{KA + 3}, 1, v{KA}")
    A(f"v_lshlrev_b32 v{KA}, 4, v{KA}")
    A(f"v_add_u32 v{KA}, {LL}, v{KA}")
    A(f"ds_read_b128 {vr(Q, 4)}, v{KA}")
    A(f"v_xor_b32 v{KA + 3}, v{KA + 3}, v{KA + 2}")
    A(f"v_lshlrev_b32 v{KA + 3}, 4, v{KA + 3}")
    A(f"v_and_b32 v{KA + 1}, 0x60, v{KA + 2}")
    A(f"v_add_u32 v{KA + 2}, v{KA + 2}, v{KA + 1}")
    A(f"v_lshlrev_b32 v{KA + 2}, 4, v{KA + 2}")
    A("s_waitcnt lgkmcnt(0)")
    A(f"v_add_f32 v{Q}, v{Q}, v{Q + 1}")
    A(f"v_add_f32 v{Q + 2}, v{Q + 2}, v{Q + 3}")
    A(f"v_add_f32 v{Q}, v{Q}, v{Q + 2}")
    A(f"v_rcp_f32 v{vM}, v{Q}")
    A("s_barrier")
    A("s_barrier")
    for w in range(4):
        A(f"ds_read_b128 {vr(Q + 4 * w, 4)}, v{KA + 3} offset:{2048 * w}")
    A("s_waitcnt lgkmcnt(2)")
    A(f"v_pk_add_f32 {vr(Q, 2)}, {vr(Q, 2)}, {vr(Q + 4, 2)}")
    A(f"v_pk_add_f32 {vr(Q + 2, 2)}, {vr(Q + 2, 2)}, {vr(Q + 6, 2)}")
    A("s_waitcnt lgkmcnt(0)")
    A(f"v_pk_add_f32 {vr(Q + 8, 2)}, {vr(Q + 8, 2)}, {vr(Q + 12, 2)}")
    A(f"v_pk_add_f32 {vr(Q + 10, 2)}, {vr(Q + 10, 2)}, {vr(Q + 14, 2)}")
    A(f"v_pk_add_f32 {vr(Q, 2)}, {vr(Q, 2)}, {vr(Q + 8, 2)}")
    A(f"v_pk_add_f32 {vr(Q + 2, 2)}, {vr(Q + 2, 2)}, {vr(Q + 10, 2)}")
    A(f"v_pk_mul_f32 {vr(Q, 2)}, {vr(Q, 2)}, {vr(vM, 2)} op_sel_hi:[1,0]")
    A(f"v_pk_mul_f32 {vr(Q + 2, 2)}, {vr(Q + 2, 2)}, {vr(vM, 2)} op_sel_hi:[1,0]")
    tag_put(Q)
    A(f"buffer_store_dwordx4 {vr(Q, 4)}, v{KA + 2}, {sr(S_WST, 4)}, s{sREC} offen offset:512 sc1")
    stamp(6)
    A("s_branch L_fin")
    A("L_k_lse:")
    A.c("wave 2 sends log2-sum-exp once the last value tiles are landing; it tells the tail when to fetch the record")
    A(f"ds_read_b128 {vr(Q, 4)}, v{QO + 1} offset:{LL - ML}")
    A(f"v_lshlrev_b32 v{vT1}, 3, v{vL}")
    A(f"v_mov_b32 v{vLs}, s{sTAG}")
    A("s_waitcnt lgkmcnt(0)")
    A(f"v_add_f32 v{Q}, v{Q}, v{Q + 1}")
    A(f"v_add_f32 v{Q + 2}, v{Q + 2}, v{Q + 3}")
    A(f"v_add_f32 v{Q}, v{Q}, v{Q + 2}")
    A(f"v_log_f32 v{Q}, v{Q}")
    A(f"v_add_f32 v{vM}, v{vM}, v{Q}")
    A("s_mov_b64 exec, 15")
    A(f"s_cmp_lg_u32 s{sW}, 2")
    A("s_barrier")
    A("s_cbranch_scc1 L_k_idle")
    A(f"buffer_store_dwordx2 {vr(vM, 2)}, v{vT1}, {sr(S_WST, 4)}, s{sREC} offen sc1")
    A("L_k_idle:")
    stamp(6)
    A("s_mov_b64 exec, -1")
    A("s_barrier")
    A("s_branch L_fin")

    sec("qbody")
    A("L_v6:")
    A("s_waitcnt lgkmcnt(0)")
    A("s_barrier")
    A("L_v_late:")
    A(f"v_and_b32 v{vN}, 15, v0")
    role_calc()
    tile_count()
    A("L_v_warm:")
    if warm_a:
        touch(["q1", "q2", "v3", "v2", "v1", "k4", "k3"])
    A("s_branch L_vwave")
    A("L_q_body:")
    A(f"s_load_dword s{sTAG}, s[26:27], {EPOCH}")
    srd(S_WST, 26, WS_SIZE)
    if qwarm is not None:
        A(f"buffer_load_dword v11, v6, {sr(S_WST, 4)}, s60 offen {qwarm}")
    consts()
    sel_consts()
    A("s_mov_b32 s62, 0xff00ff00")
    A("s_mov_b32 s63, 0xff00ff00")
    A(f"s_waitcnt vmcnt({16 + (qwarm is not None)})")
    stamp(6)
    for i in range(16):
        A(f"v_lshlrev_b32 v{XF + 2 * i}, 16, v{XR + i}")
        A(f"v_and_b32 v{XF + 2 * i + 1}, 0xffff0000, v{XR + i}")
    A(f"v_pk_add_f32 v[12:13], {vr(XF, 2)}, {vr(XF + 2, 2)}")
    A(f"v_pk_add_f32 v[14:15], {vr(XF + 4, 2)}, {vr(XF + 6, 2)}")
    for i in range(4, 16, 2):
        A(f"v_pk_add_f32 v[12:13], v[12:13], {vr(XF + 2 * i, 2)}")
        A(f"v_pk_add_f32 v[14:15], v[14:15], {vr(XF + 2 * i + 2, 2)}")
    A("v_pk_add_f32 v[12:13], v[12:13], v[14:15]")
    A("v_add_f32 v12, v12, v13")
    quad_red(12)
    allred_rows("v_add_f32", 12, 13)
    A("v_mul_f32 v12, 0x3b000000, v12")
    A("v_mov_b32 v14, 0")
    A("v_mov_b32 v15, 0")
    for i in range(16):
        A(f"v_pk_add_f32 v[8:9], {vr(XF + 2 * i, 2)}, v[12:13] op_sel_hi:[1,0] neg_lo:[0,1] neg_hi:[0,1]")
        A("v_pk_fma_f32 v[14:15], v[8:9], v[8:9], v[14:15]")
    A("v_add_f32 v14, v14, v15")
    quad_red(14)
    allred_rows("v_add_f32", 14, 15)
    A("v_mul_f32 v14, 0x3b000000, v14")
    rb(12, 12)
    rb(14, 14)
    A("v_add_f32 v14, 0x3727c5ac, v14")
    rb(14, 14)
    A("v_sqrt_f32 v14, v14")
    rb(14, 14)
    A("v_rcp_f32 v14, v14")
    stub("q1", warm_a)
    for i in range(4):
        p = XF + 2 * i
        A(f"v_pk_add_f32 {vr(p, 2)}, {vr(p, 2)}, v[12:13] op_sel_hi:[1,0] neg_lo:[0,1] neg_hi:[0,1]")
        A(f"v_cvt_pk_bf16_f32 v{p + 1}, v{p}, v{p + 1}")
        A(f"v_lshlrev_b32 v{p}, 16, v{p + 1}")
        A(f"v_and_b32 v{p + 1}, 0xffff0000, v{p + 1}")
        A(f"v_pk_mul_f32 {vr(p, 2)}, {vr(p, 2)}, v[14:15] op_sel_hi:[1,0]")
        A(f"v_cvt_pk_bf16_f32 v{XR + i}, v{p}, v{p + 1}")
    for r1 in range(2):
        if r1:
            stub("q2", warm_a)
        A(f"s_waitcnt vmcnt({8 - 8 * r1 + (qwarm is not None)})")
        for i in range(8):
            for e2 in range(4):
                R = QR + 32 * r1 + 8 * e2 + (i >> 1)
                A(f"v_perm_b32 v{QB + 4 * i + e2}, v{R + 4}, v{R}, s{sSELHI if i & 1 else sSELLO}")
            if i:
                mfma16(QD + 32 * r1 + 4 * (i - 1), XR, QB + 4 * (i - 1), True)
        mfma16(QD + 32 * r1 + 28, XR, QB + 28, True)
    make_tag()
    A.c("valid sums sit in register 2 r1 + kappa; add the two kappa halves, lane kappa keeps columns 4 kappa .. 4 kappa + 3")
    for i in range(8):
        A(f"v_pk_add_f32 {vr(QD + 4 * i, 2)}, {vr(QD + 4 * i, 2)}, {vr(QD + 32 + 4 * i + 2, 2)}")
    for i in range(8):
        A(f"v_cndmask_b32 v{QD + 4 * i}, v{QD + 4 * i}, v{QD + 4 * i + 1}, s[62:63]")
    for i in range(8):
        A(f"v_add_f32_dpp v{QD + 4 * i}, v{QD + 4 * i}, v{QD + 4 * i} row_ror:8 row_mask:0xf bank_mask:0xf")
    for i in range(4):
        A(f"v_cndmask_b32 v{XF + i}, v{QD + 4 * i}, v{QD + 16 + 4 * i}, s[62:63]")
        A(f"v_add_u32 v{XF + i}, 0x80, v{XF + i}")
    tag_put(XF)
    if qwarm is not None:
        A("s_waitcnt vmcnt(0)")
    if 'S' not in drop:
        A(f"buffer_store_dwordx4 {vr(XF, 4)}, v6, {sr(S_WST, 4)}, s60 offen {qstflags}")
    if qprio:
        A("s_setprio 0")
    stamp(1)

    A("s_branch L_vwave")
    sec("v")
    A("L_vwave:")
    srd(S_B, 8, 0 if 'v' in drop else 0x8000000)
    sel_consts()
    if stamps or peer:
        srd(S_WS, 26, WS_SIZE)
    if peer:
        A.c("peers: the attention workgroups with the same id>>3 on the other dies")
        A(f"s_load_dword s{sTAG}, s[26:27], {EPOCH}")
        A(f"s_lshr_b32 s52, s2, 3")
        A(f"s_lshl_b32 s52, s52, 10")
        A(f"s_add_u32 s52, s52, {PBUF}")
        A(f"s_lshl_b32 s54, 1, s{sXI}")
        A(f"s_xor_b32 s54, s54, 0xfe")
        A(f"s_mov_b32 s55, 0")
        A(f"v_lshlrev_b32 v250, 7, v{vL}")
        A("s_waitcnt lgkmcnt(0)")
        A(f"s_add_u32 s{sTAG}, s{sTAG}, {TAGC:#x}")
    if vtouch:
        A.c("first touch of the V window ahead of its stream")
        A(f"s_cmp_lg_u32 s{sW}, 7")
        A("s_cbranch_scc1 L_no_vtouch")
        A("v_mov_b32 v250, 0")
        A("s_mov_b64 exec, 1")
        A("s_setprio 3")
        A(f"buffer_load_dword v251, v250, {sr(S_B, 4)}, s{sT0} offen {kvflags}")
        A("s_setprio 0")
        A("s_mov_b64 exec, -1")
        A("L_no_vtouch:")
    A.c("V wave v: value tiles v, v+4, .. in registers, transposed in-lane, P.V on the matrix core")
    VO, vPA, vRA = 4, 5, 6
    ACC, PM, VB = 8, 16, 48
    A(f"v_lshlrev_b32 v{VO}, 4, v{vL}")
    A(f"s_sub_u32 s{sD}, s{sW}, 4")
    order = [9, 8, 0, 1, 2, 3, 4, 5, 6, 7]
    pair_seq = [4, 0, 1, 2, 3]
    raw_base = {k: VB + 32 * (n + 1) for n, k in enumerate(pair_seq)}
    out_base = {k: VB + 32 * n for n, k in enumerate(pair_seq)}

    def v_load(s):
        R = raw_base[s >> 1] + 16 * (s & 1)
        A(f"s_add_u32 s{sB}, s{sT0}, {16384 * s}")
        for j in range(4):
            A(f"buffer_load_dwordx4 {vr(R + 4 * j, 4)}, v{VO}, {sr(S_B, 4)}, s{sB} offen offset:{1024 * j} {kvflags}")

    def v_perm(s, i):
        R = raw_base[s >> 1] + 16 * (s & 1)
        q, sel = i >> 1, sSELHI if i & 1 else sSELLO
        d = out_base[s >> 1] + 4 * i + 2 * (s & 1)
        A(f"v_perm_b32 v{d}, v{R + 4 + q}, v{R + q}, s{sel}")
        A(f"v_perm_b32 v{d + 1}, v{R + 12 + q}, v{R + 8 + q}, s{sel}")

    def p_read(k, buf):
        for rho in range(4):
            A(f"s_mov_b64 exec, {sr(sMASK + 2 * rho, 2)}")
            A(f"ds_read_b128 {vr(PM + 16 * buf + 4 * rho, 4)}, v{vPA} offset:{1024 * k}")
        A("s_mov_b64 exec, -1")

    def pv(k, buf, i, first):
        mfma16(ACC + 4 * (i >> 2), out_base[k] + 4 * i, PM + 16 * buf + 4 * (i & 3), first and (i & 3) == 0)

    for i in range(32):
        A(f"v_mov_b32 v{raw_base[4] + i}, 0")
    set_masks()
    for i in range(32):
        A(f"v_mov_b32 v{PM + i}, 0")
    A(f"v_and_b32 v7, 3, v{vN}")
    A(f"v_lshlrev_b32 v{vPA}, 4, v7")
    A(f"v_lshl_add_u32 v{vPA}, v{vG}, 6, v{vPA}")
    A(f"s_lshl_b32 s{sA}, s{sD}, 8")
    A(f"s_add_u32 s{sA}, s{sA}, {PB}")
    A(f"v_add_u32 v{vPA}, s{sA}, v{vPA}")
    A.c("reduction slot: h*32 + ((16a + 4g + rho) ^ 2h)")
    A(f"v_lshrrev_b32 v{vRA}, 2, v{vL}")
    A(f"v_lshlrev_b32 v{ACC}, 1, v7")
    A(f"v_xor_b32 v{vRA}, v{vRA}, v{ACC}")
    A(f"v_lshl_add_u32 v{vRA}, v7, 5, v{vRA}")
    A(f"v_lshlrev_b32 v{vRA}, 4, v{vRA}")
    A(f"s_lshl_b32 s{sA}, s{sD}, 11")
    A(f"v_add_u32 v{vRA}, s{sA}, v{vRA}")
    if vearly:
        A(f"s_setprio {veprio}")
    else:
        A("s_barrier")
    def peer_load(r):
        A("s_mov_b64 exec, s[54:55]")
        A(f"buffer_load_dword v{r}, v250, {sr(S_WS, 4)}, s52 offen sc1")
        A("s_mov_b64 exec, -1")

    if adapt:
        A("s_memrealtime s[56:57]")
        A("s_waitcnt lgkmcnt(0)")
        A(f"s_sub_u32 s56, s56, s{sST}")
        A(f"s_cmp_lt_u32 s56, {adapt[0]}")
        A("s_cselect_b64 vcc, 1, 0")
    A(f"s_add_u32 s{sA}, s{sD}, 36")
    A(f"s_cmp_ge_u32 s{sA}, s{sNT}")
    A("s_cbranch_scc1 L_v9_done")
    v_load(9)
    A("L_v9_done:")
    assert vwin >= 5 and vearly != 1
    done = 0
    for n in range(4, 40):
        s_, j = order[n >> 2], n & 3
        R = raw_base[s_ >> 1] + 16 * (s_ & 1)
        if n == 4:
            A(f"s_add_u32 s{sA}, s{sD}, 32")
            A(f"s_cmp_ge_u32 s{sA}, s{sNT}")
            A("s_cbranch_scc1 L_v8_done")
        if n == 8:
            A("L_v8_done:")
        if n == 16:
            stub("v1", warm_a)
        if n == (32 if peer else 36):
            stub("v2", warm_a)
        if j == 0:
            slot_off(sB, sT0, s_)
        if vtile is not None:
            if vearly and n == 4 * vearly:
                A("s_setprio 0")
                A("s_barrier")
            if peer and j == 0 and 4 * pfirst + 4 <= n < 4 * peer[2]:
                A.c("narrow window while too few peers have posted")
                A(f"s_waitcnt vmcnt({vtile})")
                A(f"s_cbranch_vccz L_free{n}" if n > 4 * pfirst + 4 else "s_nop 0")
                A("s_mov_b64 exec, s[54:55]")
                A(f"v_cmp_ne_u32 vcc, s{sTAG}, v251")
                A("s_mov_b64 exec, -1")
                A(f"s_bcnt1_i32_b64 s{sA}, vcc")
                A(f"s_cmp_gt_u32 s{sA}, {peer[3]}")
                A("s_cselect_b64 vcc, 1, 0")
                A(f"s_cbranch_scc0 L_free{n}")
                A(f"s_waitcnt vmcnt({peer[1]})")
                peer_load(251)
                A(f"L_free{n}:")
            elif j == 0 and n >= 8:
                A(f"s_waitcnt vmcnt({vtile if n >= 4 * vearly else min(vew, vtile)})")
                if peer and n == 4 * pfirst:
                    peer_load(251)
                if adapt and n < 4 * adapt[2]:
                    A(f"s_cbranch_vccz L_wide{n}")
                    A(f"s_waitcnt vmcnt({adapt[1]})")
                    A(f"L_wide{n}:")
        elif n >= vwin:
            A(f"s_waitcnt vmcnt({vwin - 1})")
        A(f"buffer_load_dwordx4 {vr(R + 4 * j, 4)}, v{VO}, {sr(S_B, 4)}, s{sB} offen offset:{1024 * j} {kvflags}")
        if vpost and n == 4 * vpost + 3:
            A(f"s_cmp_lg_u32 s{sW}, 7")
            A("s_cbranch_scc1 L_v_posted")
            A(f"s_lshl_b32 s{sA}, s2, 7")
            A(f"s_add_u32 s{sA}, s{sA}, {PBUF}")
            A(f"v_mov_b32 v252, s{sTAG}")
            A("s_mov_b64 exec, 1")
            A(f"buffer_store_dword v252, v250, {sr(S_WS, 4)}, s{sA} offen sc1")
            A("s_mov_b64 exec, -1")
            A("L_v_posted:")
        landed = ((n - 3 - vtile) // 4 if j == 3 and n >= 8 else 0) if vtile is not None else (n - vwin + 1) // 4
        while done < landed:
            for i in range(8):
                v_perm(order[done], i)
            done += 1
    stamp(2)
    A("s_barrier")
    stamp(4)
    p_read(pair_seq[0], 0)
    for n, k in enumerate(pair_seq):
        if n == 3:
            stub("v3", warm_a)
        if n < 4:
            p_read(pair_seq[n + 1], (n + 1) & 1)
        first_t, second_t = 2 * n, 2 * n + 1
        if n == 4 and hv > 4:
            A(f"s_waitcnt vmcnt({hv})")
            A("s_barrier")
        if first_t >= done:
            A(f"s_waitcnt vmcnt({4 * (9 - first_t)})")
            for i in range(8):
                v_perm(order[first_t], i)
        lg = f"lgkmcnt({4 if n < 4 else 0})"
        if n == 4 and hv <= 4:
            A(f"s_waitcnt vmcnt({hv})")
            A("s_barrier")
        if second_t >= done:
            A(f"s_waitcnt vmcnt({4 * (9 - second_t)}) {lg}")
            if n == 4:
                stamp(5)
            seq = [0, 4, 1, 5, 2, 6, 3, 7]
            v_perm(order[second_t], seq[0])
            for m, i in enumerate(seq):
                if m < 7:
                    v_perm(order[second_t], seq[m + 1])
                pv(k, n & 1, i, n == 0)
        else:
            A(f"s_waitcnt {lg}")
            for i in (0, 4, 1, 5, 2, 6, 3, 7):
                pv(k, n & 1, i, n == 0)
    A(f"ds_write_b128 v{vRA}, {vr(ACC, 4)}")
    A(f"ds_write_b128 v{vRA}, {vr(ACC + 4, 4)} offset:256")
    A("s_waitcnt lgkmcnt(0)")
    A("s_barrier")
    A("s_branch L_fin")

    sec("ohead")
    A("L_tail:")
    A.c("tail workgroup t: head t of wo, 64 FFN channels, 16 columns of h and of the output")
    if 'T' in drop:
        A("s_waitcnt lgkmcnt(0)")
        srd(S_WS, 26, WS_SIZE)
        A("s_branch L_fin")
    t1, t2, t3, t4 = 12, 13, 14, 15
    RING = 131072
    OL, AL, HL, SL = 0, 512, 2048, 6144
    sRING, sU, sTZ = sT0, sXQ, 64
    vIdx = 254
    A(f"v_and_b32 v{vN}, 15, v0")
    A(f"s_and_b32 s{sU}, s{sW}, 3")
    A(f"s_cmp_ge_u32 s{sW}, 4")
    A("s_cbranch_scc1 L_gwave")

    def set_idx(bit):
        A(f"v_bfe_u32 v{vIdx}, v{vN}, {bit}, 1")
        A(f"v_mul_u32_u24 v{vIdx}, 0xaaaa, v{vIdx}")
        A(f"v_add_u32 v{vIdx}, 0x4444, v{vIdx}")

    def tail_consts():
        consts()
        A(f"s_getreg_b32 s{sFAST}, hwreg(HW_REG_XCC_ID, 0, 3)")
        make_tag()
        A(f"s_add_u32 s{sA}, s{sTAG}, {TAGC:#x}")
        for i in range(4):
            A(f"s_bfe_u32 s{sTZ + i}, s{sA}, {0x80000 + 8 * i:#x}")
        A("s_mov_b32 s8, 0x00ff00ff")
        A("s_mov_b32 s9, 0x00ff00ff")
        A("s_not_b64 s[10:11], s[8:9]")

    def checkin_read(R, first):
        xl = f"buffer_load_dwordx2 {vr(R, 2)}, v{R + 2}, {sr(S_WS, 4)}, s{sD} offen sc1"
        if first:
            A(f"v_and_b32 v{R + 2}, 31, v{vL}")
            A(f"v_lshlrev_b32 v{R + 2}, 3, v{R + 2}")
            A(f"s_mov_b32 s{sD}, {XBUF}")
            A(xl)
            return
        ok, top, far = A.label("near"), A.label("checkin"), A.label("far")
        A.c("check-in words are L2-local: seeing all 32 with this XCC id proves that the tail shares one die")
        A(f"s_mov_b32 s{sCNT}, 0")
        A(f"{top}:")
        A(f"v_xor_b32 v{R}, s{sFAST}, v{R}")
        A(f"v_xor_b32 v{R + 1}, s{sTAG}, v{R + 1}")
        A(f"v_or_b32 v{R}, v{R}, v{R + 1}")
        A(f"v_cmp_ne_u32 vcc, 0, v{R}")
        A(f"s_mov_b32 s{sA}, {0 if force_slow else 1}")
        A(f"s_cbranch_vccz {ok}")
        A(f"s_add_u32 s{sCNT}, s{sCNT}, 1")
        A(f"s_cmp_ge_u32 s{sCNT}, {near_tries}")
        A(f"s_cbranch_scc1 {far}")
        A(f"s_sleep {slp}")
        A(xl)
        A("s_waitcnt vmcnt(0)")
        A(f"s_branch {top}")
        A(f"{far}:")
        A.c("any other placement: write-through hand-offs, after the four workgroups that empty the h buffer report in")
        A(f"v_and_b32 v{R + 2}, 3, v{vL}")
        A(f"v_lshlrev_b32 v{R + 2}, 7, v{R + 2}")
        poll([f"buffer_load_dword v{R}, v{R + 2}, {sr(S_WS, 4)}, s{sD} offen offset:512 sc1"],
             lambda: A(f"v_cmp_ne_u32 vcc, s{sTAG}, v{R}"), sleep=slp)
        A(f"s_mov_b32 s{sA}, 0")
        A(f"{ok}:")
        A(f"s_mov_b32 s{sFAST}, s{sA}")

    A.c("O wave u: columns 128u..128u+127 of wo[head t] and of w_down[64t..64t+63], staged through a two-slot ring")
    AO, DO, BWO, BWD = 16, 32, 48, 176
    vTR, vWOo, vAr, vYs, XO, A4 = 4, 8, 240, 241, 242, 246
    A(f"s_lshl_b32 s{sRING}, s{sU}, 13")
    A(f"s_add_u32 s{sRING}, s{sRING}, {RING}")
    A.c("ring chunk = 16 consecutive rows x 256 B; row 4g'+r keeps its 64-byte block i at position i ^ r")
    A(f"v_lshlrev_b32 v{t1}, 2, v{vG}")
    A(f"v_xor_b32 v{t1}, v{t1}, v{vN}")
    A(f"v_lshlrev_b32 v{t1}, 4, v{t1}")
    A(f"v_lshl_add_u32 v{vWOo}, v{vG}, 10, v{t1}")
    A(f"s_lshl_b32 s{sA}, s{sU}, 8")
    A(f"v_add_u32 v{vWOo}, s{sA}, v{vWOo}")
    for g in range(1, 4):
        A(f"v_add_u32 v{vWOo + g}, {3072 * g}, v{vWOo}")
    A(f"s_lshl_b32 s{sC}, s{sT}, 17")
    A(f"s_lshl_b32 s{sLB}, s{sT}, 16")
    if orot:
        A.c("chunk n holds rows 16 (n ^ (t&7)): workgroups walk their slices in different orders")
        A(f"s_and_b32 s{sA}, s{sT}, 7")
        A(f"s_lshl_b32 s{sA}, s{sA}, 14")
        A(f"s_add_u32 s{sC}, s{sC}, s{sA}")
        A(f"s_and_b32 s{sA}, s{sA}, 0xc000")
        A(f"s_add_u32 s{sLB}, s{sLB}, s{sA}")
    A(f"s_lshl_b32 s{sPASS}, s{sU}, 14")
    A(f"s_add_u32 s{sPASS}, s{sPASS}, 65536")

    def ring_issue(n):
        A(f"s_add_u32 m0, s{sRING if n < 8 else sPASS}, {4096 * (n & (1 if n < 8 else 3))}")
        A(f"s_xor_b32 s{sB}, s{sC if n < 8 else sLB}, {16384 * (n & 7)}")
        for g in range(4):
            A(f"buffer_load_dwordx4 v{vWOo + g}, {sr(S_A if n < 8 else S_B, 4)}, s{sB} offen offset:{1024 * g} {woflags if n < 8 else wdflags} lds")

    def ring_read(n):
        base = BWO + 64 * (n >> 2) + 2 * (n & 3)
        for blk in range(4):
            for sel in range(2):
                A(f"ds_read_b64_tr_b16 {vr(base + 16 * blk + 8 * sel, 2)}, v{vTR + blk} offset:{4096 * (n & (1 if n < 8 else 3)) + 8 * sel}")

    A("s_waitcnt lgkmcnt(0)")
    srd(S_A, 12, 0 if 'o' in drop else 4096 * 1024)
    stamp(1)
    ring_issue(0)
    ring_issue(1)
    A("s_branch L_o_more")

    sec("ghead")
    A("L_gwave:")
    A.c("G wave v: 16 FFN channels of w_gate and w_up; batch v in stage 1; four columns in stages 2 and 4")
    AG, DG, PT, BGU, RS = 16, 32, 48, 64, 192
    vLin, vP0, vP1, vOw, vHs, vAw, vOs, vXr = range(4, 12)
    vCg, vCu, vH, vHw, vSw = range(248, 253)
    LS, LA, vHr = 224, 240, 242
    assert nsets[0] <= 2 and lsets <= 4
    vGUo, vW0, vW1, XG = RS, RS + 2, RS + 3, RS + 4
    A(f"v_lshlrev_b32 v{vLin}, 4, v{vL}")
    if tailpf:
        A.c("pull the tail's code into this die's L2 before the streams saturate memory")
        A(f"s_getpc_b64 {sr(sC, 2)}")
        A("L_tpc:")
        A(f"s_mul_i32 s{sA}, s{sU}, {128 * 24}")
        A(f"v_lshl_add_u32 v{t1}, v{vL}, 7, s{sA}")
        A(f"v_min_u32 v{t1}, L_code_end - L_tpc - 4, v{t1}")
        A(f"s_cmp_lt_u32 s{sT}, 30")
        A("s_cbranch_scc1 L_no_tpf")
        A("s_mov_b64 exec, 0xffffff")
        A(f"global_load_dword v253, v{t1}, {sr(sC, 2)}")
        A("s_mov_b64 exec, -1")
        A("L_no_tpf:")
    A.c("image [8-row group][gate, up][8 rows x 128 B]; row 128v + 8i + (l>>3), chunk (l&7) ^ ((l>>5)<<1) ^ ((v&1)<<2)")
    A(f"s_lshl_b32 m0, s{sU}, 15")
    A(f"v_lshrrev_b32 v{t1}, 3, v{vL}")
    A(f"s_lshl_b32 s{sA}, s{sU}, 7")
    A(f"v_add_u32 v{t1}, s{sA}, v{t1}")
    A(f"v_mul_u32_u24 v{t1}, 3584, v{t1}")
    A(f"v_and_b32 v{t2}, 7, v{vL}")
    A(f"v_and_b32 v{t3}, 2, v{vG}")
    A(f"v_xor_b32 v{t2}, v{t2}, v{t3}")
    A(f"s_and_b32 s{sA}, s{sU}, 1")
    A(f"s_lshl_b32 s{sA}, s{sA}, 2")
    A(f"v_xor_b32 v{t2}, s{sA}, v{t2}")
    A(f"v_lshl_add_u32 v{vGUo}, v{t2}, 4, v{t1}")
    A(f"v_add_u32 v{vGUo + 1}, {8 * 3584 - 2048}, v{vGUo}")
    A(f"s_lshl_b32 s{sLB}, s{sT}, 7")
    A(f"s_mov_b32 s{sPASS}, 0")
    for i in range(4):
        A(f"v_mov_b32 v{AG + i}, -1")
    if gprio:
        A(f"s_setprio {gprio}")
    A(f"s_cmp_lt_u32 s{sT}, 28")
    A(f"s_cselect_b32 s{S_WG + 2}, {0 if 'g' in drop else 512 * 3584}, 0")
    A(f"s_cselect_b32 s{S_WU + 2}, {0 if 'g' in drop else 512 * 3584 + 1024}, 0")
    A(f"s_mov_b32 s{S_WG + 3}, 0x20000")
    A(f"s_mov_b32 s{S_WU + 3}, 0x20000")
    A("s_waitcnt lgkmcnt(0)")
    A(f"s_mov_b64 {sr(S_WG, 2)}, s[16:17]")
    A.c("the w_up descriptor starts 1 KiB early: the instruction offset that steps LDS also steps the source")
    A(f"s_sub_u32 s{S_WU}, s18, 1024")
    A(f"s_subb_u32 s{S_WU + 1}, s19, 0")
    A("L_gu_loop:")
    A(f"s_waitcnt vmcnt({gw})")
    for k in range(4):
        A(f"buffer_load_dwordx4 v{vGUo + (k >> 1)}, {sr(S_WU if k & 1 else S_WG, 4)}, s{sLB} offen offset:{1024 * k} {guflags} lds")
    A(f"s_add_u32 m0, m0, 4096")
    A(f"s_add_u32 s{sLB}, s{sLB}, {16 * 3584}")
    A(f"s_add_u32 s{sPASS}, s{sPASS}, 1")
    A(f"s_cmp_eq_u32 s{sPASS}, 1")
    A("s_cbranch_scc1 L_gu_clear")
    A(f"s_cmp_eq_u32 s{sPASS}, 3")
    A("s_cbranch_scc1 L_gu_checkin")
    tnames = ["g3", "g2", "g1c", "g1b", "g1", "g0", "o1", "o0"] if dense else ["g3", "g2", "g1", "g0", "o0"]
    if warm_t and not paced:
        A(f"s_cmp_eq_u32 s{sPASS}, {warm_at}")
        A("s_cbranch_scc1 L_gu_warm")
    A(f"s_cmp_lt_u32 s{sPASS}, 8")
    A(f"s_cbranch_scc1 {'L_gu_warm' if warm_t and paced else 'L_gu_loop'}")
    A("s_branch L_g_more")
    if warm_t and not paced:
        A("L_gu_warm:")
        A(f"s_cmp_lg_u32 s{sU}, 0")
        A("s_cbranch_scc1 L_gu_loop")
        touch(tnames)
        A("s_branch L_gu_loop")
    if warm_t and paced:
        A("L_gu_warm:")
        A.c("one instruction-cache warm-up jump per pass: no lanes active, the landing point branches straight back")
        A(f"s_lshl_b32 s{sA}, s{sPASS}, 2")
        A(f"s_add_u32 s{sA}, s{sA}, s{sU}")
        A("s_mov_b64 exec, 0")
        slots = [(p, u) for p in (2, 4, 5, 6, 7) for u in ((0,) if len(tnames) <= 5 else (0, 2))]
        for nm, (p, u) in zip(tnames, slots):
            A(f"s_cmp_eq_u32 s{sA}, {4 * p + u}")
            A(f"s_cbranch_scc1 L_warm_{nm}")
        for nm in tnames:
            A(f"L_back_{nm}:")
        A("s_mov_b64 exec, -1")
        A("s_branch L_gu_loop")
    A("L_gu_clear:")
    A(f"s_load_dword s{sTAG}, s[26:27], {EPOCH}")
    srd(S_WST, 26, WS_SIZE)
    A(f"s_cmp_lg_u32 s{sU}, 3")
    A("s_cbranch_scc1 L_gu_loop")
    A(f"s_cmp_lt_u32 s{sT}, 28")
    A("s_cbranch_scc1 L_gu_loop")
    A.c("workgroups 28..31 mark the h hand-off buffer empty; their check-in follows once that store is done")
    A(f"s_lshl_b32 s{sA}, s{sT}, 10")
    A(f"s_add_u32 s{sA}, s{sA}, {HBUF - 28 * 1024}")
    A(f"buffer_store_dwordx4 {vr(AG, 4)}, v{vLin}, {sr(S_WST, 4)}, s{sA} offen sc1")
    A("s_waitcnt vmcnt(0) lgkmcnt(0)")
    A(f"s_add_u32 s{sB}, s{sTAG}, {TAGC:#x}")
    A(f"v_mov_b32 v{t2}, s{sB}")
    A(f"s_lshl_b32 s{sA}, s{sT}, 7")
    A(f"s_add_u32 s{sA}, s{sA}, {XBUF + 512 - 28 * 128}")
    A("s_mov_b64 exec, 1")
    A(f"buffer_store_dword v{t2}, v{vLin}, {sr(S_WST, 4)}, s{sA} offen sc1")
    A("s_mov_b64 exec, -1")
    A("s_branch L_gu_loop")
    A("L_gu_checkin:")
    A(f"s_cmp_lg_u32 s{sU}, 3")
    A("s_cbranch_scc1 L_gu_loop")
    A(f"s_getreg_b32 s{sA}, hwreg(HW_REG_XCC_ID, 0, 3)")
    A(f"v_mov_b32 v{t1}, s{sA}")
    A(f"s_lshl_b32 s{sA}, s{sT}, 3")
    A(f"s_add_u32 s{sA}, s{sA}, {XBUF}")
    A("s_waitcnt lgkmcnt(0)")
    A(f"s_add_u32 s{sB}, s{sTAG}, {TAGC:#x}")
    A(f"v_mov_b32 v{t2}, s{sB}")
    A("s_mov_b64 exec, 1")
    A(f"buffer_store_dwordx2 {vr(t1, 2)}, v{vLin}, {sr(S_WST, 4)}, s{sA} offen")
    A("s_mov_b64 exec, -1")
    A("s_branch L_gu_loop")

    A("L_o_more:")
    A(f"s_load_dword s{sTAG}, s[26:27], {EPOCH}")
    srd(S_B, 20, 0 if 'd' in drop else 1792 * 1024)
    srd(S_WS, 26, WS_SIZE)
    srd(S_WST, 26, WS_SIZE)
    A(f"v_lshrrev_b32 v{t1}, 2, v{vN}")
    A(f"v_and_b32 v{t2}, 3, v{vN}")
    A(f"v_mul_u32_u24 v{t1}, 320, v{t1}")
    A(f"v_lshl_add_u32 v{t1}, v{t2}, 4, v{t1}")
    A(f"v_lshl_add_u32 v{t1}, v{vG}, 10, v{t1}")
    for blk in range(4):
        A(f"v_xor_b32 v{vTR + blk}, {64 * blk}, v{t1}")
        A(f"v_add_u32 v{vTR + blk}, s{sRING}, v{vTR + blk}")
    A.c("matrix row m = (half, b1, sigma, b0); activation chunk (J, sigma, g) at 1024J + 256 sigma + 128(g>>1) + 32b + 16(g&1)")
    set_idx(1)
    A(f"v_and_b32 v{t1}, 1, v{vN}")
    A(f"v_lshlrev_b32 v{vAr}, 5, v{t1}")
    A(f"v_bfe_u32 v{t1}, v{vN}, 2, 1")
    A(f"v_lshl_add_u32 v{vAr}, v{t1}, 6, v{vAr}")
    A(f"v_and_b32 v{t1}, 1, v{vG}")
    A(f"v_lshl_add_u32 v{vAr}, v{t1}, 4, v{vAr}")
    A(f"v_lshrrev_b32 v{t1}, 1, v{vG}")
    A(f"v_lshl_add_u32 v{vAr}, v{t1}, 7, v{vAr}")
    A(f"v_bfe_u32 v{t1}, v{vN}, 1, 1")
    A(f"v_lshl_add_u32 v{vAr}, v{t1}, 8, v{vAr}")
    A.c("partial-sum slot [consumer 8u + 4q + 2half + (n>>3)][b1][octet][producer t][n&3][sel][b0]")
    A(f"s_lshl_b32 s{sA}, s{sU}, 16")
    A(f"s_lshl_b32 s{sB}, s{sT}, 6")
    A(f"s_add_u32 s{sA}, s{sA}, s{sB}")
    A(f"v_lshlrev_b32 v{vYs}, 4, v{t2}")
    A(f"v_bfe_u32 v{t1}, v{vN}, 2, 1")
    A(f"v_lshl_add_u32 v{vYs}, v{t1}, 11, v{vYs}")
    A(f"v_and_b32 v{t1}, 1, v{vG}")
    A(f"v_lshl_add_u32 v{vYs}, v{t1}, 12, v{vYs}")
    A(f"v_lshrrev_b32 v{t1}, 3, v{vN}")
    A(f"v_lshl_add_u32 v{vYs}, v{t1}, 13, v{vYs}")
    A(f"v_lshrrev_b32 v{t1}, 1, v{vG}")
    A(f"v_lshl_add_u32 v{vYs}, v{t1}, 14, v{vYs}")
    A(f"v_add_u32 v{vYs}, s{sA}, v{vYs}")
    A(f"s_mov_b32 s16, {YBUF}")
    A(f"s_mov_b32 s17, {YBUF + 32768}")
    for i in list(range(AO, BWO)) + list(range(A4, A4 + 8)):
        A(f"v_mov_b32 v{i}, 0")
    tail_consts()
    assert 2 <= r1at <= 7
    younger = 0
    for n in range(8):
        A(f"s_waitcnt vmcnt({(4 if n < 7 else 0) + (younger if n <= r1at else 0)}) lgkmcnt(0)")
        ring_read(n)
        if n < 6:
            A("s_waitcnt lgkmcnt(0)")
            ring_issue(n + 2)
        if n + 2 == r1at:
            A.c("once the G waves hold gate/up in registers, all of w_down goes into the upper half of that image")
            A("s_barrier")
            checkin_read(XO, True)
            A("s_barrier")
            for m in range(8, 12):
                ring_issue(m)
            younger = 16
    A(f"s_sub_u32 s{sA}, s{sPASS}, s{sRING}")
    A("s_waitcnt lgkmcnt(0)")
    for blk in range(4):
        A(f"v_add_u32 v{vTR + blk}, s{sA}, v{vTR + blk}")
    checkin_read(XO, False)
    if 'W' in drop:
        A(f"s_mov_b32 s{S_WST + 2}, 0")
    if oprio:
        A(f"s_setprio {oprio}")
    stamp(2)
    stub("o0", warm_t)
    A(f"s_cmp_eq_u32 s{sFAST}, 0")
    A("s_mov_b64 exec, s[8:9]")
    A("s_cbranch_scc1 L_o_far")

    def o_stages(sc):
        def publish(q, tb):
            D = DO + 8 * q
            L = [f"v_pk_add_f32 {vr(D, 2)}, {vr(D, 2)}, {vr(D + 2, 2)}",
                 f"v_pk_add_f32 {vr(D + 2, 2)}, {vr(D + 4, 2)}, {vr(D + 6, 2)}"]
            L += [f"v_bfi_b32 v{D + i}, v{vFF}, s{tb + i}, v{D + i}" for i in range(4)]
            L += [f"buffer_store_dwordx4 {vr(D, 4)}, v{vYs}, {sr(S_WST, 4)}, s{16 + q} offen {sc}"]
            return L

        A.c("y_t = o_t @ wo[head t]")
        A("s_barrier")
        fs(1)
        for J in range(2):
            A(f"ds_read_b128 {vr(AO + 4 * J, 4)}, v{vAr} offset:{OL + 1024 * J}")
        A("s_mov_b64 exec, s[10:11]")
        for J in range(2):
            A(f"ds_read_b128 {vr(AO + 8 + 4 * J, 4)}, v{vAr} offset:{OL + 1024 * J}")
        A("s_mov_b64 exec, -1")
        for q in range(2):
            for n in range(4):
                half, J = n >> 1, n & 1
                if q == 0:
                    A(f"s_waitcnt lgkmcnt({3 - n})")
                for sel in range(2):
                    smf(DO + 8 * q + 4 * sel, AO + 4 * n, BWO + 64 * J + 16 * (2 * q + half) + 8 * sel, vIdx)
                    if early and q == 1:
                        m = 2 * n + sel
                        for l in (["s_nop 0"] if m < 3 else publish(0, sTB)[2 * (m - 3):2 * (m - 3) + 2]):
                            A(l)
        for l in ([] if early else publish(0, sTB)) + publish(1, sTB):
            A(l)
        stamp(4)
        fs(2)
        if ackbar[0] is not None:
            A(f"s_waitcnt vmcnt({ackbar[0]})")
        A("s_barrier")
        A("s_waitcnt vmcnt(0)")
        for m in range(8, 12):
            ring_read(m)
            A("s_waitcnt lgkmcnt(4)")
        stub("o1", warm_t and dense and sc != "sc1")
        for i in range(16):
            A(f"v_mov_b32 v{DO + i}, 0")
        A("s_mov_b64 exec, s[8:9]")
        A("s_waitcnt lgkmcnt(0)")
        A("s_barrier")
        A.c("z_t = act_t @ w_down[64 rows]")
        A("s_barrier")
        fs(8)
        A(f"ds_read_b128 {vr(A4, 4)}, v{vAr} offset:{AL}")
        A("s_mov_b64 exec, s[10:11]")
        A(f"ds_read_b128 {vr(A4 + 4, 4)}, v{vAr} offset:{AL}")
        A("s_mov_b64 exec, -1")
        for q in range(2):
            for hi in range(2):
                if q == 0:
                    A(f"s_waitcnt lgkmcnt({1 - hi})")
                for i in range(2):
                    smf(DO + 8 * q + 4 * i, A4 + 4 * hi, BWD + 16 * (2 * q + hi) + 8 * i, vIdx)
        for l in publish(0, sTZ) + publish(1, sTZ):
            A(l)
        stamp(6)
        fs(9)
        if ackbar[1] is not None:
            A(f"s_waitcnt vmcnt({ackbar[1]})")
        A("s_barrier")
        fine_out()
        A("s_branch L_fin")

    def fine_out():
        if fine:
            A("s_waitcnt lgkmcnt(0)")
            for i in range(13):
                A(f"v_mov_b32 v{64 + i}, s{FS[i]}")
            A(f"s_lshl_b32 s{sA}, s{sT}, 3")
            A(f"s_add_u32 s{sA}, s{sA}, s{sW}")
            A(f"s_lshl_b32 s{sA}, s{sA}, 6")
            A(f"s_add_u32 s{sA}, s{sA}, {STAMPS + 0x20000}")
            A("v_mov_b32 v80, 0")
            A("s_mov_b64 exec, 1")
            for i in range(4):
                A(f"buffer_store_dwordx4 {vr(64 + 4 * i, 4)}, v80, {sr(S_WST, 4)}, s{sA} offen offset:{16 * i}")

    o_stages(nearflags)
    sec("ofar")
    A("L_o_far:")
    o_stages("sc1")

    A("L_g_more:")
    srd(S_WS, 26, WS_SIZE)
    srd(S_X, 4, 4096)
    srd(S_OUT, 22, 4096)
    tail_consts()
    if gprio:
        A("s_setprio 0")
    A(f"s_cmp_lt_u32 s{sT}, 28")
    A("s_cbranch_scc1 L_touched")
    A.c("workgroups without FFN weights read the partial-sum inboxes once so that the lines are resident in L2")
    A(f"s_sub_u32 s{sA}, s{sT}, 28")
    A(f"s_lshl_b32 s{sA}, s{sA}, 2")
    A(f"s_add_u32 s{sA}, s{sA}, s{sU}")
    A(f"s_lshl_b32 s{sA}, s{sA}, 14")
    A(f"s_add_u32 s{sA}, s{sA}, {YBUF}")
    for n in range(16):
        A(f"buffer_load_dwordx4 {vr(PT, 4)}, v{vLin}, {sr(S_WS, 4)}, s{sA} offen offset:{1024 * (n & 3)} {touchflags}")
        if n & 3 == 3:
            A(f"s_add_u32 s{sA}, s{sA}, 4096")
    A("L_touched:")
    A.c("stage 1 reads head t&3 of pair (v, t>>2); lane row g takes splits g and 4+g")
    A(f"s_lshl_b32 s{sA}, s{sU}, 3")
    A(f"s_lshr_b32 s{sC}, s{sT}, 2")
    A(f"s_add_u32 s{sA}, s{sA}, s{sC}")
    A(f"s_mul_i32 s{sREC}, s{sA}, {8 * REC}")
    A(f"s_add_u32 s{sREC}, s{sREC}, {OBUF}")
    A(f"s_and_b32 s{sC}, s{sT}, 3")
    A(f"s_lshl_b32 s16, s{sC}, 3")
    A(f"s_add_u32 s16, s16, s{sREC}")
    A(f"s_lshl_b32 s{sA}, s{sC}, 10")
    A(f"s_add_u32 s{sREC}, s{sREC}, s{sA}")
    A(f"v_mul_u32_u24 v{vW0}, {REC}, v{vG}")
    A(f"v_min_u32 v{t1}, 2, v{vG}")
    A(f"v_add_u32 v{t1}, 4, v{t1}")
    A(f"v_mul_u32_u24 v{vW1}, {REC}, v{t1}")
    A(f"v_lshl_add_u32 v{vP0}, v{vN}, 4, v{vW0}")
    A(f"v_lshl_add_u32 v{vP1}, v{vN}, 4, v{vW1}")
    A.c("weight row d sits at position 64(d>>6) + 32((d>>1)&1) + 16((d>>5)&1) + 4((d>>2)&3) + 2((d>>4)&1) + (d&1)")
    A.c("stage 1 lane (c, g), half a holds channel d = 32(c>>2) + 8g + 4a + (c&3); it lands in this wave's own 32-byte units of the image")
    A(f"v_lshrrev_b32 v{t4}, 3, v{vN}")
    A(f"v_lshlrev_b32 v{t1}, 10, v{t4}")
    A(f"v_bfe_u32 v{t2}, v{vN}, 1, 1")
    A(f"v_lshlrev_b32 v{vAw}, 8, v{t2}")
    A(f"v_and_b32 v{t2}, 1, v{vN}")
    A(f"v_lshl_add_u32 v{vAw}, v{t2}, 1, v{vAw}")
    A(f"v_add_u32 v{t1}, v{t1}, v{vAw}")
    A(f"v_bfe_u32 v{t2}, v{vN}, 2, 1")
    A(f"v_lshl_add_u32 v{t1}, v{t2}, 7, v{t1}")
    A(f"v_lshl_add_u32 v{vAw}, v{t2}, 3, v{vAw}")
    A(f"v_lshl_add_u32 v{vAw}, v{t4}, 4, v{vAw}")
    A(f"v_lshl_add_u32 v{vAw}, v{vG}, 5, v{vAw}")
    A(f"v_and_b32 v{t2}, 1, v{vG}")
    A(f"v_lshl_add_u32 v{t1}, v{t2}, 4, v{t1}")
    A(f"v_lshrrev_b32 v{t3}, 1, v{vG}")
    A(f"v_lshl_add_u32 v{t1}, v{t3}, 2, v{t1}")
    A(f"s_lshl_b32 s{sB}, s{sU}, 5")
    A(f"v_add_u32 v{vOw}, s{sB}, v{t1}")
    A(f"s_lshr_b32 s{sB}, s{sU}, 1")
    A(f"s_and_b32 s{sC}, s{sU}, 1")
    A(f"s_lshl_b32 s{sA}, s{sB}, 7")
    A(f"s_lshl_b32 s17, s{sC}, 2")
    A(f"s_add_u32 s{sA}, s{sA}, s17")
    A(f"v_add_u32 v{vAw}, s{sA}, v{vAw}")
    if orot:
        A(f"s_and_b32 s{sA}, s{sT}, 1")
        A(f"s_lshl_b32 s{sA}, s{sA}, 2")
        A(f"s_and_b32 s17, s{sT}, 2")
        A(f"s_lshl_b32 s17, s17, 6")
        A(f"s_add_u32 s{sA}, s{sA}, s17")
        A(f"v_xor_b32 v{vAw}, s{sA}, v{vAw}")
        A(f"s_and_b32 s17, s{sT}, 4")
        A(f"s_lshl_b32 s17, s17, 8")
        A(f"s_add_u32 s{sA}, s{sA}, s17")
        A(f"v_xor_b32 v{vOw}, s{sA}, v{vOw}")
    A(f"s_lshl_b32 s17, s{sT}, 13")
    A(f"s_lshl_b32 s{sA}, s{sU}, 11")
    A(f"s_add_u32 s17, s17, s{sA}")
    A(f"s_add_u32 s17, s17, {YBUF}")
    A.c("stages 2/4: wave v = (b1, octet), lane row (sel, b0): column 16t + 8 octet + 4 sel + cc of batch 2 b1 + b0")
    A.c("HBUF byte = (j*64 + g*16 + 4b + rho)*16 + 2e")
    A(f"v_and_b32 v{t1}, 3, v{vN}")
    A(f"v_lshlrev_b32 v{t1}, 1, v{t1}")
    A(f"v_lshl_add_u32 v{t1}, v{t3}, 3, v{t1}")
    A(f"v_lshl_add_u32 v{vHs}, v{t2}, 6, v{t1}")
    A(f"v_lshl_add_u32 v{vOs}, v{t2}, 10, v{t1}")
    A(f"s_and_b32 s{sA}, s{sT}, 7")
    A(f"s_lshl_b32 s{sA}, s{sA}, 9")
    A(f"s_lshr_b32 s18, s{sT}, 3")
    A(f"s_lshl_b32 s18, s18, 4")
    A(f"s_add_u32 s{sA}, s{sA}, s18")
    A(f"s_lshl_b32 s18, s{sC}, 8")
    A(f"s_add_u32 s{sA}, s{sA}, s18")
    A(f"s_lshl_b32 s18, s{sB}, 7")
    A(f"s_add_u32 s{sA}, s{sA}, s18")
    A(f"s_add_u32 s{sA}, s{sA}, {HBUF}")
    A(f"v_add_u32 v{vHs}, s{sA}, v{vHs}")
    A(f"s_lshl_b32 s{sA}, s{sT}, 5")
    A(f"s_lshl_b32 s18, s{sC}, 4")
    A(f"s_add_u32 s{sA}, s{sA}, s18")
    A(f"s_lshl_b32 s18, s{sB}, 11")
    A(f"s_add_u32 s{sA}, s{sA}, s18")
    A(f"v_add_u32 v{vOs}, s{sA}, v{vOs}")
    A(f"s_lshl_b32 s18, s{sU}, 10")
    A(f"v_add_u32 v{vHw}, s18, v{vLin}")
    A.c("operand slot j of wave v holds k block j ^ v, so slot 0 is the block this wave gathers itself")
    for j in range(1, 4):
        A(f"v_xor_b32 v{vHr + j - 1}, {1024 * j}, v{vHw}")
    A(f"s_add_u32 s18, s18, {HBUF}")
    A.c("LayerNorm partial sums: slot [v>>1][b][4g + rho][v&1][8 B]")
    A(f"s_lshl_b32 s{sB}, s{sB}, 10")
    A(f"s_lshl_b32 s{sC}, s{sC}, 3")
    A(f"s_add_u32 s{sB}, s{sB}, s{sC}")
    A(f"v_and_b32 v{t3}, 3, v{vN}")
    A(f"v_lshrrev_b32 v{t2}, 2, v{vN}")
    A(f"v_lshlrev_b32 v{t2}, 8, v{t2}")
    A(f"v_lshl_add_u32 v{t2}, v{vG}, 6, v{t2}")
    A(f"v_lshl_add_u32 v{t2}, v{t3}, 4, v{t2}")
    A(f"v_add_u32 v{vSw}, s{sB}, v{t2}")
    set_idx(0)
    A(f"buffer_load_ushort v{vXr}, v{vOs}, {sr(S_X, 4)}, 0 offen")
    A.c("gate/up fragments: row 128(r>>1) + 4g + (r&1), 32-byte unit v ^ ((g&1) | (r>>1)<<1)")
    A(f"v_and_b32 v{t1}, 1, v{vG}")
    A(f"v_lshl_or_b32 v{t1}, v{t4}, 1, v{t1}")
    A(f"v_xor_b32 v{t1}, s{sU}, v{t1}")
    A(f"v_lshlrev_b32 v{t1}, 5, v{t1}")
    A(f"v_lshl_add_u32 v{t1}, v{t3}, 3, v{t1}")
    A(f"v_bfe_u32 v{t2}, v{vN}, 2, 1")
    A(f"v_lshl_add_u32 v{t1}, v{t2}, 7, v{t1}")
    A(f"v_and_b32 v{t2}, 1, v{vG}")
    A(f"v_lshl_add_u32 v{t1}, v{t2}, 9, v{t1}")
    A(f"v_lshrrev_b32 v{t2}, 1, v{vG}")
    A(f"v_lshl_add_u32 v{t1}, v{t2}, 11, v{t1}")
    A(f"v_lshl_add_u32 v{t1}, v{t4}, 15, v{t1}")
    A(f"s_lshl_b32 s{sA}, s{sU}, 13")
    A(f"v_add_u32 v{t1}, s{sA}, v{t1}")
    for i in range(4):
        A(f"v_mov_b32 v{AG + i}, 0x3f803f80")
    for i in range(8):
        A(f"v_mov_b32 v{DG + i}, 0")
    A("s_waitcnt vmcnt(0)")
    A("s_barrier")
    stamp(1)
    checkin_read(XG, True)
    bgu = lambda mat, r1, j: BGU + 64 * mat + 32 * r1 + 8 * j
    for r1 in range(2):
        for j in range(4):
            A(f"v_xor_b32 v{t2}, {65536 * r1 + 8192 * j}, v{t1}")
            for mat in range(2):
                for p in range(4):
                    off = mat * 1024 + (p >> 1) * 4096 + (p & 1) * 256
                    A(f"ds_read_b64_tr_b16 {vr(bgu(mat, r1, j) + 2 * p, 2)}, v{t2} offset:{off}")
            A("s_waitcnt lgkmcnt(4)")
    A("s_waitcnt lgkmcnt(0)")
    A("s_barrier")
    A.c("column sums of the weights")
    for r1 in range(2):
        for j in range(4):
            for mat in range(2):
                smf(DG + 4 * mat, AG, bgu(mat, r1, j), vIdx)

    def fold2(D):
        for a in (D, D + 4):
            A(f"v_permlane32_swap_b32 v{a}, v{a + 2}")
            A(f"v_permlane32_swap_b32 v{a + 1}, v{a + 3}")
        for a in (D, D + 4):
            A(f"v_pk_add_f32 {vr(a, 2)}, {vr(a, 2)}, {vr(a + 2, 2)}")
        for a in (D, D + 4):
            A(f"v_permlane16_swap_b32 v{a}, v{a + 1}")
        for a in (D, D + 4):
            A(f"v_add_f32 v{a}, v{a}, v{a + 1}")

    A("s_waitcnt vmcnt(0)")
    checkin_read(XG, False)
    A(f"buffer_load_dwordx4 {vr(RS + 16, 4)}, v{vLin}, {sr(S_WS, 4)}, s18 offen sc1")
    A(f"v_lshlrev_b32 v{vXr}, 16, v{vXr}")
    A(f"buffer_store_short v{vXr}, v{vOs}, {sr(S_OUT, 4)}, 0 offen")
    A(f"v_add_f32 v{vCg}, v{DG}, v{DG + 1}")
    A(f"v_add_f32 v{vCu}, v{DG + 4}, v{DG + 5}")
    for i in range(DG, DG + 16):
        A(f"v_mov_b32 v{i}, 0")
    stamp(2)
    A(f"s_mov_b32 s{sCNT}, 0")
    A(f"s_mov_b32 s{sA}, 0x3f803f80")
    A("s_mov_b32 s20, 0x00050005" if not fine else "s_mov_b32 s26, 0x00050005")
    A("s_mov_b32 s21, 0x00050005" if not fine else "s_mov_b32 s27, 0x00050005")
    hmask = "s[20:21]" if not fine else "s[26:27]"
    A("s_mov_b32 s22, 0x3b000000")
    A("s_mov_b32 s23, 0x3b000000")
    A(f"v_mov_b32 v{LA}, v{vW0}")
    A(f"v_mov_b32 v{LA + 1}, v{vW1}")
    stamp(3)
    A("s_branch L_g_stages")
    sec("gstages")
    A("L_g_stages:")
    stub("g0", warm_t)
    A.c("stage 1: wait for the seven log-sum-exp words, then fetch and combine the partial outputs of batch v")

    def lchk(u):
        R = LS + 4 * u
        A(f"v_mov_b32 v{PT}, v{R}")
        A(f"v_mov_b32 v{PT + 2}, v{R + 2}")
        A(f"v_xor_b32 v{t1}, s{sTAG}, v{R + 1}")
        A(f"v_xor_b32 v{t2}, s{sTAG}, v{R + 3}")
        A(f"v_or_b32 v{t1}, v{t1}, v{t2}")
        A(f"v_cmpx_ne_u32 vcc, 0, v{t1}")
    mpoll(lsets, lgap, lambda u: [f"buffer_load_dwordx2 {vr(LS + 4 * u + 2 * i, 2)}, v{LA + i}, {sr(S_WS, 4)}, s16 offen sc1" for i in range(2)], lchk, slp=lslp)
    rec_loads = lambda u: [f"buffer_load_dwordx4 {vr(RS + 16 * u + 8 * i + 4 * hf, 4)}, v{vP0 + i}, {sr(S_WS, 4)}, s{sREC} offen offset:{512 + 256 * hf} sc1"
                           for i in range(2) for hf in range(2)]
    rec_check = lambda u: tag_check(range(PT, PT + 16), TAGS, t2, RS + 16 * u, "x")
    stamp(4)
    if pre[0]:
        A(f"s_sleep {pre[0]}")
    for l in rec_loads(0):
        A(l)
    A(f"v_max_f32 v{t1}, v{PT}, v{PT + 2}")
    allred_rows("v_max_f32", t1, t2)
    A(f"v_sub_f32 v{PT}, v{PT}, v{t1}")
    A(f"v_sub_f32 v{PT + 2}, v{PT + 2}, v{t1}")
    A(f"v_exp_f32 v{PT}, v{PT}")
    A(f"v_exp_f32 v{PT + 2}, v{PT + 2}")
    A(f"v_cmp_eq_u32 vcc, 3, v{vG}")
    A(f"v_cndmask_b32 v{PT + 2}, v{PT + 2}, 0, vcc")
    A(f"v_add_f32 v{t1}, v{PT}, v{PT + 2}")
    allred_rows("v_add_f32", t1, t2)
    A(f"v_rcp_f32 v{t1}, v{t1}")
    A(f"v_mul_f32 v{t3}, v{PT + 2}, v{t1}")
    A(f"v_mul_f32 v{t1}, v{PT}, v{t1}")
    weigh = [f"v_pk_mul_f32 {vr(PT + p, 2)}, {vr(PT + p, 2)}, {vr(t1, 2)} op_sel_hi:[1,0]" for p in range(0, 8, 2)]
    weigh += [f"v_pk_fma_f32 {vr(PT + p, 2)}, {vr(PT + 8 + p, 2)}, {vr(t3, 2)}, {vr(PT + p, 2)} op_sel_hi:[1,0,1]" for p in range(0, 8, 2)]
    for n in range(4):
        A(f"s_waitcnt vmcnt({3 - n})")
        if n == 3:
            stamp(2)
        for i in range(4):
            A(f"v_xor_b32 v{PT + 4 * n + i}, s{sTB + i}, v{RS + 4 * n + i}")
        A(f"v_or3_b32 v{t2}, v{PT + 4 * n}, v{PT + 4 * n + 1}, {'0' if n == 0 else 'v%d' % t2}")
        A(f"v_or3_b32 v{t2}, v{PT + 4 * n + 2}, v{PT + 4 * n + 3}, v{t2}")
        if n == 3:
            A(f"v_cmp_ne_u32_sdwa vcc, v{t2}, 0 src0_sel:BYTE_0 src1_sel:DWORD")
        A(weigh[2 * n])
        A(weigh[2 * n + 1])
    A("L_rec_weighed:")
    fs(0)
    fold2(PT)
    A("s_cbranch_vccnz L_rec_late")
    stamp(6)
    keep, A.lines = A.lines, []
    A("L_rec_late:")
    mpoll(nsets[0], gap[0], rec_loads, rec_check)
    for l in weigh:
        A(l)
    A("s_mov_b64 vcc, 0")
    A("s_branch L_rec_weighed")
    cold.extend(A.lines)
    A.lines = keep
    A(f"v_cvt_pk_bf16_f32 v{PT}, v{PT}, v{PT + 4}")
    A(f"ds_write_b16 v{vOw}, v{PT} offset:{OL}")
    A(f"ds_write_b16_d16_hi v{vOw}, v{PT} offset:{OL + 8}")
    A("s_waitcnt lgkmcnt(0)")
    A("s_barrier")
    fs(1)
    stub("g1", warm_t)
    A("s_barrier")
    fs(2)

    def column_sums(tags, f, k):
        mpoll(nsets[k], gap[k],
              lambda u: [f"buffer_load_dwordx4 {vr(RS + 8 * u + 4 * i, 4)}, v{vLin}, {sr(S_WS, 4)}, s17 offen offset:{1024 * i} sc1" for i in range(2)],
              lambda u: tag_check(range(PT, PT + 8), tags, t2, RS + 8 * u, "x",
                                  [f"v_pk_add_f32 {vr(PT + p, 2)}, {vr(PT + p, 2)}, {vr(PT + 4 + p, 2)}" for p in (0, 2)]), pre[k])
        fs(f)
        A(f"v_permlane32_swap_b32 v{PT}, v{PT + 2}")
        A(f"v_permlane32_swap_b32 v{PT + 1}, v{PT + 3}")
        A(f"v_pk_add_f32 {vr(PT, 2)}, {vr(PT, 2)}, {vr(PT + 2, 2)}")
        A(f"v_permlane16_swap_b32 v{PT}, v{PT + 1}")
        A(f"v_add_f32 v{PT}, v{PT}, v{PT + 1}")
        dpp_red("v_add_f32", [PT], [8, 4])
        rb(PT, PT)

    A.c("stage 2: h = x + sum of the 32 head contributions")
    column_sums(TAGS, 3, 1)
    A(f"v_add_f32 v{PT}, v{PT}, v{vXr}")
    A(f"s_cmp_eq_u32 s{sFAST}, 0")
    A(f"v_mov_b32_dpp v{PT + 1}, v{PT} quad_perm:[1,1,3,3] row_mask:0xf bank_mask:0xf")
    A(f"v_cvt_pk_bf16_f32 v{vH}, v{PT}, v{PT + 1}")
    A(f"v_min_u32 v{t2}, -2, v{vH}")
    A(f"s_mov_b64 exec, {hmask}")
    A("s_cbranch_scc1 L_h_far")
    A(f"buffer_store_dword v{t2}, v{vHs}, {sr(S_WST, 4)}, 0 offen")
    A("L_h_sent:")
    A("s_mov_b64 exec, -1")
    stamp(5)
    fs(4)
    stub("g1b", warm_t and dense)
    A.c("stage 3: gather h, LayerNorm folded around h @ [w_gate | w_up], act = silu(g) * u")

    def hchk(u):
        R = RS + 4 * u
        A(f"ds_write_b128 v{vHw}, {vr(R, 4)} offset:{HL}")
        for i in range(4 if hheavy else 0):
            A(f"v_dot2_f32_bf16 v{t1}, v{R + i}, s{sA}, {'v%d' % t1 if i else 0}")
            A(f"v_dot2_f32_bf16 v{t2}, v{R + i}, v{R + i}, {'v%d' % t2 if i else 0}")
        A(f"v_pk_mov_b32 {vr(AG, 2)}, {vr(R, 2)}, {vr(R, 2)} op_sel:[0,1]")
        A(f"v_pk_mov_b32 {vr(AG + 2, 2)}, {vr(R + 2, 2)}, {vr(R + 2, 2)} op_sel:[0,1]")
        A(f"v_max_u32 v{t3}, v{R}, v{R + 1}")
        if hheavy:
            A(f"ds_write_b64 v{vSw}, {vr(t1, 2)} offset:{SL}")
        A(f"v_max3_u32 v{t3}, v{t3}, v{R + 2}, v{R + 3}")
        A(f"v_cmpx_eq_u32 vcc, -1, v{t3}")
    A(f"v_lshlrev_b32 v{vH}, 16, v{vH}")
    mpoll(nsets[2], gap[2], lambda u: [f"buffer_load_dwordx4 {vr(RS + 4 * u, 4)}, v{vLin}, {sr(S_WS, 4)}, s18 offen sc1"], hchk, pre[2])
    fs(5)
    gsm = lambda n: smf(DG + 8 * (n & 1) + 4 * ((n >> 1) & 1), AG + 4 * (n >> 2), bgu(n & 1, (n >> 1) & 1, n >> 2), vIdx)
    early_n = 0
    if not hheavy:
        for i in range(4):
            A(f"v_dot2_f32_bf16 v{t1}, v{AG + i}, s{sA}, {'v%d' % t1 if i else 0}")
            A(f"v_dot2_f32_bf16 v{t2}, v{AG + i}, v{AG + i}, {'v%d' % t2 if i else 0}")
        A(f"ds_write_b64 v{vSw}, {vr(t1, 2)} offset:{SL}")
        early_n = hearly
        for n in range(early_n):
            gsm(n)
    A("s_waitcnt lgkmcnt(0)")
    A("s_barrier")
    fs(6)
    hrd = lambda j: f"ds_read_b128 {vr(AG + 4 * j, 4)}, v{vHr + j - 1} offset:{HL}"
    A(f"ds_read_b128 {vr(PT, 4)}, v{vLin} offset:{SL}")
    A(f"ds_read_b128 {vr(PT + 4, 4)}, v{vLin} offset:{SL + 1024}")
    dp = lambda v, r: f"v_add_f32_dpp v{v}, v{v}, v{v} row_ror:{r} row_mask:0xf bank_mask:0xf"
    chain = [[hrd(1)], [hrd(2)], [hrd(3)],
             ["s_waitcnt lgkmcnt(3)", f"v_pk_add_f32 {vr(PT, 2)}, {vr(PT, 2)}, {vr(PT + 2, 2)}",
              f"v_pk_add_f32 {vr(PT + 4, 2)}, {vr(PT + 4, 2)}, {vr(PT + 6, 2)}",
              f"v_pk_add_f32 {vr(PT, 2)}, {vr(PT, 2)}, {vr(PT + 4, 2)}"]]
    for r in (8, 4, 2, 1):
        chain += [[dp(PT, r)], [dp(PT + 1, r)]]
    if mimic2:
        chain += [[f"v_pk_mul_f32 {vr(t1, 2)}, {vr(PT, 2)}, s[22:23]"],
                  [f"v_fma_f32 v{t2}, -v{t1}, v{t1}, v{t2}", f"v_max_f32 v{t2}, 0, v{t2}"],
                  [f"v_cvt_pk_bf16_f32 v{t2}, v{t1}, v{t2}", f"v_lshlrev_b32 v{t1}, 16, v{t2}"],
                  [f"v_and_b32 v{t2}, 0xffff0000, v{t2}", f"v_add_f32 v{t2}, 0x3727c5ac, v{t2}",
                   f"v_cvt_pk_bf16_f32 v{t2}, v{t2}, v{t2}", f"v_lshlrev_b32 v{t2}, 16, v{t2}",
                   f"v_sqrt_f32 v{t2}, v{t2}", f"v_pk_mul_f32 {vr(vCg, 2)}, {vr(vCg, 2)}, {vr(t1, 2)} op_sel_hi:[1,0]",
                   f"v_cvt_pk_bf16_f32 v{t2}, v{t2}, v{t2}", f"v_lshlrev_b32 v{t2}, 16, v{t2}", f"v_rcp_f32 v{t2}, v{t2}"]]
    else:
        chain += [[f"v_pk_mul_f32 {vr(t1, 2)}, {vr(PT, 2)}, s[22:23]"],
                  [f"v_fma_f32 v{t2}, -v{t1}, v{t1}, v{t2}"],
                  [f"v_max_f32 v{t2}, 0, v{t2}"],
                  [f"v_add_f32 v{t2}, 0x3727c5ac, v{t2}", f"v_rsq_f32 v{t2}, v{t2}",
                   f"v_pk_mul_f32 {vr(vCg, 2)}, {vr(vCg, 2)}, {vr(t1, 2)} op_sel_hi:[1,0]"]]
    for n in range(16):
        if n and n & 3 == 0:
            A(f"s_waitcnt lgkmcnt({3 - (n >> 2)})")
        if n >= early_n:
            gsm(n)
        for c in chain.pop(0):
            A(c)
    assert not chain
    fs(7)
    A(f"v_pk_add_f32 {vr(DG, 2)}, {vr(DG, 2)}, {vr(DG + 6, 2)}")
    A(f"v_mul_f32 v{t3}, 0xbfb8aa3b, v{t2}")
    A(f"v_add_f32 v{DG}, v{DG}, v{DG + 1}")
    A(f"v_sub_f32 v{DG}, v{DG}, v{vCg}")
    A(f"v_mul_f32 v{t1}, v{DG}, v{t3}")
    A(f"v_exp_f32 v{t1}, v{t1}")
    A(f"v_pk_add_f32 {vr(DG + 8, 2)}, {vr(DG + 8, 2)}, {vr(DG + 14, 2)}")
    A(f"v_add_f32 v{t1}, 1.0, v{t1}")
    A(f"v_rcp_f32 v{t1}, v{t1}")
    A(f"v_add_f32 v{DG + 1}, v{DG + 8}, v{DG + 9}")
    A(f"v_sub_f32 v{DG + 1}, v{DG + 1}, v{vCu}")
    A(f"v_pk_mul_f32 {vr(DG, 2)}, {vr(DG, 2)}, {vr(t1, 2)} op_sel:[0,1] op_sel_hi:[1,1]")
    A(f"v_mul_f32 v{DG}, v{DG}, v{t1}")
    A(f"v_mul_f32 v{DG}, v{DG}, v{DG + 1}")
    A(f"v_cvt_pk_bf16_f32 v{DG}, v{DG}, v{DG}")
    A(f"ds_write_b16 v{vAw}, v{DG} offset:{AL}")
    A("s_waitcnt lgkmcnt(0)")
    A("s_barrier")
    fs(8)
    stub("g2", warm_t)
    A("s_barrier")
    fs(9)
    A.c("stage 4: out = h + sum of the down-projection contributions")
    column_sums([f"s{sTZ + i}" for i in range(4)], 10, 3)
    A(f"v_add_f32 v{PT}, v{PT}, v{vH}")
    A(f"v_cvt_pk_bf16_f32 v{PT}, v{PT}, v{PT}")
    A(f"buffer_store_short v{PT}, v{vOs}, {sr(S_OUT, 4)}, 0 offen")
    fs(11)
    if fine:
        A("s_waitcnt vmcnt(0)")
        fs(12)
        fine_out()
    A(f"s_or_b32 s{sA}, s{sT}, s{sU}")
    A("s_cbranch_scc1 L_fin")
    A.c("advance the epoch so that the next launch rejects this launch's hand-offs")
    A(f"s_add_u32 s{sA}, s{sTAG}, {TAGC:#x}")
    A(f"v_mov_b32 v{t1}, s{sA}")
    A(f"v_mov_b32 v{t2}, {EPOCH}")
    A("s_mov_b64 exec, 1")
    A(f"buffer_store_dword v{t1}, v{t2}, {sr(S_WST, 4)}, 0 offen")
    A("s_branch L_fin")
    stub("g3", warm_t)
    A("L_h_far:")
    A(f"buffer_store_dword v{t2}, v{vHs}, {sr(S_WST, 4)}, 0 offen sc1")
    A("s_branch L_h_sent")
    for l in cold:
        A(l)

    A("L_fin:")
    if amp:
        idx, role, wave = amp
        A("s_waitcnt vmcnt(0)")
        stamp(7)
        A(f"s_cmp_lg_u32 s{sW}, {wave}")
        A("s_cbranch_scc1 L_end")
        A(f"s_cmp_eq_u32 s{sXI}, {tailx}")
        A("s_cbranch_scc0 L_end" if role == "tail" else "s_cbranch_scc1 L_end")
        A("s_waitcnt lgkmcnt(0)")
        A(f"s_sub_u32 s{sA}, s{sST + 2 * idx}, s{sST}")
        if ampx is not None:
            A(f"s_getreg_b32 s{sA}, hwreg(HW_REG_XCC_ID, 0, 3)")
            A(f"s_add_u32 s{sA}, s{sA}, {ampx}")
            A(f"s_and_b32 s{sA}, s{sA}, 7")
            A(f"s_mul_i32 s{sA}, s{sA}, 125")
        A(f"s_min_u32 s{sA}, s{sA}, 20000")
        A(f"s_lshl_b32 s{sA}, s{sA}, 3")
        A(f"s_add_u32 s{sA}, s{sA}, 6000")
        A("L_amp:")
        A(f"s_memrealtime {sr(sC, 2)}")
        A("s_waitcnt lgkmcnt(0)")
        A(f"s_sub_u32 s{sB}, s{sC}, s{sST}")
        A(f"s_cmp_lt_u32 s{sB}, s{sA}")
        A("s_cbranch_scc1 L_amp")
    if stamps:
        A("s_waitcnt vmcnt(0)")
        stamp(7)
        A("s_waitcnt lgkmcnt(0)")
        for i in range(8):
            A(f"v_mov_b32 v{16 + i}, s{sST + 2 * i}")
        A(f"s_lshl_b32 s{sA}, s2, 3")
        A(f"s_add_u32 s{sA}, s{sA}, s{sW}")
        A(f"s_lshl_b32 s{sA}, s{sA}, 5")
        A(f"s_add_u32 s{sA}, s{sA}, {STAMPS}")
        A("v_mov_b32 v4, 0")
        A("s_mov_b64 exec, 1")
        A(f"buffer_store_dwordx4 v[16:19], v4, {sr(S_WS, 4)}, s{sA} offen")
        A(f"buffer_store_dwordx4 v[20:23], v4, {sr(S_WS, 4)}, s{sA} offen offset:16")
    A("L_end:")
    A("s_endpgm")
    A("L_code_end:")

    parts, cur = {}, None
    for l in A.lines:
        if l.startswith(".sec "):
            cur = parts.setdefault(l[5:], [])
        else:
            cur.append(l)
    page = [".p2align 12"]
    lines = (parts["entry"] + parts["ohead"] + parts["qhead"] + [f".org {NAME} + 0x440, 0" if not (stamps or amp) else ".p2align 6"]
             + parts["vinit"] + parts["k1"] + page + parts["qbody"] + parts["k2"] + page + parts["v"]
             + page + parts["ghead"] + page + parts["ofar"] + page + parts["gstages"])
    body, n = insert_waits(lines)
    out = HEADER
    out += "; @launch grid=(256,1,1) block=(512,1,1) lds=163840\n"
    out += '.amdgcn_target "amdgcn-amd-amdhsa--gfx950"\n.text\n'
    out += f".globl {NAME}\n.p2align 12\n.p2align 8\n.type {NAME},@function\n"
    out += "\n".join(("" if t.endswith(":") else "    ") + t for t in body) + "\n"
    out += f""".section .rodata,"a"
.p2align 6
.amdhsa_kernel {NAME}
  .amdhsa_next_free_vgpr 256
  .amdhsa_next_free_sgpr 102
  .amdhsa_accum_offset 256
  .amdhsa_group_segment_fixed_size 0
  .amdhsa_kernarg_size 96
  .amdhsa_user_sgpr_count 2
  .amdhsa_user_sgpr_kernarg_segment_ptr 1
  .amdhsa_system_sgpr_workgroup_id_x 1
  .amdhsa_float_denorm_mode_32 3
.end_amdhsa_kernel
"""
    return out


def layout(path):
    import subprocess, re
    subprocess.run(["clang", "-x", "assembler", "-target", "amdgcn-amd-amdhsa", "-mcpu=gfx950", "-c", path, "-o", "_l.o"], check=True)
    sym = subprocess.run(["llvm-objdump", "-t", "_l.o"], capture_output=True, text=True).stdout
    ad = {m.group(2): int(m.group(1), 16) for m in re.finditer(r"^([0-9a-f]{16}) .*\s(L_\S+)$", sym, re.M)}
    for chain in (["L_tail", "L_qside", "L_v_init", "L_warm_k2", "L_v6", "L_warm_q1", "L_warm_q2", "L_warm_k3", "L_warm_k4", "L_k_idle"],
                  ["L_vwave", "L_warm_v1", "L_warm_v2", "L_warm_v3", "L_gwave", "L_o_more", "L_warm_o0", "L_warm_o1", "L_o_far", "L_g_more", "L_g_stages"],
                  ["L_warm_g0", "L_warm_g1", "L_warm_g1b", "L_warm_g1c", "L_warm_g2", "L_warm_g3", "L_code_end"]):
        chain = [c for c in chain if c in ad]
        print(" ".join(f"{a}@{ad[a]:#x}(+{ad[b] - (ad[a] & ~63)})" for a, b in zip(chain, chain[1:]) if a in ad and b in ad))


if __name__ == "__main__":
    kw = {}
    for a in sys.argv[2:]:
        k, v = a.split("=")
        kw[k] = eval(v)
    open(sys.argv[1], "w").write(gen(**kw))
    layout(sys.argv[1])
```

```python
import sys
sys.path.insert(0, "exp")
from asmlib import Asm, vr, sr, insert_waits

NAME = "sequential_preLN__sliding_block_cached__swiglu_ffn__decode_kernel"
HEADER = open("sequential_preLN__sliding_block_cached__swiglu_ffn__decode.s.ref").read().split("; Override launch")[0]

QP, YBUF, HBUF, EPOCH, XBUF, OBUF, STAMPS = 0x0, 0x40000, 0x80000, 0x82000, 0x83000, 0x84000, 0x1c0000
TAGC = 0x9e3779b1
PBUF = 0x188000
VERSION = 28
REC = 4096
WS_SIZE = 0x200000
FLAG_OFF = 0

S_X, S_WQ, S_WS, S_WST, S_A, S_B, S_WG, S_WU, S_OUT, S_DBG = 28, 32, 36, 40, 44, 48, 52, 56, 60, 64
sW, sXI, sT, sLIM, sCNT, sPASS, sFAST, sLB, sT0, sNT = 68, 69, 70, 71, 72, 73, 74, 75, 76, 77
sA, sB, sC, sD = 78, 79, 80, 81
sSELLO, sSELHI, sREC, sTAG = 82, 83, 84, 85
sXQ = 3
sHQ, sKQ, sROT = 64, 65, 66
sMASK = 4
sTB = 12
sST = 86
vL, vN, vG = 1, 2, 3
vFF = 255
QL, ML, LL, PB = 151552, 152576, 152640, 153600


def gen(tailx=0, kvflags="nt", wqflags="nt", woflags="nt", guflags="nt", wdflags="nt", stamps=False, force_slow=False,
        dry=False, limit=0x40000, vwin=6, kwin=0, vbar=9, gsched=(4, 3, 3, 3, 3), kprio=0, amp=None, kbar=1, qprio=3, gather_before=0, qmap=1, drop='', codepf=False, tprio=True, slp=8, slp2=0, qstflags='sc1', touchflags='sc1', qwarm=None, qwb=False, fine=False, gyoung=True, nsets=(2, 2, 2, 2), gap=(2, 2, 2, 1), gwin=12, r1at=7, oprio=1, gprio=1, mimic2=True, vtile=4, ktile=None, ampx=None, vtouch=False, shift=None, pmap=1, ackbar=(None, None), pre=(0, 2, 3, 4), early=False, hv=5, lsets=2, lgap=2, owarm=False, lslp=0, nearflags='', rots=1, rotr=0, orot=True, gw=8, tailpf=True, warm_t=True, warm_a=True, warm_at=5, paced=0, dense=False, vearly=0, vew=0, veprio=1, adapt=None, peer=None, qpre=None, qlay=1, near_tries=6, trim=True, hheavy=0, skewx=None, hearly=2, vpost=None, pfirst=2, korder=(0, 1, 9, 8, 2, 3, 4, 5, 6, 7)):
    A = Asm()

    def stamp(i):
        if stamps or (amp and i in (0, amp[0])) or (adapt and i == 0):
            A(f"s_memrealtime {sr(sST + 2 * i, 2)}")

    FS = [44, 46, 48, 50, 52, 54, 56, 58, 20, 32, 24, 28, 30]

    def fs(i):
        if fine:
            A(f"s_memtime {sr(FS[i], 2)}")

    def slot_off(dst, base, slot):
        if rots and slot < 8:
            A(f"s_add_u32 s{dst}, s{sROT}, {16384 * slot}")
            A(f"s_and_b32 s{dst}, s{dst}, 0x1ffff")
            A(f"s_add_u32 s{dst}, s{dst}, s{base}")
        else:
            A(f"s_add_u32 s{dst}, s{base}, {16384 * slot}")

    def stub(name, on):
        if on:
            A(f"L_warm_{name}:")
            A(f"s_cbranch_execz L_back_{name}")

    def touch(names):
        A.c("fetch later code into the instruction cache: jump to each landing point with no lanes active and come back")
        A("s_mov_b64 exec, 0")
        for n in names:
            A(f"s_branch L_warm_{n}")
            A(f"L_back_{n}:")
        A("s_mov_b64 exec, -1")

    def sec(name):
        A(f".sec {name}")

    def srd(base, ptr, size):
        A(f"s_mov_b32 s{base}, s{ptr}")
        A(f"s_mov_b32 s{base + 1}, s{ptr + 1}")
        A(f"s_mov_b32 s{base + 2}, {size:#x}")
        A(f"s_mov_b32 s{base + 3}, 0x20000")

    def rb(dst, src):
        A(f"v_cvt_pk_bf16_f32 v{dst}, v{src}, v{src}")
        A(f"v_lshlrev_b32 v{dst}, 16, v{dst}")

    def allred_rows(op, v, t):
        A(f"v_mov_b32 v{t}, v{v}")
        A(f"v_permlane32_swap_b32 v{v}, v{t}")
        A(f"{op} v{v}, v{v}, v{t}")
        A(f"v_mov_b32 v{t}, v{v}")
        A(f"v_permlane16_swap_b32 v{v}, v{t}")
        A(f"{op} v{v}, v{v}, v{t}")

    def dpp_red(op, regs, rots):
        for r in rots:
            for v in regs:
                A(f"{op}_dpp v{v}, v{v}, v{v} row_ror:{r} row_mask:0xf bank_mask:0xf")

    def quad_red(v):
        for p in ("[1,0,3,2]", "[2,3,0,1]"):
            A(f"v_add_f32_dpp v{v}, v{v}, v{v} quad_perm:{p} row_mask:0xf bank_mask:0xf")

    def rows_to_batches(D):
        A(f"v_permlane32_swap_b32 v{D}, v{D + 2}")
        A(f"v_permlane32_swap_b32 v{D + 1}, v{D + 3}")
        A(f"v_add_f32 v{D}, v{D}, v{D + 2}")
        A(f"v_add_f32 v{D + 1}, v{D + 1}, v{D + 3}")
        A(f"v_permlane16_swap_b32 v{D}, v{D + 1}")
        A(f"v_add_f32 v{D}, v{D}, v{D + 1}")

    def fold_d(D):
        for rho in (1, 2, 3):
            for r in range(4):
                A(f"v_mov_b32_dpp v{D + r}, v{D + 4 * rho + r} quad_perm:[0,1,2,3] row_mask:{1 << rho:#x} bank_mask:0xf")
        rows_to_batches(D)

    def mfma16(D, Areg, Breg, first):
        c = "0" if first else vr(D, 4)
        A(f"v_mfma_f32_16x16x32_bf16 {vr(D, 4)}, {vr(Areg, 4)}, {vr(Breg, 4)}, {c}")

    def sentinel_check(regs, t):
        regs = list(regs)
        if len(regs) % 2 == 0:
            A(f"v_max_u32 v{t}, v{regs[0]}, v{regs[1]}")
            rest = regs[2:]
        else:
            A(f"v_max3_u32 v{t}, v{regs[0]}, v{regs[1]}, v{regs[2]}")
            rest = regs[3:]
        for i in range(0, len(rest), 2):
            A(f"v_max3_u32 v{t}, v{t}, v{rest[i]}, v{rest[i + 1]}")
        A(f"v_cmp_eq_u32 vcc, -1, v{t}")

    def tag_check(regs, tags, t, src=None, x="", extra=()):
        regs = list(regs)
        for i, r in enumerate(regs):
            A(f"v_xor_b32 v{r}, {tags[i % len(tags)]}, v{r if src is None else src + i}")
        A(f"v_or_b32 v{t}, v{regs[0]}, v{regs[1]}")
        for i in range(2, len(regs), 2):
            A(f"v_or3_b32 v{t}, v{t}, v{regs[i]}, v{regs[i + 1]}")
        for l in extra:
            A(l)
        A(f"v_cmp{x}_ne_u32_sdwa vcc, v{t}, 0 src0_sel:BYTE_0 src1_sel:DWORD")

    TAGS = [f"s{sTB + i}" for i in range(4)]

    def tag_put(D, tb=sTB):
        for i in range(4):
            A(f"v_bfi_b32 v{D + i}, v{vFF}, s{tb + i}, v{D + i}")

    def poll(loads, check, wait="s_waitcnt vmcnt(0)", sleep=0):
        top, out = A.label("poll"), A.label("polled")
        A(f"s_mov_b32 s{sCNT}, 0")
        A(f"{top}:")
        for l in loads:
            A(l)
        A(f"s_add_u32 s{sCNT}, s{sCNT}, 1")
        A(f"s_cmp_ge_u32 s{sCNT}, s{sLIM}")
        A(wait)
        check()
        A(f"s_cbranch_scc1 {out}")
        if sleep:
            A(f"s_cbranch_vccz {out}")
            A(f"s_sleep {sleep}")
            A(f"s_branch {top}")
        else:
            A(f"s_cbranch_vccnz {top}")
        A(f"{out}:")

    cold = []

    def mpoll(n, g, mk_loads, mk_check, p=0, slp=0):
        top, more, out = A.label("poll"), A.label("more"), A.label("polled")
        nl = len(mk_loads(0))
        if p == "ack":
            A("s_waitcnt vmcnt(0)")
        elif p:
            A(f"s_sleep {p}")
        for u in range(n - 1):
            for l in mk_loads(u):
                A(l)
            if g:
                A(f"s_sleep {g}")
        A(f"{top}:")
        for l in mk_loads(n - 1):
            A(l)
        A(f"s_waitcnt vmcnt({(n - 1) * nl})")
        mk_check(0)
        A(f"s_cbranch_execnz {more}")
        A(f"{out}:")
        A("s_mov_b64 exec, -1")
        keep, A.lines = A.lines, []
        A(f"{more}:")
        for u in range(1, n):
            for l in mk_loads(u - 1):
                A(l)
            A(f"s_waitcnt vmcnt({(n - 1) * nl})")
            mk_check(u)
            A(f"s_cbranch_execz {out}")
        A(f"s_add_u32 s{sCNT}, s{sCNT}, 1")
        A(f"s_cmp_lt_u32 s{sCNT}, s{sLIM}")
        if slp:
            A(f"s_sleep {slp}")
        A(f"s_cbranch_scc1 {top}")
        A(f"s_branch {out}")
        cold.extend(A.lines)
        A.lines = keep

    def smf(D, Areg, Breg, idx):
        A(f"v_smfmac_f32_16x16x64_bf16 {vr(D, 4)}, {vr(Areg, 4)}, {vr(Breg, 8)}, v{idx}")

    def make_tag():
        A("s_waitcnt lgkmcnt(0)")
        A(f"s_add_u32 s{sTAG}, s{sTAG}, {TAGC:#x}")
        for i in range(4):
            A(f"s_bfe_u32 s{sTB + i}, s{sTAG}, {0x80000 + 8 * i:#x}")

    def set_masks():
        for i in range(4):
            A(f"s_mov_b32 s{sMASK + 2 * i}, {0x000f000f << (4 * i):#x}")
            A(f"s_mov_b32 s{sMASK + 2 * i + 1}, {0x000f000f << (4 * i):#x}")

    def store_mode(texts):
        slow, done = A.label("slow"), A.label("stored")
        A(f"s_cmp_eq_u32 s{sFAST}, 0")
        A(f"s_cbranch_scc1 {slow}")
        for t in texts:
            A(t)
        A(f"s_branch {done}")
        A(f"{slow}:")
        for t in texts:
            A(t + " sc1" if t.startswith("buffer_") else t)
        A(f"{done}:")

    def line_tile_addr(dst, base_s, t1, t2):
        A(f"v_bfe_u32 v{t1}, v{vN}, 3, 1")
        A(f"v_and_b32 v{t2}, 1, v{vG}")
        A(f"v_lshl_or_b32 v{t1}, v{t2}, 1, v{t1}")
        A(f"v_lshlrev_b32 v{t1}, 5, v{t1}")
        A(f"v_and_b32 v{t2}, 3, v{vN}")
        A(f"v_lshl_add_u32 v{t1}, v{t2}, 3, v{t1}")
        A(f"v_lshrrev_b32 v{t2}, 2, v{vN}")
        A(f"v_lshl_add_u32 v{t1}, v{t2}, 7, v{t1}")
        A(f"v_lshl_add_u32 v{t1}, v{vG}, 10, v{t1}")
        for i in range(4):
            A(f"v_xor_b32 v{dst + i}, {32 * i}, v{t1}")
            if base_s is not None:
                A(f"v_add_u32 v{dst + i}, s{base_s}, v{dst + i}")

    def line_tile_read(dst, addr, off):
        for i in range(4):
            A(f"ds_read_b64_tr_b16 {vr(dst(i), 2)}, v{addr + i} offset:{off}")
            A(f"ds_read_b64_tr_b16 {vr(dst(i) + 2, 2)}, v{addr + i} offset:{off + 512}")

    def swz_chunk(dst, t):
        A(f"v_and_b32 v{t}, 1, v{vG}")
        A(f"v_lshlrev_b32 v{t}, 1, v{t}")
        A(f"v_and_b32 v{dst}, 7, v{vL}")
        A(f"v_xor_b32 v{dst}, v{dst}, v{t}")
        A(f"v_lshlrev_b32 v{dst}, 4, v{dst}")

    def consts():
        A(f"v_mov_b32 v{vFF}, 0xff")
        A(f"s_mov_b32 s{sLIM}, {limit}")

    def sel_consts():
        A(f"s_mov_b32 s{sSELLO}, 0x05040100")
        A(f"s_mov_b32 s{sSELHI}, 0x07060302")

    assert tailx == 0
    KO, KA, QO = 4, 8, 12
    vM, vLs, vT1, vT2, vGA = 14, 15, 62, 63, 61
    Q, S, PA, QM, KF, QG = 16, 32, 44, 64, 128, 160

    def role_calc():
        A.c("index 32(x-1) + t -> (pair, role): the splits of one pair sit on neighbouring workgroups of one die")
        A(f"s_lshl_b32 s{sB}, s{sXI}, 5")
        A(f"s_add_u32 s{sB}, s{sB}, s{sT}")
        A(f"s_sub_u32 s{sB}, s{sB}, 32")
        A(f"s_mul_i32 s{sT}, s{sB}, 9363")
        A(f"s_lshr_b32 s{sT}, s{sT}, 16")
        A(f"s_mul_i32 s{sA}, s{sT}, 7")
        A(f"s_sub_u32 s{sB}, s{sB}, s{sA}")
        A.c("roles own 37,37,37,37,37,36,35 tiles; byte offset of this wave's first tile")
        A(f"s_mul_i32 s{sT0}, s{sB}, 37")
        A(f"s_min_u32 s{sT0}, s{sT0}, 221")
        A(f"s_lshl_b32 s{sA}, s{sT}, 10")
        A(f"s_add_u32 s{sT0}, s{sT0}, s{sA}")
        A(f"s_and_b32 s{sD}, s{sW}, 3")
        A(f"s_add_u32 s{sT0}, s{sT0}, s{sD}")
        A(f"s_addk_i32 s{sT0}, 768")
        A(f"s_lshl_b32 s{sT0}, s{sT0}, 12")
        A(f"s_lshl_b32 s{sROT}, s{sT}, 14")

    def tile_count():
        A(f"s_max_u32 s{sA}, s{sB}, 4")
        A(f"s_sub_u32 s{sNT}, 41, s{sA}")

    sec("entry")
    A(f"{NAME}:")
    stamp(0)
    A("s_load_dwordx16 s[4:19], s[0:1], 0")
    A("s_load_dwordx8 s[20:27], s[0:1], 64")
    A("v_lshrrev_b32 v4, 6, v0")
    A(f"v_and_b32 v{vL}, 63, v0")
    A(f"v_readfirstlane_b32 s{sW}, v4")
    A(f"s_lshr_b32 s{sT}, s2, 3")
    A(f"s_cmp_ge_u32 s{sT}, 32")
    A("s_cbranch_scc1 L_end")
    A(f"v_lshrrev_b32 v{vG}, 4, v{vL}")
    A(f"s_and_b32 s{sXI}, s2, 7")
    A("s_cbranch_scc0 L_tail")
    A(f"s_cmp_eq_u32 s{sW}, 7")
    A("s_cbranch_scc1 L_v_init")
    A(f"s_cmp_eq_u32 s{sW}, 6")
    A("s_cbranch_scc1 L_v6")
    role_calc()
    A(f"s_cmp_ge_u32 s{sW}, 4")
    A("s_cbranch_scc1 L_qside")
    A.c("K wave k: key tiles k, k+4, .. go to LDS; source chunk (l&15) ^ (4(l>>4) + i) keeps the fragment reads conflict-free")
    A(f"v_lshlrev_b32 v{KO}, 2, v{vG}")
    A(f"v_xor_b32 v{KO}, v{KO}, v{vL}")
    A(f"v_lshlrev_b32 v{KO}, 4, v{KO}")
    for i in (1, 2, 3):
        A(f"v_xor_b32 v{KO + i}, {16 * i}, v{KO}")
    A(f"s_sub_u32 s{sA}, 3, s{sW}")
    A(f"s_mul_i32 m0, s{sA}, 0x9000")
    A(f"s_and_b32 s{sC}, s{sROT}, 0x1ffff")
    A(f"s_add_u32 s{sC}, s{sC}, s{sT0}")
    A(f"s_lshl_b32 s{S_A + 2}, {0 if 'k' in drop else 1}, 27")
    A(f"s_mov_b32 s{S_A + 3}, 0x20000")
    A("s_waitcnt lgkmcnt(0)")
    A(f"s_mov_b64 {sr(S_A, 2)}, s[6:7]")
    kloads = [f"buffer_load_dwordx4 v{KO + i}, {sr(S_A, 4)}, s{sC} offen offset:{1024 * i} {kvflags} lds" for i in range(4)]
    for l in kloads:
        A(l)
    stamp(1)
    A("s_branch L_k_more")

    sec("vinit")
    A("L_v_init:")
    A.c("LDS: the q copy and the max slots start empty")
    for i in range(4):
        A(f"v_mov_b32 v{8 + i}, -1")
    A(f"v_lshlrev_b32 v6, 4, v{vL}")
    A(f"v_add_u32 v7, {QL}, v6")
    A("ds_write_b128 v7, v[8:11]")
    A("ds_write_b128 v7, v[8:11] offset:1024")
    A("s_waitcnt lgkmcnt(0)")
    A("s_barrier")
    A("s_branch L_v_late")
    sec("qhead")
    A("L_qside:")
    A(f"v_and_b32 v{vN}, 15, v0")
    tile_count()
    A(f"s_cmp_eq_u32 s{sB}, 6")
    A(f"s_cselect_b32 s{sA}, {0 if 'j' in drop else 5}, {0 if 'j' in drop else 4}")
    A(f"s_cmp_le_u32 s{sW}, s{sA}")
    A("s_cbranch_scc1 L_qjob")
    A("s_waitcnt lgkmcnt(0)")
    A("s_barrier")
    A("s_branch L_v_warm")
    A("L_qjob:")
    A.c("q job: LayerNorm(x)[:, 128 kq : 128 kq + 128] @ wq[those rows, column block xq of kv head hq]")
    if qprio:
        A(f"s_setprio {qprio}")
    A.c("column block by split: 2,4,5,6,7 for the long splits, 3 for the 36-tile split, 0 and 1 for the 35-tile split")
    A(f"s_add_u32 s{sA}, s{sB}, s{sW}")
    A(f"s_sub_u32 s{sA}, s{sA}, 4")
    A(f"s_lshl_b32 s{sA}, s{sA}, 2")
    A(f"s_lshr_b32 s{sXQ}, 0x10376542, s{sA}")
    A(f"s_and_b32 s{sXQ}, s{sXQ}, 7")
    if qmap == 1:
        A(f"s_and_b32 s{sKQ}, s{sT}, 3")
        A(f"s_lshr_b32 s{sHQ}, s{sT}, 2")
    elif qmap == 2:
        A(f"s_lshr_b32 s{sKQ}, s{sT}, 3")
        A(f"s_and_b32 s{sHQ}, s{sT}, 7")
    elif qmap == 3:
        A(f"s_lshr_b32 s{sKQ}, s{sT}, 3")
        A(f"s_and_b32 s{sHQ}, s{sT}, 1")
        A(f"s_lshl_b32 s{sHQ}, s{sHQ}, 2")
        A(f"s_bfe_u32 s{sA}, s{sT}, 0x20001")
        A(f"s_add_u32 s{sHQ}, s{sHQ}, s{sA}")
    else:
        A(f"s_bfe_u32 s{sKQ}, s{sT}, 0x20001")
        A(f"s_and_b32 s{sHQ}, s{sT}, 1")
        A(f"s_lshl_b32 s{sHQ}, s{sHQ}, 2")
        A(f"s_lshr_b32 s{sA}, s{sT}, 3")
        A(f"s_add_u32 s{sHQ}, s{sHQ}, s{sA}")
    XR, XF, QR, QB, QD = 16, 32, 64, 128, 160
    A.c("matrix row (b, rho), lane group g: x[b][128 j' + 32g + 8 rho ..], block j' = kq comes first")
    A(f"v_lshrrev_b32 v4, 2, v{vN}")
    A("v_lshlrev_b32 v4, 10, v4")
    A(f"v_and_b32 v5, 3, v{vN}")
    A("v_lshl_add_u32 v4, v5, 4, v4")
    A(f"v_lshl_add_u32 v4, v{vG}, 6, v4")
    for j in range(4):
        A(f"s_add_u32 s{56 + j}, s{sKQ}, {j}")
        A(f"s_and_b32 s{56 + j}, s{56 + j}, 3")
        A(f"s_lshl_b32 s{56 + j}, s{56 + j}, 8")
    A.c("matrix column (kappa, c): wq row 128kq + 32g + 16 r1 + 8 kappa + e, columns 8c..8c+7")
    A(f"v_lshlrev_b32 v5, 18, v{vG}")
    A(f"v_lshrrev_b32 v7, 3, v{vN}")
    A("v_lshl_add_u32 v5, v7, 16, v5")
    A(f"v_and_b32 v6, 7, v{vN}")
    A("v_lshl_add_u32 v5, v6, 4, v5")
    A(f"s_lshl_b32 s{sA}, s{sXQ}, 7")
    A(f"s_lshl_b32 s{sB}, s{sHQ}, 10")
    A(f"s_add_u32 s{sA}, s{sA}, s{sB}")
    A(f"s_lshl_b32 s{sB}, s{sKQ}, 20")
    A(f"s_add_u32 s44, s{sA}, s{sB}")
    for e in range(1, 8):
        A(f"s_add_u32 s{44 + e}, s44, {8192 * e}")
    A("v_add_u32 v10, 0x20000, v5")
    A.c("QP byte = (b*8 + hq)*8192 + kq*2048 + xq*256 + lane column * 16; piece (kappa, c) holds columns 8c + 4 kappa ..")
    A(f"s_lshl_b32 s60, s{sHQ}, {15 if qlay else 13}")
    A(f"s_lshl_b32 s{sC}, s{sKQ}, {13 if qlay else 11}")
    A(f"s_add_u32 s60, s60, s{sC}")
    A(f"s_lshl_b32 s{sC}, s{sXQ}, {10 if qlay else 8}")
    A(f"s_add_u32 s60, s60, s{sC}")
    A(f"v_lshlrev_b32 v6, 4, v{vN}")
    A(f"v_lshl_add_u32 v6, v{vG}, {8 if qlay else 16}, v6")
    A("s_waitcnt lgkmcnt(0)")
    srd(S_X, 4, 4096)
    srd(S_WQ, 10, 0 if 'q' in drop else 512 * 8192)
    stamp(3)
    if qpre:
        srd(S_WST, 26, WS_SIZE)
        if qpre == "w":
            A(f"buffer_store_dwordx4 v[0:3], v6, {sr(S_WST, 4)}, s60 offen sc1")
        else:
            A(f"buffer_load_dwordx4 v[224:227], v6, {sr(S_WST, 4)}, s60 offen")
    for j in range(4):
        A(f"buffer_load_dwordx4 {vr(XR + 4 * j, 4)}, v4, {sr(S_X, 4)}, s{56 + j} offen")
    for r1 in range(2):
        for e in range(8):
            A(f"buffer_load_dwordx4 {vr(QR + 32 * r1 + 4 * e, 4)}, v{10 if r1 else 5}, {sr(S_WQ, 4)}, s{44 + e} offen {wqflags}")
    A("s_barrier")
    A("s_branch L_q_body")

    sec("k1")
    if peer:
        A("L_k_post:")
        A.c("progress flag of this workgroup, one line per workgroup id")
        srd(S_WST, 26, WS_SIZE)
        A(f"s_lshl_b32 s{sA}, s2, 7")
        A(f"s_add_u32 s{sA}, s{sA}, {PBUF}")
        A("s_waitcnt lgkmcnt(0)")
        A(f"s_add_u32 s{sC}, s{sTAG}, {TAGC:#x}")
        A(f"v_mov_b32 v{vT1}, s{sC}")
        A(f"v_mov_b32 v{vT2}, 0")
        A("s_mov_b64 exec, 1")
        A(f"buffer_store_dword v{vT1}, v{vT2}, {sr(S_WST, 4)}, s{sA} offen sc1")
        A("s_mov_b64 exec, -1")
        A("s_branch L_k_posted")
    A("L_k_more:")
    A(f"s_mov_b32 s{sLB}, m0")
    tile_count()
    A(f"s_sub_u32 s{sNT}, s{sNT}, s{sW}")
    A(f"s_add_u32 s{sNT}, s{sNT}, 3")
    A(f"s_lshr_b32 s{sNT}, s{sNT}, 2")
    A(f"s_lshl_b32 s{sPASS}, s{sNT}, 14")
    A(f"s_movk_i32 s{sCNT}, 0x4000")
    if peer:
        A(f"s_cmp_eq_u32 s{sW}, 0")
        A(f"s_cselect_b32 s{sFAST}, {0x4000 * peer[0]}, 0")
    A(f"s_load_dword s{sTAG}, s[26:27], {EPOCH}")
    if kbar == 0:
        A("s_barrier")
        stamp(5)
    A("L_k_loop:")
    A(f"s_add_u32 m0, m0, 4096")
    A(f"s_add_u32 s{sC}, s{sROT}, s{sCNT}")
    A(f"s_and_b32 s{sC}, s{sC}, 0x1ffff")
    A(f"s_bitcmp1_b32 s{sCNT}, 17")
    A(f"s_cselect_b32 s{sC}, s{sCNT}, s{sC}")
    A(f"s_add_u32 s{sC}, s{sC}, s{sT0}")
    for l in kloads:
        A(l)
    if kbar:
        A(f"s_cmp_lg_u32 s{sCNT}, {0x4000 * kbar}")
        A("s_cbranch_scc1 L_k_nobar")
        A("s_barrier")
        stamp(5)
        A("L_k_nobar:")
    if peer:
        A(f"s_cmp_eq_u32 s{sCNT}, s{sFAST}")
        A("s_cbranch_scc1 L_k_post")
        A("L_k_posted:")
    A(f"s_addk_i32 s{sCNT}, 0x4000")
    A(f"s_cmp_lt_u32 s{sCNT}, s{sPASS}")
    A("s_cbranch_scc1 L_k_loop")
    A.c("q partials of head k: [kv head][k quarter][column block][batch][256 B]; the lane half picks the quarter")
    assert qlay == 1
    srd(S_WS, 26, WS_SIZE)
    A(f"v_and_b32 v{vN}, 15, v0")
    A(f"v_lshlrev_b32 v{vGA}, 4, v{vN}")
    A(f"v_lshrrev_b32 v{vT1}, 5, v{vL}")
    A(f"v_lshl_add_u32 v{vGA}, v{vT1}, 13, v{vGA}")
    A(f"v_and_b32 v{vT1}, 1, v{vG}")
    A(f"v_lshl_add_u32 v{vGA}, v{vT1}, 10, v{vGA}")
    A(f"s_lshl_b32 s{sREC}, s{sT}, 3")
    A(f"s_add_u32 s{sREC}, s{sREC}, s{sB}")
    A(f"s_and_b32 s{sA}, s{sT}, 7")
    A(f"s_lshl_b32 s{sA}, s{sA}, 15")
    A(f"s_lshr_b32 s{sB}, s{sT}, 3")
    A(f"s_lshl_b32 s{sB}, s{sB}, 8")
    A(f"s_add_u32 s{sA}, s{sA}, s{sB}")
    A(f"s_lshl_b32 s{sB}, s{sW}, 11")
    A(f"s_add_u32 s{sA}, s{sA}, s{sB}")
    A(f"s_add_u32 s{sB}, s{sA}, 16384")
    gloads = [f"buffer_load_dwordx4 {vr(QG + 4 * i, 4)}, v{vGA}, {sr(S_WS, 4)}, s{sB if i else sA} offen sc1" for i in range(2)]
    if 'G' in drop:
        gloads = []
    for l in gloads:
        A(l)
    A("s_barrier")
    consts()
    srd(S_WST, 26, WS_SIZE)
    A(f"s_mul_i32 s{sREC}, s{sREC}, {REC}")
    A(f"s_add_u32 s{sREC}, s{sREC}, {OBUF}")
    stamp(2)
    make_tag()
    A.c("K fragment LDS addresses: key(mu)*256 + ((4j + g) ^ mu)*16, key(mu) = 4*(mu&3) + (mu>>2)")
    A(f"v_and_b32 v{vT1}, 3, v{vN}")
    A(f"v_lshlrev_b32 v{QO}, 4, v{vT1}")
    A(f"v_lshlrev_b32 v{vT1}, 10, v{vT1}")
    A(f"v_lshrrev_b32 v{vT2}, 2, v{vN}")
    A(f"v_lshl_add_u32 v{vT1}, v{vT2}, 8, v{vT1}")
    A(f"v_xor_b32 v{vM}, v{vG}, v{vN}")
    A(f"v_lshl_add_u32 v{vT1}, v{vM}, 4, v{vT1}")
    for j in range(4):
        A(f"v_xor_b32 v{KA + j}, {64 * j}, v{vT1}")
        A(f"v_add_u32 v{KA + j}, s{sLB}, v{KA + j}")
    A(f"v_add_u32 v{QO + 1}, {ML}, v{QO}")
    A(f"v_lshl_add_u32 v{QO}, v{vG}, 6, v{QO}")
    A.c("probability slot of slot s = 4a + rho: PB + (s>>1)*1024 + k*256 + g*64 + h*16 + (s&1)*8")
    A(f"v_lshrrev_b32 v{vM}, 1, v{vT2}")
    A(f"v_lshl_add_u32 v{PA}, v{vM}, 10, v{QO}")
    A(f"v_and_b32 v{vM}, 1, v{vT2}")
    A(f"v_lshl_add_u32 v{PA}, v{vM}, 3, v{PA}")
    A(f"s_lshl_b32 s{sC}, s{sW}, 8")
    A(f"s_add_u32 s{sC}, s{sC}, {PB}")
    A(f"v_add_u32 v{PA}, s{sC}, v{PA}")
    A(f"v_add_u32 v{QO}, {QL}, v{QO}")
    A.c("s[18:19]: lanes of accumulator 2 whose tile exists")
    A(f"v_add_u32 v{vT1}, 8, v{vT2}")
    A(f"v_cmp_gt_u32 s[18:19], s{sNT}, v{vT1}")
    set_masks()
    for i in range(0, 64, 2):
        A(f"v_mov_b64 {vr(QM + i, 2)}, 0")
    A.c("sum the four q partials of head k into LDS (operand order)")
    A(f"v_and_b32 v{Q}, 7, v{vL}")
    A(f"v_lshlrev_b32 v{Q}, 6, v{Q}")
    A(f"v_bfe_u32 v{vT1}, v{vL}, 4, 1")
    A(f"v_lshl_add_u32 v{Q}, v{vT1}, 9, v{Q}")
    A(f"v_and_b32 v{vT1}, 8, v{vL}")
    A(f"v_add_u32 v{Q}, v{Q}, v{vT1}")
    A(f"s_lshl_b32 s{sC}, s{sW}, 4")
    A(f"s_add_u32 s{sC}, s{sC}, {QL}")
    A(f"v_add_u32 v{Q}, s{sC}, v{Q}")
    A("s_waitcnt vmcnt(0)")
    tag_check(range(QG, QG + 8), TAGS, vT1)
    A("s_cbranch_vccz L_k_gathered")
    poll(gloads, lambda: tag_check(range(QG, QG + 8), TAGS, vT1))
    A("L_k_gathered:")
    for i in range(4):
        A(f"v_permlane32_swap_b32 v{QG + i}, v{QG + 4 + i}")
    A(f"v_pk_add_f32 {vr(QG, 2)}, {vr(QG, 2)}, {vr(QG + 4, 2)}")
    A(f"v_pk_add_f32 {vr(QG + 2, 2)}, {vr(QG + 2, 2)}, {vr(QG + 6, 2)}")
    for i in range(4):
        A(f"v_mov_b32 v{QG + 4 + i}, v{QG + i}")
    for i in range(4):
        A(f"v_permlane32_swap_b32 v{QG + i}, v{QG + 4 + i}")
    A(f"v_pk_add_f32 {vr(QG, 2)}, {vr(QG, 2)}, {vr(QG + 4, 2)}")
    A(f"v_pk_add_f32 {vr(QG + 2, 2)}, {vr(QG + 2, 2)}, {vr(QG + 6, 2)}")
    for i in range(2):
        A(f"v_cvt_pk_bf16_f32 v{QG + i}, v{QG + 2 * i}, v{QG + 2 * i + 1}")
        A(f"v_min_u32 v{QG + i}, -2, v{QG + i}")
    A(f"ds_write_b64 v{Q}, {vr(QG, 2)}")
    poll([f"ds_read_b128 {vr(Q + 4 * j, 4)}, v{QO} offset:{256 * j}" for j in range(4)],
         lambda: sentinel_check(range(Q, Q + 16), vT1), wait="s_waitcnt lgkmcnt(0)", sleep=2)
    for rho in range(4):
        A(f"s_mov_b64 exec, {sr(sMASK + 2 * rho, 2)}")
        for j in range(4):
            A(f"ds_read_b128 {vr(QM + 16 * rho + 4 * j, 4)}, v{QO} offset:{256 * j}")
        if rho & 1:
            A("s_waitcnt lgkmcnt(0)")
    A("s_mov_b64 exec, -1")
    A("s_waitcnt vmcnt(0)")
    stamp(3)

    def qk_reads(slot):
        for j in range(4):
            A(f"ds_read_b128 {vr(KF + 16 * (slot & 1) + 4 * j, 4)}, v{KA + j} offset:{4096 * slot}")

    qk_reads(0)
    for slot in range(10):
        if slot >= 8:
            A(f"s_cmp_le_u32 s{sNT}, {slot}")
            A("s_cbranch_scc1 L_qk_done")
        if slot < 9:
            qk_reads(slot + 1)
            A("s_waitcnt lgkmcnt(4)")
        else:
            A("s_waitcnt lgkmcnt(0)")
        for j in range(4):
            mfma16(S + 4 * (slot >> 2), KF + 16 * (slot & 1) + 4 * j, QM + 16 * (slot & 3) + 4 * j, j == 0 and (slot & 3) == 0)
    A("s_branch L_qk_done")
    sec("k2")
    A("L_qk_done:")
    stub("k3", warm_a)
    A.c("scores: bf16(bf16(q.k) * Dh^-0.5); absent tiles get -inf")
    A(f"s_mov_b32 s{sA}, 0x3db504f3")
    A(f"s_mov_b32 s{sB}, 0x3fb8aa3b")
    A(f"v_mov_b32 v{vT1}, 0xff800000")
    for i in range(0, 12, 2):
        p = S + i
        A(f"v_cvt_pk_bf16_f32 v{p + 1}, v{p}, v{p + 1}")
        A(f"v_lshlrev_b32 v{p}, 16, v{p + 1}")
        A(f"v_and_b32 v{p + 1}, 0xffff0000, v{p + 1}")
        A(f"v_mul_f32 v{p}, s{sA}, v{p}")
        A(f"v_mul_f32 v{p + 1}, s{sA}, v{p + 1}")
        A(f"v_cvt_pk_bf16_f32 v{p + 1}, v{p}, v{p + 1}")
        A(f"v_lshlrev_b32 v{p}, 16, v{p + 1}")
        A(f"v_and_b32 v{p + 1}, 0xffff0000, v{p + 1}")
        if i >= 8:
            m = "s[18:19]"
            A(f"v_cndmask_b32 v{p}, v{vT1}, v{p}, {m}")
            A(f"v_cndmask_b32 v{p + 1}, v{vT1}, v{p + 1}, {m}")
    A(f"v_max_f32 v{vM}, v{S}, v{S + 1}")
    for i in range(2, 12, 2):
        A(f"v_max3_f32 v{vM}, v{vM}, v{S + i}, v{S + i + 1}")
    dpp_red("v_max_f32", [vM], [8, 4])
    allred_rows("v_max_f32", vM, vT1)
    A(f"v_min_u32 v{vM}, -2, v{vM}")
    A(f"s_lshl_b32 s{sA}, s{sW}, 2")
    A(f"v_add_u32 v{vT2}, s{sA}, v{QO + 1}")
    A("s_mov_b64 exec, 15")
    A(f"ds_write_b32 v{vT2}, v{vM}")
    A("s_mov_b64 exec, -1")
    poll([f"ds_read_b128 {vr(Q, 4)}, v{QO + 1}"], lambda: sentinel_check(range(Q, Q + 4), vT1),
         wait="s_waitcnt lgkmcnt(0)", sleep=1)
    stub("k4", warm_a)
    A(f"v_max_f32 v{vM}, v{Q}, v{Q + 1}")
    A(f"v_max3_f32 v{vM}, v{vM}, v{Q + 2}, v{Q + 3}")
    for i in range(12):
        A(f"v_sub_f32 v{S + i}, v{S + i}, v{vM}")
        A(f"v_mul_f32 v{S + i}, s{sB}, v{S + i}")
        A(f"v_exp_f32 v{S + i}, v{S + i}")
    A(f"v_mul_f32 v{vM}, s{sB}, v{vM}")
    for i in range(6):
        A(f"v_cvt_pk_bf16_f32 v{Q + i}, v{S + 2 * i}, v{S + 2 * i + 1}")
    A(f"ds_write_b64 v{PA}, {vr(Q, 2)}")
    A(f"ds_write_b64 v{PA}, {vr(Q + 2, 2)} offset:2048")
    A("s_mov_b32 exec_lo, 0x00ff00ff")
    A("s_mov_b32 exec_hi, 0x00ff00ff")
    A(f"ds_write_b64 v{PA}, {vr(Q + 4, 2)} offset:4096")
    A("s_mov_b64 exec, -1")
    A(f"v_add_f32 v{vLs}, v{S}, v{S + 1}")
    for i in range(2, 12):
        A(f"v_add_f32 v{vLs}, v{vLs}, v{S + i}")
    dpp_red("v_add_f32", [vLs], [8, 4])
    allred_rows("v_add_f32", vLs, vT1)
    A("s_mov_b64 exec, 15")
    A(f"ds_write_b32 v{vT2}, v{vLs} offset:{LL - ML}")
    A("s_mov_b64 exec, -1")
    A("s_waitcnt lgkmcnt(0)")
    stamp(4)
    A("s_barrier")
    A(f"s_cmp_ge_u32 s{sW}, 2")
    A("s_cbranch_scc1 L_k_lse")
    A.c("waves 0,1: thread G owns 16 bytes of the record, head G>>5, scaled by 1/L")
    A(f"v_and_b32 v{KA + 2}, 127, v0")
    A(f"v_lshrrev_b32 v{KA}, 5, v{KA + 2}")
    A(f"v_lshlrev_b32 v{KA + 3}, 1, v{KA}")
    A(f"v_lshlrev_b32 v{KA}, 4, v{KA}")
    A(f"v_add_u32 v{KA}, {LL}, v{KA}")
    A(f"ds_read_b128 {vr(Q, 4)}, v{KA}")
    A(f"v_xor_b32 v{KA + 3}, v{KA + 3}, v{KA + 2}")
    A(f"v_lshlrev_b32 v{KA + 3}, 4, v{KA + 3}")
    A(f"v_and_b32 v{KA + 1}, 0x60, v{KA + 2}")
    A(f"v_add_u32 v{KA + 2}, v{KA + 2}, v{KA + 1}")
    A(f"v_lshlrev_b32 v{KA + 2}, 4, v{KA + 2}")
    A("s_waitcnt lgkmcnt(0)")
    A(f"v_add_f32 v{Q}, v{Q}, v{Q + 1}")
    A(f"v_add_f32 v{Q + 2}, v{Q + 2}, v{Q + 3}")
    A(f"v_add_f32 v{Q}, v{Q}, v{Q + 2}")
    A(f"v_rcp_f32 v{vM}, v{Q}")
    A("s_barrier")
    A("s_barrier")
    for w in range(4):
        A(f"ds_read_b128 {vr(Q + 4 * w, 4)}, v{KA + 3} offset:{2048 * w}")
    A("s_waitcnt lgkmcnt(2)")
    A(f"v_pk_add_f32 {vr(Q, 2)}, {vr(Q, 2)}, {vr(Q + 4, 2)}")
    A(f"v_pk_add_f32 {vr(Q + 2, 2)}, {vr(Q + 2, 2)}, {vr(Q + 6, 2)}")
    A("s_waitcnt lgkmcnt(0)")
    A(f"v_pk_add_f32 {vr(Q + 8, 2)}, {vr(Q + 8, 2)}, {vr(Q + 12, 2)}")
    A(f"v_pk_add_f32 {vr(Q + 10, 2)}, {vr(Q + 10, 2)}, {vr(Q + 14, 2)}")
    A(f"v_pk_add_f32 {vr(Q, 2)}, {vr(Q, 2)}, {vr(Q + 8, 2)}")
    A(f"v_pk_add_f32 {vr(Q + 2, 2)}, {vr(Q + 2, 2)}, {vr(Q + 10, 2)}")
    A(f"v_pk_mul_f32 {vr(Q, 2)}, {vr(Q, 2)}, {vr(vM, 2)} op_sel_hi:[1,0]")
    A(f"v_pk_mul_f32 {vr(Q + 2, 2)}, {vr(Q + 2, 2)}, {vr(vM, 2)} op_sel_hi:[1,0]")
    tag_put(Q)
    A(f"buffer_store_dwordx4 {vr(Q, 4)}, v{KA + 2}, {sr(S_WST, 4)}, s{sREC} offen offset:512 sc1")
    stamp(6)
    A("s_branch L_fin")
    A("L_k_lse:")
    if skewx is not None:
        A(f"s_lshl_b32 s{sA}, s2, 7")
        A(f"s_add_u32 s{sA}, s{sA}, {PBUF}")
        A(f"v_mov_b32 v200, s{sST}")
        A("v_mov_b32 v201, 0")
        A("s_mov_b64 exec, 1")
        A(f"buffer_store_dword v200, v201, {sr(S_WST, 4)}, s{sA} offen sc1")
        A("s_mov_b64 exec, -1")
        A("s_waitcnt vmcnt(0)")
    A.c("wave 2 sends log2-sum-exp once the last value tiles are landing; it tells the tail when to fetch the record")
    A(f"ds_read_b128 {vr(Q, 4)}, v{QO + 1} offset:{LL - ML}")
    A(f"v_lshlrev_b32 v{vT1}, 3, v{vL}")
    A(f"v_mov_b32 v{vLs}, s{sTAG}")
    A("s_waitcnt lgkmcnt(0)")
    A(f"v_add_f32 v{Q}, v{Q}, v{Q + 1}")
    A(f"v_add_f32 v{Q + 2}, v{Q + 2}, v{Q + 3}")
    A(f"v_add_f32 v{Q}, v{Q}, v{Q + 2}")
    A(f"v_log_f32 v{Q}, v{Q}")
    A(f"v_add_f32 v{vM}, v{vM}, v{Q}")
    A("s_mov_b64 exec, 15")
    A(f"s_cmp_lg_u32 s{sW}, 2")
    A("s_barrier")
    A("s_cbranch_scc1 L_k_idle")
    A(f"buffer_store_dwordx2 {vr(vM, 2)}, v{vT1}, {sr(S_WST, 4)}, s{sREC} offen sc1")
    A("L_k_idle:")
    stamp(6)
    A("s_mov_b64 exec, -1")
    A("s_barrier")
    A("s_branch L_fin")

    sec("qbody")
    A("L_v6:")
    A("s_waitcnt lgkmcnt(0)")
    A("s_barrier")
    A("L_v_late:")
    A(f"v_and_b32 v{vN}, 15, v0")
    role_calc()
    tile_count()
    A("L_v_warm:")
    if warm_a:
        touch(["q1", "q2", "v3", "v2", "v1", "k4", "k3"])
    A("s_branch L_vwave")
    A("L_q_body:")
    A(f"s_load_dword s{sTAG}, s[26:27], {EPOCH}")
    srd(S_WST, 26, WS_SIZE)
    if qwarm is not None:
        A(f"buffer_load_dword v11, v6, {sr(S_WST, 4)}, s60 offen {qwarm}")
    consts()
    sel_consts()
    A("s_mov_b32 s62, 0xff00ff00")
    A("s_mov_b32 s63, 0xff00ff00")
    A(f"s_waitcnt vmcnt({16 + (qwarm is not None)})")
    stamp(6)
    for i in range(16):
        A(f"v_lshlrev_b32 v{XF + 2 * i}, 16, v{XR + i}")
        A(f"v_and_b32 v{XF + 2 * i + 1}, 0xffff0000, v{XR + i}")
    A(f"v_pk_add_f32 v[12:13], {vr(XF, 2)}, {vr(XF + 2, 2)}")
    A(f"v_pk_add_f32 v[14:15], {vr(XF + 4, 2)}, {vr(XF + 6, 2)}")
    for i in range(4, 16, 2):
        A(f"v_pk_add_f32 v[12:13], v[12:13], {vr(XF + 2 * i, 2)}")
        A(f"v_pk_add_f32 v[14:15], v[14:15], {vr(XF + 2 * i + 2, 2)}")
    A("v_pk_add_f32 v[12:13], v[12:13], v[14:15]")
    A("v_add_f32 v12, v12, v13")
    quad_red(12)
    allred_rows("v_add_f32", 12, 13)
    A("v_mul_f32 v12, 0x3b000000, v12")
    A("v_mov_b32 v14, 0")
    A("v_mov_b32 v15, 0")
    for i in range(16):
        A(f"v_pk_add_f32 v[8:9], {vr(XF + 2 * i, 2)}, v[12:13] op_sel_hi:[1,0] neg_lo:[0,1] neg_hi:[0,1]")
        A("v_pk_fma_f32 v[14:15], v[8:9], v[8:9], v[14:15]")
    A("v_add_f32 v14, v14, v15")
    quad_red(14)
    allred_rows("v_add_f32", 14, 15)
    A("v_mul_f32 v14, 0x3b000000, v14")
    rb(12, 12)
    rb(14, 14)
    A("v_add_f32 v14, 0x3727c5ac, v14")
    rb(14, 14)
    A("v_sqrt_f32 v14, v14")
    rb(14, 14)
    A("v_rcp_f32 v14, v14")
    stub("q1", warm_a)
    for i in range(4):
        p = XF + 2 * i
        A(f"v_pk_add_f32 {vr(p, 2)}, {vr(p, 2)}, v[12:13] op_sel_hi:[1,0] neg_lo:[0,1] neg_hi:[0,1]")
        A(f"v_cvt_pk_bf16_f32 v{p + 1}, v{p}, v{p + 1}")
        A(f"v_lshlrev_b32 v{p}, 16, v{p + 1}")
        A(f"v_and_b32 v{p + 1}, 0xffff0000, v{p + 1}")
        A(f"v_pk_mul_f32 {vr(p, 2)}, {vr(p, 2)}, v[14:15] op_sel_hi:[1,0]")
        A(f"v_cvt_pk_bf16_f32 v{XR + i}, v{p}, v{p + 1}")
    for r1 in range(2):
        if r1:
            stub("q2", warm_a)
        A(f"s_waitcnt vmcnt({8 - 8 * r1 + (qwarm is not None)})")
        for i in range(8):
            for e2 in range(4):
                R = QR + 32 * r1 + 8 * e2 + (i >> 1)
                A(f"v_perm_b32 v{QB + 4 * i + e2}, v{R + 4}, v{R}, s{sSELHI if i & 1 else sSELLO}")
            if i:
                mfma16(QD + 32 * r1 + 4 * (i - 1), XR, QB + 4 * (i - 1), True)
        mfma16(QD + 32 * r1 + 28, XR, QB + 28, True)
    make_tag()
    A.c("valid sums sit in register 2 r1 + kappa; add the two kappa halves, lane kappa keeps columns 4 kappa .. 4 kappa + 3")
    for i in range(8):
        A(f"v_pk_add_f32 {vr(QD + 4 * i, 2)}, {vr(QD + 4 * i, 2)}, {vr(QD + 32 + 4 * i + 2, 2)}")
    for i in range(8):
        A(f"v_cndmask_b32 v{QD + 4 * i}, v{QD + 4 * i}, v{QD + 4 * i + 1}, s[62:63]")
    for i in range(8):
        A(f"v_add_f32_dpp v{QD + 4 * i}, v{QD + 4 * i}, v{QD + 4 * i} row_ror:8 row_mask:0xf bank_mask:0xf")
    for i in range(4):
        A(f"v_cndmask_b32 v{XF + i}, v{QD + 4 * i}, v{QD + 16 + 4 * i}, s[62:63]")
        A(f"v_add_u32 v{XF + i}, 0x80, v{XF + i}")
    tag_put(XF)
    if qwarm is not None:
        A("s_waitcnt vmcnt(0)")
    if 'S' not in drop:
        A(f"buffer_store_dwordx4 {vr(XF, 4)}, v6, {sr(S_WST, 4)}, s60 offen {qstflags}")
    if qprio:
        A("s_setprio 0")
    stamp(1)

    A("s_branch L_vwave")
    sec("v")
    A("L_vwave:")
    srd(S_B, 8, 0 if 'v' in drop else 0x8000000)
    sel_consts()
    if stamps or peer:
        srd(S_WS, 26, WS_SIZE)
    if peer:
        A.c("peers: the attention workgroups with the same id>>3 on the other dies")
        A(f"s_load_dword s{sTAG}, s[26:27], {EPOCH}")
        A(f"s_lshr_b32 s52, s2, 3")
        A(f"s_lshl_b32 s52, s52, 10")
        A(f"s_add_u32 s52, s52, {PBUF}")
        A(f"s_lshl_b32 s54, 1, s{sXI}")
        A(f"s_xor_b32 s54, s54, 0xfe")
        A(f"s_mov_b32 s55, 0")
        A(f"v_lshlrev_b32 v250, 7, v{vL}")
        A("s_waitcnt lgkmcnt(0)")
        A(f"s_add_u32 s{sTAG}, s{sTAG}, {TAGC:#x}")
    if vtouch:
        A.c("first touch of the V window ahead of its stream")
        A(f"s_cmp_lg_u32 s{sW}, 7")
        A("s_cbranch_scc1 L_no_vtouch")
        A("v_mov_b32 v250, 0")
        A("s_mov_b64 exec, 1")
        A("s_setprio 3")
        A(f"buffer_load_dword v251, v250, {sr(S_B, 4)}, s{sT0} offen {kvflags}")
        A("s_setprio 0")
        A("s_mov_b64 exec, -1")
        A("L_no_vtouch:")
    A.c("V wave v: value tiles v, v+4, .. in registers, transposed in-lane, P.V on the matrix core")
    VO, vPA, vRA = 4, 5, 6
    ACC, PM, VB = 8, 16, 48
    A(f"v_lshlrev_b32 v{VO}, 4, v{vL}")
    A(f"s_sub_u32 s{sD}, s{sW}, 4")
    order = [9, 8, 0, 1, 2, 3, 4, 5, 6, 7]
    pair_seq = [4, 0, 1, 2, 3]
    raw_base = {k: VB + 32 * (n + 1) for n, k in enumerate(pair_seq)}
    out_base = {k: VB + 32 * n for n, k in enumerate(pair_seq)}

    def v_load(s):
        R = raw_base[s >> 1] + 16 * (s & 1)
        A(f"s_add_u32 s{sB}, s{sT0}, {16384 * s}")
        for j in range(4):
            A(f"buffer_load_dwordx4 {vr(R + 4 * j, 4)}, v{VO}, {sr(S_B, 4)}, s{sB} offen offset:{1024 * j} {kvflags}")

    def v_perm(s, i):
        R = raw_base[s >> 1] + 16 * (s & 1)
        q, sel = i >> 1, sSELHI if i & 1 else sSELLO
        d = out_base[s >> 1] + 4 * i + 2 * (s & 1)
        A(f"v_perm_b32 v{d}, v{R + 4 + q}, v{R + q}, s{sel}")
        A(f"v_perm_b32 v{d + 1}, v{R + 12 + q}, v{R + 8 + q}, s{sel}")

    def p_read(k, buf):
        for rho in range(4):
            A(f"s_mov_b64 exec, {sr(sMASK + 2 * rho, 2)}")
            A(f"ds_read_b128 {vr(PM + 16 * buf + 4 * rho, 4)}, v{vPA} offset:{1024 * k}")
        A("s_mov_b64 exec, -1")

    def pv(k, buf, i, first):
        mfma16(ACC + 4 * (i >> 2), out_base[k] + 4 * i, PM + 16 * buf + 4 * (i & 3), first and (i & 3) == 0)

    for i in range(32):
        A(f"v_mov_b32 v{raw_base[4] + i}, 0")
    set_masks()
    for i in range(32):
        A(f"v_mov_b32 v{PM + i}, 0")
    A(f"v_and_b32 v7, 3, v{vN}")
    A(f"v_lshlrev_b32 v{vPA}, 4, v7")
    A(f"v_lshl_add_u32 v{vPA}, v{vG}, 6, v{vPA}")
    A(f"s_lshl_b32 s{sA}, s{sD}, 8")
    A(f"s_add_u32 s{sA}, s{sA}, {PB}")
    A(f"v_add_u32 v{vPA}, s{sA}, v{vPA}")
    A.c("reduction slot: h*32 + ((16a + 4g + rho) ^ 2h)")
    A(f"v_lshrrev_b32 v{vRA}, 2, v{vL}")
    A(f"v_lshlrev_b32 v{ACC}, 1, v7")
    A(f"v_xor_b32 v{vRA}, v{vRA}, v{ACC}")
    A(f"v_lshl_add_u32 v{vRA}, v7, 5, v{vRA}")
    A(f"v_lshlrev_b32 v{vRA}, 4, v{vRA}")
    A(f"s_lshl_b32 s{sA}, s{sD}, 11")
    A(f"v_add_u32 v{vRA}, s{sA}, v{vRA}")
    if vearly:
        A(f"s_setprio {veprio}")
    else:
        A("s_barrier")
    def peer_load(r):
        A("s_mov_b64 exec, s[54:55]")
        A(f"buffer_load_dword v{r}, v250, {sr(S_WS, 4)}, s52 offen sc1")
        A("s_mov_b64 exec, -1")

    if adapt:
        A("s_memrealtime s[56:57]")
        A("s_waitcnt lgkmcnt(0)")
        A(f"s_sub_u32 s56, s56, s{sST}")
        A(f"s_cmp_lt_u32 s56, {adapt[0]}")
        A("s_cselect_b64 vcc, 1, 0")
    A(f"s_add_u32 s{sA}, s{sD}, 36")
    A(f"s_cmp_ge_u32 s{sA}, s{sNT}")
    A("s_cbranch_scc1 L_v9_done")
    v_load(9)
    A("L_v9_done:")
    assert vwin >= 5 and vearly != 1
    done = 0
    for n in range(4, 40):
        s_, j = order[n >> 2], n & 3
        R = raw_base[s_ >> 1] + 16 * (s_ & 1)
        if n == 4:
            A(f"s_add_u32 s{sA}, s{sD}, 32")
            A(f"s_cmp_ge_u32 s{sA}, s{sNT}")
            A("s_cbranch_scc1 L_v8_done")
        if n == 8:
            A("L_v8_done:")
        if n == 16:
            stub("v1", warm_a)
        if n == (32 if peer else 36):
            stub("v2", warm_a)
        if j == 0:
            slot_off(sB, sT0, s_)
        if vtile is not None:
            if vearly and n == 4 * vearly:
                A("s_setprio 0")
                A("s_barrier")
            if peer and j == 0 and 4 * pfirst + 4 <= n < 4 * peer[2]:
                A.c("narrow window while too few peers have posted")
                A(f"s_waitcnt vmcnt({vtile})")
                A(f"s_cbranch_vccz L_free{n}" if n > 4 * pfirst + 4 else "s_nop 0")
                A("s_mov_b64 exec, s[54:55]")
                A(f"v_cmp_ne_u32 vcc, s{sTAG}, v251")
                A("s_mov_b64 exec, -1")
                A(f"s_bcnt1_i32_b64 s{sA}, vcc")
                A(f"s_cmp_gt_u32 s{sA}, {peer[3]}")
                A("s_cselect_b64 vcc, 1, 0")
                A(f"s_cbranch_scc0 L_free{n}")
                A(f"s_waitcnt vmcnt({peer[1]})")
                peer_load(251)
                A(f"L_free{n}:")
            elif j == 0 and n >= 8:
                A(f"s_waitcnt vmcnt({vtile if n >= 4 * vearly else min(vew, vtile)})")
                if peer and n == 4 * pfirst:
                    peer_load(251)
                if adapt and n < 4 * adapt[2]:
                    A(f"s_cbranch_vccz L_wide{n}")
                    A(f"s_waitcnt vmcnt({adapt[1]})")
                    A(f"L_wide{n}:")
        elif n >= vwin:
            A(f"s_waitcnt vmcnt({vwin - 1})")
        A(f"buffer_load_dwordx4 {vr(R + 4 * j, 4)}, v{VO}, {sr(S_B, 4)}, s{sB} offen offset:{1024 * j} {kvflags}")
        if vpost and n == 4 * vpost + 3:
            A(f"s_cmp_lg_u32 s{sW}, 7")
            A("s_cbranch_scc1 L_v_posted")
            A(f"s_lshl_b32 s{sA}, s2, 7")
            A(f"s_add_u32 s{sA}, s{sA}, {PBUF}")
            A(f"v_mov_b32 v252, s{sTAG}")
            A("s_mov_b64 exec, 1")
            A(f"buffer_store_dword v252, v250, {sr(S_WS, 4)}, s{sA} offen sc1")
            A("s_mov_b64 exec, -1")
            A("L_v_posted:")
        landed = ((n - 3 - vtile) // 4 if j == 3 and n >= 8 else 0) if vtile is not None else (n - vwin + 1) // 4
        while done < landed:
            for i in range(8):
                v_perm(order[done], i)
            done += 1
    stamp(2)
    A("s_barrier")
    stamp(4)
    p_read(pair_seq[0], 0)
    for n, k in enumerate(pair_seq):
        if n == 3:
            stub("v3", warm_a)
        if n < 4:
            p_read(pair_seq[n + 1], (n + 1) & 1)
        first_t, second_t = 2 * n, 2 * n + 1
        if n == 4 and hv > 4:
            A(f"s_waitcnt vmcnt({hv})")
            A("s_barrier")
        if first_t >= done:
            A(f"s_waitcnt vmcnt({4 * (9 - first_t)})")
            for i in range(8):
                v_perm(order[first_t], i)
        lg = f"lgkmcnt({4 if n < 4 else 0})"
        if n == 4 and hv <= 4:
            A(f"s_waitcnt vmcnt({hv})")
            A("s_barrier")
        if second_t >= done:
            A(f"s_waitcnt vmcnt({4 * (9 - second_t)}) {lg}")
            if n == 4:
                stamp(5)
            seq = [0, 4, 1, 5, 2, 6, 3, 7]
            v_perm(order[second_t], seq[0])
            for m, i in enumerate(seq):
                if m < 7:
                    v_perm(order[second_t], seq[m + 1])
                pv(k, n & 1, i, n == 0)
        else:
            A(f"s_waitcnt {lg}")
            for i in (0, 4, 1, 5, 2, 6, 3, 7):
                pv(k, n & 1, i, n == 0)
    A(f"ds_write_b128 v{vRA}, {vr(ACC, 4)}")
    A(f"ds_write_b128 v{vRA}, {vr(ACC + 4, 4)} offset:256")
    A("s_waitcnt lgkmcnt(0)")
    A("s_barrier")
    A("s_branch L_fin")

    sec("ohead")
    A("L_tail:")
    A.c("tail workgroup t: head t of wo, 64 FFN channels, 16 columns of h and of the output")
    if 'T' in drop:
        A("s_waitcnt lgkmcnt(0)")
        srd(S_WS, 26, WS_SIZE)
        A("s_branch L_fin")
    t1, t2, t3, t4 = 12, 13, 14, 15
    RING = 131072
    OL, AL, HL, SL = 0, 512, 2048, 6144
    sRING, sU, sTZ = sT0, sXQ, 64
    vIdx = 254
    A(f"v_and_b32 v{vN}, 15, v0")
    A(f"s_and_b32 s{sU}, s{sW}, 3")
    A(f"s_cmp_ge_u32 s{sW}, 4")
    A("s_cbranch_scc1 L_gwave")

    def set_idx(bit):
        A(f"v_bfe_u32 v{vIdx}, v{vN}, {bit}, 1")
        A(f"v_mul_u32_u24 v{vIdx}, 0xaaaa, v{vIdx}")
        A(f"v_add_u32 v{vIdx}, 0x4444, v{vIdx}")

    def tail_consts():
        consts()
        A(f"s_getreg_b32 s{sFAST}, hwreg(HW_REG_XCC_ID, 0, 3)")
        make_tag()
        A(f"s_add_u32 s{sA}, s{sTAG}, {TAGC:#x}")
        for i in range(4):
            A(f"s_bfe_u32 s{sTZ + i}, s{sA}, {0x80000 + 8 * i:#x}")
        A("s_mov_b32 s8, 0x00ff00ff")
        A("s_mov_b32 s9, 0x00ff00ff")
        A("s_not_b64 s[10:11], s[8:9]")

    def checkin_read(R, first):
        xl = f"buffer_load_dwordx2 {vr(R, 2)}, v{R + 2}, {sr(S_WS, 4)}, s{sD} offen sc1"
        if first:
            A(f"v_and_b32 v{R + 2}, 31, v{vL}")
            A(f"v_lshlrev_b32 v{R + 2}, 3, v{R + 2}")
            A(f"s_mov_b32 s{sD}, {XBUF}")
            A(xl)
            return
        ok, top, far = A.label("near"), A.label("checkin"), A.label("far")
        A.c("check-in words are L2-local: seeing all 32 with this XCC id proves that the tail shares one die")
        A(f"s_mov_b32 s{sCNT}, 0")
        A(f"{top}:")
        A(f"v_xor_b32 v{R}, s{sFAST}, v{R}")
        A(f"v_xor_b32 v{R + 1}, s{sTAG}, v{R + 1}")
        A(f"v_or_b32 v{R}, v{R}, v{R + 1}")
        A(f"v_cmp_ne_u32 vcc, 0, v{R}")
        A(f"s_mov_b32 s{sA}, {0 if force_slow else 1}")
        A(f"s_cbranch_vccz {ok}")
        A(f"s_add_u32 s{sCNT}, s{sCNT}, 1")
        A(f"s_cmp_ge_u32 s{sCNT}, {near_tries}")
        A(f"s_cbranch_scc1 {far}")
        A(f"s_sleep {slp}")
        A(xl)
        A("s_waitcnt vmcnt(0)")
        A(f"s_branch {top}")
        A(f"{far}:")
        A.c("any other placement: write-through hand-offs, after the four workgroups that empty the h buffer report in")
        A(f"v_and_b32 v{R + 2}, 3, v{vL}")
        A(f"v_lshlrev_b32 v{R + 2}, 7, v{R + 2}")
        poll([f"buffer_load_dword v{R}, v{R + 2}, {sr(S_WS, 4)}, s{sD} offen offset:512 sc1"],
             lambda: A(f"v_cmp_ne_u32 vcc, s{sTAG}, v{R}"), sleep=slp)
        A(f"s_mov_b32 s{sA}, 0")
        A(f"{ok}:")
        A(f"s_mov_b32 s{sFAST}, s{sA}")

    A.c("O wave u: columns 128u..128u+127 of wo[head t] and of w_down[64t..64t+63], staged through a two-slot ring")
    AO, DO, BWO, BWD = 16, 32, 48, 176
    vTR, vWOo, vAr, vYs, XO, A4 = 4, 8, 240, 241, 242, 246
    A(f"s_lshl_b32 s{sRING}, s{sU}, 13")
    A(f"s_add_u32 s{sRING}, s{sRING}, {RING}")
    A.c("ring chunk = 16 consecutive rows x 256 B; row 4g'+r keeps its 64-byte block i at position i ^ r")
    A(f"v_lshlrev_b32 v{t1}, 2, v{vG}")
    A(f"v_xor_b32 v{t1}, v{t1}, v{vN}")
    A(f"v_lshlrev_b32 v{t1}, 4, v{t1}")
    A(f"v_lshl_add_u32 v{vWOo}, v{vG}, 10, v{t1}")
    A(f"s_lshl_b32 s{sA}, s{sU}, 8")
    A(f"v_add_u32 v{vWOo}, s{sA}, v{vWOo}")
    for g in range(1, 4):
        A(f"v_add_u32 v{vWOo + g}, {3072 * g}, v{vWOo}")
    A(f"s_lshl_b32 s{sC}, s{sT}, 17")
    A(f"s_lshl_b32 s{sLB}, s{sT}, 16")
    if orot:
        A.c("chunk n holds rows 16 (n ^ (t&7)): workgroups walk their slices in different orders")
        A(f"s_and_b32 s{sA}, s{sT}, 7")
        A(f"s_lshl_b32 s{sA}, s{sA}, 14")
        A(f"s_add_u32 s{sC}, s{sC}, s{sA}")
        A(f"s_and_b32 s{sA}, s{sA}, 0xc000")
        A(f"s_add_u32 s{sLB}, s{sLB}, s{sA}")
    A(f"s_lshl_b32 s{sPASS}, s{sU}, 14")
    A(f"s_add_u32 s{sPASS}, s{sPASS}, 65536")

    def ring_issue(n):
        A(f"s_add_u32 m0, s{sRING if n < 8 else sPASS}, {4096 * (n & (1 if n < 8 else 3))}")
        A(f"s_xor_b32 s{sB}, s{sC if n < 8 else sLB}, {16384 * (n & 7)}")
        for g in range(4):
            A(f"buffer_load_dwordx4 v{vWOo + g}, {sr(S_A if n < 8 else S_B, 4)}, s{sB} offen offset:{1024 * g} {woflags if n < 8 else wdflags} lds")

    def ring_read(n):
        base = BWO + 64 * (n >> 2) + 2 * (n & 3)
        for blk in range(4):
            for sel in range(2):
                A(f"ds_read_b64_tr_b16 {vr(base + 16 * blk + 8 * sel, 2)}, v{vTR + blk} offset:{4096 * (n & (1 if n < 8 else 3)) + 8 * sel}")

    A("s_waitcnt lgkmcnt(0)")
    srd(S_A, 12, 0 if 'o' in drop else 4096 * 1024)
    stamp(1)
    ring_issue(0)
    ring_issue(1)
    A("s_branch L_o_more")

    sec("ghead")
    A("L_gwave:")
    A.c("G wave v: 16 FFN channels of w_gate and w_up; batch v in stage 1; four columns in stages 2 and 4")
    AG, DG, PT, BGU, RS = 16, 32, 48, 64, 192
    vLin, vP0, vP1, vOw, vHs, vAw, vOs, vXr = range(4, 12)
    vCg, vCu, vH, vHw, vSw = range(248, 253)
    LS, LA, vHr = 224, 240, 242
    assert nsets[0] <= 2 and lsets <= 4
    vGUo, vW0, vW1, XG = RS, RS + 2, RS + 3, RS + 4
    A(f"v_lshlrev_b32 v{vLin}, 4, v{vL}")
    if tailpf:
        A.c("pull the tail's code into this die's L2 before the streams saturate memory")
        A(f"s_getpc_b64 {sr(sC, 2)}")
        A("L_tpc:")
        A(f"s_mul_i32 s{sA}, s{sU}, {128 * 24}")
        A(f"v_lshl_add_u32 v{t1}, v{vL}, 7, s{sA}")
        A(f"v_min_u32 v{t1}, L_code_end - L_tpc - 4, v{t1}")
        A(f"s_cmp_lt_u32 s{sT}, 30")
        A("s_cbranch_scc1 L_no_tpf")
        A("s_mov_b64 exec, 0xffffff")
        A(f"global_load_dword v253, v{t1}, {sr(sC, 2)}")
        A("s_mov_b64 exec, -1")
        A("L_no_tpf:")
    A.c("image [8-row group][gate, up][8 rows x 128 B]; row 128v + 8i + (l>>3), chunk (l&7) ^ ((l>>5)<<1) ^ ((v&1)<<2)")
    A(f"s_lshl_b32 m0, s{sU}, 15")
    A(f"v_lshrrev_b32 v{t1}, 3, v{vL}")
    A(f"s_lshl_b32 s{sA}, s{sU}, 7")
    A(f"v_add_u32 v{t1}, s{sA}, v{t1}")
    A(f"v_mul_u32_u24 v{t1}, 3584, v{t1}")
    A(f"v_and_b32 v{t2}, 7, v{vL}")
    A(f"v_and_b32 v{t3}, 2, v{vG}")
    A(f"v_xor_b32 v{t2}, v{t2}, v{t3}")
    A(f"s_and_b32 s{sA}, s{sU}, 1")
    A(f"s_lshl_b32 s{sA}, s{sA}, 2")
    A(f"v_xor_b32 v{t2}, s{sA}, v{t2}")
    A(f"v_lshl_add_u32 v{vGUo}, v{t2}, 4, v{t1}")
    A(f"v_add_u32 v{vGUo + 1}, {8 * 3584 - 2048}, v{vGUo}")
    A(f"s_lshl_b32 s{sLB}, s{sT}, 7")
    A(f"s_mov_b32 s{sPASS}, 0")
    for i in range(4):
        A(f"v_mov_b32 v{AG + i}, -1")
    if gprio:
        A(f"s_setprio {gprio}")
    A(f"s_cmp_lt_u32 s{sT}, 28")
    A(f"s_cselect_b32 s{S_WG + 2}, {0 if 'g' in drop else 512 * 3584}, 0")
    A(f"s_cselect_b32 s{S_WU + 2}, {0 if 'g' in drop else 512 * 3584 + 1024}, 0")
    A(f"s_mov_b32 s{S_WG + 3}, 0x20000")
    A(f"s_mov_b32 s{S_WU + 3}, 0x20000")
    A("s_waitcnt lgkmcnt(0)")
    A(f"s_mov_b64 {sr(S_WG, 2)}, s[16:17]")
    A.c("the w_up descriptor starts 1 KiB early: the instruction offset that steps LDS also steps the source")
    A(f"s_sub_u32 s{S_WU}, s18, 1024")
    A(f"s_subb_u32 s{S_WU + 1}, s19, 0")
    A("L_gu_loop:")
    A(f"s_waitcnt vmcnt({gw})")
    for k in range(4):
        A(f"buffer_load_dwordx4 v{vGUo + (k >> 1)}, {sr(S_WU if k & 1 else S_WG, 4)}, s{sLB} offen offset:{1024 * k} {guflags} lds")
    A(f"s_add_u32 m0, m0, 4096")
    A(f"s_add_u32 s{sLB}, s{sLB}, {16 * 3584}")
    A(f"s_add_u32 s{sPASS}, s{sPASS}, 1")
    A(f"s_cmp_eq_u32 s{sPASS}, 1")
    A("s_cbranch_scc1 L_gu_clear")
    A(f"s_cmp_eq_u32 s{sPASS}, 3")
    A("s_cbranch_scc1 L_gu_checkin")
    tnames = ["g3", "g2", "g1c", "g1b", "g1", "g0", "o1", "o0"] if dense else ["g3", "g2", "g1", "g0", "o0"]
    if warm_t and not paced:
        A(f"s_cmp_eq_u32 s{sPASS}, {warm_at}")
        A("s_cbranch_scc1 L_gu_warm")
    A(f"s_cmp_lt_u32 s{sPASS}, 8")
    A(f"s_cbranch_scc1 {'L_gu_warm' if warm_t and paced else 'L_gu_loop'}")
    A("s_branch L_g_more")
    if warm_t and not paced:
        A("L_gu_warm:")
        A(f"s_cmp_lg_u32 s{sU}, 0")
        A("s_cbranch_scc1 L_gu_loop")
        touch(tnames)
        A("s_branch L_gu_loop")
    if warm_t and paced:
        A("L_gu_warm:")
        A.c("one instruction-cache warm-up jump per pass: no lanes active, the landing point branches straight back")
        A(f"s_lshl_b32 s{sA}, s{sPASS}, 2")
        A(f"s_add_u32 s{sA}, s{sA}, s{sU}")
        A("s_mov_b64 exec, 0")
        slots = [(p, u) for p in (2, 4, 5, 6, 7) for u in ((0,) if len(tnames) <= 5 else (0, 2))]
        for nm, (p, u) in zip(tnames, slots):
            A(f"s_cmp_eq_u32 s{sA}, {4 * p + u}")
            A(f"s_cbranch_scc1 L_warm_{nm}")
        for nm in tnames:
            A(f"L_back_{nm}:")
        A("s_mov_b64 exec, -1")
        A("s_branch L_gu_loop")
    A("L_gu_clear:")
    A(f"s_load_dword s{sTAG}, s[26:27], {EPOCH}")
    srd(S_WST, 26, WS_SIZE)
    A(f"s_cmp_lg_u32 s{sU}, 3")
    A("s_cbranch_scc1 L_gu_loop")
    A(f"s_cmp_lt_u32 s{sT}, 28")
    A("s_cbranch_scc1 L_gu_loop")
    A.c("workgroups 28..31 mark the h hand-off buffer empty; their check-in follows once that store is done")
    A(f"s_lshl_b32 s{sA}, s{sT}, 10")
    A(f"s_add_u32 s{sA}, s{sA}, {HBUF - 28 * 1024}")
    A(f"buffer_store_dwordx4 {vr(AG, 4)}, v{vLin}, {sr(S_WST, 4)}, s{sA} offen sc1")
    A("s_waitcnt vmcnt(0) lgkmcnt(0)")
    A(f"s_add_u32 s{sB}, s{sTAG}, {TAGC:#x}")
    A(f"v_mov_b32 v{t2}, s{sB}")
    A(f"s_lshl_b32 s{sA}, s{sT}, 7")
    A(f"s_add_u32 s{sA}, s{sA}, {XBUF + 512 - 28 * 128}")
    A("s_mov_b64 exec, 1")
    A(f"buffer_store_dword v{t2}, v{vLin}, {sr(S_WST, 4)}, s{sA} offen sc1")
    A("s_mov_b64 exec, -1")
    A("s_branch L_gu_loop")
    A("L_gu_checkin:")
    A(f"s_cmp_lg_u32 s{sU}, 3")
    A("s_cbranch_scc1 L_gu_loop")
    A(f"s_getreg_b32 s{sA}, hwreg(HW_REG_XCC_ID, 0, 3)")
    A(f"v_mov_b32 v{t1}, s{sA}")
    A(f"s_lshl_b32 s{sA}, s{sT}, 3")
    A(f"s_add_u32 s{sA}, s{sA}, {XBUF}")
    A("s_waitcnt lgkmcnt(0)")
    A(f"s_add_u32 s{sB}, s{sTAG}, {TAGC:#x}")
    A(f"v_mov_b32 v{t2}, s{sB}")
    A("s_mov_b64 exec, 1")
    A(f"buffer_store_dwordx2 {vr(t1, 2)}, v{vLin}, {sr(S_WST, 4)}, s{sA} offen")
    A("s_mov_b64 exec, -1")
    A("s_branch L_gu_loop")

    A("L_o_more:")
    A(f"s_load_dword s{sTAG}, s[26:27], {EPOCH}")
    srd(S_B, 20, 0 if 'd' in drop else 1792 * 1024)
    srd(S_WS, 26, WS_SIZE)
    srd(S_WST, 26, WS_SIZE)
    A(f"v_lshrrev_b32 v{t1}, 2, v{vN}")
    A(f"v_and_b32 v{t2}, 3, v{vN}")
    A(f"v_mul_u32_u24 v{t1}, 320, v{t1}")
    A(f"v_lshl_add_u32 v{t1}, v{t2}, 4, v{t1}")
    A(f"v_lshl_add_u32 v{t1}, v{vG}, 10, v{t1}")
    for blk in range(4):
        A(f"v_xor_b32 v{vTR + blk}, {64 * blk}, v{t1}")
        A(f"v_add_u32 v{vTR + blk}, s{sRING}, v{vTR + blk}")
    A.c("matrix row m = (half, b1, sigma, b0); activation chunk (J, sigma, g) at 1024J + 256 sigma + 128(g>>1) + 32b + 16(g&1)")
    set_idx(1)
    A(f"v_and_b32 v{t1}, 1, v{vN}")
    A(f"v_lshlrev_b32 v{vAr}, 5, v{t1}")
    A(f"v_bfe_u32 v{t1}, v{vN}, 2, 1")
    A(f"v_lshl_add_u32 v{vAr}, v{t1}, 6, v{vAr}")
    A(f"v_and_b32 v{t1}, 1, v{vG}")
    A(f"v_lshl_add_u32 v{vAr}, v{t1}, 4, v{vAr}")
    A(f"v_lshrrev_b32 v{t1}, 1, v{vG}")
    A(f"v_lshl_add_u32 v{vAr}, v{t1}, 7, v{vAr}")
    A(f"v_bfe_u32 v{t1}, v{vN}, 1, 1")
    A(f"v_lshl_add_u32 v{vAr}, v{t1}, 8, v{vAr}")
    A.c("partial-sum slot [consumer 8u + 4q + 2half + (n>>3)][b1][octet][producer t][n&3][sel][b0]")
    A(f"s_lshl_b32 s{sA}, s{sU}, 16")
    A(f"s_lshl_b32 s{sB}, s{sT}, 6")
    A(f"s_add_u32 s{sA}, s{sA}, s{sB}")
    A(f"v_lshlrev_b32 v{vYs}, 4, v{t2}")
    A(f"v_bfe_u32 v{t1}, v{vN}, 2, 1")
    A(f"v_lshl_add_u32 v{vYs}, v{t1}, 11, v{vYs}")
    A(f"v_and_b32 v{t1}, 1, v{vG}")
    A(f"v_lshl_add_u32 v{vYs}, v{t1}, 12, v{vYs}")
    A(f"v_lshrrev_b32 v{t1}, 3, v{vN}")
    A(f"v_lshl_add_u32 v{vYs}, v{t1}, 13, v{vYs}")
    A(f"v_lshrrev_b32 v{t1}, 1, v{vG}")
    A(f"v_lshl_add_u32 v{vYs}, v{t1}, 14, v{vYs}")
    A(f"v_add_u32 v{vYs}, s{sA}, v{vYs}")
    A(f"s_mov_b32 s16, {YBUF}")
    A(f"s_mov_b32 s17, {YBUF + 32768}")
    for i in list(range(AO, BWO)) + list(range(A4, A4 + 8)):
        A(f"v_mov_b32 v{i}, 0")
    tail_consts()
    assert 2 <= r1at <= 7
    younger = 0
    for n in range(8):
        A(f"s_waitcnt vmcnt({(4 if n < 7 else 0) + (younger if n <= r1at else 0)}) lgkmcnt(0)")
        ring_read(n)
        if n < 6:
            A("s_waitcnt lgkmcnt(0)")
            ring_issue(n + 2)
        if n + 2 == r1at:
            A.c("once the G waves hold gate/up in registers, all of w_down goes into the upper half of that image")
            A("s_barrier")
            checkin_read(XO, True)
            A("s_barrier")
            for m in range(8, 12):
                ring_issue(m)
            younger = 16
    A(f"s_sub_u32 s{sA}, s{sPASS}, s{sRING}")
    A("s_waitcnt lgkmcnt(0)")
    for blk in range(4):
        A(f"v_add_u32 v{vTR + blk}, s{sA}, v{vTR + blk}")
    checkin_read(XO, False)
    if 'W' in drop:
        A(f"s_mov_b32 s{S_WST + 2}, 0")
    if oprio:
        A(f"s_setprio {oprio}")
    stamp(2)
    stub("o0", warm_t)
    A(f"s_cmp_eq_u32 s{sFAST}, 0")
    A("s_mov_b64 exec, s[8:9]")
    A("s_cbranch_scc1 L_o_far")

    def o_stages(sc):
        def publish(q, tb):
            D = DO + 8 * q
            L = [f"v_pk_add_f32 {vr(D, 2)}, {vr(D, 2)}, {vr(D + 2, 2)}",
                 f"v_pk_add_f32 {vr(D + 2, 2)}, {vr(D + 4, 2)}, {vr(D + 6, 2)}"]
            L += [f"v_bfi_b32 v{D + i}, v{vFF}, s{tb + i}, v{D + i}" for i in range(4)]
            L += [f"buffer_store_dwordx4 {vr(D, 4)}, v{vYs}, {sr(S_WST, 4)}, s{16 + q} offen {sc}"]
            return L

        A.c("y_t = o_t @ wo[head t]")
        A("s_barrier")
        fs(1)
        for J in range(2):
            A(f"ds_read_b128 {vr(AO + 4 * J, 4)}, v{vAr} offset:{OL + 1024 * J}")
        A("s_mov_b64 exec, s[10:11]")
        for J in range(2):
            A(f"ds_read_b128 {vr(AO + 8 + 4 * J, 4)}, v{vAr} offset:{OL + 1024 * J}")
        A("s_mov_b64 exec, -1")
        for q in range(2):
            for n in range(4):
                half, J = n >> 1, n & 1
                if q == 0:
                    A(f"s_waitcnt lgkmcnt({3 - n})")
                for sel in range(2):
                    smf(DO + 8 * q + 4 * sel, AO + 4 * n, BWO + 64 * J + 16 * (2 * q + half) + 8 * sel, vIdx)
                    if early and q == 1:
                        m = 2 * n + sel
                        for l in (["s_nop 0"] if m < 3 else publish(0, sTB)[2 * (m - 3):2 * (m - 3) + 2]):
                            A(l)
        for l in ([] if early else publish(0, sTB)) + publish(1, sTB):
            A(l)
        stamp(4)
        fs(2)
        if ackbar[0] is not None:
            A(f"s_waitcnt vmcnt({ackbar[0]})")
        A("s_barrier")
        A("s_waitcnt vmcnt(0)")
        for m in range(8, 12):
            ring_read(m)
            A("s_waitcnt lgkmcnt(4)")
        stub("o1", warm_t and dense and sc != "sc1")
        for i in range(16):
            A(f"v_mov_b32 v{DO + i}, 0")
        A("s_mov_b64 exec, s[8:9]")
        A("s_waitcnt lgkmcnt(0)")
        A("s_barrier")
        A.c("z_t = act_t @ w_down[64 rows]")
        A("s_barrier")
        fs(8)
        A(f"ds_read_b128 {vr(A4, 4)}, v{vAr} offset:{AL}")
        A("s_mov_b64 exec, s[10:11]")
        A(f"ds_read_b128 {vr(A4 + 4, 4)}, v{vAr} offset:{AL}")
        A("s_mov_b64 exec, -1")
        for q in range(2):
            for hi in range(2):
                if q == 0:
                    A(f"s_waitcnt lgkmcnt({1 - hi})")
                for i in range(2):
                    smf(DO + 8 * q + 4 * i, A4 + 4 * hi, BWD + 16 * (2 * q + hi) + 8 * i, vIdx)
        for l in publish(0, sTZ) + publish(1, sTZ):
            A(l)
        stamp(6)
        fs(9)
        if ackbar[1] is not None:
            A(f"s_waitcnt vmcnt({ackbar[1]})")
        A("s_barrier")
        fine_out()
        A("s_branch L_fin")

    def fine_out():
        if fine:
            A("s_waitcnt lgkmcnt(0)")
            for i in range(13):
                A(f"v_mov_b32 v{64 + i}, s{FS[i]}")
            A(f"s_lshl_b32 s{sA}, s{sT}, 3")
            A(f"s_add_u32 s{sA}, s{sA}, s{sW}")
            A(f"s_lshl_b32 s{sA}, s{sA}, 6")
            A(f"s_add_u32 s{sA}, s{sA}, {STAMPS + 0x20000}")
            A("v_mov_b32 v80, 0")
            A("s_mov_b64 exec, 1")
            for i in range(4):
                A(f"buffer_store_dwordx4 {vr(64 + 4 * i, 4)}, v80, {sr(S_WST, 4)}, s{sA} offen offset:{16 * i}")

    o_stages(nearflags)
    sec("ofar")
    A("L_o_far:")
    o_stages("sc1")

    A("L_g_more:")
    srd(S_WS, 26, WS_SIZE)
    srd(S_X, 4, 4096)
    srd(S_OUT, 22, 4096)
    tail_consts()
    if gprio:
        A("s_setprio 0")
    A(f"s_cmp_lt_u32 s{sT}, 28")
    A("s_cbranch_scc1 L_touched")
    A.c("workgroups without FFN weights read the partial-sum inboxes once so that the lines are resident in L2")
    A(f"s_sub_u32 s{sA}, s{sT}, 28")
    A(f"s_lshl_b32 s{sA}, s{sA}, 2")
    A(f"s_add_u32 s{sA}, s{sA}, s{sU}")
    A(f"s_lshl_b32 s{sA}, s{sA}, 14")
    A(f"s_add_u32 s{sA}, s{sA}, {YBUF}")
    for n in range(16):
        A(f"buffer_load_dwordx4 {vr(PT, 4)}, v{vLin}, {sr(S_WS, 4)}, s{sA} offen offset:{1024 * (n & 3)} {touchflags}")
        if n & 3 == 3:
            A(f"s_add_u32 s{sA}, s{sA}, 4096")
    A("L_touched:")
    A.c("stage 1 reads head t&3 of pair (v, t>>2); lane row g takes splits g and 4+g")
    A(f"s_lshl_b32 s{sA}, s{sU}, 3")
    A(f"s_lshr_b32 s{sC}, s{sT}, 2")
    A(f"s_add_u32 s{sA}, s{sA}, s{sC}")
    A(f"s_mul_i32 s{sREC}, s{sA}, {8 * REC}")
    A(f"s_add_u32 s{sREC}, s{sREC}, {OBUF}")
    A(f"s_and_b32 s{sC}, s{sT}, 3")
    A(f"s_lshl_b32 s16, s{sC}, 3")
    A(f"s_add_u32 s16, s16, s{sREC}")
    A(f"s_lshl_b32 s{sA}, s{sC}, 10")
    A(f"s_add_u32 s{sREC}, s{sREC}, s{sA}")
    A(f"v_mul_u32_u24 v{vW0}, {REC}, v{vG}")
    A(f"v_min_u32 v{t1}, 2, v{vG}")
    A(f"v_add_u32 v{t1}, 4, v{t1}")
    A(f"v_mul_u32_u24 v{vW1}, {REC}, v{t1}")
    A(f"v_lshl_add_u32 v{vP0}, v{vN}, 4, v{vW0}")
    A(f"v_lshl_add_u32 v{vP1}, v{vN}, 4, v{vW1}")
    A.c("weight row d sits at position 64(d>>6) + 32((d>>1)&1) + 16((d>>5)&1) + 4((d>>2)&3) + 2((d>>4)&1) + (d&1)")
    A.c("stage 1 lane (c, g), half a holds channel d = 32(c>>2) + 8g + 4a + (c&3); it lands in this wave's own 32-byte units of the image")
    A(f"v_lshrrev_b32 v{t4}, 3, v{vN}")
    A(f"v_lshlrev_b32 v{t1}, 10, v{t4}")
    A(f"v_bfe_u32 v{t2}, v{vN}, 1, 1")
    A(f"v_lshlrev_b32 v{vAw}, 8, v{t2}")
    A(f"v_and_b32 v{t2}, 1, v{vN}")
    A(f"v_lshl_add_u32 v{vAw}, v{t2}, 1, v{vAw}")
    A(f"v_add_u32 v{t1}, v{t1}, v{vAw}")
    A(f"v_bfe_u32 v{t2}, v{vN}, 2, 1")
    A(f"v_lshl_add_u32 v{t1}, v{t2}, 7, v{t1}")
    A(f"v_lshl_add_u32 v{vAw}, v{t2}, 3, v{vAw}")
    A(f"v_lshl_add_u32 v{vAw}, v{t4}, 4, v{vAw}")
    A(f"v_lshl_add_u32 v{vAw}, v{vG}, 5, v{vAw}")
    A(f"v_and_b32 v{t2}, 1, v{vG}")
    A(f"v_lshl_add_u32 v{t1}, v{t2}, 4, v{t1}")
    A(f"v_lshrrev_b32 v{t3}, 1, v{vG}")
    A(f"v_lshl_add_u32 v{t1}, v{t3}, 2, v{t1}")
    A(f"s_lshl_b32 s{sB}, s{sU}, 5")
    A(f"v_add_u32 v{vOw}, s{sB}, v{t1}")
    A(f"s_lshr_b32 s{sB}, s{sU}, 1")
    A(f"s_and_b32 s{sC}, s{sU}, 1")
    A(f"s_lshl_b32 s{sA}, s{sB}, 7")
    A(f"s_lshl_b32 s17, s{sC}, 2")
    A(f"s_add_u32 s{sA}, s{sA}, s17")
    A(f"v_add_u32 v{vAw}, s{sA}, v{vAw}")
    if orot:
        A(f"s_and_b32 s{sA}, s{sT}, 1")
        A(f"s_lshl_b32 s{sA}, s{sA}, 2")
        A(f"s_and_b32 s17, s{sT}, 2")
        A(f"s_lshl_b32 s17, s17, 6")
        A(f"s_add_u32 s{sA}, s{sA}, s17")
        A(f"v_xor_b32 v{vAw}, s{sA}, v{vAw}")
        A(f"s_and_b32 s17, s{sT}, 4")
        A(f"s_lshl_b32 s17, s17, 8")
        A(f"s_add_u32 s{sA}, s{sA}, s17")
        A(f"v_xor_b32 v{vOw}, s{sA}, v{vOw}")
    A(f"s_lshl_b32 s17, s{sT}, 13")
    A(f"s_lshl_b32 s{sA}, s{sU}, 11")
    A(f"s_add_u32 s17, s17, s{sA}")
    A(f"s_add_u32 s17, s17, {YBUF}")
    A.c("stages 2/4: wave v = (b1, octet), lane row (sel, b0): column 16t + 8 octet + 4 sel + cc of batch 2 b1 + b0")
    A.c("HBUF byte = (j*64 + g*16 + 4b + rho)*16 + 2e")
    A(f"v_and_b32 v{t1}, 3, v{vN}")
    A(f"v_lshlrev_b32 v{t1}, 1, v{t1}")
    A(f"v_lshl_add_u32 v{t1}, v{t3}, 3, v{t1}")
    A(f"v_lshl_add_u32 v{vHs}, v{t2}, 6, v{t1}")
    A(f"v_lshl_add_u32 v{vOs}, v{t2}, 10, v{t1}")
    A(f"s_and_b32 s{sA}, s{sT}, 7")
    A(f"s_lshl_b32 s{sA}, s{sA}, 9")
    A(f"s_lshr_b32 s18, s{sT}, 3")
    A(f"s_lshl_b32 s18, s18, 4")
    A(f"s_add_u32 s{sA}, s{sA}, s18")
    A(f"s_lshl_b32 s18, s{sC}, 8")
    A(f"s_add_u32 s{sA}, s{sA}, s18")
    A(f"s_lshl_b32 s18, s{sB}, 7")
    A(f"s_add_u32 s{sA}, s{sA}, s18")
    A(f"s_add_u32 s{sA}, s{sA}, {HBUF}")
    A(f"v_add_u32 v{vHs}, s{sA}, v{vHs}")
    A(f"s_lshl_b32 s{sA}, s{sT}, 5")
    A(f"s_lshl_b32 s18, s{sC}, 4")
    A(f"s_add_u32 s{sA}, s{sA}, s18")
    A(f"s_lshl_b32 s18, s{sB}, 11")
    A(f"s_add_u32 s{sA}, s{sA}, s18")
    A(f"v_add_u32 v{vOs}, s{sA}, v{vOs}")
    A(f"s_lshl_b32 s18, s{sU}, 10")
    A(f"v_add_u32 v{vHw}, s18, v{vLin}")
    A.c("operand slot j of wave v holds k block j ^ v, so slot 0 is the block this wave gathers itself")
    for j in range(1, 4):
        A(f"v_xor_b32 v{vHr + j - 1}, {1024 * j}, v{vHw}")
    A(f"s_add_u32 s18, s18, {HBUF}")
    A.c("LayerNorm partial sums: slot [v>>1][b][4g + rho][v&1][8 B]")
    A(f"s_lshl_b32 s{sB}, s{sB}, 10")
    A(f"s_lshl_b32 s{sC}, s{sC}, 3")
    A(f"s_add_u32 s{sB}, s{sB}, s{sC}")
    A(f"v_and_b32 v{t3}, 3, v{vN}")
    A(f"v_lshrrev_b32 v{t2}, 2, v{vN}")
    A(f"v_lshlrev_b32 v{t2}, 8, v{t2}")
    A(f"v_lshl_add_u32 v{t2}, v{vG}, 6, v{t2}")
    A(f"v_lshl_add_u32 v{t2}, v{t3}, 4, v{t2}")
    A(f"v_add_u32 v{vSw}, s{sB}, v{t2}")
    set_idx(0)
    A(f"buffer_load_ushort v{vXr}, v{vOs}, {sr(S_X, 4)}, 0 offen")
    A.c("gate/up fragments: row 128(r>>1) + 4g + (r&1), 32-byte unit v ^ ((g&1) | (r>>1)<<1)")
    A(f"v_and_b32 v{t1}, 1, v{vG}")
    A(f"v_lshl_or_b32 v{t1}, v{t4}, 1, v{t1}")
    A(f"v_xor_b32 v{t1}, s{sU}, v{t1}")
    A(f"v_lshlrev_b32 v{t1}, 5, v{t1}")
    A(f"v_lshl_add_u32 v{t1}, v{t3}, 3, v{t1}")
    A(f"v_bfe_u32 v{t2}, v{vN}, 2, 1")
    A(f"v_lshl_add_u32 v{t1}, v{t2}, 7, v{t1}")
    A(f"v_and_b32 v{t2}, 1, v{vG}")
    A(f"v_lshl_add_u32 v{t1}, v{t2}, 9, v{t1}")
    A(f"v_lshrrev_b32 v{t2}, 1, v{vG}")
    A(f"v_lshl_add_u32 v{t1}, v{t2}, 11, v{t1}")
    A(f"v_lshl_add_u32 v{t1}, v{t4}, 15, v{t1}")
    A(f"s_lshl_b32 s{sA}, s{sU}, 13")
    A(f"v_add_u32 v{t1}, s{sA}, v{t1}")
    for i in range(4):
        A(f"v_mov_b32 v{AG + i}, 0x3f803f80")
    for i in range(8):
        A(f"v_mov_b32 v{DG + i}, 0")
    A("s_waitcnt vmcnt(0)")
    A("s_barrier")
    stamp(1)
    checkin_read(XG, True)
    bgu = lambda mat, r1, j: BGU + 64 * mat + 32 * r1 + 8 * j
    for r1 in range(2):
        for j in range(4):
            A(f"v_xor_b32 v{t2}, {65536 * r1 + 8192 * j}, v{t1}")
            for mat in range(2):
                for p in range(4):
                    off = mat * 1024 + (p >> 1) * 4096 + (p & 1) * 256
                    A(f"ds_read_b64_tr_b16 {vr(bgu(mat, r1, j) + 2 * p, 2)}, v{t2} offset:{off}")
            A("s_waitcnt lgkmcnt(4)")
    A("s_waitcnt lgkmcnt(0)")
    A("s_barrier")
    A.c("column sums of the weights")
    for r1 in range(2):
        for j in range(4):
            for mat in range(2):
                smf(DG + 4 * mat, AG, bgu(mat, r1, j), vIdx)

    def fold2(D):
        for a in (D, D + 4):
            A(f"v_permlane32_swap_b32 v{a}, v{a + 2}")
            A(f"v_permlane32_swap_b32 v{a + 1}, v{a + 3}")
        for a in (D, D + 4):
            A(f"v_pk_add_f32 {vr(a, 2)}, {vr(a, 2)}, {vr(a + 2, 2)}")
        for a in (D, D + 4):
            A(f"v_permlane16_swap_b32 v{a}, v{a + 1}")
        for a in (D, D + 4):
            A(f"v_add_f32 v{a}, v{a}, v{a + 1}")

    A("s_waitcnt vmcnt(0)")
    checkin_read(XG, False)
    A(f"buffer_load_dwordx4 {vr(RS + 16, 4)}, v{vLin}, {sr(S_WS, 4)}, s18 offen sc1")
    A(f"v_lshlrev_b32 v{vXr}, 16, v{vXr}")
    A(f"buffer_store_short v{vXr}, v{vOs}, {sr(S_OUT, 4)}, 0 offen")
    A(f"v_add_f32 v{vCg}, v{DG}, v{DG + 1}")
    A(f"v_add_f32 v{vCu}, v{DG + 4}, v{DG + 5}")
    for i in range(DG, DG + 16):
        A(f"v_mov_b32 v{i}, 0")
    stamp(2)
    A(f"s_mov_b32 s{sCNT}, 0")
    A(f"s_mov_b32 s{sA}, 0x3f803f80")
    A("s_mov_b32 s20, 0x00050005" if not fine else "s_mov_b32 s26, 0x00050005")
    A("s_mov_b32 s21, 0x00050005" if not fine else "s_mov_b32 s27, 0x00050005")
    hmask = "s[20:21]" if not fine else "s[26:27]"
    A("s_mov_b32 s22, 0x3b000000")
    A("s_mov_b32 s23, 0x3b000000")
    A(f"v_mov_b32 v{LA}, v{vW0}")
    A(f"v_mov_b32 v{LA + 1}, v{vW1}")
    stamp(3)
    A("s_branch L_g_stages")
    sec("gstages")
    A("L_g_stages:")
    stub("g0", warm_t)
    A.c("stage 1: wait for the seven log-sum-exp words, then fetch and combine the partial outputs of batch v")

    def lchk(u):
        R = LS + 4 * u
        A(f"v_mov_b32 v{PT}, v{R}")
        A(f"v_mov_b32 v{PT + 2}, v{R + 2}")
        A(f"v_xor_b32 v{t1}, s{sTAG}, v{R + 1}")
        A(f"v_xor_b32 v{t2}, s{sTAG}, v{R + 3}")
        A(f"v_or_b32 v{t1}, v{t1}, v{t2}")
        A(f"v_cmpx_ne_u32 vcc, 0, v{t1}")
    mpoll(lsets, lgap, lambda u: [f"buffer_load_dwordx2 {vr(LS + 4 * u + 2 * i, 2)}, v{LA + i}, {sr(S_WS, 4)}, s16 offen sc1" for i in range(2)], lchk, slp=lslp)
    rec_loads = lambda u: [f"buffer_load_dwordx4 {vr(RS + 16 * u + 8 * i + 4 * hf, 4)}, v{vP0 + i}, {sr(S_WS, 4)}, s{sREC} offen offset:{512 + 256 * hf} sc1"
                           for i in range(2) for hf in range(2)]
    rec_check = lambda u: tag_check(range(PT, PT + 16), TAGS, t2, RS + 16 * u, "x")
    stamp(4)
    if pre[0]:
        A(f"s_sleep {pre[0]}")
    for l in rec_loads(0):
        A(l)
    A(f"v_max_f32 v{t1}, v{PT}, v{PT + 2}")
    allred_rows("v_max_f32", t1, t2)
    A(f"v_sub_f32 v{PT}, v{PT}, v{t1}")
    A(f"v_sub_f32 v{PT + 2}, v{PT + 2}, v{t1}")
    A(f"v_exp_f32 v{PT}, v{PT}")
    A(f"v_exp_f32 v{PT + 2}, v{PT + 2}")
    A(f"v_cmp_eq_u32 vcc, 3, v{vG}")
    A(f"v_cndmask_b32 v{PT + 2}, v{PT + 2}, 0, vcc")
    A(f"v_add_f32 v{t1}, v{PT}, v{PT + 2}")
    allred_rows("v_add_f32", t1, t2)
    A(f"v_rcp_f32 v{t1}, v{t1}")
    A(f"v_mul_f32 v{t3}, v{PT + 2}, v{t1}")
    A(f"v_mul_f32 v{t1}, v{PT}, v{t1}")
    weigh = [f"v_pk_mul_f32 {vr(PT + p, 2)}, {vr(PT + p, 2)}, {vr(t1, 2)} op_sel_hi:[1,0]" for p in range(0, 8, 2)]
    weigh += [f"v_pk_fma_f32 {vr(PT + p, 2)}, {vr(PT + 8 + p, 2)}, {vr(t3, 2)}, {vr(PT + p, 2)} op_sel_hi:[1,0,1]" for p in range(0, 8, 2)]
    for n in range(4):
        A(f"s_waitcnt vmcnt({3 - n})")
        if n == 3:
            stamp(2)
        for i in range(4):
            A(f"v_xor_b32 v{PT + 4 * n + i}, s{sTB + i}, v{RS + 4 * n + i}")
        A(f"v_or3_b32 v{t2}, v{PT + 4 * n}, v{PT + 4 * n + 1}, {'0' if n == 0 else 'v%d' % t2}")
        A(f"v_or3_b32 v{t2}, v{PT + 4 * n + 2}, v{PT + 4 * n + 3}, v{t2}")
        if n == 3:
            A(f"v_cmp_ne_u32_sdwa vcc, v{t2}, 0 src0_sel:BYTE_0 src1_sel:DWORD")
        A(weigh[2 * n])
        A(weigh[2 * n + 1])
    A("L_rec_weighed:")
    fs(0)
    fold2(PT)
    A("s_cbranch_vccnz L_rec_late")
    stamp(6)
    keep, A.lines = A.lines, []
    A("L_rec_late:")
    mpoll(nsets[0], gap[0], rec_loads, rec_check)
    for l in weigh:
        A(l)
    A("s_mov_b64 vcc, 0")
    A("s_branch L_rec_weighed")
    cold.extend(A.lines)
    A.lines = keep
    A(f"v_cvt_pk_bf16_f32 v{PT}, v{PT}, v{PT + 4}")
    A(f"ds_write_b16 v{vOw}, v{PT} offset:{OL}")
    A(f"ds_write_b16_d16_hi v{vOw}, v{PT} offset:{OL + 8}")
    A("s_waitcnt lgkmcnt(0)")
    A("s_barrier")
    fs(1)
    stub("g1", warm_t)
    A("s_barrier")
    fs(2)

    def column_sums(tags, f, k):
        mpoll(nsets[k], gap[k],
              lambda u: [f"buffer_load_dwordx4 {vr(RS + 8 * u + 4 * i, 4)}, v{vLin}, {sr(S_WS, 4)}, s17 offen offset:{1024 * i} sc1" for i in range(2)],
              lambda u: tag_check(range(PT, PT + 8), tags, t2, RS + 8 * u, "x",
                                  [f"v_pk_add_f32 {vr(PT + p, 2)}, {vr(PT + p, 2)}, {vr(PT + 4 + p, 2)}" for p in (0, 2)]), pre[k])
        fs(f)
        A(f"v_permlane32_swap_b32 v{PT}, v{PT + 2}")
        A(f"v_permlane32_swap_b32 v{PT + 1}, v{PT + 3}")
        A(f"v_pk_add_f32 {vr(PT, 2)}, {vr(PT, 2)}, {vr(PT + 2, 2)}")
        A(f"v_permlane16_swap_b32 v{PT}, v{PT + 1}")
        A(f"v_add_f32 v{PT}, v{PT}, v{PT + 1}")
        dpp_red("v_add_f32", [PT], [8, 4])
        rb(PT, PT)

    A.c("stage 2: h = x + sum of the 32 head contributions")
    column_sums(TAGS, 3, 1)
    A(f"v_add_f32 v{PT}, v{PT}, v{vXr}")
    A(f"s_cmp_eq_u32 s{sFAST}, 0")
    A(f"v_mov_b32_dpp v{PT + 1}, v{PT} quad_perm:[1,1,3,3] row_mask:0xf bank_mask:0xf")
    A(f"v_cvt_pk_bf16_f32 v{vH}, v{PT}, v{PT + 1}")
    A(f"v_min_u32 v{t2}, -2, v{vH}")
    A(f"s_mov_b64 exec, {hmask}")
    A("s_cbranch_scc1 L_h_far")
    A(f"buffer_store_dword v{t2}, v{vHs}, {sr(S_WST, 4)}, 0 offen")
    A("L_h_sent:")
    A("s_mov_b64 exec, -1")
    stamp(5)
    fs(4)
    stub("g1b", warm_t and dense)
    A.c("stage 3: gather h, LayerNorm folded around h @ [w_gate | w_up], act = silu(g) * u")

    def hchk(u):
        R = RS + 4 * u
        A(f"ds_write_b128 v{vHw}, {vr(R, 4)} offset:{HL}")
        for i in range(4 if hheavy else 0):
            A(f"v_dot2_f32_bf16 v{t1}, v{R + i}, s{sA}, {'v%d' % t1 if i else 0}")
            A(f"v_dot2_f32_bf16 v{t2}, v{R + i}, v{R + i}, {'v%d' % t2 if i else 0}")
        A(f"v_pk_mov_b32 {vr(AG, 2)}, {vr(R, 2)}, {vr(R, 2)} op_sel:[0,1]")
        A(f"v_pk_mov_b32 {vr(AG + 2, 2)}, {vr(R + 2, 2)}, {vr(R + 2, 2)} op_sel:[0,1]")
        A(f"v_max_u32 v{t3}, v{R}, v{R + 1}")
        if hheavy:
            A(f"ds_write_b64 v{vSw}, {vr(t1, 2)} offset:{SL}")
        A(f"v_max3_u32 v{t3}, v{t3}, v{R + 2}, v{R + 3}")
        A(f"v_cmpx_eq_u32 vcc, -1, v{t3}")
    A(f"v_lshlrev_b32 v{vH}, 16, v{vH}")
    mpoll(nsets[2], gap[2], lambda u: [f"buffer_load_dwordx4 {vr(RS + 4 * u, 4)}, v{vLin}, {sr(S_WS, 4)}, s18 offen sc1"], hchk, pre[2])
    fs(5)
    gsm = lambda n: smf(DG + 8 * (n & 1) + 4 * ((n >> 1) & 1), AG + 4 * (n >> 2), bgu(n & 1, (n >> 1) & 1, n >> 2), vIdx)
    early_n = 0
    if not hheavy:
        for i in range(4):
            A(f"v_dot2_f32_bf16 v{t1}, v{AG + i}, s{sA}, {'v%d' % t1 if i else 0}")
            A(f"v_dot2_f32_bf16 v{t2}, v{AG + i}, v{AG + i}, {'v%d' % t2 if i else 0}")
        A(f"ds_write_b64 v{vSw}, {vr(t1, 2)} offset:{SL}")
        early_n = hearly
        for n in range(early_n):
            gsm(n)
    A("s_waitcnt lgkmcnt(0)")
    A("s_barrier")
    fs(6)
    hrd = lambda j: f"ds_read_b128 {vr(AG + 4 * j, 4)}, v{vHr + j - 1} offset:{HL}"
    A(f"ds_read_b128 {vr(PT, 4)}, v{vLin} offset:{SL}")
    A(f"ds_read_b128 {vr(PT + 4, 4)}, v{vLin} offset:{SL + 1024}")
    dp = lambda v, r: f"v_add_f32_dpp v{v}, v{v}, v{v} row_ror:{r} row_mask:0xf bank_mask:0xf"
    chain = [[hrd(1)], [hrd(2)], [hrd(3)],
             ["s_waitcnt lgkmcnt(3)", f"v_pk_add_f32 {vr(PT, 2)}, {vr(PT, 2)}, {vr(PT + 2, 2)}",
              f"v_pk_add_f32 {vr(PT + 4, 2)}, {vr(PT + 4, 2)}, {vr(PT + 6, 2)}",
              f"v_pk_add_f32 {vr(PT, 2)}, {vr(PT, 2)}, {vr(PT + 4, 2)}"]]
    for r in (8, 4, 2, 1):
        chain += [[dp(PT, r)], [dp(PT + 1, r)]]
    if mimic2:
        chain += [[f"v_pk_mul_f32 {vr(t1, 2)}, {vr(PT, 2)}, s[22:23]"],
                  [f"v_fma_f32 v{t2}, -v{t1}, v{t1}, v{t2}", f"v_max_f32 v{t2}, 0, v{t2}"],
                  [f"v_cvt_pk_bf16_f32 v{t2}, v{t1}, v{t2}", f"v_lshlrev_b32 v{t1}, 16, v{t2}"],
                  [f"v_and_b32 v{t2}, 0xffff0000, v{t2}", f"v_add_f32 v{t2}, 0x3727c5ac, v{t2}",
                   f"v_cvt_pk_bf16_f32 v{t2}, v{t2}, v{t2}", f"v_lshlrev_b32 v{t2}, 16, v{t2}",
                   f"v_sqrt_f32 v{t2}, v{t2}", f"v_pk_mul_f32 {vr(vCg, 2)}, {vr(vCg, 2)}, {vr(t1, 2)} op_sel_hi:[1,0]",
                   f"v_cvt_pk_bf16_f32 v{t2}, v{t2}, v{t2}", f"v_lshlrev_b32 v{t2}, 16, v{t2}", f"v_rcp_f32 v{t2}, v{t2}"]]
    else:
        chain += [[f"v_pk_mul_f32 {vr(t1, 2)}, {vr(PT, 2)}, s[22:23]"],
                  [f"v_fma_f32 v{t2}, -v{t1}, v{t1}, v{t2}"],
                  [f"v_max_f32 v{t2}, 0, v{t2}"],
                  [f"v_add_f32 v{t2}, 0x3727c5ac, v{t2}", f"v_rsq_f32 v{t2}, v{t2}",
                   f"v_pk_mul_f32 {vr(vCg, 2)}, {vr(vCg, 2)}, {vr(t1, 2)} op_sel_hi:[1,0]"]]
    for n in range(16):
        if n and n & 3 == 0:
            A(f"s_waitcnt lgkmcnt({3 - (n >> 2)})")
        if n >= early_n:
            gsm(n)
        for c in chain.pop(0):
            A(c)
    assert not chain
    fs(7)
    A(f"v_pk_add_f32 {vr(DG, 2)}, {vr(DG, 2)}, {vr(DG + 6, 2)}")
    A(f"v_mul_f32 v{t3}, 0xbfb8aa3b, v{t2}")
    A(f"v_add_f32 v{DG}, v{DG}, v{DG + 1}")
    A(f"v_sub_f32 v{DG}, v{DG}, v{vCg}")
    A(f"v_mul_f32 v{t1}, v{DG}, v{t3}")
    A(f"v_exp_f32 v{t1}, v{t1}")
    A(f"v_pk_add_f32 {vr(DG + 8, 2)}, {vr(DG + 8, 2)}, {vr(DG + 14, 2)}")
    A(f"v_add_f32 v{t1}, 1.0, v{t1}")
    A(f"v_rcp_f32 v{t1}, v{t1}")
    A(f"v_add_f32 v{DG + 1}, v{DG + 8}, v{DG + 9}")
    A(f"v_sub_f32 v{DG + 1}, v{DG + 1}, v{vCu}")
    A(f"v_pk_mul_f32 {vr(DG, 2)}, {vr(DG, 2)}, {vr(t1, 2)} op_sel:[0,1] op_sel_hi:[1,1]")
    A(f"v_mul_f32 v{DG}, v{DG}, v{t1}")
    A(f"v_mul_f32 v{DG}, v{DG}, v{DG + 1}")
    A(f"v_cvt_pk_bf16_f32 v{DG}, v{DG}, v{DG}")
    A(f"ds_write_b16 v{vAw}, v{DG} offset:{AL}")
    A("s_waitcnt lgkmcnt(0)")
    A("s_barrier")
    fs(8)
    stub("g2", warm_t)
    A("s_barrier")
    fs(9)
    A.c("stage 4: out = h + sum of the down-projection contributions")
    column_sums([f"s{sTZ + i}" for i in range(4)], 10, 3)
    A(f"v_add_f32 v{PT}, v{PT}, v{vH}")
    A(f"v_cvt_pk_bf16_f32 v{PT}, v{PT}, v{PT}")
    A(f"buffer_store_short v{PT}, v{vOs}, {sr(S_OUT, 4)}, 0 offen")
    fs(11)
    if fine:
        A("s_waitcnt vmcnt(0)")
        fs(12)
        fine_out()
    A(f"s_or_b32 s{sA}, s{sT}, s{sU}")
    A("s_cbranch_scc1 L_fin")
    A.c("advance the epoch so that the next launch rejects this launch's hand-offs")
    A(f"s_add_u32 s{sA}, s{sTAG}, {TAGC:#x}")
    A(f"v_mov_b32 v{t1}, s{sA}")
    A(f"v_mov_b32 v{t2}, {EPOCH}")
    A("s_mov_b64 exec, 1")
    A(f"buffer_store_dword v{t1}, v{t2}, {sr(S_WST, 4)}, 0 offen")
    A("s_branch L_fin")
    stub("g3", warm_t)
    A("L_h_far:")
    A(f"buffer_store_dword v{t2}, v{vHs}, {sr(S_WST, 4)}, 0 offen sc1")
    A("s_branch L_h_sent")
    for l in cold:
        A(l)

    A("L_fin:")
    if amp:
        idx, role, wave = amp
        A("s_waitcnt vmcnt(0)")
        stamp(7)
        A(f"s_cmp_lg_u32 s{sW}, {wave}")
        A("s_cbranch_scc1 L_end")
        A(f"s_cmp_eq_u32 s{sXI}, {tailx}")
        A("s_cbranch_scc0 L_end" if role == "tail" else "s_cbranch_scc1 L_end")
        A("s_waitcnt lgkmcnt(0)")
        A(f"s_sub_u32 s{sA}, s{sST + 2 * idx}, s{sST}")
        if skewx is not None:
            A("s_mov_b64 exec, -1")
            srd(S_WS, 26, WS_SIZE)
            A(f"s_lshl_b32 s{sB}, s2, 7")
            A(f"s_add_u32 s{sB}, s{sB}, {PBUF + 128 * skewx}")
            A("v_mov_b32 v201, 0")
            A(f"buffer_load_dword v200, v201, {sr(S_WS, 4)}, s{sB} offen sc1")
            A("s_waitcnt vmcnt(0)")
            A(f"v_readfirstlane_b32 s{sA}, v200")
            A(f"s_sub_u32 s{sA}, s{sA}, s{sST}")
            A(f"s_add_u32 s{sA}, s{sA}, 100")
            A(f"s_lshl_b32 s{sA}, s{sA}, 2")
        if ampx is not None:
            A(f"s_getreg_b32 s{sA}, hwreg(HW_REG_XCC_ID, 0, 3)")
            A(f"s_add_u32 s{sA}, s{sA}, {ampx}")
            A(f"s_and_b32 s{sA}, s{sA}, 7")
            A(f"s_mul_i32 s{sA}, s{sA}, 125")
        A(f"s_min_u32 s{sA}, s{sA}, 20000")
        A(f"s_lshl_b32 s{sA}, s{sA}, 3")
        A(f"s_add_u32 s{sA}, s{sA}, 6000")
        A("L_amp:")
        A(f"s_memrealtime {sr(sC, 2)}")
        A("s_waitcnt lgkmcnt(0)")
        A(f"s_sub_u32 s{sB}, s{sC}, s{sST}")
        A(f"s_cmp_lt_u32 s{sB}, s{sA}")
        A("s_cbranch_scc1 L_amp")
    if stamps:
        A("s_waitcnt vmcnt(0)")
        stamp(7)
        A("s_waitcnt lgkmcnt(0)")
        for i in range(8):
            A(f"v_mov_b32 v{16 + i}, s{sST + 2 * i}")
        A(f"s_lshl_b32 s{sA}, s2, 3")
        A(f"s_add_u32 s{sA}, s{sA}, s{sW}")
        A(f"s_lshl_b32 s{sA}, s{sA}, 5")
        A(f"s_add_u32 s{sA}, s{sA}, {STAMPS}")
        A("v_mov_b32 v4, 0")
        A("s_mov_b64 exec, 1")
        A(f"buffer_store_dwordx4 v[16:19], v4, {sr(S_WS, 4)}, s{sA} offen")
        A(f"buffer_store_dwordx4 v[20:23], v4, {sr(S_WS, 4)}, s{sA} offen offset:16")
    A("L_end:")
    A("s_endpgm")
    A("L_code_end:")

    parts, cur = {}, None
    for l in A.lines:
        if l.startswith(".sec "):
            cur = parts.setdefault(l[5:], [])
        else:
            cur.append(l)
    page = [".p2align 12"]
    lines = (parts["entry"] + parts["ohead"] + parts["qhead"] + [f".org {NAME} + 0x440, 0" if not (stamps or amp) else ".p2align 6"]
             + parts["vinit"] + parts["k1"] + page + parts["qbody"] + parts["k2"] + page + parts["v"]
             + page + parts["ghead"] + page + parts["ofar"] + page + parts["gstages"])
    body, n = insert_waits(lines)
    out = HEADER
    out += "; @launch grid=(256,1,1) block=(512,1,1) lds=163840\n"
    out += '.amdgcn_target "amdgcn-amd-amdhsa--gfx950"\n.text\n'
    out += f".globl {NAME}\n.p2align 12\n.p2align 8\n.type {NAME},@function\n"
    out += "\n".join(("" if t.endswith(":") else "    ") + t for t in body) + "\n"
    out += f""".section .rodata,"a"
.p2align 6
.amdhsa_kernel {NAME}
  .amdhsa_next_free_vgpr 256
  .amdhsa_next_free_sgpr 102
  .amdhsa_accum_offset 256
  .amdhsa_group_segment_fixed_size 0
  .amdhsa_kernarg_size 96
  .amdhsa_user_sgpr_count 2
  .amdhsa_user_sgpr_kernarg_segment_ptr 1
  .amdhsa_system_sgpr_workgroup_id_x 1
  .amdhsa_float_denorm_mode_32 3
.end_amdhsa_kernel
"""
    return out


def layout(path):
    import subprocess, re
    subprocess.run(["clang", "-x", "assembler", "-target", "amdgcn-amd-amdhsa", "-mcpu=gfx950", "-c", path, "-o", "_l.o"], check=True)
    sym = subprocess.run(["llvm-objdump", "-t", "_l.o"], capture_output=True, text=True).stdout
    ad = {m.group(2): int(m.group(1), 16) for m in re.finditer(r"^([0-9a-f]{16}) .*\s(L_\S+)$", sym, re.M)}
    for chain in (["L_tail", "L_qside", "L_v_init", "L_warm_k2", "L_v6", "L_warm_q1", "L_warm_q2", "L_warm_k3", "L_warm_k4", "L_k_idle"],
                  ["L_vwave", "L_warm_v1", "L_warm_v2", "L_warm_v3", "L_gwave", "L_o_more", "L_warm_o0", "L_warm_o1", "L_o_far", "L_g_more", "L_g_stages"],
                  ["L_warm_g0", "L_warm_g1", "L_warm_g1b", "L_warm_g1c", "L_warm_g2", "L_warm_g3", "L_code_end"]):
        chain = [c for c in chain if c in ad]
        print(" ".join(f"{a}@{ad[a]:#x}(+{ad[b] - (ad[a] & ~63)})" for a, b in zip(chain, chain[1:]) if a in ad and b in ad))


if __name__ == "__main__":
    kw = {}
    for a in sys.argv[2:]:
        k, v = a.split("=")
        kw[k] = eval(v)
    open(sys.argv[1], "w").write(gen(**kw))
    layout(sys.argv[1])
```

```python
import sys
sys.path.insert(0, "exp")
from asmlib import Asm, vr, sr, insert_waits

NAME = "sequential_preLN__sliding_block_cached__swiglu_ffn__decode_kernel"
HEADER = open("sequential_preLN__sliding_block_cached__swiglu_ffn__decode.s.ref").read().split("; Override launch")[0]

QP, YBUF, HBUF, EPOCH, XBUF, OBUF, STAMPS = 0x0, 0x40000, 0x80000, 0x82000, 0x83000, 0x84000, 0x200000
TAGC = 0x9e3779b1
PBUF = 0x188000
QFAR = 0x1c0000
VERSION = 31
REC = 4096
WS_SIZE = 0x240000
FLAG_OFF = 0

S_X, S_WQ, S_WS, S_WST, S_A, S_B, S_WG, S_WU, S_OUT, S_DBG = 28, 32, 36, 40, 44, 48, 52, 56, 60, 64
sW, sXI, sT, sLIM, sCNT, sPASS, sFAST, sLB, sT0, sNT = 68, 69, 70, 71, 72, 73, 74, 75, 76, 77
sA, sB, sC, sD = 78, 79, 80, 81
sSELLO, sSELHI, sREC, sTAG = 82, 83, 84, 85
sXQ = 3
sHQ, sKQ, sROT = 64, 65, 66
sMASK = 4
sTB = 12
sST = 86
vL, vN, vG = 1, 2, 3
vFF = 255
QL, ML, LL, PB, QS = 151552, 152576, 152640, 153600, 158720


def gen(tailx=0, kvflags="nt", wqflags="nt", woflags="nt", guflags="nt", wdflags="nt", stamps=False, force_slow=False,
        dry=False, limit=0x40000, vwin=6, kwin=0, vbar=9, gsched=(4, 3, 3, 3, 3), kprio=0, amp=None, kbar=1, qprio=3, gather_before=0, qmap=1, drop='', codepf=False, tprio=True, slp=8, slp2=0, qstflags='sc1', touchflags='sc1', qwarm=None, qwb=False, fine=False, gyoung=True, nsets=(2, 2, 2, 2), gap=(2, 2, 2, 1), gwin=12, r1at=9, tdelay=0, q_tries=3, vnarrow=(2,), kloopw=4, gslow=0, oslow=5, oprio=1, gprio=1, mimic2=True, vtile=4, ktile=None, ampx=None, vtouch=False, shift=None, pmap=1, ackbar=(None, None), pre=(0, 2, 3, 4), early=False, hv=5, lsets=2, lgap=2, owarm=False, lslp=0, nearflags='', rots=1, rotr=0, orot=True, gw=8, tailpf=True, warm_t=True, warm_a=True, warm_at=5, paced=0, dense=False, vearly=0, vew=0, veprio=1, adapt=None, peer=None, qpre=None, qlay=1, near_tries=6, trim=True, hheavy=0, hearly=2, vpost=None, pfirst=2, korder=(0, 1, 9, 8, 2, 3, 4, 5, 6, 7)):
    A = Asm()

    def stamp(i):
        if stamps or (amp and i in (0, amp[0])) or (adapt and i == 0):
            A(f"s_memrealtime {sr(sST + 2 * i, 2)}")

    FS = [44, 46, 48, 50, 52, 54, 56, 58, 20, 32, 24, 28, 30]

    def fs(i):
        if fine:
            A(f"s_memtime {sr(FS[i], 2)}")

    def slot_off(dst, base, slot):
        if rots and slot < 8:
            A(f"s_add_u32 s{dst}, s{sROT}, {16384 * slot}")
            A(f"s_and_b32 s{dst}, s{dst}, 0x1ffff")
            A(f"s_add_u32 s{dst}, s{dst}, s{base}")
        else:
            A(f"s_add_u32 s{dst}, s{base}, {16384 * slot}")

    def stub(name, on):
        if on:
            A(f"L_warm_{name}:")
            A(f"s_cbranch_execz L_back_{name}")

    def touch(names):
        A.c("fetch later code into the instruction cache: jump to each landing point with no lanes active and come back")
        A("s_mov_b64 exec, 0")
        for n in names:
            A(f"s_branch L_warm_{n}")
            A(f"L_back_{n}:")
        A("s_mov_b64 exec, -1")

    def sec(name):
        A(f".sec {name}")

    def srd(base, ptr, size):
        A(f"s_mov_b32 s{base}, s{ptr}")
        A(f"s_mov_b32 s{base + 1}, s{ptr + 1}")
        A(f"s_mov_b32 s{base + 2}, {size:#x}")
        A(f"s_mov_b32 s{base + 3}, 0x20000")

    def rb(dst, src):
        A(f"v_cvt_pk_bf16_f32 v{dst}, v{src}, v{src}")
        A(f"v_lshlrev_b32 v{dst}, 16, v{dst}")

    def allred_rows(op, v, t):
        A(f"v_mov_b32 v{t}, v{v}")
        A(f"v_permlane32_swap_b32 v{v}, v{t}")
        A(f"{op} v{v}, v{v}, v{t}")
        A(f"v_mov_b32 v{t}, v{v}")
        A(f"v_permlane16_swap_b32 v{v}, v{t}")
        A(f"{op} v{v}, v{v}, v{t}")

    def dpp_red(op, regs, rots):
        for r in rots:
            for v in regs:
                A(f"{op}_dpp v{v}, v{v}, v{v} row_ror:{r} row_mask:0xf bank_mask:0xf")

    def quad_red(v):
        for p in ("[1,0,3,2]", "[2,3,0,1]"):
            A(f"v_add_f32_dpp v{v}, v{v}, v{v} quad_perm:{p} row_mask:0xf bank_mask:0xf")

    def rows_to_batches(D):
        A(f"v_permlane32_swap_b32 v{D}, v{D + 2}")
        A(f"v_permlane32_swap_b32 v{D + 1}, v{D + 3}")
        A(f"v_add_f32 v{D}, v{D}, v{D + 2}")
        A(f"v_add_f32 v{D + 1}, v{D + 1}, v{D + 3}")
        A(f"v_permlane16_swap_b32 v{D}, v{D + 1}")
        A(f"v_add_f32 v{D}, v{D}, v{D + 1}")

    def fold_d(D):
        for rho in (1, 2, 3):
            for r in range(4):
                A(f"v_mov_b32_dpp v{D + r}, v{D + 4 * rho + r} quad_perm:[0,1,2,3] row_mask:{1 << rho:#x} bank_mask:0xf")
        rows_to_batches(D)

    def mfma16(D, Areg, Breg, first):
        c = "0" if first else vr(D, 4)
        A(f"v_mfma_f32_16x16x32_bf16 {vr(D, 4)}, {vr(Areg, 4)}, {vr(Breg, 4)}, {c}")

    def sentinel_check(regs, t):
        regs = list(regs)
        if len(regs) % 2 == 0:
            A(f"v_max_u32 v{t}, v{regs[0]}, v{regs[1]}")
            rest = regs[2:]
        else:
            A(f"v_max3_u32 v{t}, v{regs[0]}, v{regs[1]}, v{regs[2]}")
            rest = regs[3:]
        for i in range(0, len(rest), 2):
            A(f"v_max3_u32 v{t}, v{t}, v{rest[i]}, v{rest[i + 1]}")
        A(f"v_cmp_eq_u32 vcc, -1, v{t}")

    def tag_check(regs, tags, t, src=None, x="", extra=()):
        regs = list(regs)
        for i, r in enumerate(regs):
            A(f"v_xor_b32 v{r}, {tags[i % len(tags)]}, v{r if src is None else src + i}")
        A(f"v_or_b32 v{t}, v{regs[0]}, v{regs[1]}")
        for i in range(2, len(regs), 2):
            A(f"v_or3_b32 v{t}, v{t}, v{regs[i]}, v{regs[i + 1]}")
        for l in extra:
            A(l)
        A(f"v_cmp{x}_ne_u32_sdwa vcc, v{t}, 0 src0_sel:BYTE_0 src1_sel:DWORD")

    TAGS = [f"s{sTB + i}" for i in range(4)]

    def tag_put(D, tb=sTB):
        for i in range(4):
            A(f"v_bfi_b32 v{D + i}, v{vFF}, s{tb + i}, v{D + i}")

    def poll(loads, check, wait="s_waitcnt vmcnt(0)", sleep=0):
        top, out = A.label("poll"), A.label("polled")
        A(f"s_mov_b32 s{sCNT}, 0")
        A(f"{top}:")
        for l in loads:
            A(l)
        A(f"s_add_u32 s{sCNT}, s{sCNT}, 1")
        A(f"s_cmp_ge_u32 s{sCNT}, s{sLIM}")
        A(wait)
        check()
        A(f"s_cbranch_scc1 {out}")
        if sleep:
            A(f"s_cbranch_vccz {out}")
            A(f"s_sleep {sleep}")
            A(f"s_branch {top}")
        else:
            A(f"s_cbranch_vccnz {top}")
        A(f"{out}:")

    cold = []

    def mpoll(n, g, mk_loads, mk_check, p=0, slp=0):
        top, more, out = A.label("poll"), A.label("more"), A.label("polled")
        nl = len(mk_loads(0))
        if p == "ack":
            A("s_waitcnt vmcnt(0)")
        elif p:
            A(f"s_sleep {p}")
        for u in range(n - 1):
            for l in mk_loads(u):
                A(l)
            if g:
                A(f"s_sleep {g}")
        A(f"{top}:")
        for l in mk_loads(n - 1):
            A(l)
        A(f"s_waitcnt vmcnt({(n - 1) * nl})")
        mk_check(0)
        A(f"s_cbranch_execnz {more}")
        A(f"{out}:")
        A("s_mov_b64 exec, -1")
        keep, A.lines = A.lines, []
        A(f"{more}:")
        for u in range(1, n):
            for l in mk_loads(u - 1):
                A(l)
            A(f"s_waitcnt vmcnt({(n - 1) * nl})")
            mk_check(u)
            A(f"s_cbranch_execz {out}")
        A(f"s_add_u32 s{sCNT}, s{sCNT}, 1")
        A(f"s_cmp_lt_u32 s{sCNT}, s{sLIM}")
        if slp:
            A(f"s_sleep {slp}")
        A(f"s_cbranch_scc1 {top}")
        A(f"s_branch {out}")
        cold.extend(A.lines)
        A.lines = keep

    def smf(D, Areg, Breg, idx):
        A(f"v_smfmac_f32_16x16x64_bf16 {vr(D, 4)}, {vr(Areg, 4)}, {vr(Breg, 8)}, v{idx}")

    def make_tag():
        A("s_waitcnt lgkmcnt(0)")
        A(f"s_add_u32 s{sTAG}, s{sTAG}, {TAGC:#x}")
        for i in range(4):
            A(f"s_bfe_u32 s{sTB + i}, s{sTAG}, {0x80000 + 8 * i:#x}")

    def set_masks():
        for i in range(4):
            A(f"s_mov_b32 s{sMASK + 2 * i}, {0x000f000f << (4 * i):#x}")
            A(f"s_mov_b32 s{sMASK + 2 * i + 1}, {0x000f000f << (4 * i):#x}")

    def store_mode(texts):
        slow, done = A.label("slow"), A.label("stored")
        A(f"s_cmp_eq_u32 s{sFAST}, 0")
        A(f"s_cbranch_scc1 {slow}")
        for t in texts:
            A(t)
        A(f"s_branch {done}")
        A(f"{slow}:")
        for t in texts:
            A(t + " sc1" if t.startswith("buffer_") else t)
        A(f"{done}:")

    def line_tile_addr(dst, base_s, t1, t2):
        A(f"v_bfe_u32 v{t1}, v{vN}, 3, 1")
        A(f"v_and_b32 v{t2}, 1, v{vG}")
        A(f"v_lshl_or_b32 v{t1}, v{t2}, 1, v{t1}")
        A(f"v_lshlrev_b32 v{t1}, 5, v{t1}")
        A(f"v_and_b32 v{t2}, 3, v{vN}")
        A(f"v_lshl_add_u32 v{t1}, v{t2}, 3, v{t1}")
        A(f"v_lshrrev_b32 v{t2}, 2, v{vN}")
        A(f"v_lshl_add_u32 v{t1}, v{t2}, 7, v{t1}")
        A(f"v_lshl_add_u32 v{t1}, v{vG}, 10, v{t1}")
        for i in range(4):
            A(f"v_xor_b32 v{dst + i}, {32 * i}, v{t1}")
            if base_s is not None:
                A(f"v_add_u32 v{dst + i}, s{base_s}, v{dst + i}")

    def line_tile_read(dst, addr, off):
        for i in range(4):
            A(f"ds_read_b64_tr_b16 {vr(dst(i), 2)}, v{addr + i} offset:{off}")
            A(f"ds_read_b64_tr_b16 {vr(dst(i) + 2, 2)}, v{addr + i} offset:{off + 512}")

    def swz_chunk(dst, t):
        A(f"v_and_b32 v{t}, 1, v{vG}")
        A(f"v_lshlrev_b32 v{t}, 1, v{t}")
        A(f"v_and_b32 v{dst}, 7, v{vL}")
        A(f"v_xor_b32 v{dst}, v{dst}, v{t}")
        A(f"v_lshlrev_b32 v{dst}, 4, v{dst}")

    def consts():
        A(f"v_mov_b32 v{vFF}, 0xff")
        A(f"s_mov_b32 s{sLIM}, {limit}")

    def sel_consts():
        A(f"s_mov_b32 s{sSELLO}, 0x05040100")
        A(f"s_mov_b32 s{sSELHI}, 0x07060302")

    assert tailx == 0
    KO, KA, QO = 4, 8, 12
    vM, vLs, vT1, vT2, vGA = 14, 15, 62, 63, 61
    Q, S, PA, QM, KF, QG = 16, 32, 44, 64, 128, 160

    def role_calc():
        A.c("t < 28: kv head x-1, batch t/7, role t%7 (one die per kv head); t >= 28: kv head 7, batch t-28, role x-1")
        A(f"s_mul_i32 s{sA}, s{sT}, 37")
        A(f"s_lshr_b32 s{sKQ}, s{sA}, 8")
        A(f"s_mul_i32 s{sA}, s{sKQ}, 7")
        A(f"s_sub_u32 s{sB}, s{sT}, s{sA}")
        A(f"s_sub_u32 s{sHQ}, s{sXI}, 1")
        A(f"s_cmp_ge_u32 s{sT}, 28")
        A(f"s_cselect_b32 s{sKQ}, s{sB}, s{sKQ}")
        A(f"s_cselect_b32 s{sB}, s{sHQ}, s{sB}")
        A(f"s_cselect_b32 s{sHQ}, 7, s{sHQ}")
        A(f"s_lshl3_add_u32 s{sT}, s{sKQ}, s{sHQ}")
        A.c("roles own 37,37,37,37,37,36,35 tiles; byte offset of this wave's first tile")
        A(f"s_mul_i32 s{sT0}, s{sB}, 37")
        A(f"s_min_u32 s{sT0}, s{sT0}, 221")
        A(f"s_lshl_b32 s{sA}, s{sT}, 10")
        A(f"s_add_u32 s{sT0}, s{sT0}, s{sA}")
        A(f"s_and_b32 s{sD}, s{sW}, 3")
        A(f"s_add_u32 s{sT0}, s{sT0}, s{sD}")
        A(f"s_addk_i32 s{sT0}, 768")
        A(f"s_lshl_b32 s{sT0}, s{sT0}, 12")
        A(f"s_lshl1_add_u32 s{sROT}, s{sKQ}, s{sHQ}")
        A(f"s_lshl_b32 s{sROT}, s{sROT}, 14")

    def tile_count():
        A(f"s_max_u32 s{sA}, s{sB}, 4")
        A(f"s_sub_u32 s{sNT}, 41, s{sA}")

    sec("entry")
    A(f"{NAME}:")
    stamp(0)
    A("s_load_dwordx16 s[4:19], s[0:1], 0")
    A("s_load_dwordx8 s[20:27], s[0:1], 64")
    A("v_lshrrev_b32 v4, 6, v0")
    A(f"v_and_b32 v{vL}, 63, v0")
    A(f"v_readfirstlane_b32 s{sW}, v4")
    A(f"s_lshr_b32 s{sT}, s2, 3")
    A(f"s_cmp_ge_u32 s{sT}, 32")
    A("s_cbranch_scc1 L_end")
    A(f"v_lshrrev_b32 v{vG}, 4, v{vL}")
    A(f"s_and_b32 s{sXI}, s2, 7")
    A("s_cbranch_scc0 L_tail")
    A(f"s_cmp_eq_u32 s{sW}, 7")
    A("s_cbranch_scc1 L_v_init")
    A(f"s_cmp_eq_u32 s{sW}, 6")
    A("s_cbranch_scc1 L_v6")
    role_calc()
    A(f"s_cmp_ge_u32 s{sW}, 4")
    A("s_cbranch_scc1 L_qside")
    A.c("K wave k: key tiles k, k+4, .. go to LDS; source chunk (l&15) ^ (4(l>>4) + i) keeps the fragment reads conflict-free")
    A(f"v_lshlrev_b32 v{KO}, 2, v{vG}")
    A(f"v_xor_b32 v{KO}, v{KO}, v{vL}")
    A(f"v_lshlrev_b32 v{KO}, 4, v{KO}")
    for i in (1, 2, 3):
        A(f"v_xor_b32 v{KO + i}, {16 * i}, v{KO}")
    A(f"s_sub_u32 s{sA}, 3, s{sW}")
    A(f"s_mul_i32 m0, s{sA}, 0x9000")
    A(f"s_and_b32 s{sC}, s{sROT}, 0x1ffff")
    A(f"s_add_u32 s{sC}, s{sC}, s{sT0}")
    A(f"s_lshl_b32 s{S_A + 2}, {0 if 'k' in drop else 1}, 27")
    A(f"s_mov_b32 s{S_A + 3}, 0x20000")
    A("s_waitcnt lgkmcnt(0)")
    A(f"s_mov_b64 {sr(S_A, 2)}, s[6:7]")
    kloads = [f"buffer_load_dwordx4 v{KO + i}, {sr(S_A, 4)}, s{sC} offen offset:{1024 * i} {kvflags} lds" for i in range(4)]
    for l in kloads:
        A(l)
    stamp(1)
    A("s_branch L_k_more")

    sec("vinit")
    A("L_v_init:")
    A.c("LDS: the q copy and the max slots start empty")
    for i in range(4):
        A(f"v_mov_b32 v{8 + i}, -1")
    A(f"v_lshlrev_b32 v6, 4, v{vL}")
    A(f"v_add_u32 v7, {QL}, v6")
    A("ds_write_b128 v7, v[8:11]")
    A("ds_write_b128 v7, v[8:11] offset:1024")
    A("s_waitcnt lgkmcnt(0)")
    A("s_barrier")
    A("s_branch L_v_late")
    sec("qhead")
    A("L_qside:")
    A(f"v_and_b32 v{vN}, 15, v0")
    tile_count()
    A(f"s_cmp_eq_u32 s{sB}, 6")
    A(f"s_cselect_b32 s{sA}, {0 if 'j' in drop else 5}, {0 if 'j' in drop else 4}")
    A(f"s_cmp_le_u32 s{sW}, s{sA}")
    A("s_cbranch_scc1 L_qjob")
    A("s_waitcnt lgkmcnt(0)")
    A("s_barrier")
    A("s_branch L_v_warm")
    A("L_qjob:")
    A.c("q job: LayerNorm(x)[:, 128 kq : 128 kq + 128] @ wq[those rows, column block xq of kv head hq]")
    if qprio:
        A(f"s_setprio {qprio}")
    A.c("column block by split: 2,4,5,6,7 for the long splits, 3 for the 36-tile split, 0 and 1 for the 35-tile split")
    A(f"s_add_u32 s{sA}, s{sB}, s{sW}")
    A(f"s_sub_u32 s{sA}, s{sA}, 4")
    A(f"s_lshl_b32 s{sA}, s{sA}, 2")
    A(f"s_lshr_b32 s{sXQ}, 0x10376542, s{sA}")
    A(f"s_and_b32 s{sXQ}, s{sXQ}, 7")
    XR, XF, QR, QB, QD = 16, 32, 64, 128, 160
    A.c("matrix row (b, rho), lane group g: x[b][128 j' + 32g + 8 rho ..], block j' = kq comes first")
    A(f"v_lshrrev_b32 v4, 2, v{vN}")
    A("v_lshlrev_b32 v4, 10, v4")
    A(f"v_and_b32 v5, 3, v{vN}")
    A("v_lshl_add_u32 v4, v5, 4, v4")
    A(f"v_lshl_add_u32 v4, v{vG}, 6, v4")
    for j in range(4):
        A(f"s_add_u32 s{56 + j}, s{sKQ}, {j}")
        A(f"s_and_b32 s{56 + j}, s{56 + j}, 3")
        A(f"s_lshl_b32 s{56 + j}, s{56 + j}, 8")
    A.c("matrix column (kappa, c): wq row 128kq + 32g + 16 r1 + 8 kappa + e, columns 8c..8c+7")
    A(f"v_lshlrev_b32 v5, 18, v{vG}")
    A(f"v_lshrrev_b32 v7, 3, v{vN}")
    A("v_lshl_add_u32 v5, v7, 16, v5")
    A(f"v_and_b32 v6, 7, v{vN}")
    A("v_lshl_add_u32 v5, v6, 4, v5")
    A(f"s_lshl_b32 s{sA}, s{sXQ}, 7")
    A(f"s_lshl_b32 s{sB}, s{sHQ}, 10")
    A(f"s_add_u32 s{sA}, s{sA}, s{sB}")
    A(f"s_lshl_b32 s{sB}, s{sKQ}, 20")
    A(f"s_add_u32 s44, s{sA}, s{sB}")
    for e in range(1, 8):
        A(f"s_add_u32 s{44 + e}, s44, {8192 * e}")
    A("v_add_u32 v10, 0x20000, v5")
    A.c("QP byte = (b*8 + hq)*8192 + kq*2048 + xq*256 + lane column * 16; piece (kappa, c) holds columns 8c + 4 kappa ..")
    A(f"s_lshl_b32 s60, s{sHQ}, {15 if qlay else 13}")
    A(f"s_lshl_b32 s{sC}, s{sKQ}, {13 if qlay else 11}")
    A(f"s_add_u32 s60, s60, s{sC}")
    A(f"s_lshl_b32 s{sC}, s{sXQ}, {10 if qlay else 8}")
    A(f"s_add_u32 s60, s60, s{sC}")
    A(f"v_lshlrev_b32 v6, 4, v{vN}")
    A(f"v_lshl_add_u32 v6, v{vG}, {8 if qlay else 16}, v6")
    A("s_waitcnt lgkmcnt(0)")
    srd(S_X, 4, 4096)
    srd(S_WQ, 10, 0 if 'q' in drop else 512 * 8192)
    stamp(3)
    if qpre:
        srd(S_WST, 26, WS_SIZE)
        if qpre == "w":
            A(f"buffer_store_dwordx4 v[0:3], v6, {sr(S_WST, 4)}, s60 offen sc1")
        else:
            A(f"buffer_load_dwordx4 v[224:227], v6, {sr(S_WST, 4)}, s60 offen")
    for j in range(4):
        A(f"buffer_load_dwordx4 {vr(XR + 4 * j, 4)}, v4, {sr(S_X, 4)}, s{56 + j} offen")
    for r1 in range(2):
        for e in range(8):
            A(f"buffer_load_dwordx4 {vr(QR + 32 * r1 + 4 * e, 4)}, v{10 if r1 else 5}, {sr(S_WQ, 4)}, s{44 + e} offen {wqflags}")
    A("s_barrier")
    A("s_branch L_q_body")

    sec("k1")
    if peer:
        A("L_k_post:")
        A.c("progress flag of this workgroup, one line per workgroup id")
        srd(S_WST, 26, WS_SIZE)
        A(f"s_lshl_b32 s{sA}, s2, 7")
        A(f"s_add_u32 s{sA}, s{sA}, {PBUF}")
        A("s_waitcnt lgkmcnt(0)")
        A(f"s_add_u32 s{sC}, s{sTAG}, {TAGC:#x}")
        A(f"v_mov_b32 v{vT1}, s{sC}")
        A(f"v_mov_b32 v{vT2}, 0")
        A("s_mov_b64 exec, 1")
        A(f"buffer_store_dword v{vT1}, v{vT2}, {sr(S_WST, 4)}, s{sA} offen sc1")
        A("s_mov_b64 exec, -1")
        A("s_branch L_k_posted")
    A("L_k_more:")
    A(f"s_mov_b32 s{sLB}, m0")
    tile_count()
    A(f"s_sub_u32 s{sNT}, s{sNT}, s{sW}")
    A(f"s_add_u32 s{sNT}, s{sNT}, 3")
    A(f"s_lshr_b32 s{sNT}, s{sNT}, 2")
    A(f"s_lshl_b32 s{sPASS}, s{sNT}, 14")
    A(f"s_movk_i32 s{sCNT}, 0x4000")
    if peer:
        A(f"s_cmp_eq_u32 s{sW}, 0")
        A(f"s_cselect_b32 s{sFAST}, {0x4000 * peer[0]}, 0")
    A(f"s_load_dword s{sTAG}, s[26:27], {EPOCH}")
    if kbar == 0:
        A("s_barrier")
        stamp(5)
    A("L_k_loop:")
    A(f"s_add_u32 m0, m0, 4096")
    A(f"s_add_u32 s{sC}, s{sROT}, s{sCNT}")
    A(f"s_and_b32 s{sC}, s{sC}, 0x1ffff")
    A(f"s_bitcmp1_b32 s{sCNT}, 17")
    A(f"s_cselect_b32 s{sC}, s{sCNT}, s{sC}")
    A(f"s_add_u32 s{sC}, s{sC}, s{sT0}")
    if kloopw is not None:
        A(f"s_waitcnt vmcnt({kloopw})")
    for l in kloads:
        A(l)
    if kbar:
        A(f"s_cmp_lg_u32 s{sCNT}, {0x4000 * kbar}")
        A("s_cbranch_scc1 L_k_nobar")
        A("s_barrier")
        stamp(5)
        A("L_k_nobar:")
    if peer:
        A(f"s_cmp_eq_u32 s{sCNT}, s{sFAST}")
        A("s_cbranch_scc1 L_k_post")
        A("L_k_posted:")
    A(f"s_addk_i32 s{sCNT}, 0x4000")
    A(f"s_cmp_lt_u32 s{sCNT}, s{sPASS}")
    A("s_cbranch_scc1 L_k_loop")
    A.c("q partials of head k: [kv head][k quarter][column block][batch][256 B]; the lane half picks the quarter")
    assert qlay == 1
    srd(S_WS, 26, WS_SIZE)
    A(f"v_and_b32 v{vN}, 15, v0")
    A(f"v_lshlrev_b32 v{vGA}, 4, v{vN}")
    A(f"v_lshrrev_b32 v{vT1}, 5, v{vL}")
    A(f"v_lshl_add_u32 v{vGA}, v{vT1}, 13, v{vGA}")
    A(f"v_and_b32 v{vT1}, 1, v{vG}")
    A(f"v_lshl_add_u32 v{vGA}, v{vT1}, 10, v{vGA}")
    A(f"s_lshl_b32 s{sREC}, s{sT}, 3")
    A(f"s_add_u32 s{sREC}, s{sREC}, s{sB}")
    A(f"s_lshl_b32 s54, s{sHQ}, 15")
    A(f"s_lshl_b32 s{sA}, s{sKQ}, 8")
    A(f"s_add_u32 s54, s54, s{sA}")
    A(f"s_lshl_b32 s{sA}, s{sW}, 11")
    A(f"s_add_u32 s54, s54, s{sA}")
    A(f"s_add_u32 s52, s54, {QFAR}")
    A(f"s_cmp_eq_u32 s{sHQ}, 7")
    A(f"s_cselect_b32 s54, s52, s54")
    A(f"s_add_u32 s55, s54, 16384")
    gl = lambda b: [f"buffer_load_dwordx4 {vr(QG + 4 * i, 4)}, v{vGA}, {sr(S_WS, 4)}, s{b + i} offen sc1" for i in range(2)]
    gloads = gl(54)
    if 'G' in drop:
        gloads = []
    for l in gloads:
        A(l)
    A("s_barrier")
    consts()
    srd(S_WST, 26, WS_SIZE)
    A(f"s_mul_i32 s{sREC}, s{sREC}, {REC}")
    A(f"s_add_u32 s{sREC}, s{sREC}, {OBUF}")
    stamp(2)
    make_tag()
    A.c("K fragment LDS addresses: key(mu)*256 + ((4j + g) ^ mu)*16, key(mu) = 4*(mu&3) + (mu>>2)")
    A(f"v_and_b32 v{vT1}, 3, v{vN}")
    A(f"v_lshlrev_b32 v{QO}, 4, v{vT1}")
    A(f"v_lshlrev_b32 v{vT1}, 10, v{vT1}")
    A(f"v_lshrrev_b32 v{vT2}, 2, v{vN}")
    A(f"v_lshl_add_u32 v{vT1}, v{vT2}, 8, v{vT1}")
    A(f"v_xor_b32 v{vM}, v{vG}, v{vN}")
    A(f"v_lshl_add_u32 v{vT1}, v{vM}, 4, v{vT1}")
    for j in range(4):
        A(f"v_xor_b32 v{KA + j}, {64 * j}, v{vT1}")
        A(f"v_add_u32 v{KA + j}, s{sLB}, v{KA + j}")
    A(f"v_add_u32 v{QO + 1}, {ML}, v{QO}")
    A(f"v_lshl_add_u32 v{QO}, v{vG}, 6, v{QO}")
    A.c("probability slot of slot s = 4a + rho: PB + (s>>1)*1024 + k*256 + g*64 + h*16 + (s&1)*8")
    A(f"v_lshrrev_b32 v{vM}, 1, v{vT2}")
    A(f"v_lshl_add_u32 v{PA}, v{vM}, 10, v{QO}")
    A(f"v_and_b32 v{vM}, 1, v{vT2}")
    A(f"v_lshl_add_u32 v{PA}, v{vM}, 3, v{PA}")
    A(f"s_lshl_b32 s{sC}, s{sW}, 8")
    A(f"s_add_u32 s{sC}, s{sC}, {PB}")
    A(f"v_add_u32 v{PA}, s{sC}, v{PA}")
    A(f"v_add_u32 v{QO}, {QL}, v{QO}")
    A.c("s[18:19]: lanes of accumulator 2 whose tile exists")
    A(f"v_add_u32 v{vT1}, 8, v{vT2}")
    A(f"v_cmp_gt_u32 s[18:19], s{sNT}, v{vT1}")
    set_masks()
    for i in range(0, 64, 2):
        A(f"v_mov_b64 {vr(QM + i, 2)}, 0")
    A(f"s_getreg_b32 s56, hwreg(HW_REG_XCC_ID, 0, 3)")
    A(f"s_cmp_eq_u32 s{sHQ}, 7")
    A(f"s_cselect_b32 s56, 0, s56")
    A(f"s_xor_b32 s56, s56, s{sTB + 3}")
    A.c("sum the four q partials of head k into LDS (operand order)")
    A(f"v_and_b32 v{Q}, 7, v{vL}")
    A(f"v_lshlrev_b32 v{Q}, 6, v{Q}")
    A(f"v_bfe_u32 v{vT1}, v{vL}, 4, 1")
    A(f"v_lshl_add_u32 v{Q}, v{vT1}, 9, v{Q}")
    A(f"v_and_b32 v{vT1}, 8, v{vL}")
    A(f"v_add_u32 v{Q}, v{Q}, v{vT1}")
    A(f"s_lshl_b32 s{sC}, s{sW}, 4")
    A(f"s_add_u32 s{sC}, s{sC}, {QL}")
    A(f"v_add_u32 v{Q}, s{sC}, v{Q}")
    A("s_waitcnt vmcnt(0)")
    NEAR = TAGS[:3] + ["s56"]
    tag_check(range(QG, QG + 8), NEAR, vT1)
    A("s_cbranch_vccnz L_k_q_late")
    A("L_k_gathered:")
    for i in range(4):
        A(f"v_permlane32_swap_b32 v{QG + i}, v{QG + 4 + i}")
    A(f"v_pk_add_f32 {vr(QG, 2)}, {vr(QG, 2)}, {vr(QG + 4, 2)}")
    A(f"v_pk_add_f32 {vr(QG + 2, 2)}, {vr(QG + 2, 2)}, {vr(QG + 6, 2)}")
    for i in range(4):
        A(f"v_mov_b32 v{QG + 4 + i}, v{QG + i}")
    for i in range(4):
        A(f"v_permlane32_swap_b32 v{QG + i}, v{QG + 4 + i}")
    A(f"v_pk_add_f32 {vr(QG, 2)}, {vr(QG, 2)}, {vr(QG + 4, 2)}")
    A(f"v_pk_add_f32 {vr(QG + 2, 2)}, {vr(QG + 2, 2)}, {vr(QG + 6, 2)}")
    for i in range(2):
        A(f"v_cvt_pk_bf16_f32 v{QG + i}, v{QG + 2 * i}, v{QG + 2 * i + 1}")
        A(f"v_min_u32 v{QG + i}, -2, v{QG + i}")
    A(f"ds_write_b64 v{Q}, {vr(QG, 2)}")
    poll([f"ds_read_b128 {vr(Q + 4 * j, 4)}, v{QO} offset:{256 * j}" for j in range(4)],
         lambda: sentinel_check(range(Q, Q + 16), vT1), wait="s_waitcnt lgkmcnt(0)", sleep=2)
    for rho in range(4):
        A(f"s_mov_b64 exec, {sr(sMASK + 2 * rho, 2)}")
        for j in range(4):
            A(f"ds_read_b128 {vr(QM + 16 * rho + 4 * j, 4)}, v{QO} offset:{256 * j}")
        if rho & 1:
            A("s_waitcnt lgkmcnt(0)")
    A("s_mov_b64 exec, -1")
    A("s_waitcnt vmcnt(0)")
    stamp(3)

    def qk_reads(slot):
        for j in range(4):
            A(f"ds_read_b128 {vr(KF + 16 * (slot & 1) + 4 * j, 4)}, v{KA + j} offset:{4096 * slot}")

    qk_reads(0)
    for slot in range(10):
        if slot >= 8:
            A(f"s_cmp_le_u32 s{sNT}, {slot}")
            A("s_cbranch_scc1 L_qk_done")
        if slot < 9:
            qk_reads(slot + 1)
            A("s_waitcnt lgkmcnt(4)")
        else:
            A("s_waitcnt lgkmcnt(0)")
        for j in range(4):
            mfma16(S + 4 * (slot >> 2), KF + 16 * (slot & 1) + 4 * j, QM + 16 * (slot & 3) + 4 * j, j == 0 and (slot & 3) == 0)
    A("s_branch L_qk_done")
    sec("k2")
    A("L_qk_done:")
    stub("k3", warm_a)
    A.c("scores: bf16(bf16(q.k) * Dh^-0.5); absent tiles get -inf")
    A(f"s_mov_b32 s{sA}, 0x3db504f3")
    A(f"s_mov_b32 s{sB}, 0x3fb8aa3b")
    A(f"v_mov_b32 v{vT1}, 0xff800000")
    for i in range(0, 12, 2):
        p = S + i
        A(f"v_cvt_pk_bf16_f32 v{p + 1}, v{p}, v{p + 1}")
        A(f"v_lshlrev_b32 v{p}, 16, v{p + 1}")
        A(f"v_and_b32 v{p + 1}, 0xffff0000, v{p + 1}")
        A(f"v_mul_f32 v{p}, s{sA}, v{p}")
        A(f"v_mul_f32 v{p + 1}, s{sA}, v{p + 1}")
        A(f"v_cvt_pk_bf16_f32 v{p + 1}, v{p}, v{p + 1}")
        A(f"v_lshlrev_b32 v{p}, 16, v{p + 1}")
        A(f"v_and_b32 v{p + 1}, 0xffff0000, v{p + 1}")
        if i >= 8:
            m = "s[18:19]"
            A(f"v_cndmask_b32 v{p}, v{vT1}, v{p}, {m}")
            A(f"v_cndmask_b32 v{p + 1}, v{vT1}, v{p + 1}, {m}")
    A(f"v_max_f32 v{vM}, v{S}, v{S + 1}")
    for i in range(2, 12, 2):
        A(f"v_max3_f32 v{vM}, v{vM}, v{S + i}, v{S + i + 1}")
    dpp_red("v_max_f32", [vM], [8, 4])
    allred_rows("v_max_f32", vM, vT1)
    A(f"v_min_u32 v{vM}, -2, v{vM}")
    A(f"s_lshl_b32 s{sA}, s{sW}, 2")
    A(f"v_add_u32 v{vT2}, s{sA}, v{QO + 1}")
    A("s_mov_b64 exec, 15")
    A(f"ds_write_b32 v{vT2}, v{vM}")
    A("s_mov_b64 exec, -1")
    poll([f"ds_read_b128 {vr(Q, 4)}, v{QO + 1}"], lambda: sentinel_check(range(Q, Q + 4), vT1),
         wait="s_waitcnt lgkmcnt(0)", sleep=1)
    stub("k4", warm_a)
    A(f"v_max_f32 v{vM}, v{Q}, v{Q + 1}")
    A(f"v_max3_f32 v{vM}, v{vM}, v{Q + 2}, v{Q + 3}")
    for i in range(12):
        A(f"v_sub_f32 v{S + i}, v{S + i}, v{vM}")
        A(f"v_mul_f32 v{S + i}, s{sB}, v{S + i}")
        A(f"v_exp_f32 v{S + i}, v{S + i}")
    A(f"v_mul_f32 v{vM}, s{sB}, v{vM}")
    for i in range(6):
        A(f"v_cvt_pk_bf16_f32 v{Q + i}, v{S + 2 * i}, v{S + 2 * i + 1}")
    A(f"ds_write_b64 v{PA}, {vr(Q, 2)}")
    A(f"ds_write_b64 v{PA}, {vr(Q + 2, 2)} offset:2048")
    A("s_mov_b32 exec_lo, 0x00ff00ff")
    A("s_mov_b32 exec_hi, 0x00ff00ff")
    A(f"ds_write_b64 v{PA}, {vr(Q + 4, 2)} offset:4096")
    A("s_mov_b64 exec, -1")
    A(f"v_add_f32 v{vLs}, v{S}, v{S + 1}")
    for i in range(2, 12):
        A(f"v_add_f32 v{vLs}, v{vLs}, v{S + i}")
    dpp_red("v_add_f32", [vLs], [8, 4])
    allred_rows("v_add_f32", vLs, vT1)
    A("s_mov_b64 exec, 15")
    A(f"ds_write_b32 v{vT2}, v{vLs} offset:{LL - ML}")
    A("s_mov_b64 exec, -1")
    A("s_waitcnt lgkmcnt(0)")
    stamp(4)
    A("s_barrier")
    A(f"s_cmp_ge_u32 s{sW}, 2")
    A("s_cbranch_scc1 L_k_lse")
    A.c("waves 0,1: thread G owns 16 bytes of the record, head G>>5, scaled by 1/L")
    A(f"v_and_b32 v{KA + 2}, 127, v0")
    A(f"v_lshrrev_b32 v{KA}, 5, v{KA + 2}")
    A(f"v_lshlrev_b32 v{KA + 3}, 1, v{KA}")
    A(f"v_lshlrev_b32 v{KA}, 4, v{KA}")
    A(f"v_add_u32 v{KA}, {LL}, v{KA}")
    A(f"ds_read_b128 {vr(Q, 4)}, v{KA}")
    A(f"v_xor_b32 v{KA + 3}, v{KA + 3}, v{KA + 2}")
    A(f"v_lshlrev_b32 v{KA + 3}, 4, v{KA + 3}")
    A(f"v_and_b32 v{KA + 1}, 0x60, v{KA + 2}")
    A(f"v_add_u32 v{KA + 2}, v{KA + 2}, v{KA + 1}")
    A(f"v_lshlrev_b32 v{KA + 2}, 4, v{KA + 2}")
    A("s_waitcnt lgkmcnt(0)")
    A(f"v_add_f32 v{Q}, v{Q}, v{Q + 1}")
    A(f"v_add_f32 v{Q + 2}, v{Q + 2}, v{Q + 3}")
    A(f"v_add_f32 v{Q}, v{Q}, v{Q + 2}")
    A(f"v_rcp_f32 v{vM}, v{Q}")
    A("s_barrier")
    A("s_barrier")
    for w in range(4):
        A(f"ds_read_b128 {vr(Q + 4 * w, 4)}, v{KA + 3} offset:{2048 * w}")
    A("s_waitcnt lgkmcnt(2)")
    A(f"v_pk_add_f32 {vr(Q, 2)}, {vr(Q, 2)}, {vr(Q + 4, 2)}")
    A(f"v_pk_add_f32 {vr(Q + 2, 2)}, {vr(Q + 2, 2)}, {vr(Q + 6, 2)}")
    A("s_waitcnt lgkmcnt(0)")
    A(f"v_pk_add_f32 {vr(Q + 8, 2)}, {vr(Q + 8, 2)}, {vr(Q + 12, 2)}")
    A(f"v_pk_add_f32 {vr(Q + 10, 2)}, {vr(Q + 10, 2)}, {vr(Q + 14, 2)}")
    A(f"v_pk_add_f32 {vr(Q, 2)}, {vr(Q, 2)}, {vr(Q + 8, 2)}")
    A(f"v_pk_add_f32 {vr(Q + 2, 2)}, {vr(Q + 2, 2)}, {vr(Q + 10, 2)}")
    A(f"v_pk_mul_f32 {vr(Q, 2)}, {vr(Q, 2)}, {vr(vM, 2)} op_sel_hi:[1,0]")
    A(f"v_pk_mul_f32 {vr(Q + 2, 2)}, {vr(Q + 2, 2)}, {vr(vM, 2)} op_sel_hi:[1,0]")
    tag_put(Q)
    A(f"buffer_store_dwordx4 {vr(Q, 4)}, v{KA + 2}, {sr(S_WST, 4)}, s{sREC} offen offset:512 sc1")
    stamp(6)
    A("s_branch L_fin")
    sec("klate")
    A("L_k_q_late:")
    A.c("q is late or its producers sit on another die: after a few tries send this workgroup's partials write-through")
    A.c("and accept whichever copy of the group's partials completes")
    A(f"s_mov_b32 s{sCNT}, 0")
    A(f"s_add_u32 s53, s52, 16384")
    A("L_k_q_again:")
    for l in gloads:
        A(l)
    A(f"s_add_u32 s{sCNT}, s{sCNT}, 1")
    A("s_waitcnt vmcnt(0)")
    tag_check(range(QG, QG + 8), NEAR, vT1)
    A("s_cbranch_vccz L_k_gathered")
    A(f"s_cmp_lt_u32 s{sCNT}, {q_tries}")
    A("s_cbranch_scc1 L_k_q_again")
    A(f"s_cmp_lg_u32 s{sCNT}, {q_tries}")
    A("s_cbranch_scc1 L_k_q_resent")
    A(f"v_lshlrev_b32 v{vT1}, 4, v{vL}")
    A(f"v_add_u32 v{QG + 8}, {QS}, v{vT1}")
    A(f"ds_read_b128 {vr(QG, 4)}, v{QG + 8}")
    A(f"ds_read_b128 {vr(QG + 4, 4)}, v{QG + 8} offset:1024")
    A(f"s_lshl_b32 s{sA}, s{sB}, 2")
    A(f"s_lshr_b32 s{sA}, 0x10376542, s{sA}")
    A(f"s_and_b32 s{sA}, s{sA}, 7")
    A(f"s_lshl_b32 s{sA}, s{sA}, 10")
    A(f"s_lshl_b32 s{sC}, s{sKQ}, 13")
    A(f"s_add_u32 s{sA}, s{sA}, s{sC}")
    A(f"s_lshl_b32 s{sC}, s{sHQ}, 15")
    A(f"s_add_u32 s{sA}, s{sA}, s{sC}")
    A(f"s_add_u32 s{sA}, s{sA}, {QFAR}")
    A("s_waitcnt lgkmcnt(0)")
    A(f"buffer_store_dwordx4 {vr(QG, 4)}, v{vT1}, {sr(S_WST, 4)}, s{sA} offen sc1")
    A(f"s_cmp_lg_u32 s{sB}, 6")
    A("s_cbranch_scc1 L_k_q_resent")
    A(f"buffer_store_dwordx4 {vr(QG + 4, 4)}, v{vT1}, {sr(S_WST, 4)}, s{sA} offen offset:1024 sc1")
    A("L_k_q_resent:")
    for l in gl(52):
        A(l)
    A(f"s_cmp_lt_u32 s{sCNT}, s{sLIM}")
    A("s_waitcnt vmcnt(0)")
    tag_check(range(QG, QG + 8), TAGS, vT1)
    A("s_cbranch_vccz L_k_gathered")
    A("s_cbranch_scc1 L_k_q_again")
    A("s_branch L_k_gathered")
    sec("k2")
    A("L_k_lse:")
    A.c("wave 2 sends log2-sum-exp once the last value tiles are landing; it tells the tail when to fetch the record")
    A(f"ds_read_b128 {vr(Q, 4)}, v{QO + 1} offset:{LL - ML}")
    A(f"v_lshlrev_b32 v{vT1}, 3, v{vL}")
    A(f"v_mov_b32 v{vLs}, s{sTAG}")
    A("s_waitcnt lgkmcnt(0)")
    A(f"v_add_f32 v{Q}, v{Q}, v{Q + 1}")
    A(f"v_add_f32 v{Q + 2}, v{Q + 2}, v{Q + 3}")
    A(f"v_add_f32 v{Q}, v{Q}, v{Q + 2}")
    A(f"v_log_f32 v{Q}, v{Q}")
    A(f"v_add_f32 v{vM}, v{vM}, v{Q}")
    A("s_mov_b64 exec, 15")
    A(f"s_cmp_lg_u32 s{sW}, 2")
    A("s_barrier")
    A("s_cbranch_scc1 L_k_idle")
    A(f"buffer_store_dwordx2 {vr(vM, 2)}, v{vT1}, {sr(S_WST, 4)}, s{sREC} offen sc1")
    A("L_k_idle:")
    stamp(6)
    A("s_mov_b64 exec, -1")
    A("s_barrier")
    A("s_branch L_fin")

    sec("qbody")
    A("L_v6:")
    A("s_waitcnt lgkmcnt(0)")
    A("s_barrier")
    A("L_v_late:")
    A(f"v_and_b32 v{vN}, 15, v0")
    role_calc()
    tile_count()
    A("L_v_warm:")
    if warm_a:
        touch(["q1", "q2", "v3", "v2", "v1", "k4", "k3"])
    A("s_branch L_vwave")
    A("L_q_body:")
    A(f"s_load_dword s{sTAG}, s[26:27], {EPOCH}")
    srd(S_WST, 26, WS_SIZE)
    if qwarm is not None:
        A(f"buffer_load_dword v11, v6, {sr(S_WST, 4)}, s60 offen {qwarm}")
    consts()
    sel_consts()
    A("s_mov_b32 s62, 0xff00ff00")
    A("s_mov_b32 s63, 0xff00ff00")
    A(f"s_waitcnt vmcnt({16 + (qwarm is not None)})")
    stamp(6)
    for i in range(16):
        A(f"v_lshlrev_b32 v{XF + 2 * i}, 16, v{XR + i}")
        A(f"v_and_b32 v{XF + 2 * i + 1}, 0xffff0000, v{XR + i}")
    A(f"v_pk_add_f32 v[12:13], {vr(XF, 2)}, {vr(XF + 2, 2)}")
    A(f"v_pk_add_f32 v[14:15], {vr(XF + 4, 2)}, {vr(XF + 6, 2)}")
    for i in range(4, 16, 2):
        A(f"v_pk_add_f32 v[12:13], v[12:13], {vr(XF + 2 * i, 2)}")
        A(f"v_pk_add_f32 v[14:15], v[14:15], {vr(XF + 2 * i + 2, 2)}")
    A("v_pk_add_f32 v[12:13], v[12:13], v[14:15]")
    A("v_add_f32 v12, v12, v13")
    quad_red(12)
    allred_rows("v_add_f32", 12, 13)
    A("v_mul_f32 v12, 0x3b000000, v12")
    A("v_mov_b32 v14, 0")
    A("v_mov_b32 v15, 0")
    for i in range(16):
        A(f"v_pk_add_f32 v[8:9], {vr(XF + 2 * i, 2)}, v[12:13] op_sel_hi:[1,0] neg_lo:[0,1] neg_hi:[0,1]")
        A("v_pk_fma_f32 v[14:15], v[8:9], v[8:9], v[14:15]")
    A("v_add_f32 v14, v14, v15")
    quad_red(14)
    allred_rows("v_add_f32", 14, 15)
    A("v_mul_f32 v14, 0x3b000000, v14")
    rb(12, 12)
    rb(14, 14)
    A("v_add_f32 v14, 0x3727c5ac, v14")
    rb(14, 14)
    A("v_sqrt_f32 v14, v14")
    rb(14, 14)
    A("v_rcp_f32 v14, v14")
    stub("q1", warm_a)
    for i in range(4):
        p = XF + 2 * i
        A(f"v_pk_add_f32 {vr(p, 2)}, {vr(p, 2)}, v[12:13] op_sel_hi:[1,0] neg_lo:[0,1] neg_hi:[0,1]")
        A(f"v_cvt_pk_bf16_f32 v{p + 1}, v{p}, v{p + 1}")
        A(f"v_lshlrev_b32 v{p}, 16, v{p + 1}")
        A(f"v_and_b32 v{p + 1}, 0xffff0000, v{p + 1}")
        A(f"v_pk_mul_f32 {vr(p, 2)}, {vr(p, 2)}, v[14:15] op_sel_hi:[1,0]")
        A(f"v_cvt_pk_bf16_f32 v{XR + i}, v{p}, v{p + 1}")
    for r1 in range(2):
        if r1:
            stub("q2", warm_a)
        A(f"s_waitcnt vmcnt({8 - 8 * r1 + (qwarm is not None)})")
        for i in range(8):
            for e2 in range(4):
                R = QR + 32 * r1 + 8 * e2 + (i >> 1)
                A(f"v_perm_b32 v{QB + 4 * i + e2}, v{R + 4}, v{R}, s{sSELHI if i & 1 else sSELLO}")
            if i:
                mfma16(QD + 32 * r1 + 4 * (i - 1), XR, QB + 4 * (i - 1), True)
        mfma16(QD + 32 * r1 + 28, XR, QB + 28, True)
    make_tag()
    A.c("valid sums sit in register 2 r1 + kappa; add the two kappa halves, lane kappa keeps columns 4 kappa .. 4 kappa + 3")
    for i in range(8):
        A(f"v_pk_add_f32 {vr(QD + 4 * i, 2)}, {vr(QD + 4 * i, 2)}, {vr(QD + 32 + 4 * i + 2, 2)}")
    for i in range(8):
        A(f"v_cndmask_b32 v{QD + 4 * i}, v{QD + 4 * i}, v{QD + 4 * i + 1}, s[62:63]")
    for i in range(8):
        A(f"v_add_f32_dpp v{QD + 4 * i}, v{QD + 4 * i}, v{QD + 4 * i} row_ror:8 row_mask:0xf bank_mask:0xf")
    for i in range(4):
        A(f"v_cndmask_b32 v{XF + i}, v{QD + 4 * i}, v{QD + 16 + 4 * i}, s[62:63]")
        A(f"v_add_u32 v{XF + i}, 0x80, v{XF + i}")
    tag_put(XF)
    if qwarm is not None:
        A("s_waitcnt vmcnt(0)")
    A(f"s_sub_u32 s{sA}, s{sW}, 4")
    A(f"s_lshl_b32 s{sA}, s{sA}, 10")
    A(f"s_add_u32 s{sA}, s{sA}, {QS}")
    A(f"v_add_u32 v7, s{sA}, v6")
    A(f"ds_write_b128 v7, {vr(XF, 4)}")
    A(f"s_cmp_eq_u32 s{sHQ}, 7")
    A("s_cbranch_scc1 L_q_far")
    A(f"s_getreg_b32 s{sA}, hwreg(HW_REG_XCC_ID, 0, 3)")
    A(f"v_xor_b32 v{XF + 7}, s{sA}, v{XF + 3}")
    for i in range(3):
        A(f"v_mov_b32 v{XF + 4 + i}, v{XF + i}")
    A(f"buffer_store_dwordx4 {vr(XF + 4, 4)}, v6, {sr(S_WST, 4)}, s60 offen")
    A("s_branch L_q_sent")
    A("L_q_far:")
    A(f"s_add_u32 s60, s60, {QFAR}")
    A(f"buffer_store_dwordx4 {vr(XF, 4)}, v6, {sr(S_WST, 4)}, s60 offen sc1")
    A("L_q_sent:")
    A("s_waitcnt lgkmcnt(0)")
    if qprio:
        A("s_setprio 0")
    stamp(1)

    A("s_branch L_vwave")
    sec("v")
    A("L_vwave:")
    srd(S_B, 8, 0 if 'v' in drop else 0x8000000)
    sel_consts()
    if stamps or peer:
        srd(S_WS, 26, WS_SIZE)
    if peer:
        A.c("peers: the attention workgroups with the same id>>3 on the other dies")
        A(f"s_load_dword s{sTAG}, s[26:27], {EPOCH}")
        A(f"s_lshr_b32 s52, s2, 3")
        A(f"s_lshl_b32 s52, s52, 10")
        A(f"s_add_u32 s52, s52, {PBUF}")
        A(f"s_lshl_b32 s54, 1, s{sXI}")
        A(f"s_xor_b32 s54, s54, 0xfe")
        A(f"s_mov_b32 s55, 0")
        A(f"v_lshlrev_b32 v250, 7, v{vL}")
        A("s_waitcnt lgkmcnt(0)")
        A(f"s_add_u32 s{sTAG}, s{sTAG}, {TAGC:#x}")
    if vtouch:
        A.c("first touch of the V window ahead of its stream")
        A(f"s_cmp_lg_u32 s{sW}, 7")
        A("s_cbranch_scc1 L_no_vtouch")
        A("v_mov_b32 v250, 0")
        A("s_mov_b64 exec, 1")
        A("s_setprio 3")
        A(f"buffer_load_dword v251, v250, {sr(S_B, 4)}, s{sT0} offen {kvflags}")
        A("s_setprio 0")
        A("s_mov_b64 exec, -1")
        A("L_no_vtouch:")
    A.c("V wave v: value tiles v, v+4, .. in registers, transposed in-lane, P.V on the matrix core")
    VO, vPA, vRA = 4, 5, 6
    ACC, PM, VB = 8, 16, 48
    A(f"v_lshlrev_b32 v{VO}, 4, v{vL}")
    A(f"s_sub_u32 s{sD}, s{sW}, 4")
    order = [9, 8, 0, 1, 2, 3, 4, 5, 6, 7]
    pair_seq = [4, 0, 1, 2, 3]
    raw_base = {k: VB + 32 * (n + 1) for n, k in enumerate(pair_seq)}
    out_base = {k: VB + 32 * n for n, k in enumerate(pair_seq)}

    def v_load(s):
        R = raw_base[s >> 1] + 16 * (s & 1)
        A(f"s_add_u32 s{sB}, s{sT0}, {16384 * s}")
        for j in range(4):
            A(f"buffer_load_dwordx4 {vr(R + 4 * j, 4)}, v{VO}, {sr(S_B, 4)}, s{sB} offen offset:{1024 * j} {kvflags}")

    def v_perm(s, i):
        R = raw_base[s >> 1] + 16 * (s & 1)
        q, sel = i >> 1, sSELHI if i & 1 else sSELLO
        d = out_base[s >> 1] + 4 * i + 2 * (s & 1)
        A(f"v_perm_b32 v{d}, v{R + 4 + q}, v{R + q}, s{sel}")
        A(f"v_perm_b32 v{d + 1}, v{R + 12 + q}, v{R + 8 + q}, s{sel}")

    def p_read(k, buf):
        for rho in range(4):
            A(f"s_mov_b64 exec, {sr(sMASK + 2 * rho, 2)}")
            A(f"ds_read_b128 {vr(PM + 16 * buf + 4 * rho, 4)}, v{vPA} offset:{1024 * k}")
        A("s_mov_b64 exec, -1")

    def pv(k, buf, i, first):
        mfma16(ACC + 4 * (i >> 2), out_base[k] + 4 * i, PM + 16 * buf + 4 * (i & 3), first and (i & 3) == 0)

    for i in range(32):
        A(f"v_mov_b32 v{raw_base[4] + i}, 0")
    set_masks()
    for i in range(32):
        A(f"v_mov_b32 v{PM + i}, 0")
    A(f"v_and_b32 v7, 3, v{vN}")
    A(f"v_lshlrev_b32 v{vPA}, 4, v7")
    A(f"v_lshl_add_u32 v{vPA}, v{vG}, 6, v{vPA}")
    A(f"s_lshl_b32 s{sA}, s{sD}, 8")
    A(f"s_add_u32 s{sA}, s{sA}, {PB}")
    A(f"v_add_u32 v{vPA}, s{sA}, v{vPA}")
    A.c("reduction slot: h*32 + ((16a + 4g + rho) ^ 2h)")
    A(f"v_lshrrev_b32 v{vRA}, 2, v{vL}")
    A(f"v_lshlrev_b32 v{ACC}, 1, v7")
    A(f"v_xor_b32 v{vRA}, v{vRA}, v{ACC}")
    A(f"v_lshl_add_u32 v{vRA}, v7, 5, v{vRA}")
    A(f"v_lshlrev_b32 v{vRA}, 4, v{vRA}")
    A(f"s_lshl_b32 s{sA}, s{sD}, 11")
    A(f"v_add_u32 v{vRA}, s{sA}, v{vRA}")
    if vearly:
        A(f"s_setprio {veprio}")
    else:
        A("s_barrier")
    def peer_load(r):
        A("s_mov_b64 exec, s[54:55]")
        A(f"buffer_load_dword v{r}, v250, {sr(S_WS, 4)}, s52 offen sc1")
        A("s_mov_b64 exec, -1")

    if adapt:
        A("s_memrealtime s[56:57]")
        A("s_waitcnt lgkmcnt(0)")
        A(f"s_sub_u32 s56, s56, s{sST}")
        A(f"s_cmp_lt_u32 s56, {adapt[0]}")
        A("s_cselect_b64 vcc, 1, 0")
    A(f"s_add_u32 s{sA}, s{sD}, 36")
    A(f"s_cmp_ge_u32 s{sA}, s{sNT}")
    A("s_cbranch_scc1 L_v9_done")
    v_load(9)
    A("L_v9_done:")
    assert vwin >= 5 and vearly != 1
    done = 0
    for n in range(4, 40):
        s_, j = order[n >> 2], n & 3
        R = raw_base[s_ >> 1] + 16 * (s_ & 1)
        if n == 4:
            A(f"s_add_u32 s{sA}, s{sD}, 32")
            A(f"s_cmp_ge_u32 s{sA}, s{sNT}")
            A("s_cbranch_scc1 L_v8_done")
        if n == 8:
            A("L_v8_done:")
        if n == 16:
            stub("v1", warm_a)
        if n == (32 if peer else 36):
            stub("v2", warm_a)
        if j == 0:
            slot_off(sB, sT0, s_)
        if vtile is not None:
            if vearly and n == 4 * vearly:
                A("s_setprio 0")
                A("s_barrier")
            if peer and j == 0 and 4 * pfirst + 4 <= n < 4 * peer[2]:
                A.c("narrow window while too few peers have posted")
                A(f"s_waitcnt vmcnt({vtile})")
                A(f"s_cbranch_vccz L_free{n}" if n > 4 * pfirst + 4 else "s_nop 0")
                A("s_mov_b64 exec, s[54:55]")
                A(f"v_cmp_ne_u32 vcc, s{sTAG}, v251")
                A("s_mov_b64 exec, -1")
                A(f"s_bcnt1_i32_b64 s{sA}, vcc")
                A(f"s_cmp_gt_u32 s{sA}, {peer[3]}")
                A("s_cselect_b64 vcc, 1, 0")
                A(f"s_cbranch_scc0 L_free{n}")
                A(f"s_waitcnt vmcnt({peer[1]})")
                peer_load(251)
                A(f"L_free{n}:")
            elif j == 0 and n >= 8:
                A(f"s_waitcnt vmcnt({2 if (n >> 2) in vnarrow else vtile if n >= 4 * vearly else min(vew, vtile)})")
                if peer and n == 4 * pfirst:
                    peer_load(251)
                if adapt and n < 4 * adapt[2]:
                    A(f"s_cbranch_vccz L_wide{n}")
                    A(f"s_waitcnt vmcnt({adapt[1]})")
                    A(f"L_wide{n}:")
        elif n >= vwin:
            A(f"s_waitcnt vmcnt({vwin - 1})")
        A(f"buffer_load_dwordx4 {vr(R + 4 * j, 4)}, v{VO}, {sr(S_B, 4)}, s{sB} offen offset:{1024 * j} {kvflags}")
        if vpost and n == 4 * vpost + 3:
            A(f"s_cmp_lg_u32 s{sW}, 7")
            A("s_cbranch_scc1 L_v_posted")
            A(f"s_lshl_b32 s{sA}, s2, 7")
            A(f"s_add_u32 s{sA}, s{sA}, {PBUF}")
            A(f"v_mov_b32 v252, s{sTAG}")
            A("s_mov_b64 exec, 1")
            A(f"buffer_store_dword v252, v250, {sr(S_WS, 4)}, s{sA} offen sc1")
            A("s_mov_b64 exec, -1")
            A("L_v_posted:")
        landed = ((n - 3 - vtile) // 4 if j == 3 and n >= 8 else 0) if vtile is not None else (n - vwin + 1) // 4
        while done < landed:
            for i in range(8):
                v_perm(order[done], i)
            done += 1
    stamp(2)
    A("s_barrier")
    stamp(4)
    p_read(pair_seq[0], 0)
    for n, k in enumerate(pair_seq):
        if n == 3:
            stub("v3", warm_a)
        if n < 4:
            p_read(pair_seq[n + 1], (n + 1) & 1)
        first_t, second_t = 2 * n, 2 * n + 1
        if n == 4 and hv > 4:
            A(f"s_waitcnt vmcnt({hv})")
            A("s_barrier")
        if first_t >= done:
            A(f"s_waitcnt vmcnt({4 * (9 - first_t)})")
            for i in range(8):
                v_perm(order[first_t], i)
        lg = f"lgkmcnt({4 if n < 4 else 0})"
        if n == 4 and hv <= 4:
            A(f"s_waitcnt vmcnt({hv})")
            A("s_barrier")
        if second_t >= done:
            A(f"s_waitcnt vmcnt({4 * (9 - second_t)}) {lg}")
            if n == 4:
                stamp(5)
            seq = [0, 4, 1, 5, 2, 6, 3, 7]
            v_perm(order[second_t], seq[0])
            for m, i in enumerate(seq):
                if m < 7:
                    v_perm(order[second_t], seq[m + 1])
                pv(k, n & 1, i, n == 0)
        else:
            A(f"s_waitcnt {lg}")
            for i in (0, 4, 1, 5, 2, 6, 3, 7):
                pv(k, n & 1, i, n == 0)
    A(f"ds_write_b128 v{vRA}, {vr(ACC, 4)}")
    A(f"ds_write_b128 v{vRA}, {vr(ACC + 4, 4)} offset:256")
    A("s_waitcnt lgkmcnt(0)")
    A("s_barrier")
    A("s_branch L_fin")

    sec("ohead")
    A("L_tail:")
    A.c("tail workgroup t: head t of wo, 64 FFN channels, 16 columns of h and of the output")
    if 'T' in drop:
        A("s_waitcnt lgkmcnt(0)")
        srd(S_WS, 26, WS_SIZE)
        A("s_branch L_fin")
    t1, t2, t3, t4 = 12, 13, 14, 15
    RING = 131072
    OL, AL, HL, SL = 0, 512, 2048, 6144
    sRING, sU, sTZ = sT0, sXQ, 64
    vIdx = 254
    if tdelay:
        A("s_waitcnt lgkmcnt(0)")
        A(f"s_sleep {tdelay}")
    A(f"v_and_b32 v{vN}, 15, v0")
    A(f"s_and_b32 s{sU}, s{sW}, 3")
    A(f"s_cmp_ge_u32 s{sW}, 4")
    A("s_cbranch_scc1 L_gwave")

    def set_idx(bit):
        A(f"v_bfe_u32 v{vIdx}, v{vN}, {bit}, 1")
        A(f"v_mul_u32_u24 v{vIdx}, 0xaaaa, v{vIdx}")
        A(f"v_add_u32 v{vIdx}, 0x4444, v{vIdx}")

    def tail_consts():
        consts()
        A(f"s_getreg_b32 s{sFAST}, hwreg(HW_REG_XCC_ID, 0, 3)")
        make_tag()
        A(f"s_add_u32 s{sA}, s{sTAG}, {TAGC:#x}")
        for i in range(4):
            A(f"s_bfe_u32 s{sTZ + i}, s{sA}, {0x80000 + 8 * i:#x}")
        A("s_mov_b32 s8, 0x00ff00ff")
        A("s_mov_b32 s9, 0x00ff00ff")
        A("s_not_b64 s[10:11], s[8:9]")

    def checkin_read(R, first):
        xl = f"buffer_load_dwordx2 {vr(R, 2)}, v{R + 2}, {sr(S_WS, 4)}, s{sD} offen sc1"
        if first:
            A(f"v_and_b32 v{R + 2}, 31, v{vL}")
            A(f"v_lshlrev_b32 v{R + 2}, 3, v{R + 2}")
            A(f"s_mov_b32 s{sD}, {XBUF}")
            A(xl)
            return
        ok, top, far = A.label("near"), A.label("checkin"), A.label("far")
        A.c("check-in words are L2-local: seeing all 32 with this XCC id proves that the tail shares one die")
        A(f"s_mov_b32 s{sCNT}, 0")
        A(f"{top}:")
        A(f"v_xor_b32 v{R}, s{sFAST}, v{R}")
        A(f"v_xor_b32 v{R + 1}, s{sTAG}, v{R + 1}")
        A(f"v_or_b32 v{R}, v{R}, v{R + 1}")
        A(f"v_cmp_ne_u32 vcc, 0, v{R}")
        A(f"s_mov_b32 s{sA}, {0 if force_slow else 1}")
        A(f"s_cbranch_vccz {ok}")
        A(f"s_add_u32 s{sCNT}, s{sCNT}, 1")
        A(f"s_cmp_ge_u32 s{sCNT}, {near_tries}")
        A(f"s_cbranch_scc1 {far}")
        A(f"s_sleep {slp}")
        A(xl)
        A("s_waitcnt vmcnt(0)")
        A(f"s_branch {top}")
        A(f"{far}:")
        A.c("any other placement: write-through hand-offs, after the four workgroups that empty the h buffer report in")
        A(f"v_and_b32 v{R + 2}, 3, v{vL}")
        A(f"v_lshlrev_b32 v{R + 2}, 7, v{R + 2}")
        poll([f"buffer_load_dword v{R}, v{R + 2}, {sr(S_WS, 4)}, s{sD} offen offset:512 sc1"],
             lambda: A(f"v_cmp_ne_u32 vcc, s{sTAG}, v{R}"), sleep=slp)
        A(f"s_mov_b32 s{sA}, 0")
        A(f"{ok}:")
        A(f"s_mov_b32 s{sFAST}, s{sA}")

    A.c("O wave u: columns 128u..128u+127 of wo[head t] and of w_down[64t..64t+63], staged through a two-slot ring")
    AO, DO, BWO, BWD = 16, 32, 48, 176
    vTR, vWOo, vAr, vYs, XO, A4 = 4, 8, 240, 241, 242, 246
    A(f"s_lshl_b32 s{sRING}, s{sU}, 13")
    A(f"s_add_u32 s{sRING}, s{sRING}, {RING}")
    A.c("ring chunk = 16 consecutive rows x 256 B; row 4g'+r keeps its 64-byte block i at position i ^ r")
    A(f"v_lshlrev_b32 v{t1}, 2, v{vG}")
    A(f"v_xor_b32 v{t1}, v{t1}, v{vN}")
    A(f"v_lshlrev_b32 v{t1}, 4, v{t1}")
    A(f"v_lshl_add_u32 v{vWOo}, v{vG}, 10, v{t1}")
    A(f"s_lshl_b32 s{sA}, s{sU}, 8")
    A(f"v_add_u32 v{vWOo}, s{sA}, v{vWOo}")
    for g in range(1, 4):
        A(f"v_add_u32 v{vWOo + g}, {3072 * g}, v{vWOo}")
    A(f"s_lshl_b32 s{sC}, s{sT}, 17")
    A(f"s_lshl_b32 s{sLB}, s{sT}, 16")
    if orot:
        A.c("chunk n holds rows 16 (n ^ (t&7)): workgroups walk their slices in different orders")
        A(f"s_and_b32 s{sA}, s{sT}, 7")
        A(f"s_lshl_b32 s{sA}, s{sA}, 14")
        A(f"s_add_u32 s{sC}, s{sC}, s{sA}")
        A(f"s_and_b32 s{sA}, s{sA}, 0xc000")
        A(f"s_add_u32 s{sLB}, s{sLB}, s{sA}")
    A(f"s_lshl_b32 s{sPASS}, s{sU}, 14")
    A(f"s_add_u32 s{sPASS}, s{sPASS}, 65536")

    nring = max(r1at, 7)

    def ring_issue(n):
        A(f"s_add_u32 m0, s{sRING if n <= nring else sPASS}, {4096 * (n & (1 if n <= nring else 3))}")
        A(f"s_xor_b32 s{sB}, s{sC if n < 8 else sLB}, {16384 * (n & 7)}")
        for g in range(4):
            A(f"buffer_load_dwordx4 v{vWOo + g}, {sr(S_A if n < 8 else S_B, 4)}, s{sB} offen offset:{1024 * g} {woflags if n < 8 else wdflags} lds")

    def ring_read(n):
        base = BWO + 64 * (n >> 2) + 2 * (n & 3)
        for blk in range(4):
            for sel in range(2):
                A(f"ds_read_b64_tr_b16 {vr(base + 16 * blk + 8 * sel, 2)}, v{vTR + blk} offset:{4096 * (n & (1 if n <= nring else 3)) + 8 * sel}")

    A("s_waitcnt lgkmcnt(0)")
    srd(S_A, 12, 0 if 'o' in drop else 4096 * 1024)
    stamp(1)
    ring_issue(0)
    ring_issue(1)
    A("s_branch L_o_more")

    sec("ghead")
    A("L_gwave:")
    A.c("G wave v: 16 FFN channels of w_gate and w_up; batch v in stage 1; four columns in stages 2 and 4")
    AG, DG, PT, BGU, RS = 16, 32, 48, 64, 192
    vLin, vP0, vP1, vOw, vHs, vAw, vOs, vXr = range(4, 12)
    vCg, vCu, vH, vHw, vSw = range(248, 253)
    LS, LA, vHr = 224, 240, 242
    assert nsets[0] <= 2 and lsets <= 4
    vGUo, vW0, vW1, XG = RS, RS + 2, RS + 3, RS + 4
    A(f"v_lshlrev_b32 v{vLin}, 4, v{vL}")
    if tailpf:
        A.c("pull the tail's code into this die's L2 before the streams saturate memory")
        A(f"s_getpc_b64 {sr(sC, 2)}")
        A("L_tpc:")
        A(f"s_mul_i32 s{sA}, s{sU}, {128 * 24}")
        A(f"v_lshl_add_u32 v{t1}, v{vL}, 7, s{sA}")
        A(f"v_min_u32 v{t1}, L_code_end - L_tpc - 4, v{t1}")
        A(f"s_cmp_lt_u32 s{sT}, 30")
        A("s_cbranch_scc1 L_no_tpf")
        A("s_mov_b64 exec, 0xffffff")
        A(f"global_load_dword v253, v{t1}, {sr(sC, 2)}")
        A("s_mov_b64 exec, -1")
        A("L_no_tpf:")
    A.c("image [8-row group][gate, up][8 rows x 128 B]; row 128v + 8i + (l>>3), chunk (l&7) ^ ((l>>5)<<1) ^ ((v&1)<<2)")
    A(f"s_lshl_b32 m0, s{sU}, 15")
    A(f"v_lshrrev_b32 v{t1}, 3, v{vL}")
    A(f"s_lshl_b32 s{sA}, s{sU}, 7")
    A(f"v_add_u32 v{t1}, s{sA}, v{t1}")
    A(f"v_mul_u32_u24 v{t1}, 3584, v{t1}")
    A(f"v_and_b32 v{t2}, 7, v{vL}")
    A(f"v_and_b32 v{t3}, 2, v{vG}")
    A(f"v_xor_b32 v{t2}, v{t2}, v{t3}")
    A(f"s_and_b32 s{sA}, s{sU}, 1")
    A(f"s_lshl_b32 s{sA}, s{sA}, 2")
    A(f"v_xor_b32 v{t2}, s{sA}, v{t2}")
    A(f"v_lshl_add_u32 v{vGUo}, v{t2}, 4, v{t1}")
    A(f"v_add_u32 v{vGUo + 1}, {8 * 3584 - 2048}, v{vGUo}")
    A(f"s_lshl_b32 s{sLB}, s{sT}, 7")
    A(f"s_mov_b32 s{sPASS}, 0")
    if gslow is not None:
        A.c("column blocks with t&3 == 3 meet the slower fourth line of each KiB; the others keep one clause in flight")
        A(f"s_andn2_b32 vcc_lo, 3, s{sT}")
        A("s_mov_b32 vcc_hi, 0")
    for i in range(4):
        A(f"v_mov_b32 v{AG + i}, -1")
    if gprio:
        A(f"s_setprio {gprio}")
    A(f"s_cmp_lt_u32 s{sT}, 28")
    A(f"s_cselect_b32 s{S_WG + 2}, {0 if 'g' in drop else 512 * 3584}, 0")
    A(f"s_cselect_b32 s{S_WU + 2}, {0 if 'g' in drop else 512 * 3584 + 1024}, 0")
    A(f"s_mov_b32 s{S_WG + 3}, 0x20000")
    A(f"s_mov_b32 s{S_WU + 3}, 0x20000")
    A("s_waitcnt lgkmcnt(0)")
    A(f"s_mov_b64 {sr(S_WG, 2)}, s[16:17]")
    A.c("the w_up descriptor starts 1 KiB early: the instruction offset that steps LDS also steps the source")
    A(f"s_sub_u32 s{S_WU}, s18, 1024")
    A(f"s_subb_u32 s{S_WU + 1}, s19, 0")
    A("L_gu_loop:")
    A(f"s_waitcnt vmcnt({gw})")
    if gslow is not None:
        A("s_cbranch_vccz L_gu_wide")
        A(f"s_waitcnt vmcnt({gslow})")
        A("L_gu_wide:")
    for k in range(4):
        A(f"buffer_load_dwordx4 v{vGUo + (k >> 1)}, {sr(S_WU if k & 1 else S_WG, 4)}, s{sLB} offen offset:{1024 * k} {guflags} lds")
    A(f"s_add_u32 m0, m0, 4096")
    A(f"s_add_u32 s{sLB}, s{sLB}, {16 * 3584}")
    A(f"s_add_u32 s{sPASS}, s{sPASS}, 1")
    A(f"s_cmp_eq_u32 s{sPASS}, 1")
    A("s_cbranch_scc1 L_gu_clear")
    A(f"s_cmp_eq_u32 s{sPASS}, 3")
    A("s_cbranch_scc1 L_gu_checkin")
    tnames = ["g3", "g2", "g1c", "g1b", "g1", "g0", "o1", "o0"] if dense else ["g3", "g2", "g1", "g0", "o0"]
    if warm_t and not paced:
        A(f"s_cmp_eq_u32 s{sPASS}, {warm_at}")
        A("s_cbranch_scc1 L_gu_warm")
    A(f"s_cmp_lt_u32 s{sPASS}, 8")
    A(f"s_cbranch_scc1 {'L_gu_warm' if warm_t and paced else 'L_gu_loop'}")
    A("s_branch L_g_more")
    if warm_t and not paced:
        A("L_gu_warm:")
        A(f"s_cmp_lg_u32 s{sU}, 0")
        A("s_cbranch_scc1 L_gu_loop")
        touch(tnames)
        A("s_branch L_gu_loop")
    if warm_t and paced:
        A("L_gu_warm:")
        A.c("one instruction-cache warm-up jump per pass: no lanes active, the landing point branches straight back")
        A(f"s_lshl_b32 s{sA}, s{sPASS}, 2")
        A(f"s_add_u32 s{sA}, s{sA}, s{sU}")
        A("s_mov_b64 exec, 0")
        slots = [(p, u) for p in (2, 4, 5, 6, 7) for u in ((0,) if len(tnames) <= 5 else (0, 2))]
        for nm, (p, u) in zip(tnames, slots):
            A(f"s_cmp_eq_u32 s{sA}, {4 * p + u}")
            A(f"s_cbranch_scc1 L_warm_{nm}")
        for nm in tnames:
            A(f"L_back_{nm}:")
        A("s_mov_b64 exec, -1")
        A("s_branch L_gu_loop")
    A("L_gu_clear:")
    A(f"s_load_dword s{sTAG}, s[26:27], {EPOCH}")
    srd(S_WST, 26, WS_SIZE)
    A(f"s_cmp_lg_u32 s{sU}, 3")
    A("s_cbranch_scc1 L_gu_loop")
    A(f"s_cmp_lt_u32 s{sT}, 28")
    A("s_cbranch_scc1 L_gu_loop")
    A.c("workgroups 28..31 mark the h hand-off buffer empty; their check-in follows once that store is done")
    A(f"s_lshl_b32 s{sA}, s{sT}, 10")
    A(f"s_add_u32 s{sA}, s{sA}, {HBUF - 28 * 1024}")
    A(f"buffer_store_dwordx4 {vr(AG, 4)}, v{vLin}, {sr(S_WST, 4)}, s{sA} offen sc1")
    A("s_waitcnt vmcnt(0) lgkmcnt(0)")
    A(f"s_add_u32 s{sB}, s{sTAG}, {TAGC:#x}")
    A(f"v_mov_b32 v{t2}, s{sB}")
    A(f"s_lshl_b32 s{sA}, s{sT}, 7")
    A(f"s_add_u32 s{sA}, s{sA}, {XBUF + 512 - 28 * 128}")
    A("s_mov_b64 exec, 1")
    A(f"buffer_store_dword v{t2}, v{vLin}, {sr(S_WST, 4)}, s{sA} offen sc1")
    A("s_mov_b64 exec, -1")
    A("s_branch L_gu_loop")
    A("L_gu_checkin:")
    A(f"s_cmp_lg_u32 s{sU}, 3")
    A("s_cbranch_scc1 L_gu_loop")
    A(f"s_getreg_b32 s{sA}, hwreg(HW_REG_XCC_ID, 0, 3)")
    A(f"v_mov_b32 v{t1}, s{sA}")
    A(f"s_lshl_b32 s{sA}, s{sT}, 3")
    A(f"s_add_u32 s{sA}, s{sA}, {XBUF}")
    A("s_waitcnt lgkmcnt(0)")
    A(f"s_add_u32 s{sB}, s{sTAG}, {TAGC:#x}")
    A(f"v_mov_b32 v{t2}, s{sB}")
    A("s_mov_b64 exec, 1")
    A(f"buffer_store_dwordx2 {vr(t1, 2)}, v{vLin}, {sr(S_WST, 4)}, s{sA} offen")
    A("s_mov_b64 exec, -1")
    A("s_branch L_gu_loop")

    A("L_o_more:")
    A(f"s_load_dword s{sTAG}, s[26:27], {EPOCH}")
    srd(S_B, 20, 0 if 'd' in drop else 1792 * 1024)
    srd(S_WS, 26, WS_SIZE)
    srd(S_WST, 26, WS_SIZE)
    A(f"v_lshrrev_b32 v{t1}, 2, v{vN}")
    A(f"v_and_b32 v{t2}, 3, v{vN}")
    A(f"v_mul_u32_u24 v{t1}, 320, v{t1}")
    A(f"v_lshl_add_u32 v{t1}, v{t2}, 4, v{t1}")
    A(f"v_lshl_add_u32 v{t1}, v{vG}, 10, v{t1}")
    for blk in range(4):
        A(f"v_xor_b32 v{vTR + blk}, {64 * blk}, v{t1}")
        A(f"v_add_u32 v{vTR + blk}, s{sRING}, v{vTR + blk}")
    A.c("matrix row m = (half, b1, sigma, b0); activation chunk (J, sigma, g) at 1024J + 256 sigma + 128(g>>1) + 32b + 16(g&1)")
    set_idx(1)
    A(f"v_and_b32 v{t1}, 1, v{vN}")
    A(f"v_lshlrev_b32 v{vAr}, 5, v{t1}")
    A(f"v_bfe_u32 v{t1}, v{vN}, 2, 1")
    A(f"v_lshl_add_u32 v{vAr}, v{t1}, 6, v{vAr}")
    A(f"v_and_b32 v{t1}, 1, v{vG}")
    A(f"v_lshl_add_u32 v{vAr}, v{t1}, 4, v{vAr}")
    A(f"v_lshrrev_b32 v{t1}, 1, v{vG}")
    A(f"v_lshl_add_u32 v{vAr}, v{t1}, 7, v{vAr}")
    A(f"v_bfe_u32 v{t1}, v{vN}, 1, 1")
    A(f"v_lshl_add_u32 v{vAr}, v{t1}, 8, v{vAr}")
    A.c("partial-sum slot [consumer 8u + 4q + 2half + (n>>3)][b1][octet][producer t][n&3][sel][b0]")
    A(f"s_lshl_b32 s{sA}, s{sU}, 16")
    A(f"s_lshl_b32 s{sB}, s{sT}, 6")
    A(f"s_add_u32 s{sA}, s{sA}, s{sB}")
    A(f"v_lshlrev_b32 v{vYs}, 4, v{t2}")
    A(f"v_bfe_u32 v{t1}, v{vN}, 2, 1")
    A(f"v_lshl_add_u32 v{vYs}, v{t1}, 11, v{vYs}")
    A(f"v_and_b32 v{t1}, 1, v{vG}")
    A(f"v_lshl_add_u32 v{vYs}, v{t1}, 12, v{vYs}")
    A(f"v_lshrrev_b32 v{t1}, 3, v{vN}")
    A(f"v_lshl_add_u32 v{vYs}, v{t1}, 13, v{vYs}")
    A(f"v_lshrrev_b32 v{t1}, 1, v{vG}")
    A(f"v_lshl_add_u32 v{vYs}, v{t1}, 14, v{vYs}")
    A(f"v_add_u32 v{vYs}, s{sA}, v{vYs}")
    A(f"s_mov_b32 s16, {YBUF}")
    A(f"s_mov_b32 s17, {YBUF + 32768}")
    for i in list(range(AO, BWO)) + list(range(A4, A4 + 8)):
        A(f"v_mov_b32 v{i}, 0")
    tail_consts()
    assert 2 <= r1at <= 9
    order_ = [0, 1]
    for n in range(8):
        A(f"s_waitcnt vmcnt({4 * (len(order_) - 1 - order_.index(n))}) lgkmcnt(0)")
        ring_read(n)
        if n + 2 <= nring:
            A("s_waitcnt lgkmcnt(0)")
            if n < oslow:
                A(f"s_andn2_b32 s{sA}, 3, s{sT}")
                A(f"s_cbranch_scc0 L_o_wide{n}")
                A("s_waitcnt vmcnt(0)")
                A(f"L_o_wide{n}:")
            ring_issue(n + 2)
            order_.append(n + 2)
        if n + 2 == r1at:
            A.c("once the G waves hold gate/up in registers, the rest of w_down goes into the upper half of that image")
            A("s_barrier")
            checkin_read(XO, True)
            A("s_barrier")
            for m in range(nring + 1, 12):
                ring_issue(m)
                order_.append(m)
    A(f"s_waitcnt vmcnt({4 * (11 - nring)}) lgkmcnt(0)")
    checkin_read(XO, False)
    if 'W' in drop:
        A(f"s_mov_b32 s{S_WST + 2}, 0")
    if oprio:
        A(f"s_setprio {oprio}")
    stamp(2)
    stub("o0", warm_t)
    A(f"s_cmp_eq_u32 s{sFAST}, 0")
    A("s_mov_b64 exec, s[8:9]")
    A("s_cbranch_scc1 L_o_far")

    def o_stages(sc):
        def publish(q, tb):
            D = DO + 8 * q
            L = [f"v_pk_add_f32 {vr(D, 2)}, {vr(D, 2)}, {vr(D + 2, 2)}",
                 f"v_pk_add_f32 {vr(D + 2, 2)}, {vr(D + 4, 2)}, {vr(D + 6, 2)}"]
            L += [f"v_bfi_b32 v{D + i}, v{vFF}, s{tb + i}, v{D + i}" for i in range(4)]
            L += [f"buffer_store_dwordx4 {vr(D, 4)}, v{vYs}, {sr(S_WST, 4)}, s{16 + q} offen {sc}"]
            return L

        A.c("y_t = o_t @ wo[head t]")
        A("s_barrier")
        fs(1)
        for J in range(2):
            A(f"ds_read_b128 {vr(AO + 4 * J, 4)}, v{vAr} offset:{OL + 1024 * J}")
        A("s_mov_b64 exec, s[10:11]")
        for J in range(2):
            A(f"ds_read_b128 {vr(AO + 8 + 4 * J, 4)}, v{vAr} offset:{OL + 1024 * J}")
        A("s_mov_b64 exec, -1")
        for q in range(2):
            for n in range(4):
                half, J = n >> 1, n & 1
                if q == 0:
                    A(f"s_waitcnt lgkmcnt({3 - n})")
                for sel in range(2):
                    smf(DO + 8 * q + 4 * sel, AO + 4 * n, BWO + 64 * J + 16 * (2 * q + half) + 8 * sel, vIdx)
                    if early and q == 1:
                        m = 2 * n + sel
                        for l in (["s_nop 0"] if m < 3 else publish(0, sTB)[2 * (m - 3):2 * (m - 3) + 2]):
                            A(l)
        for l in ([] if early else publish(0, sTB)) + publish(1, sTB):
            A(l)
        stamp(4)
        fs(2)
        if ackbar[0] is not None:
            A(f"s_waitcnt vmcnt({ackbar[0]})")
        A("s_barrier")
        A("s_waitcnt vmcnt(0)")
        for m in range(8, 12):
            if m == nring + 1:
                A(f"s_sub_u32 s{sA}, s{sPASS}, s{sRING}")
                for blk in range(4):
                    A(f"v_add_u32 v{vTR + blk}, s{sA}, v{vTR + blk}")
            ring_read(m)
            A("s_waitcnt lgkmcnt(4)")
        stub("o1", warm_t and dense and sc != "sc1")
        for i in range(16):
            A(f"v_mov_b32 v{DO + i}, 0")
        A("s_mov_b64 exec, s[8:9]")
        A("s_waitcnt lgkmcnt(0)")
        A("s_barrier")
        A.c("z_t = act_t @ w_down[64 rows]")
        A("s_barrier")
        fs(8)
        A(f"ds_read_b128 {vr(A4, 4)}, v{vAr} offset:{AL}")
        A("s_mov_b64 exec, s[10:11]")
        A(f"ds_read_b128 {vr(A4 + 4, 4)}, v{vAr} offset:{AL}")
        A("s_mov_b64 exec, -1")
        for q in range(2):
            for hi in range(2):
                if q == 0:
                    A(f"s_waitcnt lgkmcnt({1 - hi})")
                for i in range(2):
                    smf(DO + 8 * q + 4 * i, A4 + 4 * hi, BWD + 16 * (2 * q + hi) + 8 * i, vIdx)
        for l in publish(0, sTZ) + publish(1, sTZ):
            A(l)
        stamp(6)
        fs(9)
        if ackbar[1] is not None:
            A(f"s_waitcnt vmcnt({ackbar[1]})")
        A("s_barrier")
        fine_out()
        A("s_branch L_fin")

    def fine_out():
        if fine:
            A("s_waitcnt lgkmcnt(0)")
            for i in range(13):
                A(f"v_mov_b32 v{64 + i}, s{FS[i]}")
            A(f"s_lshl_b32 s{sA}, s{sT}, 3")
            A(f"s_add_u32 s{sA}, s{sA}, s{sW}")
            A(f"s_lshl_b32 s{sA}, s{sA}, 6")
            A(f"s_add_u32 s{sA}, s{sA}, {STAMPS + 0x20000}")
            A("v_mov_b32 v80, 0")
            A("s_mov_b64 exec, 1")
            for i in range(4):
                A(f"buffer_store_dwordx4 {vr(64 + 4 * i, 4)}, v80, {sr(S_WST, 4)}, s{sA} offen offset:{16 * i}")

    o_stages(nearflags)
    sec("ofar")
    A("L_o_far:")
    o_stages("sc1")

    A("L_g_more:")
    srd(S_WS, 26, WS_SIZE)
    srd(S_X, 4, 4096)
    srd(S_OUT, 22, 4096)
    tail_consts()
    if gprio:
        A("s_setprio 0")
    A(f"s_cmp_lt_u32 s{sT}, 28")
    A("s_cbranch_scc1 L_touched")
    A.c("workgroups without FFN weights read the partial-sum inboxes once so that the lines are resident in L2")
    A(f"s_sub_u32 s{sA}, s{sT}, 28")
    A(f"s_lshl_b32 s{sA}, s{sA}, 2")
    A(f"s_add_u32 s{sA}, s{sA}, s{sU}")
    A(f"s_lshl_b32 s{sA}, s{sA}, 14")
    A(f"s_add_u32 s{sA}, s{sA}, {YBUF}")
    for n in range(16):
        A(f"buffer_load_dwordx4 {vr(PT, 4)}, v{vLin}, {sr(S_WS, 4)}, s{sA} offen offset:{1024 * (n & 3)} {touchflags}")
        if n & 3 == 3:
            A(f"s_add_u32 s{sA}, s{sA}, 4096")
    A("L_touched:")
    A.c("stage 1 reads head t&3 of pair (v, t>>2); lane row g takes splits g and 4+g")
    A(f"s_lshl_b32 s{sA}, s{sU}, 3")
    A(f"s_lshr_b32 s{sC}, s{sT}, 2")
    A(f"s_add_u32 s{sA}, s{sA}, s{sC}")
    A(f"s_mul_i32 s{sREC}, s{sA}, {8 * REC}")
    A(f"s_add_u32 s{sREC}, s{sREC}, {OBUF}")
    A(f"s_and_b32 s{sC}, s{sT}, 3")
    A(f"s_lshl_b32 s16, s{sC}, 3")
    A(f"s_add_u32 s16, s16, s{sREC}")
    A(f"s_lshl_b32 s{sA}, s{sC}, 10")
    A(f"s_add_u32 s{sREC}, s{sREC}, s{sA}")
    A(f"v_mul_u32_u24 v{vW0}, {REC}, v{vG}")
    A(f"v_min_u32 v{t1}, 2, v{vG}")
    A(f"v_add_u32 v{t1}, 4, v{t1}")
    A(f"v_mul_u32_u24 v{vW1}, {REC}, v{t1}")
    A(f"v_lshl_add_u32 v{vP0}, v{vN}, 4, v{vW0}")
    A(f"v_lshl_add_u32 v{vP1}, v{vN}, 4, v{vW1}")
    A.c("weight row d sits at position 64(d>>6) + 32((d>>1)&1) + 16((d>>5)&1) + 4((d>>2)&3) + 2((d>>4)&1) + (d&1)")
    A.c("stage 1 lane (c, g), half a holds channel d = 32(c>>2) + 8g + 4a + (c&3); it lands in this wave's own 32-byte units of the image")
    A(f"v_lshrrev_b32 v{t4}, 3, v{vN}")
    A(f"v_lshlrev_b32 v{t1}, 10, v{t4}")
    A(f"v_bfe_u32 v{t2}, v{vN}, 1, 1")
    A(f"v_lshlrev_b32 v{vAw}, 8, v{t2}")
    A(f"v_and_b32 v{t2}, 1, v{vN}")
    A(f"v_lshl_add_u32 v{vAw}, v{t2}, 1, v{vAw}")
    A(f"v_add_u32 v{t1}, v{t1}, v{vAw}")
    A(f"v_bfe_u32 v{t2}, v{vN}, 2, 1")
    A(f"v_lshl_add_u32 v{t1}, v{t2}, 7, v{t1}")
    A(f"v_lshl_add_u32 v{vAw}, v{t2}, 3, v{vAw}")
    A(f"v_lshl_add_u32 v{vAw}, v{t4}, 4, v{vAw}")
    A(f"v_lshl_add_u32 v{vAw}, v{vG}, 5, v{vAw}")
    A(f"v_and_b32 v{t2}, 1, v{vG}")
    A(f"v_lshl_add_u32 v{t1}, v{t2}, 4, v{t1}")
    A(f"v_lshrrev_b32 v{t3}, 1, v{vG}")
    A(f"v_lshl_add_u32 v{t1}, v{t3}, 2, v{t1}")
    A(f"s_lshl_b32 s{sB}, s{sU}, 5")
    A(f"v_add_u32 v{vOw}, s{sB}, v{t1}")
    A(f"s_lshr_b32 s{sB}, s{sU}, 1")
    A(f"s_and_b32 s{sC}, s{sU}, 1")
    A(f"s_lshl_b32 s{sA}, s{sB}, 7")
    A(f"s_lshl_b32 s17, s{sC}, 2")
    A(f"s_add_u32 s{sA}, s{sA}, s17")
    A(f"v_add_u32 v{vAw}, s{sA}, v{vAw}")
    if orot:
        A(f"s_and_b32 s{sA}, s{sT}, 1")
        A(f"s_lshl_b32 s{sA}, s{sA}, 2")
        A(f"s_and_b32 s17, s{sT}, 2")
        A(f"s_lshl_b32 s17, s17, 6")
        A(f"s_add_u32 s{sA}, s{sA}, s17")
        A(f"v_xor_b32 v{vAw}, s{sA}, v{vAw}")
        A(f"s_and_b32 s17, s{sT}, 4")
        A(f"s_lshl_b32 s17, s17, 8")
        A(f"s_add_u32 s{sA}, s{sA}, s17")
        A(f"v_xor_b32 v{vOw}, s{sA}, v{vOw}")
    A(f"s_lshl_b32 s17, s{sT}, 13")
    A(f"s_lshl_b32 s{sA}, s{sU}, 11")
    A(f"s_add_u32 s17, s17, s{sA}")
    A(f"s_add_u32 s17, s17, {YBUF}")
    A.c("stages 2/4: wave v = (b1, octet), lane row (sel, b0): column 16t + 8 octet + 4 sel + cc of batch 2 b1 + b0")
    A.c("HBUF byte = (j*64 + g*16 + 4b + rho)*16 + 2e")
    A(f"v_and_b32 v{t1}, 3, v{vN}")
    A(f"v_lshlrev_b32 v{t1}, 1, v{t1}")
    A(f"v_lshl_add_u32 v{t1}, v{t3}, 3, v{t1}")
    A(f"v_lshl_add_u32 v{vHs}, v{t2}, 6, v{t1}")
    A(f"v_lshl_add_u32 v{vOs}, v{t2}, 10, v{t1}")
    A(f"s_and_b32 s{sA}, s{sT}, 7")
    A(f"s_lshl_b32 s{sA}, s{sA}, 9")
    A(f"s_lshr_b32 s18, s{sT}, 3")
    A(f"s_lshl_b32 s18, s18, 4")
    A(f"s_add_u32 s{sA}, s{sA}, s18")
    A(f"s_lshl_b32 s18, s{sC}, 8")
    A(f"s_add_u32 s{sA}, s{sA}, s18")
    A(f"s_lshl_b32 s18, s{sB}, 7")
    A(f"s_add_u32 s{sA}, s{sA}, s18")
    A(f"s_add_u32 s{sA}, s{sA}, {HBUF}")
    A(f"v_add_u32 v{vHs}, s{sA}, v{vHs}")
    A(f"s_lshl_b32 s{sA}, s{sT}, 5")
    A(f"s_lshl_b32 s18, s{sC}, 4")
    A(f"s_add_u32 s{sA}, s{sA}, s18")
    A(f"s_lshl_b32 s18, s{sB}, 11")
    A(f"s_add_u32 s{sA}, s{sA}, s18")
    A(f"v_add_u32 v{vOs}, s{sA}, v{vOs}")
    A(f"s_lshl_b32 s18, s{sU}, 10")
    A(f"v_add_u32 v{vHw}, s18, v{vLin}")
    A.c("operand slot j of wave v holds k block j ^ v, so slot 0 is the block this wave gathers itself")
    for j in range(1, 4):
        A(f"v_xor_b32 v{vHr + j - 1}, {1024 * j}, v{vHw}")
    A(f"s_add_u32 s18, s18, {HBUF}")
    A.c("LayerNorm partial sums: slot [v>>1][b][4g + rho][v&1][8 B]")
    A(f"s_lshl_b32 s{sB}, s{sB}, 10")
    A(f"s_lshl_b32 s{sC}, s{sC}, 3")
    A(f"s_add_u32 s{sB}, s{sB}, s{sC}")
    A(f"v_and_b32 v{t3}, 3, v{vN}")
    A(f"v_lshrrev_b32 v{t2}, 2, v{vN}")
    A(f"v_lshlrev_b32 v{t2}, 8, v{t2}")
    A(f"v_lshl_add_u32 v{t2}, v{vG}, 6, v{t2}")
    A(f"v_lshl_add_u32 v{t2}, v{t3}, 4, v{t2}")
    A(f"v_add_u32 v{vSw}, s{sB}, v{t2}")
    set_idx(0)
    A(f"buffer_load_ushort v{vXr}, v{vOs}, {sr(S_X, 4)}, 0 offen")
    A.c("gate/up fragments: row 128(r>>1) + 4g + (r&1), 32-byte unit v ^ ((g&1) | (r>>1)<<1)")
    A(f"v_and_b32 v{t1}, 1, v{vG}")
    A(f"v_lshl_or_b32 v{t1}, v{t4}, 1, v{t1}")
    A(f"v_xor_b32 v{t1}, s{sU}, v{t1}")
    A(f"v_lshlrev_b32 v{t1}, 5, v{t1}")
    A(f"v_lshl_add_u32 v{t1}, v{t3}, 3, v{t1}")
    A(f"v_bfe_u32 v{t2}, v{vN}, 2, 1")
    A(f"v_lshl_add_u32 v{t1}, v{t2}, 7, v{t1}")
    A(f"v_and_b32 v{t2}, 1, v{vG}")
    A(f"v_lshl_add_u32 v{t1}, v{t2}, 9, v{t1}")
    A(f"v_lshrrev_b32 v{t2}, 1, v{vG}")
    A(f"v_lshl_add_u32 v{t1}, v{t2}, 11, v{t1}")
    A(f"v_lshl_add_u32 v{t1}, v{t4}, 15, v{t1}")
    A(f"s_lshl_b32 s{sA}, s{sU}, 13")
    A(f"v_add_u32 v{t1}, s{sA}, v{t1}")
    for i in range(4):
        A(f"v_mov_b32 v{AG + i}, 0x3f803f80")
    for i in range(8):
        A(f"v_mov_b32 v{DG + i}, 0")
    A("s_waitcnt vmcnt(0)")
    A("s_barrier")
    stamp(1)
    checkin_read(XG, True)
    bgu = lambda mat, r1, j: BGU + 64 * mat + 32 * r1 + 8 * j
    for r1 in range(2):
        for j in range(4):
            A(f"v_xor_b32 v{t2}, {65536 * r1 + 8192 * j}, v{t1}")
            for mat in range(2):
                for p in range(4):
                    off = mat * 1024 + (p >> 1) * 4096 + (p & 1) * 256
                    A(f"ds_read_b64_tr_b16 {vr(bgu(mat, r1, j) + 2 * p, 2)}, v{t2} offset:{off}")
            A("s_waitcnt lgkmcnt(4)")
    A("s_waitcnt lgkmcnt(0)")
    A("s_barrier")
    A.c("column sums of the weights")
    for r1 in range(2):
        for j in range(4):
            for mat in range(2):
                smf(DG + 4 * mat, AG, bgu(mat, r1, j), vIdx)

    def fold2(D):
        for a in (D, D + 4):
            A(f"v_permlane32_swap_b32 v{a}, v{a + 2}")
            A(f"v_permlane32_swap_b32 v{a + 1}, v{a + 3}")
        for a in (D, D + 4):
            A(f"v_pk_add_f32 {vr(a, 2)}, {vr(a, 2)}, {vr(a + 2, 2)}")
        for a in (D, D + 4):
            A(f"v_permlane16_swap_b32 v{a}, v{a + 1}")
        for a in (D, D + 4):
            A(f"v_add_f32 v{a}, v{a}, v{a + 1}")

    A("s_waitcnt vmcnt(0)")
    checkin_read(XG, False)
    A(f"buffer_load_dwordx4 {vr(RS + 16, 4)}, v{vLin}, {sr(S_WS, 4)}, s18 offen sc1")
    A(f"v_lshlrev_b32 v{vXr}, 16, v{vXr}")
    A(f"buffer_store_short v{vXr}, v{vOs}, {sr(S_OUT, 4)}, 0 offen")
    A(f"v_add_f32 v{vCg}, v{DG}, v{DG + 1}")
    A(f"v_add_f32 v{vCu}, v{DG + 4}, v{DG + 5}")
    for i in range(DG, DG + 16):
        A(f"v_mov_b32 v{i}, 0")
    stamp(2)
    A(f"s_mov_b32 s{sCNT}, 0")
    A(f"s_mov_b32 s{sA}, 0x3f803f80")
    A("s_mov_b32 s20, 0x00050005" if not fine else "s_mov_b32 s26, 0x00050005")
    A("s_mov_b32 s21, 0x00050005" if not fine else "s_mov_b32 s27, 0x00050005")
    hmask = "s[20:21]" if not fine else "s[26:27]"
    A("s_mov_b32 s22, 0x3b000000")
    A("s_mov_b32 s23, 0x3b000000")
    A(f"v_mov_b32 v{LA}, v{vW0}")
    A(f"v_mov_b32 v{LA + 1}, v{vW1}")
    stamp(3)
    A("s_branch L_g_stages")
    sec("gstages")
    A("L_g_stages:")
    stub("g0", warm_t)
    A.c("stage 1: wait for the seven log-sum-exp words, then fetch and combine the partial outputs of batch v")

    def lchk(u):
        R = LS + 4 * u
        A(f"v_mov_b32 v{PT}, v{R}")
        A(f"v_mov_b32 v{PT + 2}, v{R + 2}")
        A(f"v_xor_b32 v{t1}, s{sTAG}, v{R + 1}")
        A(f"v_xor_b32 v{t2}, s{sTAG}, v{R + 3}")
        A(f"v_or_b32 v{t1}, v{t1}, v{t2}")
        A(f"v_cmpx_ne_u32 vcc, 0, v{t1}")
    mpoll(lsets, lgap, lambda u: [f"buffer_load_dwordx2 {vr(LS + 4 * u + 2 * i, 2)}, v{LA + i}, {sr(S_WS, 4)}, s16 offen sc1" for i in range(2)], lchk, slp=lslp)
    rec_loads = lambda u: [f"buffer_load_dwordx4 {vr(RS + 16 * u + 8 * i + 4 * hf, 4)}, v{vP0 + i}, {sr(S_WS, 4)}, s{sREC} offen offset:{512 + 256 * hf} sc1"
                           for i in range(2) for hf in range(2)]
    rec_check = lambda u: tag_check(range(PT, PT + 16), TAGS, t2, RS + 16 * u, "x")
    stamp(4)
    if pre[0]:
        A(f"s_sleep {pre[0]}")
    for l in rec_loads(0):
        A(l)
    A(f"v_max_f32 v{t1}, v{PT}, v{PT + 2}")
    allred_rows("v_max_f32", t1, t2)
    A(f"v_sub_f32 v{PT}, v{PT}, v{t1}")
    A(f"v_sub_f32 v{PT + 2}, v{PT + 2}, v{t1}")
    A(f"v_exp_f32 v{PT}, v{PT}")
    A(f"v_exp_f32 v{PT + 2}, v{PT + 2}")
    A(f"v_cmp_eq_u32 vcc, 3, v{vG}")
    A(f"v_cndmask_b32 v{PT + 2}, v{PT + 2}, 0, vcc")
    A(f"v_add_f32 v{t1}, v{PT}, v{PT + 2}")
    allred_rows("v_add_f32", t1, t2)
    A(f"v_rcp_f32 v{t1}, v{t1}")
    A(f"v_mul_f32 v{t3}, v{PT + 2}, v{t1}")
    A(f"v_mul_f32 v{t1}, v{PT}, v{t1}")
    weigh = [f"v_pk_mul_f32 {vr(PT + p, 2)}, {vr(PT + p, 2)}, {vr(t1, 2)} op_sel_hi:[1,0]" for p in range(0, 8, 2)]
    weigh += [f"v_pk_fma_f32 {vr(PT + p, 2)}, {vr(PT + 8 + p, 2)}, {vr(t3, 2)}, {vr(PT + p, 2)} op_sel_hi:[1,0,1]" for p in range(0, 8, 2)]
    for n in range(4):
        A(f"s_waitcnt vmcnt({3 - n})")
        if n == 3:
            stamp(2)
        for i in range(4):
            A(f"v_xor_b32 v{PT + 4 * n + i}, s{sTB + i}, v{RS + 4 * n + i}")
        A(f"v_or3_b32 v{t2}, v{PT + 4 * n}, v{PT + 4 * n + 1}, {'0' if n == 0 else 'v%d' % t2}")
        A(f"v_or3_b32 v{t2}, v{PT + 4 * n + 2}, v{PT + 4 * n + 3}, v{t2}")
        if n == 3:
            A(f"v_cmp_ne_u32_sdwa vcc, v{t2}, 0 src0_sel:BYTE_0 src1_sel:DWORD")
        A(weigh[2 * n])
        A(weigh[2 * n + 1])
    A("L_rec_weighed:")
    fs(0)
    fold2(PT)
    A("s_cbranch_vccnz L_rec_late")
    stamp(6)
    keep, A.lines = A.lines, []
    A("L_rec_late:")
    mpoll(nsets[0], gap[0], rec_loads, rec_check)
    for l in weigh:
        A(l)
    A("s_mov_b64 vcc, 0")
    A("s_branch L_rec_weighed")
    cold.extend(A.lines)
    A.lines = keep
    A(f"v_cvt_pk_bf16_f32 v{PT}, v{PT}, v{PT + 4}")
    A(f"ds_write_b16 v{vOw}, v{PT} offset:{OL}")
    A(f"ds_write_b16_d16_hi v{vOw}, v{PT} offset:{OL + 8}")
    A("s_waitcnt lgkmcnt(0)")
    A("s_barrier")
    fs(1)
    stub("g1", warm_t)
    A("s_barrier")
    fs(2)

    def column_sums(tags, f, k):
        mpoll(nsets[k], gap[k],
              lambda u: [f"buffer_load_dwordx4 {vr(RS + 8 * u + 4 * i, 4)}, v{vLin}, {sr(S_WS, 4)}, s17 offen offset:{1024 * i} sc1" for i in range(2)],
              lambda u: tag_check(range(PT, PT + 8), tags, t2, RS + 8 * u, "x",
                                  [f"v_pk_add_f32 {vr(PT + p, 2)}, {vr(PT + p, 2)}, {vr(PT + 4 + p, 2)}" for p in (0, 2)]), pre[k])
        fs(f)
        A(f"v_permlane32_swap_b32 v{PT}, v{PT + 2}")
        A(f"v_permlane32_swap_b32 v{PT + 1}, v{PT + 3}")
        A(f"v_pk_add_f32 {vr(PT, 2)}, {vr(PT, 2)}, {vr(PT + 2, 2)}")
        A(f"v_permlane16_swap_b32 v{PT}, v{PT + 1}")
        A(f"v_add_f32 v{PT}, v{PT}, v{PT + 1}")
        dpp_red("v_add_f32", [PT], [8, 4])
        rb(PT, PT)

    A.c("stage 2: h = x + sum of the 32 head contributions")
    column_sums(TAGS, 3, 1)
    A(f"v_add_f32 v{PT}, v{PT}, v{vXr}")
    A(f"s_cmp_eq_u32 s{sFAST}, 0")
    A(f"v_mov_b32_dpp v{PT + 1}, v{PT} quad_perm:[1,1,3,3] row_mask:0xf bank_mask:0xf")
    A(f"v_cvt_pk_bf16_f32 v{vH}, v{PT}, v{PT + 1}")
    A(f"v_min_u32 v{t2}, -2, v{vH}")
    A(f"s_mov_b64 exec, {hmask}")
    A("s_cbranch_scc1 L_h_far")
    A(f"buffer_store_dword v{t2}, v{vHs}, {sr(S_WST, 4)}, 0 offen")
    A("L_h_sent:")
    A("s_mov_b64 exec, -1")
    stamp(5)
    fs(4)
    stub("g1b", warm_t and dense)
    A.c("stage 3: gather h, LayerNorm folded around h @ [w_gate | w_up], act = silu(g) * u")

    def hchk(u):
        R = RS + 4 * u
        A(f"ds_write_b128 v{vHw}, {vr(R, 4)} offset:{HL}")
        for i in range(4 if hheavy else 0):
            A(f"v_dot2_f32_bf16 v{t1}, v{R + i}, s{sA}, {'v%d' % t1 if i else 0}")
            A(f"v_dot2_f32_bf16 v{t2}, v{R + i}, v{R + i}, {'v%d' % t2 if i else 0}")
        A(f"v_pk_mov_b32 {vr(AG, 2)}, {vr(R, 2)}, {vr(R, 2)} op_sel:[0,1]")
        A(f"v_pk_mov_b32 {vr(AG + 2, 2)}, {vr(R + 2, 2)}, {vr(R + 2, 2)} op_sel:[0,1]")
        A(f"v_max_u32 v{t3}, v{R}, v{R + 1}")
        if hheavy:
            A(f"ds_write_b64 v{vSw}, {vr(t1, 2)} offset:{SL}")
        A(f"v_max3_u32 v{t3}, v{t3}, v{R + 2}, v{R + 3}")
        A(f"v_cmpx_eq_u32 vcc, -1, v{t3}")
    A(f"v_lshlrev_b32 v{vH}, 16, v{vH}")
    mpoll(nsets[2], gap[2], lambda u: [f"buffer_load_dwordx4 {vr(RS + 4 * u, 4)}, v{vLin}, {sr(S_WS, 4)}, s18 offen sc1"], hchk, pre[2])
    fs(5)
    gsm = lambda n: smf(DG + 8 * (n & 1) + 4 * ((n >> 1) & 1), AG + 4 * (n >> 2), bgu(n & 1, (n >> 1) & 1, n >> 2), vIdx)
    early_n = 0
    if not hheavy:
        for i in range(4):
            A(f"v_dot2_f32_bf16 v{t1}, v{AG + i}, s{sA}, {'v%d' % t1 if i else 0}")
            A(f"v_dot2_f32_bf16 v{t2}, v{AG + i}, v{AG + i}, {'v%d' % t2 if i else 0}")
        A(f"ds_write_b64 v{vSw}, {vr(t1, 2)} offset:{SL}")
        early_n = hearly
        for n in range(early_n):
            gsm(n)
    A("s_waitcnt lgkmcnt(0)")
    A("s_barrier")
    fs(6)
    hrd = lambda j: f"ds_read_b128 {vr(AG + 4 * j, 4)}, v{vHr + j - 1} offset:{HL}"
    A(f"ds_read_b128 {vr(PT, 4)}, v{vLin} offset:{SL}")
    A(f"ds_read_b128 {vr(PT + 4, 4)}, v{vLin} offset:{SL + 1024}")
    dp = lambda v, r: f"v_add_f32_dpp v{v}, v{v}, v{v} row_ror:{r} row_mask:0xf bank_mask:0xf"
    chain = [[hrd(1)], [hrd(2)], [hrd(3)],
             ["s_waitcnt lgkmcnt(3)", f"v_pk_add_f32 {vr(PT, 2)}, {vr(PT, 2)}, {vr(PT + 2, 2)}",
              f"v_pk_add_f32 {vr(PT + 4, 2)}, {vr(PT + 4, 2)}, {vr(PT + 6, 2)}",
              f"v_pk_add_f32 {vr(PT, 2)}, {vr(PT, 2)}, {vr(PT + 4, 2)}"]]
    for r in (8, 4, 2, 1):
        chain += [[dp(PT, r)], [dp(PT + 1, r)]]
    if mimic2:
        chain += [[f"v_pk_mul_f32 {vr(t1, 2)}, {vr(PT, 2)}, s[22:23]"],
                  [f"v_fma_f32 v{t2}, -v{t1}, v{t1}, v{t2}", f"v_max_f32 v{t2}, 0, v{t2}"],
                  [f"v_cvt_pk_bf16_f32 v{t2}, v{t1}, v{t2}", f"v_lshlrev_b32 v{t1}, 16, v{t2}"],
                  [f"v_and_b32 v{t2}, 0xffff0000, v{t2}", f"v_add_f32 v{t2}, 0x3727c5ac, v{t2}",
                   f"v_cvt_pk_bf16_f32 v{t2}, v{t2}, v{t2}", f"v_lshlrev_b32 v{t2}, 16, v{t2}",
                   f"v_sqrt_f32 v{t2}, v{t2}", f"v_pk_mul_f32 {vr(vCg, 2)}, {vr(vCg, 2)}, {vr(t1, 2)} op_sel_hi:[1,0]",
                   f"v_cvt_pk_bf16_f32 v{t2}, v{t2}, v{t2}", f"v_lshlrev_b32 v{t2}, 16, v{t2}", f"v_rcp_f32 v{t2}, v{t2}"]]
    else:
        chain += [[f"v_pk_mul_f32 {vr(t1, 2)}, {vr(PT, 2)}, s[22:23]"],
                  [f"v_fma_f32 v{t2}, -v{t1}, v{t1}, v{t2}"],
                  [f"v_max_f32 v{t2}, 0, v{t2}"],
                  [f"v_add_f32 v{t2}, 0x3727c5ac, v{t2}", f"v_rsq_f32 v{t2}, v{t2}",
                   f"v_pk_mul_f32 {vr(vCg, 2)}, {vr(vCg, 2)}, {vr(t1, 2)} op_sel_hi:[1,0]"]]
    for n in range(16):
        if n and n & 3 == 0:
            A(f"s_waitcnt lgkmcnt({3 - (n >> 2)})")
        if n >= early_n:
            gsm(n)
        for c in chain.pop(0):
            A(c)
    assert not chain
    fs(7)
    A(f"v_pk_add_f32 {vr(DG, 2)}, {vr(DG, 2)}, {vr(DG + 6, 2)}")
    A(f"v_mul_f32 v{t3}, 0xbfb8aa3b, v{t2}")
    A(f"v_add_f32 v{DG}, v{DG}, v{DG + 1}")
    A(f"v_sub_f32 v{DG}, v{DG}, v{vCg}")
    A(f"v_mul_f32 v{t1}, v{DG}, v{t3}")
    A(f"v_exp_f32 v{t1}, v{t1}")
    A(f"v_pk_add_f32 {vr(DG + 8, 2)}, {vr(DG + 8, 2)}, {vr(DG + 14, 2)}")
    A(f"v_add_f32 v{t1}, 1.0, v{t1}")
    A(f"v_rcp_f32 v{t1}, v{t1}")
    A(f"v_add_f32 v{DG + 1}, v{DG + 8}, v{DG + 9}")
    A(f"v_sub_f32 v{DG + 1}, v{DG + 1}, v{vCu}")
    A(f"v_pk_mul_f32 {vr(DG, 2)}, {vr(DG, 2)}, {vr(t1, 2)} op_sel:[0,1] op_sel_hi:[1,1]")
    A(f"v_mul_f32 v{DG}, v{DG}, v{t1}")
    A(f"v_mul_f32 v{DG}, v{DG}, v{DG + 1}")
    A(f"v_cvt_pk_bf16_f32 v{DG}, v{DG}, v{DG}")
    A(f"ds_write_b16 v{vAw}, v{DG} offset:{AL}")
    A("s_waitcnt lgkmcnt(0)")
    A("s_barrier")
    fs(8)
    stub("g2", warm_t)
    A("s_barrier")
    fs(9)
    A.c("stage 4: out = h + sum of the down-projection contributions")
    column_sums([f"s{sTZ + i}" for i in range(4)], 10, 3)
    A(f"v_add_f32 v{PT}, v{PT}, v{vH}")
    A(f"v_cvt_pk_bf16_f32 v{PT}, v{PT}, v{PT}")
    A(f"buffer_store_short v{PT}, v{vOs}, {sr(S_OUT, 4)}, 0 offen")
    fs(11)
    if fine:
        A("s_waitcnt vmcnt(0)")
        fs(12)
        fine_out()
    A(f"s_or_b32 s{sA}, s{sT}, s{sU}")
    A("s_cbranch_scc1 L_fin")
    A.c("advance the epoch so that the next launch rejects this launch's hand-offs")
    A(f"s_add_u32 s{sA}, s{sTAG}, {TAGC:#x}")
    A(f"v_mov_b32 v{t1}, s{sA}")
    A(f"v_mov_b32 v{t2}, {EPOCH}")
    A("s_mov_b64 exec, 1")
    A(f"buffer_store_dword v{t1}, v{t2}, {sr(S_WST, 4)}, 0 offen")
    A("s_branch L_fin")
    stub("g3", warm_t)
    A("L_h_far:")
    A(f"buffer_store_dword v{t2}, v{vHs}, {sr(S_WST, 4)}, 0 offen sc1")
    A("s_branch L_h_sent")
    for l in cold:
        A(l)

    A("L_fin:")
    if amp:
        idx, role, wave = amp
        A("s_waitcnt vmcnt(0)")
        stamp(7)
        A(f"s_cmp_lg_u32 s{sW}, {wave}")
        A("s_cbranch_scc1 L_end")
        A(f"s_cmp_eq_u32 s{sXI}, {tailx}")
        A("s_cbranch_scc0 L_end" if role == "tail" else "s_cbranch_scc1 L_end")
        A("s_waitcnt lgkmcnt(0)")
        A(f"s_sub_u32 s{sA}, s{sST + 2 * idx}, s{sST}")
        if ampx is not None:
            A(f"s_getreg_b32 s{sA}, hwreg(HW_REG_XCC_ID, 0, 3)")
            A(f"s_add_u32 s{sA}, s{sA}, {ampx}")
            A(f"s_and_b32 s{sA}, s{sA}, 7")
            A(f"s_mul_i32 s{sA}, s{sA}, 125")
        A(f"s_min_u32 s{sA}, s{sA}, 20000")
        A(f"s_lshl_b32 s{sA}, s{sA}, 3")
        A(f"s_add_u32 s{sA}, s{sA}, 6000")
        A("L_amp:")
        A(f"s_memrealtime {sr(sC, 2)}")
        A("s_waitcnt lgkmcnt(0)")
        A(f"s_sub_u32 s{sB}, s{sC}, s{sST}")
        A(f"s_cmp_lt_u32 s{sB}, s{sA}")
        A("s_cbranch_scc1 L_amp")
    if stamps:
        A("s_waitcnt vmcnt(0)")
        stamp(7)
        A("s_waitcnt lgkmcnt(0)")
        for i in range(8):
            A(f"v_mov_b32 v{16 + i}, s{sST + 2 * i}")
        A(f"s_lshl_b32 s{sA}, s2, 3")
        A(f"s_add_u32 s{sA}, s{sA}, s{sW}")
        A(f"s_lshl_b32 s{sA}, s{sA}, 5")
        A(f"s_add_u32 s{sA}, s{sA}, {STAMPS}")
        A("v_mov_b32 v4, 0")
        A("s_mov_b64 exec, 1")
        A(f"buffer_store_dwordx4 v[16:19], v4, {sr(S_WS, 4)}, s{sA} offen")
        A(f"buffer_store_dwordx4 v[20:23], v4, {sr(S_WS, 4)}, s{sA} offen offset:16")
    A("L_end:")
    A("s_endpgm")
    A("L_code_end:")

    parts, cur = {}, None
    for l in A.lines:
        if l.startswith(".sec "):
            cur = parts.setdefault(l[5:], [])
        else:
            cur.append(l)
    page = [".p2align 12"]
    lines = (parts["entry"] + parts["ohead"] + parts["qhead"] + [f".org {NAME} + 0x440, 0" if not (stamps or amp) else ".p2align 6"]
             + parts["vinit"] + parts["k1"] + page + parts["qbody"] + parts["k2"] + parts["klate"] + page + parts["v"]
             + page + parts["ghead"] + page + parts["ofar"] + page + parts["gstages"])
    body, n = insert_waits(lines)
    out = HEADER
    out += "; @launch grid=(256,1,1) block=(512,1,1) lds=163840\n"
    out += '.amdgcn_target "amdgcn-amd-amdhsa--gfx950"\n.text\n'
    out += f".globl {NAME}\n.p2align 12\n.p2align 8\n.type {NAME},@function\n"
    out += "\n".join(("" if t.endswith(":") else "    ") + t for t in body) + "\n"
    out += f""".section .rodata,"a"
.p2align 6
.amdhsa_kernel {NAME}
  .amdhsa_next_free_vgpr 256
  .amdhsa_next_free_sgpr 102
  .amdhsa_accum_offset 256
  .amdhsa_group_segment_fixed_size 0
  .amdhsa_kernarg_size 96
  .amdhsa_user_sgpr_count 2
  .amdhsa_user_sgpr_kernarg_segment_ptr 1
  .amdhsa_system_sgpr_workgroup_id_x 1
  .amdhsa_float_denorm_mode_32 3
.end_amdhsa_kernel
"""
    return out


def layout(path):
    import subprocess, re
    subprocess.run(["clang", "-x", "assembler", "-target", "amdgcn-amd-amdhsa", "-mcpu=gfx950", "-c", path, "-o", "_l.o"], check=True)
    sym = subprocess.run(["llvm-objdump", "-t", "_l.o"], capture_output=True, text=True).stdout
    ad = {m.group(2): int(m.group(1), 16) for m in re.finditer(r"^([0-9a-f]{16}) .*\s(L_\S+)$", sym, re.M)}
    for chain in (["L_tail", "L_qside", "L_v_init", "L_warm_k2", "L_v6", "L_warm_q1", "L_warm_q2", "L_warm_k3", "L_warm_k4", "L_k_idle"],
                  ["L_vwave", "L_warm_v1", "L_warm_v2", "L_warm_v3", "L_gwave", "L_o_more", "L_warm_o0", "L_warm_o1", "L_o_far", "L_g_more", "L_g_stages"],
                  ["L_warm_g0", "L_warm_g1", "L_warm_g1b", "L_warm_g1c", "L_warm_g2", "L_warm_g3", "L_code_end"]):
        chain = [c for c in chain if c in ad]
        print(" ".join(f"{a}@{ad[a]:#x}(+{ad[b] - (ad[a] & ~63)})" for a, b in zip(chain, chain[1:]) if a in ad and b in ad))


if __name__ == "__main__":
    kw = {}
    for a in sys.argv[2:]:
        k, v = a.split("=")
        kw[k] = eval(v)
    open(sys.argv[1], "w").write(gen(**kw))
    layout(sys.argv[1])
```
